```python
import torch

def _softmax(x, axis=-1):
    return torch.softmax(x, dim=axis)
def _gelu(x):
    return torch.nn.functional.gelu(x, approximate="tanh")
def _silu(x):
    return torch.nn.functional.silu(x)
def _sigmoid(x):
    return torch.sigmoid(x)
def _layernorm(x, axis=-1, eps=1e-5):
    m = x.mean(dim=axis, keepdim=True)
    v = x.var(dim=axis, keepdim=True, unbiased=False)
    return (x - m) / torch.sqrt(v + eps)
def _scatter_add(tgt, idx, src, axis=0):
    return tgt.clone().index_add_(axis, idx, src)
def _segment_sum(src, seg, n):
    out = torch.zeros((n,) + src.shape[1:], dtype=src.dtype)
    return out.index_add_(0, seg, src)
def _pad(x, pw):
    flat = tuple(v for pair in reversed(pw) for v in pair)
    return torch.nn.functional.pad(x, flat)

kernel_name = 'parallel_sum__spectral_fnet__dense_activation_relu__prompt'

def setup_inputs():

    _w = (lambda a: (lambda t: t.to(torch.bfloat16) if t.is_floating_point() else t)(torch.as_tensor(a)))
    def _A_setup():
        B, S, D = 1, 2048, 448
        ns = torch.arange(S)[:, None] * torch.arange(S)[None, :]
        nd = torch.arange(D)[:, None] * torch.arange(D)[None, :]
        Ws_re = torch.cos(-2.0 * torch.pi * ns / S).to(float)
        Ws_im = torch.sin(-2.0 * torch.pi * ns / S).to(float)
        Wd_re = torch.cos(-2.0 * torch.pi * nd / D).to(float)
        Wd_im = torch.sin(-2.0 * torch.pi * nd / D).to(float)
        return {
            "x": _w((lambda *s: torch.randn(*s, dtype=torch.bfloat16) * 0.05)(B, S, D)),
            "dft_seq_re": _w(Ws_re),
            "dft_seq_im": _w(Ws_im),
            "dft_hid_re": _w(Wd_re),
            "dft_hid_im": _w(Wd_im),
        }
    _A_in = _A_setup()

    def _B_setup():
        B, S, D, Dff = 1, 2048, 448, 1792
        return {
            "x": _w((lambda *s: torch.randn(*s, dtype=torch.bfloat16) * 0.05)(B, S, D)),
            "w1": _w((lambda *s: torch.randn(*s, dtype=torch.bfloat16) * 0.4)(D, Dff)),
            "w2": _w((lambda *s: torch.randn(*s, dtype=torch.bfloat16) * 0.4)(Dff, D)),
        }
    _B_in = _B_setup()

    return {
        "A_x": _A_in["x"],
        "A_dft_seq_re": _A_in["dft_seq_re"],
        "A_dft_seq_im": _A_in["dft_seq_im"],
        "A_dft_hid_re": _A_in["dft_hid_re"],
        "A_dft_hid_im": _A_in["dft_hid_im"],
        "B_x": _B_in["x"],
        "B_w1": _B_in["w1"],
        "B_w2": _B_in["w2"],
    }

def reference(A_x, A_dft_seq_re, A_dft_seq_im, A_dft_hid_re, A_dft_hid_im, B_x, B_w1, B_w2):
    def _A_ref(x, dft_seq_re, dft_seq_im, dft_hid_re, dft_hid_im):
        a = torch.einsum("bsd,ed->bse", x, dft_hid_re)
        b = torch.einsum("bsd,ed->bse", x, dft_hid_im)
        y = torch.einsum("ts,bse->bte", dft_seq_re, a) - torch.einsum("ts,bse->bte", dft_seq_im, b)
        return y

    def _B_ref(x, w1, w2):
        h = torch.einsum("bsd,df->bsf", x, w1)
        zero = torch.zeros_like(h)
        h = torch.maximum(h, zero)
        return torch.einsum("bsf,fd->bsd", h, w2)

    x = A_x
    xn = _layernorm(x, axis=-1)
    return x + _A_ref(xn, A_dft_seq_re, A_dft_seq_im, A_dft_hid_re, A_dft_hid_im) + _B_ref(xn, B_w1, B_w2)
```

```python
class Asm:
    def __init__(self):
        self.lines = []
        self.nlabel = 0
    def __call__(self, s):
        for l in s.split("\n"):
            l = l.strip()
            if l:
                if l.endswith(":"):
                    self.lines.append(l)
                else:
                    self.lines.append("    " + l)
    def c(self, s):
        self.lines.append("    ; " + s)
    def label(self, base="L"):
        self.nlabel += 1
        return f"{base}_{self.nlabel}"
    def text(self):
        return "\n".join(self.lines) + "\n"

def v(i, n=1):
    return f"v{i}" if n == 1 else f"v[{i}:{i+n-1}]"
def a(i, n=1):
    return f"a{i}" if n == 1 else f"a[{i}:{i+n-1}]"
def s(i, n=1):
    return f"s{i}" if n == 1 else f"s[{i}:{i+n-1}]"

def kernel_header(name):
    return f""".text
.globl {name}
.p2align 8
.type {name},@function
{name}:
"""
def kernel_desc(name, vgpr, accum, sgpr=102, extra=""):
    return f""".section .rodata,"a"
.p2align 6
.amdhsa_kernel {name}
  .amdhsa_next_free_vgpr {vgpr}
  .amdhsa_next_free_sgpr {sgpr}
  .amdhsa_accum_offset {accum}
  .amdhsa_group_segment_fixed_size 0
  .amdhsa_kernarg_size 88
  .amdhsa_user_sgpr_count 2
  .amdhsa_user_sgpr_kernarg_segment_ptr 1
  .amdhsa_system_sgpr_workgroup_id_x 1
{extra}.end_amdhsa_kernel
"""
```

```python
import sys
from asmlib import *

NAME = "parallel_sum__spectral_fnet__dense_activation_relu__prompt_kernel"

HV_STRIDE = 72 * 1024
WS_XF = 0x900000
WS_X512 = 0xA00000
WS_RSTD = 0xA01000
WS_FLAG = 0xA04000
WS_STAMP = 0xA10000
WS_SIZE = 0xA10000
OOB = 0x7FFFFF00

sX, sW1, sW2, sWS, sWD, sOUT, sDBG, sC = 28, 32, 36, 40, 44, 48, 52, 56
S_W, S_XCD, S_J = 60, 61, 62


class K(Asm):
    def __init__(self, stamps):
        super().__init__()
        self.stamps = stamps
        self.vm = []
        self.lg = []
        self.vm_done = 0
        self.lg_done = 0

    def vmem(self, txt, tag=None):
        self(txt)
        self.vm.append(tag)

    def lds(self, txt, tag=None):
        self(txt)
        self.lg.append(tag)

    def _n(self, lst, tags):
        last = -1
        for i, t in enumerate(lst):
            if t in tags:
                last = i
        assert last >= 0, tags
        return len(lst) - 1 - last

    def wait(self, vm=None, lg=None):
        parts = []
        if vm is not None:
            n = 0 if vm == 0 else self._n(self.vm, vm if isinstance(vm, list) else [vm])
            n = min(n, 63)
            if vm == 0 or len(self.vm) - n > self.vm_done:
                parts.append(f"vmcnt({n})")
                self.vm_done = len(self.vm) - n
        if lg is not None:
            n = 0 if lg == 0 else self._n(self.lg, lg if isinstance(lg, list) else [lg])
            n = min(n, 15)
            if lg == 0 or len(self.lg) - n > self.lg_done:
                parts.append(f"lgkmcnt({n})")
                self.lg_done = len(self.lg) - n
        if parts:
            self("s_waitcnt " + " ".join(parts))

    def reset(self):
        self.vm = []
        self.lg = []
        self.vm_done = 0
        self.lg_done = 0

    def stamp(self, i):
        if self.stamps:
            self(f"s_memtime s[{64+2*i}:{65+2*i}]")

    def dump_stamps(self, n):
        if not self.stamps:
            return
        L = self.label("L_st")
        self("s_waitcnt lgkmcnt(0)")
        self("s_mov_b64 exec, 1")
        self(f"s_lshl_b32 s26, s2, 3\ns_add_u32 s26, s26, s{S_W}\ns_lshl_b32 s26, s26, 7\ns_add_u32 s26, s26, {WS_STAMP}")
        self("v_mov_b32 v2, s26")
        for i in range(0, n, 2):
            self(f"v_mov_b32 v4, s{64+2*i}\nv_mov_b32 v5, s{65+2*i}\nv_mov_b32 v6, s{66+2*i}\nv_mov_b32 v7, s{67+2*i}")
            self(f"buffer_store_dwordx4 v[4:7], v2, s[{sWS}:{sWS+3}], 0 offen offset:{8*i}")
            self("s_nop 2")
        self("s_waitcnt vmcnt(0)")

    def srd(self, d, lo, size):
        self(f"s_mov_b32 s{d}, s{lo}\ns_and_b32 s{d+1}, s{lo+1}, 0xffff\ns_mov_b32 s{d+2}, {size}\ns_mov_b32 s{d+3}, 0x20000")

    def fix2048(self, t, tmp):
        self(f"v_lshrrev_b32 v{tmp}, 11, v{t}\nv_lshlrev_b32 v{tmp}, 10, v{tmp}\nv_sub_u32 v{t}, v{t}, v{tmp}")

    def mfma(self, d, a_, b_, c=None):
        cs = v(d, 4) if c is None else c
        self(f"v_mfma_f32_16x16x32_bf16 {v(d,4)}, {v(a_,4)}, {v(b_,4)}, {cs}")

    def dma(self, voff, srd, soff, m0expr, tag, imm=0, flags=""):
        self(m0expr)
        self("s_nop 0")
        o = f" offset:{imm}" if imm else ""
        self.vmem(f"buffer_load_dwordx4 v{voff}, s[{srd}:{srd+3}], {soff} offen{o} lds {flags}".rstrip(), tag)

    def poll(self, voff, srd, soff, cmp, nlanes, stag=None):
        L, Ld = self.label("L_poll"), self.label("L_polld")
        self(f"s_mov_b64 exec, {hex((1 << nlanes) - 1)}")
        self("s_mov_b32 s27, 0x40000")
        self(f"{L}:")
        self(f"buffer_load_dword v3, v{voff}, s[{srd}:{srd+3}], {soff} offen sc1")
        self("s_waitcnt vmcnt(0)")
        if cmp == "ne0":
            self("v_cmp_ne_u32 vcc, 0, v3")
        else:
            self(f"v_cmp_eq_u32 vcc, s{stag}, v3")
        self("s_nop 1")
        self("s_cmp_eq_u64 vcc, exec")
        self(f"s_cbranch_scc1 {Ld}")
        self("s_sleep 1")
        self("s_sub_u32 s27, s27, 1")
        self(f"s_cbranch_scc0 {L}")
        self(f"{Ld}:")
        self("s_mov_b64 exec, -1")


REG = [2, 3, 4, 1, 0]


def ring_addr(r):
    return REG[r >> 1] * 32768 + (r & 1) * 4096


def gen(stamps=False, opt=None):
    opt = opt or {}
    HST = opt.get("hst", "sc1")
    HLD = opt.get("hld", "sc1")
    TOUCH_AT = opt.get("touch_at", 3)
    A = K(stamps)
    A.stamp(0)
    A("""
    s_load_dwordx16 s[4:19], s[0:1], 0
    s_load_dwordx4 s[20:23], s[0:1], 64
    s_load_dwordx2 s[24:25], s[0:1], 80
    s_cmp_ge_u32 s2, 256
    s_cbranch_scc1 L_end
    v_lshrrev_b32 v2, 6, v0
    v_and_b32 v1, 63, v0
    """)
    A(f"s_and_b32 s{S_XCD}, s2, 7\ns_lshr_b32 s{S_J}, s2, 3")
    A(f"v_readfirstlane_b32 s{S_W}, v2")
    A("s_waitcnt lgkmcnt(0)")
    A.srd(sX, 4, 2048 * 896)
    A.srd(sWS, 24, WS_SIZE + (0x40000 if stamps else 0))
    A(f"s_cmp_ge_u32 s{S_J}, 28\ns_cbranch_scc1 L_dft")

    S_RB, S_FT, S_KX, S_KW, S_MX, S_MW, S_T, S_CT = 63, 96, 97, 98, 99, 100, 101, 26
    A(f"""
    s_cmp_ge_u32 s{S_J}, 14
    s_cselect_b32 s27, 1, 0
    s_cselect_b32 s3, 14, 0
    s_sub_u32 s{S_FT}, s{S_J}, s3
    s_lshl_b32 s{S_RB}, s{S_XCD}, 1
    s_add_u32 s{S_RB}, s{S_RB}, s27
    """)
    A.srd(sW2, 18, 1792 * 896)
    A(f"s_cmp_eq_u32 s{S_W}, 4\ns_cbranch_scc1 L_ffn_helper")
    A.srd(sW1, 16, 448 * 3584)
    A(f"""
    s_mul_i32 s27, s27, 3
    s_add_u32 s27, s27, s{S_FT}
    s_cmp_ge_u32 s27, 14
    s_cselect_b32 s3, 14, 0
    s_sub_u32 s27, s27, s3
    s_cmp_ge_u32 s27, 7
    s_cselect_b32 s3, 7, 0
    s_sub_u32 s27, s27, s3
    s_lshl_b32 s{S_KX}, s27, 7
    s_mul_i32 s{S_KW}, s27, {64*3584}
    """)
    VX, VW1, XA, WA, ONES = 2, 248, 8, 12, 16
    VW2 = 7
    FX = [24, 56]; FW = [40, 72]
    ACC, RS, CS = 88, 152, 160
    A(f"""
    s_lshl_b32 s3, s{S_RB}, 6
    s_lshr_b32 s27, s{S_W}, 1
    s_add_u32 s3, s3, s27
    v_lshrrev_b32 v20, 3, v1
    v_lshlrev_b32 v20, 1, v20
    v_add_u32 v20, s3, v20
    s_and_b32 s27, s{S_W}, 1
    s_cmp_eq_u32 s27, 1
    s_cselect_b32 s3, -1, 1
    s_cselect_b32 s{S_MX}, 2048, 0
    v_lshrrev_b32 v21, 4, v1
    v_and_b32 v22, 7, v1
    s_movk_i32 s{S_MW}, 896
    """)
    for u in range(4):
        A(f"v_add_u32 v23, {16*u}, v20\nv_mul_i32_i24 v23, s3, v23\nv_add_u32 v23, s{S_MX}, v23")
        if u == 0:
            A.fix2048(23, 6)
        A(f"v_mul_lo_u32 v23, v23, s{S_MW}")
        A(f"v_xor_b32 v6, v22, v21" if u % 2 == 0 else "v_xor_b32 v6, 4, v6")
        A(f"v_lshl_add_u32 v{VX+u}, v6, 4, v23")
    A(f"""
    s_lshl_b32 s3, s27, 1
    s_lshr_b32 s{S_MW}, s{S_W}, 1
    s_add_u32 s3, s3, s{S_MW}
    s_lshl_b32 s{S_MW}, s3, 10
    s_add_u32 s{S_MW}, s{S_MW}, 16384
    s_lshl_b32 s{S_MX}, s{S_W}, 12
    s_lshl_b32 s3, s3, 2
    v_add_u32 v20, s3, v21
    v_mul_u32_u24 v20, 3584, v20
    s_lshl_b32 s3, s{S_FT}, 8
    v_add_u32 v20, s3, v20
    s_lshl_b32 s3, s27, 2
    v_or_b32 v23, s3, v21
    v_lshlrev_b32 v23, 1, v23
    v_and_b32 v22, 15, v1
    v_xor_b32 v23, v23, v22
    v_lshl_add_u32 v{VW1}, v23, 4, v20
    v_add_u32 v{VW1+1}, {16*3584}, v{VW1}
    v_add_u32 v{VW1+2}, {32*3584}, v{VW1}
    v_add_u32 v{VW1+3}, {48*3584}, v{VW1}
    """)

    def p1_issue(st):
        slot = st % 5
        for u in range(4):
            A.dma(VX + u, sX, f"s{S_KX}", f"s_add_u32 m0, s{S_MX}, {slot*32768 + u*1024}", ("p1", st))
            A.dma(VW1 + u, sW1, f"s{S_KW}", f"s_add_u32 m0, s{S_MW}, {slot*32768 + u*4096}", ("p1", st))
        if st < 6:
            A(f"""
            s_add_u32 s{S_KX}, s{S_KX}, 128
            s_add_u32 s{S_KW}, s{S_KW}, {64*3584}
            s_cmp_eq_u32 s{S_KX}, 896
            s_cselect_b32 s{S_KX}, 0, s{S_KX}
            s_cselect_b32 s{S_KW}, 0, s{S_KW}
            """)
    for st in range(5):
        p1_issue(st)
    A.stamp(1)
    A(f"""
    v_and_b32 v22, 15, v1
    v_lshrrev_b32 v23, 1, v22
    v_xor_b32 v23, v23, v21
    v_lshlrev_b32 v23, 4, v23
    v_lshl_add_u32 v23, v22, 7, v23
    s_lshr_b32 s3, s{S_W}, 1
    s_lshl_b32 s3, s3, 13
    v_add_u32 v23, s3, v23
    s_lshl_b32 s3, s27, 12
    v_add_u32 v{XA}, s3, v23
    s_xor_b32 s3, s3, 4096
    v_add_u32 v{XA+1}, s3, v23
    v_xor_b32 v{XA+2}, 64, v{XA}
    v_xor_b32 v{XA+3}, 64, v{XA+1}
    """)
    A(f"""
    v_bfe_u32 v20, v1, 2, 2
    v_lshl_add_u32 v22, v21, 3, v20
    v_lshlrev_b32 v22, 8, v22
    v_and_b32 v23, 3, v1
    v_lshl_add_u32 v22, v23, 3, v22
    v_add_u32 v22, 16384, v22
    v_and_b32 v23, 1, v21
    v_lshl_or_b32 v23, v23, 2, v20
    s_lshl_b32 s3, s27, 2
    s_and_b32 s{S_T}, s{S_W}, 2
    s_or_b32 s3, s3, s{S_T}
    v_xor_b32 v23, s3, v23
    """)
    for cb in range(4):
        A(f"v_xor_b32 v20, {cb}, v23\nv_lshl_add_u32 v{WA+cb}, v20, 5, v22")
    for i in range(4):
        A(f"v_mov_b32 v{ONES+i}, 0x3f803f80")
    A(f"""
    s_cmp_ge_u32 s{S_FT}, 7
    s_cselect_b32 s3, 1, 0
    s_cselect_b32 s{S_CT}, 7, 0
    s_sub_u32 s{S_CT}, s{S_FT}, s{S_CT}
    s_lshl_b32 s{S_T}, s{S_RB}, 1
    s_add_u32 s{S_T}, s{S_T}, s3
    v_lshrrev_b32 v20, 3, v1
    v_mul_u32_u24 v22, 896, v20
    v_and_b32 v20, 6, v20
    v_and_b32 v23, 7, v1
    v_xor_b32 v20, v20, v23
    v_lshl_add_u32 v22, v20, 4, v22
    s_lshl_b32 s3, s{S_CT}, 7
    v_add_u32 v{VW2}, s3, v22
    """)
    S_M2, S_K2 = 14, 15
    A(f"s_lshl_b32 s{S_M2}, s{S_W}, 13\ns_mul_i32 s{S_K2}, s{S_W}, {14*32*896}")

    def w_issue(step):
        srd = sW2 if step < 14 else sWD
        if step == 14:
            A(f"s_and_b32 s{S_K2}, s{S_W}, 1\ns_mul_i32 s{S_K2}, s{S_K2}, {128*896}")
        for u in range(4):
            A.dma(VW2, srd, f"s{S_K2}", f"s_add_u32 m0, s{S_M2}, {ring_addr(step % 10) + u*1024}", ("w", step))
            A(f"s_add_u32 s{S_K2}, s{S_K2}, {8*896}")

    def p1_reads(st, q, buf):
        slot = st % 5
        so = (slot & 1) * 32768
        for rb in range(4):
            A.lds(f"ds_read_b128 {v(FX[buf]+4*rb,4)}, v{XA + 2*q + (rb>>1)} offset:{so + (rb&1)*2048}", ("f", st, q))
        for cb in range(4):
            for h in range(2):
                A.lds(f"ds_read_b64_tr_b16 {v(FW[buf]+4*cb+2*h,2)}, v{WA+cb} offset:{so + q*8192 + h*1024}", ("f", st, q))

    def p1_mfma(buf, first):
        z = "0" if first else None
        for cb in range(4):
            for rb in range(4):
                A.mfma(ACC + (cb * 4 + rb) * 4, FW[buf] + 4 * cb, FX[buf] + 4 * rb, z)
            if cb < 2:
                A.mfma(RS + 4 * cb, ONES, FX[buf] + 4 * cb, z)
                A.mfma(CS + 4 * cb, FW[buf] + 4 * cb, ONES, z)

    def p1_addr_step(st):
        d = {2: 65536, 4: 65536, 5: -131072}.get(st)
        if d:
            for r in list(range(XA, XA + 4)) + list(range(WA, WA + 4)):
                A(f"v_add_u32 v{r}, {d & 0xffffffff}, v{r}")

    A.wait(vm=("p1", 0))
    A("s_barrier")
    A.stamp(2)
    p1_reads(0, 0, 0)
    for st in range(7):
        p1_reads(st, 1, 1)
        A.wait(lg=("f", st, 0))
        p1_mfma(0, st == 0)
        if st < 6:
            A.wait(vm=("p1", st + 1), lg=0)
            A("s_barrier")
            if st + 5 < 7:
                p1_issue(st + 5)
            elif st < 5:
                w_issue(2 * (st - 2)); w_issue(2 * (st - 2) + 1)
            p1_addr_step(st + 1)
            p1_reads(st + 1, 0, 0)
        else:
            A.wait(lg=0)
        p1_mfma(1, False)
    A.stamp(3)
    A(f"""
    s_and_b32 s27, s{S_W}, 1
    s_lshr_b32 s3, s{S_W}, 1
    v_and_b32 v20, 15, v1
    v_lshlrev_b32 v20, 2, v20
    v_lshrrev_b32 v21, 4, v1
    v_lshlrev_b32 v21, 4, v21
    s_lshl_b32 s{S_KX}, s3, 8
    v_add_u32 v20, s{S_KX}, v20
    s_lshl_b32 s{S_KW}, s27, 8
    v_add_u32 v21, s{S_KW}, v21
    s_lshl_b32 s{S_KX}, s27, 7
    s_lshl_b32 s{S_KW}, s3, 7
    v_add_u32 v22, s{S_KX}, v20
    v_add_u32 v23, s{S_KW}, v21
    v_xor_b32 v8, 128, v22
    v_xor_b32 v9, 128, v23
    s_nop 2
    """)
    A.lds(f"ds_write_b32 v22, v{RS}")
    A.lds(f"ds_write_b32 v22, v{RS+4} offset:64")
    A.lds(f"ds_write_b128 v23, {v(CS,4)} offset:512")
    A.lds(f"ds_write_b128 v23, {v(CS+4,4)} offset:576")
    A.wait(lg=0)
    A("s_barrier")
    MB = 24; CSR = 28
    A.lds(f"ds_read_b32 v{MB+2}, v8")
    A.lds(f"ds_read_b32 v{MB+3}, v8 offset:64")
    A.lds(f"ds_read_b128 {v(CSR+8,4)}, v9 offset:512")
    A.lds(f"ds_read_b128 {v(CSR+12,4)}, v9 offset:576")
    A(f"v_mov_b32 v{MB}, v{RS}\nv_mov_b32 v{MB+1}, v{RS+4}")
    for i in range(8):
        A(f"v_mov_b32 v{CSR+i}, v{CS+i}")
    A(f"""
    s_lshl_b32 s{S_KX}, s{S_RB}, 3
    s_lshl_b32 s{S_KW}, s3, 2
    s_add_u32 s{S_KX}, s{S_KX}, s{S_KW}
    s_mul_i32 s{S_KX}, s{S_KX}, 72
    s_lshl_b32 s{S_KW}, s{S_FT}, 2
    s_add_u32 s{S_KX}, s{S_KX}, s{S_KW}
    s_lshl_b32 s{S_KW}, s27, 1
    s_add_u32 s{S_KX}, s{S_KX}, s{S_KW}
    s_lshl_b32 s{S_KX}, s{S_KX}, 10
    s_mul_i32 s{S_KW}, s27, {2*HV_STRIDE}
    s_lshl_b32 s{S_MX}, s3, 10
    v_lshlrev_b32 v20, 4, v1
    v_add_u32 v21, s{S_MX}, v20
    s_xor_b32 s{S_MX}, s{S_MX}, 1024
    v_add_u32 v20, s{S_MX}, v20
    s_add_u32 s{S_MX}, s{S_KX}, s{S_KW}
    s_xor_b32 s27, s27, 1
    s_mul_i32 s{S_KW}, s27, {2*HV_STRIDE}
    s_add_u32 s{S_MW}, s{S_KX}, s{S_KW}
    s_mov_b32 s3, {0x3b124925}
    """)
    A.wait(lg=0)
    for i in range(4):
        A(f"v_mul_f32 v{MB+i}, s3, v{MB+i}")
    A(f"v_cvt_pk_bf16_f32 v44, v{MB}, v{MB+1}\nv_cvt_pk_bf16_f32 v45, v{MB+2}, v{MB+3}")
    A(f"v_lshlrev_b32 v{MB}, 16, v44\nv_and_b32 v{MB+1}, 0xffff0000, v44\nv_lshlrev_b32 v{MB+2}, 16, v45\nv_and_b32 v{MB+3}, 0xffff0000, v45")
    PK = 48
    n = 0
    for rb in range(4):
        sel = "op_sel:[0,1,0] op_sel_hi:[1,1,1]" if rb & 1 else "op_sel_hi:[1,0,1]"
        for pp in range(2):
            d = PK + 4 * n
            for i in range(2):
                cb = 2 * pp + i
                a0 = ACC + (cb * 4 + rb) * 4
                for hh in range(2):
                    A(f"v_pk_fma_f32 {v(a0+2*hh,2)}, {v(CSR+4*cb+2*hh,2)}, {v(MB+(rb&2),2)}, {v(a0+2*hh,2)} {sel} neg_lo:[1,0,0] neg_hi:[1,0,0]")
            for i in range(2):
                cb = 2 * pp + i
                a0 = ACC + (cb * 4 + rb) * 4
                for hh in range(2):
                    A(f"v_cvt_pk_bf16_f32 v{d+2*i+hh}, v{a0+2*hh}, v{a0+2*hh+1}")
            for i in range(4):
                A(f"v_pk_max_i16 v{d+i}, v{d+i}, 0")
            sb = S_MX if rb < 2 else S_MW
            if rb & 1 and pp == 0:
                A(f"s_add_u32 s{sb}, s{sb}, {HV_STRIDE}")
            A.vmem(f"buffer_store_dwordx4 {v(d,4)}, v{21 if pp == 0 else 20}, s[{sWS}:{sWS+3}], s{sb} offen {HST}", "hst")
            n += 1
    w_issue(6); w_issue(7)
    WA2 = 8
    VH = 2
    FW2 = [24, 40]
    HF = 152
    XR = 56
    RSD, VO = 64, 68
    A(f"""
    v_lshrrev_b32 v20, 4, v1
    v_bfe_u32 v21, v1, 2, 2
    v_lshl_add_u32 v22, v20, 2, v21
    v_lshrrev_b32 v23, 1, v22
    v_and_b32 v23, 3, v23
    v_lshlrev_b32 v22, 7, v22
    v_and_b32 v21, 3, v1
    v_lshl_add_u32 v22, v21, 3, v22
    v_add_u32 v22, s{S_M2}, v22
    """)
    for eb in range(4):
        A(f"v_xor_b32 v21, {eb}, v23\nv_lshl_add_u32 v{WA2+eb}, v21, 5, v22")
        A(f"v_add_u32 v{WA2+4+eb}, 0x10000, v{WA2+eb}\nv_add_u32 v{WA2+8+eb}, 0x20000, v{WA2+eb}")
    A(f"v_lshlrev_b32 v{VH}, 4, v1")
    for rb in range(1, 4):
        A(f"v_add_u32 v{VH+rb}, {rb*HV_STRIDE}, v{VH}")
    S_H = S_KX
    A(f"""
    s_mul_i32 s{S_H}, s{S_T}, {4*HV_STRIDE}
    s_mul_i32 s3, s{S_W}, {14*1024}
    s_add_u32 s{S_KW}, s{S_H}, s3
    s_cmp_ge_u32 s{S_W}, 2
    s_cselect_b32 s{sWD}, s12, s10
    s_cselect_b32 s{sWD+1}, s13, s11
    s_and_b32 s{sWD+1}, s{sWD+1}, 0xffff
    s_mov_b32 s{sWD+2}, {448*896}
    s_mov_b32 s{sWD+3}, 0x20000
    """)
    A.srd(sOUT, 20, 2048 * 896)
    A(f"""
    s_lshr_b32 s3, s{S_T}, 1
    s_lshl_b32 s3, s3, 6
    s_and_b32 s27, s{S_T}, 1
    s_add_u32 s{S_MX}, s3, s27
    s_and_b32 s27, s{S_W}, 1
    s_lshl_b32 s27, s27, 5
    s_add_u32 s27, s27, s{S_MX}
    v_lshl_add_u32 v20, v20, 1, s27
    s_cmp_ge_u32 s{S_W}, 2
    s_cselect_b32 s3, -1, 1
    s_cselect_b32 s27, 2048, 0
    v_and_b32 v21, 15, v1
    v_lshlrev_b32 v22, 3, v21
    s_lshl_b32 s{S_MW}, s{S_CT}, 7
    v_add_u32 v22, s{S_MW}, v22
    """)
    for ps in range(4):
        A(f"v_add_u32 v23, {8*ps}, v20\nv_mul_i32_i24 v23, s3, v23\nv_add_u32 v23, s27, v23")
        if ps == 0:
            A.fix2048(23, 72)
        A(f"v_mul_u32_u24 v23, 896, v23\nv_add_u32 v{VO+ps}, v23, v22")
    A(f"v_lshl_add_u32 v21, v21, 1, s{S_MX}")
    A(f"v_lshlrev_b32 v73, 2, v21\nv_add_u32 v74, 128, v73")
    A(f"v_sub_u32 v75, 2048, v21")
    A.fix2048(75, 72)
    A(f"v_lshlrev_b32 v75, 2, v75\nv_sub_u32 v76, {(2048-32)*4}, v73")
    A.wait(vm="hst")
    A("s_barrier")
    A.stamp(4)
    w_issue(8); w_issue(9)
    for ps in range(4):
        A.vmem(f"buffer_load_dwordx2 {v(XR+2*ps,2)}, v{VO+ps}, s[{sX}:{sX+3}], 0 offen", "xr")
    A("s_barrier")
    A.stamp(5)

    def h_issue(step):
        if step == 14:
            A(f"s_lshl_b32 s{S_KW}, s{S_W}, 12\ns_add_u32 s{S_KW}, s{S_KW}, s{S_H}\ns_add_u32 s{S_KW}, s{S_KW}, {56*1024}")
        loc = step if step < 14 else step - 14
        if loc and loc % 4 == 0:
            A(f"s_add_u32 s{S_KW}, s{S_KW}, 4096")
        for rb in range(4):
            A.vmem(f"buffer_load_dwordx4 {v(HF + (step % 6)*16 + 4*rb, 4)}, v{VH+rb}, s[{sWS}:{sWS+3}], s{S_KW} offen offset:{(loc%4)*1024} {HLD}", ("h", step))

    def w_reads(step):
        a = ring_addr(step % 10)
        bank, off = a >> 16, a & 0xffff
        for eb in range(4):
            for h in range(2):
                A.lds(f"ds_read_b64_tr_b16 {v(FW2[step&1]+4*eb+2*h,2)}, v{WA2+4*bank+eb} offset:{off + h*2048}", ("wf", step))

    NST = 18
    for stp in range(6):
        h_issue(stp)
    A.wait(vm=("w", 0))
    w_reads(0)
    for stp in range(NST):
        if stp + 1 < NST:
            A.wait(vm=("w", stp + 1))
            w_reads(stp + 1)
        if stp == 14:
            A.wait(vm="rstd")
            A("s_nop 7")
            for eb in range(4):
                for rb in range(4):
                    a0 = ACC + (eb * 4 + rb) * 4
                    sel = "op_sel:[0,1] op_sel_hi:[1,1]" if rb & 1 else "op_sel_hi:[1,0]"
                    for hh in range(2):
                        A(f"v_pk_mul_f32 {v(a0+2*hh,2)}, {v(a0+2*hh,2)}, {v(RSD+(rb&2),2)} {sel}")
        A.wait(vm=("h", stp), lg=("wf", stp))
        if stp + 10 < NST:
            w_issue(stp + 10)
        for eb in range(4):
            for rb in range(4):
                A.mfma(ACC + (eb * 4 + rb) * 4, FW2[stp & 1] + 4 * eb, HF + (stp % 6) * 16 + 4 * rb, "0" if stp == 0 else None)
        if stp + 6 < 14:
            h_issue(stp + 6)
        if stp == 11:
            A.stamp(6)
            A("s_barrier")
            A.stamp(7)
            A(f"s_mov_b32 s{S_MW}, {WS_RSTD}")
            for i in range(4):
                A.vmem(f"buffer_load_dword v{RSD+i}, v{73+i}, s[{sWS}:{sWS+3}], s{S_MW} offen {HLD}", "rstd")
            for s2 in range(14, 18):
                h_issue(s2)
    A.stamp(8)
    A(f"""
    v_and_b32 v20, 15, v1
    v_lshrrev_b32 v21, 4, v1
    v_mul_u32_u24 v22, 272, v20
    v_lshl_add_u32 v22, v21, 4, v22
    v_add_u32 v22, s{S_M2}, v22
    v_add_u32 v23, 0x10000, v22
    v_mul_u32_u24 v21, 272, v21
    v_lshl_add_u32 v21, v20, 4, v21
    s_lshl_b32 s3, s{S_W}, 15
    v_add_u32 v21, s3, v21
    """)
    for rb in range(4):
        for eb in range(4):
            A.lds(f"ds_write_b128 v{22 + (rb>>1)}, {v(ACC+(eb*4+rb)*4,4)} offset:{(rb&1)*32768 + eb*64}")
    A.wait(lg=0)
    A("s_barrier")
    for ps in range(4):
        for w2 in range(4):
            A.lds(f"ds_read_b128 {v(ACC+(ps*4+w2)*4,4)}, v21 offset:{w2*8192 + ps*1088}", ("r", ps))
    A.wait(vm="xr")
    for ps in range(4):
        x0 = XR + 2 * ps
        A(f"v_lshlrev_b32 v24, 16, v{x0}\nv_and_b32 v25, 0xffff0000, v{x0}\nv_lshlrev_b32 v26, 16, v{x0+1}\nv_and_b32 v27, 0xffff0000, v{x0+1}")
        A.wait(lg=("r", ps))
        b = ACC + ps * 16
        for hh in range(2):
            A(f"v_pk_add_f32 {v(b+2*hh,2)}, {v(b+2*hh,2)}, {v(b+4+2*hh,2)}")
            A(f"v_pk_add_f32 {v(b+8+2*hh,2)}, {v(b+8+2*hh,2)}, {v(b+12+2*hh,2)}")
        for hh in range(2):
            A(f"v_pk_add_f32 {v(b+2*hh,2)}, {v(b+2*hh,2)}, {v(24+2*hh,2)}")
        for hh in range(2):
            A(f"v_pk_add_f32 {v(b+2*hh,2)}, {v(b+2*hh,2)}, {v(b+8+2*hh,2)}")
        A(f"v_cvt_pk_bf16_f32 v{b+4}, v{b}, v{b+1}\nv_cvt_pk_bf16_f32 v{b+5}, v{b+2}, v{b+3}")
        A.vmem(f"buffer_store_dwordx2 {v(b+4,2)}, v{VO+ps}, s[{sOUT}:{sOUT+3}], 0 offen")
    A.stamp(9)
    A.dump_stamps(10)
    A("s_endpgm")

    A.reset()
    A("L_ffn_helper:")
    S_TAG = 96
    A.srd(sDBG, 22, 256)
    A(f"""
    s_lshl_b32 s{S_KX}, s{S_RB}, 8
    s_add_u32 s{S_KX}, s{S_KX}, {WS_FLAG}
    v_mov_b32 v4, 0
    buffer_load_dword v5, v4, s[{sWS}:{sWS+3}], s{S_KX} offen sc1
    """)
    code_touch(A)
    A(f"""
    v_lshlrev_b32 v6, 2, v1
    v_lshlrev_b32 v7, 7, v1
    s_mul_i32 s3, s{S_J}, {448*128}
    v_add_u32 v7, s3, v7
    s_lshl_b32 s{S_KW}, s{S_FT}, 2
    s_add_u32 s{S_KW}, s{S_KW}, s{S_KX}
    s_waitcnt vmcnt(0)
    v_readfirstlane_b32 s27, v5
    s_nop 3
    s_mul_i32 s27, s27, 0x9E3779B1
    s_add_u32 s101, s27, 0x7F4A7C15
    v_mov_b32 v5, s101
    """)
    for b in range(9):
        A("s_barrier")
        if b == TOUCH_AT:
            for i in range(7):
                A(f"buffer_load_dword v{8+i}, v7, s[{sW2}:{sW2+3}], 0 offen")
                A(f"v_add_u32 v7, 8192, v7")
    A("s_mov_b64 exec, 1")
    A(f"buffer_store_dword v5, v4, s[{sWS}:{sWS+3}], s{S_KW} offen offset:64 sc1")
    A.stamp(1)
    A(f"s_add_u32 s{S_KW}, s{S_KX}, 64")
    A.poll(6, sWS, f"s{S_KW}", "eq", 14, 101)
    A.stamp(2)
    A("s_barrier")
    A(f"s_cmp_lg_u32 s{S_FT}, 0\ns_cbranch_scc1 L_noepoch")
    A("s_mov_b64 exec, 1")
    A(f"buffer_store_dword v5, v4, s[{sWS}:{sWS+3}], s{S_KX} offen sc1")
    A("s_mov_b64 exec, -1")
    A("L_noepoch:")
    A(f"s_movk_i32 s{S_KW}, 128")
    A.poll(6, sDBG, f"s{S_KW}", "ne0", 32)
    A.stamp(3)
    A("s_barrier")
    A.dump_stamps(4)
    A("s_endpgm")

    A.reset()
    A("L_dft:")
    S_Q, S_VAR, S_M, S_N, S_P = 63, 96, 97, 98, 99
    A(f"""
    s_sub_u32 s3, s{S_J}, 28
    s_lshl_b32 s{S_Q}, s{S_XCD}, 2
    s_add_u32 s{S_Q}, s{S_Q}, s3
    s_lshr_b32 s{S_VAR}, s{S_XCD}, 1
    s_and_b32 s{S_M}, s{S_XCD}, 1
    s_lshl_b32 s{S_M}, s{S_M}, 1
    s_lshr_b32 s27, s3, 1
    s_add_u32 s{S_M}, s{S_M}, s27
    s_and_b32 s{S_N}, s3, 1
    s_and_b32 s{S_P}, s{S_VAR}, 1
    s_cmp_eq_u32 s{S_W}, 4
    s_cbranch_scc1 L_dft_helper
    """)
    RAW, EO, TF, TM, ST = 32, 96, 224, 232, 240
    A(f"""
    s_lshl_b32 s3, s{S_Q}, 4
    s_lshl_b32 s27, s{S_W}, 2
    s_add_u32 s3, s3, s27
    v_lshrrev_b32 v2, 4, v1
    v_add_u32 v2, s3, v2
    v_and_b32 v3, 15, v1
    v_sub_u32 v5, 2048, v2
    v_sub_u32 v6, 1024, v2
    v_add_u32 v7, 1024, v2
    v_cmp_eq_u32 s[100:101], 0, v2
    v_mov_b32 v8, 512
    v_mov_b32 v9, 1536
    v_mov_b32 v4, v2
    v_cndmask_b32 v5, v5, v8, s[100:101]
    v_cndmask_b32 v7, v7, v9, s[100:101]
    v_lshlrev_b32 v8, 4, v3
    v_sub_u32 v9, 880, v8
    v_add_u32 v10, 256, v8
    v_sub_u32 v11, 624, v8
    v_mov_b32 v12, {OOB}
    v_cmp_gt_u32 vcc, 12, v3
    s_nop 1
    v_cndmask_b32 v10, v12, v10, vcc
    v_cndmask_b32 v11, v12, v11, vcc
    """)
    for rho in range(4):
        A(f"v_mul_u32_u24 v13, 896, v{4+rho}")
        for t in range(2):
            for fm in range(2):
                A(f"v_add_u32 v{14+2*t+fm}, v13, v{8+2*t+fm}")
        for t in range(2):
            for fm in range(2):
                A.vmem(f"buffer_load_dwordx4 {v(RAW + (rho*2+t)*8 + 4*fm, 4)}, v{14+2*t+fm}, s[{sX}:{sX+3}], 0 offen", ("x", rho))
    A(f"""
    s_cmp_ge_u32 s{S_VAR}, 2
    s_cselect_b32 s{sC}, s8, s6
    s_cselect_b32 s{sC+1}, s9, s7
    s_and_b32 s{sC+1}, s{sC+1}, 0xffff
    s_mov_b32 s{sC+2}, {2048*4096}
    s_mov_b32 s{sC+3}, 0x20000
    s_lshl_b32 s3, s{S_M}, 7
    s_lshl_b32 s27, s{S_W}, 5
    s_add_u32 s3, s3, s27
    s_lshl_b32 s3, s3, 1
    s_add_u32 s3, s3, s{S_P}
    s_lshl_b32 s3, s3, 12
    v_lshrrev_b32 v13, 3, v1
    v_lshlrev_b32 v13, 13, v13
    v_add_u32 v13, s3, v13
    v_lshrrev_b32 v14, 4, v1
    v_and_b32 v15, 7, v1
    v_xor_b32 v14, v14, v15
    v_xor_b32 v15, 4, v14
    v_lshl_add_u32 v16, v14, 4, v13
    v_lshl_add_u32 v17, v15, 4, v13
    v_add_u32 v17, {8*8192}, v17
    v_add_u32 v18, {16*8192}, v16
    v_add_u32 v19, {16*8192}, v17
    s_lshl_b32 s26, s{S_W}, 12
    """)
    for stg in range(8):
        for u in range(4):
            A.dma(16 + u, sC, "0", f"s_add_u32 m0, s26, {stg*16384 + u*1024 - stg*128}", "c", imm=stg * 128)
    A.stamp(1)
    A(f"""
    v_cmp_eq_u32 s[26:27], 0, v3
    v_mov_b32 v21, 2.0
    v_mov_b32 v23, 0
    v_cndmask_b32 v20, 2.0, 1.0, s[26:27]
    v_cndmask_b32 v23, v23, v21, vcc
    v_cmp_eq_u32 s[26:27], 12, v3
    v_mov_b32 v22, v23
    s_nop 0
    v_cndmask_b32 v22, v22, 1.0, s[26:27]
    """)
    E = lambda rho, t: EO + (rho * 2 + t) * 16
    O = lambda rho, t: EO + (rho * 2 + t) * 16 + 8
    for rho in range(4):
        A.wait(vm=("x", rho))
        m0_ = RAW + (rho * 2) * 8 + 4
        m1_ = RAW + (rho * 2 + 1) * 8 + 4
        A(f"v_mov_b32_dpp v24, v{m0_} row_shr:1 row_mask:0xf bank_mask:0xf bound_ctrl:0")
        A(f"v_mov_b32_dpp v25, v{m0_} row_ror:1 row_mask:0xf bank_mask:0xf")
        A("s_nop 1")
        A(f"v_mov_b32_dpp v25, v{m1_} row_shr:1 row_mask:0xf bank_mask:0xf")
        for t in range(2):
            F = RAW + (rho * 2 + t) * 8
            M = F + 4
            for i in range(4):
                A(f"v_lshlrev_b32 v{TF+2*i}, 16, v{F+i}\nv_and_b32 v{TF+2*i+1}, 0xffff0000, v{F+i}")
            A(f"v_lshlrev_b32 v{TM}, 16, v{24+t}")
            for j in range(1, 8):
                k = 8 - j
                if k & 1:
                    A(f"v_and_b32 v{TM+j}, 0xffff0000, v{M + k//2}")
                else:
                    A(f"v_lshlrev_b32 v{TM+j}, 16, v{M + k//2}")
            for i in range(4):
                A(f"v_pk_add_f32 {v(E(rho,t)+2*i,2)}, {v(TF+2*i,2)}, {v(TM+2*i,2)}")
                A(f"v_pk_add_f32 {v(O(rho,t)+2*i,2)}, {v(TF+2*i,2)}, {v(TM+2*i,2)} neg_lo:[0,1] neg_hi:[0,1]")
            sm, sq = ST + 4 * rho, ST + 4 * rho + 2
            for i in range(4):
                if t == 0 and i == 0:
                    A(f"v_pk_add_f32 {v(sm,2)}, {v(E(rho,0),2)}, {v(E(rho,0)+2,2)}")
                elif not (t == 0 and i == 1):
                    A(f"v_pk_add_f32 {v(sm,2)}, {v(sm,2)}, {v(E(rho,t)+2*i,2)}")
                if t == 0 and i == 0:
                    A(f"v_pk_mul_f32 {v(sq,2)}, {v(E(rho,0),2)}, {v(E(rho,0),2)}")
                else:
                    A(f"v_pk_fma_f32 {v(sq,2)}, {v(E(rho,t)+2*i,2)}, {v(E(rho,t)+2*i,2)}, {v(sq,2)}")
                A(f"v_pk_fma_f32 {v(sq,2)}, {v(O(rho,t)+2*i,2)}, {v(O(rho,t)+2*i,2)}, {v(sq,2)}")
    A.stamp(2)
    for rho in range(4):
        A(f"v_add_f32 v{ST+4*rho}, v{ST+4*rho}, v{ST+4*rho+1}\nv_add_f32 v{ST+4*rho+2}, v{ST+4*rho+2}, v{ST+4*rho+3}")
    for sh in (8, 4, 2, 1):
        for i in range(8):
            r = ST + 2 * i
            A(f"v_add_f32_dpp v{r}, v{r}, v{r} row_ror:{sh} row_mask:0xf bank_mask:0xf")
    R_, C_ = 24, 28
    A(f"s_mov_b32 s3, {0x3b124925}\ns_mov_b32 s26, {0x3a924925}\ns_mov_b32 s27, {0x3727c5ac}")
    for rho in range(4):
        A(f"v_mul_f32 v{ST+4*rho}, s3, v{ST+4*rho}\nv_mul_f32 v{ST+4*rho+2}, s26, v{ST+4*rho+2}")
    for rho in range(4):
        A(f"v_fma_f32 v{ST+4*rho+2}, -v{ST+4*rho}, v{ST+4*rho}, v{ST+4*rho+2}")
    for rho in range(4):
        A(f"v_max_f32 v{ST+4*rho+2}, 0, v{ST+4*rho+2}")
    for rho in range(4):
        A(f"v_cvt_pk_bf16_f32 v{ST+4*rho+1}, v{ST+4*rho}, v{ST+4*rho+2}")
    for rho in range(4):
        A(f"v_lshlrev_b32 v{ST+4*rho}, 16, v{ST+4*rho+1}\nv_and_b32 v{ST+4*rho+2}, 0xffff0000, v{ST+4*rho+1}")
    for rho in range(4):
        A(f"v_add_f32 v{ST+4*rho+2}, s27, v{ST+4*rho+2}")
    for rho in range(4):
        A(f"v_cvt_pk_bf16_f32 v{ST+4*rho+2}, v{ST+4*rho+2}, v{ST+4*rho+2}")
    for rho in range(4):
        A(f"v_and_b32 v{ST+4*rho+2}, 0xffff0000, v{ST+4*rho+2}")
    for rho in range(4):
        A(f"v_sqrt_f32 v{ST+4*rho+2}, v{ST+4*rho+2}")
    for rho in range(4):
        A(f"v_cvt_pk_bf16_f32 v{ST+4*rho+2}, v{ST+4*rho+2}, v{ST+4*rho+2}")
    for rho in range(4):
        A(f"v_and_b32 v{ST+4*rho+2}, 0xffff0000, v{ST+4*rho+2}")
    for rho in range(4):
        A(f"v_rcp_f32 v{R_+rho}, v{ST+4*rho+2}")
    A("s_nop 0")
    for rho in range(4):
        A(f"v_mul_f32 v{C_+rho}, v{ST+4*rho}, v{R_+rho}")
    A(f"""
    v_cmp_eq_u32 vcc, 1, v3
    v_cmp_eq_u32 s[26:27], 2, v3
    v_mov_b32 v8, v4
    v_mov_b32 v9, v{R_}
    v_cndmask_b32 v8, v8, v5, vcc
    v_cndmask_b32 v9, v9, v{R_+1}, vcc
    v_cmp_eq_u32 vcc, 3, v3
    v_cndmask_b32 v8, v8, v6, s[26:27]
    v_cndmask_b32 v9, v9, v{R_+2}, s[26:27]
    v_cndmask_b32 v8, v8, v7, vcc
    v_cndmask_b32 v9, v9, v{R_+3}, vcc
    v_cmp_gt_u32 vcc, 4, v3
    v_lshlrev_b32 v8, 2, v8
    v_add_u32 v8, {WS_RSTD}, v8
    v_cndmask_b32 v8, v12, v8, vcc
    """)
    A.vmem(f"buffer_store_dword v9, v8, s[{sWS}:{sWS+3}], 0 offen {HST}")
    A(f"s_or_b32 s3, s{S_Q}, s{S_W}\ns_cmp_lg_u32 s3, 0\ns_cbranch_scc1 L_no512")
    A(f"v_add_f32 v10, v{C_+1}, v{C_+3}")
    for t in range(2):
        for j in range(8):
            A(f"v_mul_f32 v{TF+j}, v10, v{20+2*t+(1 if j else 0)}")
            A(f"v_fma_f32 v{TF+j}, v{E(1,t)+j}, v{R_+1}, -v{TF+j}")
            A(f"v_fma_f32 v{TF+j}, v{E(3,t)+j}, v{R_+3}, v{TF+j}")
            A(f"v_mul_f32 v{TM+j}, v{O(1,t)+j}, v{R_+1}")
            A(f"v_fma_f32 v{TM+j}, -v{O(3,t)+j}, v{R_+3}, v{TM+j}")
        for i in range(4):
            A(f"v_cvt_pk_bf16_f32 v{RAW+8*t+i}, v{TF+2*i}, v{TF+2*i+1}")
            A(f"v_cvt_pk_bf16_f32 v{RAW+8*t+4+i}, v{TM+2*i}, v{TM+2*i+1}")
    A(f"v_lshlrev_b32 v10, 4, v3\nv_add_u32 v10, {WS_X512}, v10\nv_cndmask_b32 v10, v12, v10, s[100:101]")
    for t in range(2):
        A(f"buffer_store_dwordx4 {v(RAW+8*t,4)}, v10, s[{sWS}:{sWS+3}], 0 offen offset:{256*t} {HST}")
        A(f"buffer_store_dwordx4 {v(RAW+8*t+4,4)}, v10, s[{sWS}:{sWS+3}], 0 offen offset:{3*512+256*t} {HST}")
    A("s_nop 1")
    A("L_no512:")
    for r in (R_ + 1, R_ + 3, C_ + 1, C_ + 3):
        A(f"v_cndmask_b32 v{r}, v{r}, 0, s[100:101]")
    A(f"v_add_f32 v{C_}, v{C_}, v{C_+1}\nv_add_f32 v{C_+2}, v{C_+2}, v{C_+3}")
    OUT = lambda var, t: RAW + (var * 2 + t) * 8
    bl = "op_sel_hi:[1,0,1]"
    bh = "op_sel:[0,1,0] op_sel_hi:[1,1,1]"
    for t in range(2):
        W = 20 + 2 * t
        A(f"v_pk_mul_f32 v[8:9], {v(W,2)}, {v(C_,2)} op_sel_hi:[1,0] neg_lo:[1,0] neg_hi:[1,0]")
        A(f"v_pk_mul_f32 v[10:11], {v(W,2)}, {v(C_+2,2)} op_sel_hi:[1,0] neg_lo:[1,0] neg_hi:[1,0]")
        for i in range(4):
            cs = "" if i else None
            s3lo, s3hi = (0, 1) if i == 0 else (1, 1)
            a_, b_ = TF, TF + 2
            A(f"v_pk_fma_f32 {v(a_,2)}, {v(E(0,t)+2*i,2)}, {v(R_,2)}, v[8:9] op_sel:[0,0,{s3lo}] op_sel_hi:[1,0,{s3hi}]")
            A(f"v_pk_fma_f32 {v(b_,2)}, {v(E(2,t)+2*i,2)}, {v(R_+2,2)}, v[10:11] op_sel:[0,0,{s3lo}] op_sel_hi:[1,0,{s3hi}]")
            A(f"v_pk_mul_f32 {v(TM,2)}, {v(O(0,t)+2*i,2)}, {v(R_,2)} op_sel_hi:[1,0]")
            A(f"v_pk_mul_f32 {v(TM+2,2)}, {v(O(3,t)+2*i,2)}, {v(R_+2,2)} op_sel:[0,1] op_sel_hi:[1,1]")
            A(f"v_pk_fma_f32 {v(a_,2)}, {v(E(1,t)+2*i,2)}, {v(R_,2)}, {v(a_,2)} {bh}")
            A(f"v_pk_fma_f32 {v(b_,2)}, {v(E(3,t)+2*i,2)}, {v(R_+2,2)}, {v(b_,2)} {bh}")
            A(f"v_pk_fma_f32 {v(TM,2)}, {v(O(1,t)+2*i,2)}, {v(R_,2)}, {v(TM,2)} {bh} neg_lo:[1,0,0] neg_hi:[1,0,0]")
            A(f"v_pk_fma_f32 {v(TM+2,2)}, {v(O(2,t)+2*i,2)}, {v(R_+2,2)}, {v(TM+2,2)} {bl} neg_lo:[1,0,0] neg_hi:[1,0,0]")
            A(f"v_pk_add_f32 {v(OUT(0,t)+2*i,2)}, {v(a_,2)}, {v(b_,2)}")
            A(f"v_pk_add_f32 {v(OUT(1,t)+2*i,2)}, {v(a_,2)}, {v(b_,2)} neg_lo:[0,1] neg_hi:[0,1]")
            A(f"v_pk_add_f32 {v(OUT(2,t)+2*i,2)}, {v(TM,2)}, {v(TM+2,2)}")
            A(f"v_pk_add_f32 {v(OUT(3,t)+2*i,2)}, {v(TM,2)}, {v(TM+2,2)} neg_lo:[0,1] neg_hi:[0,1]")
    PKD = EO
    FS = 131072
    A(f"""
    v_lshrrev_b32 v8, 4, v1
    v_lshlrev_b32 v8, 13, v8
    v_lshrrev_b32 v9, 1, v3
    v_lshl_add_u32 v8, v9, 9, v8
    v_lshl_add_u32 v8, v9, 4, v8
    v_and_b32 v9, 1, v3
    v_lshl_add_u32 v8, v9, 7, v8
    s_lshr_b32 s3, s{S_W}, 1
    s_lshl_b32 s3, s3, 8
    s_and_b32 s27, s{S_W}, 1
    s_lshl_b32 s27, s27, 3
    s_add_u32 s3, s3, s27
    s_add_u32 s3, s3, {FS}
    v_add_u32 v8, s3, v8
    """)
    for j in range(1, 8):
        A(f"v_xor_b32 v{8+j}, {j<<4}, v8")
    for t in range(2):
        for j in range(8):
            A(f"v_permlane16_swap_b32 v{OUT(0,t)+j}, v{OUT(1,t)+j}")
            A(f"v_permlane16_swap_b32 v{OUT(2,t)+j}, v{OUT(3,t)+j}")
        for j in range(8):
            p = PKD + (t * 8 + j) * 2
            A(f"v_cvt_pk_bf16_f32 v{p}, v{OUT(0,t)+j}, v{OUT(1,t)+j}")
            A(f"v_cvt_pk_bf16_f32 v{p+1}, v{OUT(2,t)+j}, v{OUT(3,t)+j}")
        A("s_nop 0")
        for j in range(8):
            p = PKD + (t * 8 + j) * 2
            A(f"v_permlane32_swap_b32 v{p}, v{p+1}")
        for j in range(8):
            p = PKD + (t * 8 + j) * 2
            A.lds(f"ds_write_b64 v{8+j}, {v(p,2)} offset:{t*4096}")
    A(f"""
    v_lshrrev_b32 v16, 5, v1
    v_and_b32 v17, 31, v1
    v_xor_b32 v18, v17, v16
    v_lshlrev_b32 v18, 4, v18
    v_lshl_add_u32 v18, v16, 9, v18
    s_lshl_b32 s3, s{S_W}, 13
    s_add_u32 s3, s3, {FS}
    v_add_u32 v18, s3, v18
    v_xor_b32 v19, 32, v18
    v_xor_b32 v20, 64, v18
    v_xor_b32 v21, 96, v18
    v_lshlrev_b32 v17, 4, v17
    v_lshl_add_u32 v17, v16, 14, v17
    s_lshr_b32 s3, s{S_Q}, 1
    s_lshl_b32 s3, s3, 10
    s_and_b32 s27, s{S_Q}, 1
    s_lshl_b32 s27, s27, 9
    s_add_u32 s3, s3, s27
    s_lshl_b32 s27, s{S_W}, 18
    s_add_u32 s3, s3, s27
    s_add_u32 s3, s3, {WS_XF}
    """)
    A.wait(lg=0)
    A("s_barrier")
    for i in range(8):
        A.lds(f"ds_read_b128 {v(RAW+4*i,4)}, v{18 + (i&3)} offset:{i*1024}", ("rb", i))
    for i in range(8):
        A.wait(lg=("rb", i))
        A.vmem(f"buffer_store_dwordx4 {v(RAW+4*i,4)}, v17, s[{sWS}:{sWS+3}], s3 offen {HST}")
        A(f"s_add_u32 s3, s3, 32768")
    A.stamp(3)
    SACC, SEX, CF, XF = 32, 96, [104, 136], 168
    KALT, B512, X5 = 4, 8, [12, 16]
    CA = 22
    A(f"""
    v_and_b32 v2, 15, v1
    v_lshrrev_b32 v3, 4, v1
    v_lshrrev_b32 v26, 1, v2
    v_xor_b32 v26, v26, v3
    v_lshlrev_b32 v26, 4, v26
    v_lshl_add_u32 v{CA}, v2, 7, v26
    v_xor_b32 v{CA+1}, 64, v{CA}
    v_add_u32 v{CA+2}, 0x10000, v{CA}
    v_add_u32 v{CA+3}, 0x10000, v{CA+1}
    v_and_b32 v26, 1, v1
    s_cmp_ge_u32 s{S_VAR}, 2
    s_cselect_b32 s100, 1, 0
    s_cselect_b32 s101, 0x80008000, 0
    v_xor_b32 v26, s100, v26
    v_lshlrev_b32 v26, 15, v26
    v_or_b32 v{B512}, 0x3f80, v26
    s_lshl_b32 s26, s{S_N}, 3
    s_lshl_b32 s27, s{S_W}, 1
    s_add_u32 s26, s26, s27
    s_lshl_b32 s3, s{S_VAR}, 4
    s_add_u32 s3, s3, s26
    s_lshl_b32 s{S_KX}, s3, 14
    s_add_u32 s{S_KX}, s{S_KX}, {WS_XF}
    s_lshl_b32 s26, s26, 5
    s_lshl_b32 s27, s{S_VAR}, 9
    s_add_u32 s26, s26, s27
    s_add_u32 s26, s26, {WS_X512}
    v_lshl_add_u32 v27, v1, 1, s26
    s_add_u32 s3, s{S_VAR}, 1
    s_and_b32 s3, s3, 2
    s_cmp_eq_u32 s3, 0
    s_cselect_b32 s3, 16, 0
    v_cmp_gt_u32 vcc, s3, v1
    v_mov_b32 v26, {OOB}
    v_lshlrev_b32 v28, 4, v1
    v_cndmask_b32 v27, v26, v27, vcc
    v_add_u32 v29, 16384, v28
    """)
    for i in range(4):
        A(f"v_mov_b32 v{KALT+i}, 0xbf803f80")
    for i in range(1, 4):
        A(f"v_mov_b32 v{B512+i}, 0\nv_mov_b32 v{X5[0]+i}, 0\nv_mov_b32 v{X5[1]+i}, 0")
    A.wait(vm=0)
    A("s_barrier")
    A.stamp(4)

    def c_reads(sb):
        stg, q = sb >> 1, sb & 1
        for tb in range(8):
            a_ = stg * 16384 + tb * 2048
            A.lds(f"ds_read_b128 {v(CF[sb&1]+4*tb,4)}, v{CA + 2*(a_>>16) + q} offset:{a_ & 0xffff}", ("cf", sb))

    def x_issue(sb):
        if sb and sb % 4 == 0:
            A(f"s_add_u32 s{S_KX}, s{S_KX}, 4096")
        for a_ in range(2):
            A.vmem(f"buffer_load_dwordx4 {v(XF + (sb % 11)*8 + 4*a_, 4)}, v{28+a_}, s[{sWS}:{sWS+3}], s{S_KX} offen offset:{(sb%4)*1024} {HLD}", ("xf", sb))
    c_reads(0)
    A("s_barrier")
    A.stamp(5)
    for sb in range(11):
        x_issue(sb)
    A.vmem(f"buffer_load_ushort v{X5[0]}, v27, s[{sWS}:{sWS+3}], 0 offen {HLD}", "x5")
    A.vmem(f"buffer_load_ushort v{X5[1]}, v27, s[{sWS}:{sWS+3}], 0 offen offset:32 {HLD}", "x5")
    for sb in range(16):
        if sb + 1 < 16:
            c_reads(sb + 1)
        A.wait(vm=("xf", sb), lg=("cf", sb))
        z = "0" if sb == 0 else None
        for a_ in range(2):
            xa = XF + (sb % 11) * 8 + 4 * a_
            for tb in range(8):
                A.mfma(SACC + (a_ * 8 + tb) * 4, xa, CF[sb & 1] + 4 * tb, z)
            A.mfma(SEX + 4 * a_, xa, KALT, z)
        if sb + 11 < 16:
            x_issue(sb + 11)
    A.wait(vm="x5")
    for a_ in range(2):
        for tb in range(8):
            A.mfma(SACC + (a_ * 8 + tb) * 4, X5[a_], B512)
        A.mfma(SEX + 4 * a_, X5[a_], KALT)
    A.stamp(6)
    A(f"""
    s_and_b32 s3, s{S_XCD}, 1
    s_lshl_b32 s3, s3, 1
    s_sub_u32 s27, s{S_J}, 28
    s_lshr_b32 s27, s27, 1
    s_add_u32 s3, s3, s27
    s_or_b32 s26, s3, s{S_VAR}
    s_lshl_b32 s3, s3, 5
    s_lshl_b32 s27, s{S_P}, 2
    s_add_u32 s3, s3, s27
    s_mul_i32 s3, s3, 72
    s_lshl_b32 s27, s100, 3
    s_add_u32 s3, s3, s27
    s_lshl_b32 s27, s{S_N}, 2
    s_add_u32 s3, s3, s27
    s_add_u32 s3, s3, s{S_W}
    s_add_u32 s3, s3, 56
    s_lshl_b32 s3, s3, 10
    s_cmp_eq_u32 s26, 0
    s_cselect_b32 s26, 0x00010001, 0
    s_mov_b32 s27, s26
    """)
    D0 = CF[0]
    A(f"v_cvt_pk_bf16_f32 v{XF}, v{SEX}, v{SEX+1}\nv_cvt_pk_bf16_f32 v{XF+1}, v{SEX+2}, v{SEX+3}")
    A(f"v_cvt_pk_bf16_f32 v{XF+2}, v{SEX+4}, v{SEX+5}\nv_cvt_pk_bf16_f32 v{XF+3}, v{SEX+6}, v{SEX+7}")
    for tb in range(8):
        d = D0 + 8 * tb
        for a_ in range(2):
            s0 = SACC + (a_ * 8 + tb) * 4
            A(f"v_cvt_pk_bf16_f32 v{d+2*a_}, v{s0}, v{s0+1}\nv_cvt_pk_bf16_f32 v{d+2*a_+1}, v{s0+2}, v{s0+3}")
        for i in range(4):
            A(f"v_xor_b32 v{d+4+i}, s101, v{d+i}")
        if tb == 0:
            for i in range(4):
                A(f"v_cndmask_b32 v{d+i}, v{d+i}, v{XF+i}, s[26:27]")
        blk = (tb >> 1) * 8 + (tb & 1)
        A(f"s_add_u32 s{S_KX}, s3, {blk*HV_STRIDE}")
        A.vmem(f"buffer_store_dwordx4 {v(d+4,4)}, v28, s[{sWS}:{sWS+3}], s{S_KX} offen {HST}")
        A(f"s_add_u32 s{S_KX}, s3, {(blk+2)*HV_STRIDE}")
        A.vmem(f"buffer_store_dwordx4 {v(d,4)}, v28, s[{sWS}:{sWS+3}], s{S_KX} offen {HST}")
    A.wait(vm=0)
    A("s_barrier")
    A.stamp(7)
    A.dump_stamps(8)
    A("s_endpgm")

    A.reset()
    A("L_dft_helper:")
    A.srd(sDBG, 22, 256)
    A.srd(sW1, 10, 448 * 896)
    A.srd(sW2, 12, 448 * 896)
    code_touch(A)
    A(f"""
    v_lshlrev_b32 v6, 2, v1
    v_lshlrev_b32 v7, 7, v1
    s_sub_u32 s3, s{S_J}, 28
    s_mul_i32 s3, s3, {448*128}
    v_add_u32 v7, s3, v7
    v_mov_b32 v4, 0
    v_mov_b32 v5, 1
    s_lshl_b32 s{S_KW}, s{S_Q}, 2
    s_barrier
    s_barrier
    s_mov_b64 exec, 1
    buffer_store_dword v5, v4, s[{sDBG}:{sDBG+3}], s{S_KW} offen sc1
    """)
    A.stamp(1)
    A.poll(6, sDBG, "0", "ne0", 32)
    A.stamp(2)
    A("s_barrier")
    for i in range(7):
        A(f"buffer_load_dword v{8+i}, v7, s[{sW1}:{sW1+3}], 0 offen")
        A(f"buffer_load_dword v{16+i}, v7, s[{sW2}:{sW2+3}], 0 offen")
        A(f"v_add_u32 v7, 8192, v7")
    A("s_barrier")
    A("s_mov_b64 exec, 1")
    A(f"buffer_store_dword v5, v4, s[{sDBG}:{sDBG+3}], s{S_KW} offen offset:128 sc1")
    A.stamp(3)
    A.dump_stamps(4)
    A("L_end:")
    A("s_endpgm")
    A("L_code_end:")

    hdr = open("parallel_sum__spectral_fnet__dense_activation_relu__prompt.s.ref").read().split("; Override")[0]
    return (hdr + "; @launch grid=(256,1,1) block=(320,1,1) lds=163840\n"
            + ".amdgcn_target \"amdgcn-amd-amdhsa--gfx950\"\n" + kernel_header(NAME) + A.text() + kernel_desc(NAME, 256, 256))


def code_touch(A):
    L = A.label("L_pc")
    A(f"""
    s_getpc_b64 s[56:57]
    {L}:
    s_sub_u32 s56, s56, {L}-{NAME}
    s_subb_u32 s57, s57, 0
    s_mov_b32 s58, L_code_end-{NAME}
    s_mov_b32 s59, 0x20000
    v_lshlrev_b32 v8, 12, v1
    s_lshl_b32 s3, s{S_J}, 7
    v_add_u32 v8, s3, v8
    s_mov_b64 exec, 0xff
    buffer_load_dword v9, v8, s[56:59], 0 offen
    s_mov_b64 exec, -1
    """)


if __name__ == "__main__":
    out = sys.argv[1]
    stamps = len(sys.argv) > 2 and sys.argv[2] == "stamps"
    opt = {}
    for kv in sys.argv[3:]:
        k, x = kv.split("=")
        opt[k] = int(x) if x.lstrip("-").isdigit() else x
    open(out, "w").write(gen(stamps, opt))
```

```python
import sys
from asmlib import *

NAME = "parallel_sum__spectral_fnet__dense_activation_relu__prompt_kernel"

H_STRIDE = 56 * 1024
WS_VV = 0x700000
WS_XF = 0x810000
WS_X512 = 0x910000
WS_RSTD = 0x911000
WS_HFLAG = 0x914000
WS_PFLAG = 0x916000
WS_PART = 0x920000
WS_STAMP = 0xD20000
WS_SIZE = 0xD20000
OOB = 0x7FFFFF00

sX, sW1, sW2, sWS, sWD, sOUT, sDBG, sC = 28, 32, 36, 40, 44, 48, 52, 56
S_W, S_XCD, S_J = 60, 61, 62


class K(Asm):
    def __init__(self, stamps):
        super().__init__()
        self.stamps = stamps
        self.vm = []
        self.lg = []
        self.vm_done = 0
        self.lg_done = 0

    spr = None
    def __call__(self, s):
        for l in s.split("\n"):
            l = l.strip()
            if not l:
                continue
            super().__call__(l)
            if self.spr and self.spr["on"] and l.startswith("v_") and not l.startswith("v_cmp"):
                self.spr["cnt"] -= 1
                if self.spr["cnt"] <= 0 and self.spr["q"]:
                    self.spr["on"] = False
                    self.spr["q"].pop(0)()
                    self.spr["cnt"] = self.spr["gap"][len(self.spr["q"]) & 1]
                    self.spr["on"] = True

    def sprinkle(self, pairs, every):
        q = [f for p in pairs for f in p]
        self.spr = dict(q=q, on=True, cnt=1, gap=(every - 1, 1))

    def sprinkle_flush(self):
        q, self.spr = self.spr["q"], None
        for i, f in enumerate(q):
            if (len(q) - i) & 1:
                self("s_nop 0")
            f()

    def vmem(self, txt, tag=None):
        self(txt)
        self.vm.append(tag)

    def lds(self, txt, tag=None):
        self(txt)
        self.lg.append(tag)

    def _n(self, lst, tags):
        last = -1
        for i, t in enumerate(lst):
            if t in tags:
                last = i
        assert last >= 0, tags
        return len(lst) - 1 - last

    def wait(self, vm=None, lg=None):
        parts = []
        if vm is not None:
            n = 0 if vm == 0 else self._n(self.vm, vm if isinstance(vm, list) else [vm])
            n = min(n, 63)
            if vm == 0 or len(self.vm) - n > self.vm_done:
                parts.append(f"vmcnt({n})")
                self.vm_done = len(self.vm) - n
        if lg is not None:
            n = 0 if lg == 0 else self._n(self.lg, lg if isinstance(lg, list) else [lg])
            n = min(n, 15)
            if lg == 0 or len(self.lg) - n > self.lg_done:
                parts.append(f"lgkmcnt({n})")
                self.lg_done = len(self.lg) - n
        if parts:
            self("s_waitcnt " + " ".join(parts))

    def reset(self):
        self.vm = []
        self.lg = []
        self.vm_done = 0
        self.lg_done = 0

    def stamp(self, i):
        if self.stamps:
            self(f"s_memtime s[{64+2*i}:{65+2*i}]")
            if i == 0:
                self("s_memrealtime s[92:93]")

    def dump_stamps(self, n):
        if not self.stamps:
            return
        L = self.label("L_st")
        self("s_memrealtime s[90:91]")
        self("s_memtime s[88:89]")
        self("s_waitcnt lgkmcnt(0)")
        self("s_mov_b64 exec, 1")
        self(f"s_lshl_b32 s26, s2, 3\ns_add_u32 s26, s26, s{S_W}\ns_lshl_b32 s26, s26, 7\ns_add_u32 s26, s26, {WS_STAMP}")
        self("v_mov_b32 v2, s26")
        for i in list(range(0, n, 2)) + [12, 14]:
            self(f"v_mov_b32 v4, s{64+2*i}\nv_mov_b32 v5, s{65+2*i}\nv_mov_b32 v6, s{66+2*i}\nv_mov_b32 v7, s{67+2*i}")
            self(f"buffer_store_dwordx4 v[4:7], v2, s[{sWS}:{sWS+3}], 0 offen offset:{8*i}")
            self("s_nop 2")
        self("s_waitcnt vmcnt(0)")

    def srd(self, d, lo, size):
        self(f"s_mov_b32 s{d}, s{lo}\ns_and_b32 s{d+1}, s{lo+1}, 0xffff\ns_mov_b32 s{d+2}, {size}\ns_mov_b32 s{d+3}, 0x20000")

    def fix2048(self, t, tmp):
        self(f"v_lshrrev_b32 v{tmp}, 11, v{t}\nv_lshlrev_b32 v{tmp}, 10, v{tmp}\nv_sub_u32 v{t}, v{t}, v{tmp}")

    def mfma(self, d, a_, b_, c=None):
        cs = v(d, 4) if c is None else c
        self(f"v_mfma_f32_16x16x32_bf16 {v(d,4)}, {v(a_,4)}, {v(b_,4)}, {cs}")

    def dma(self, voff, srd, soff, m0expr, tag, imm=0, flags=""):
        self(m0expr)
        self("s_nop 0")
        o = f" offset:{imm}" if imm else ""
        self.vmem(f"buffer_load_dwordx4 v{voff}, s[{srd}:{srd+3}], {soff} offen{o} lds {flags}".rstrip(), tag)

    def weave(self, mf, fill, lead=0):
        nm = len(mf)
        gaps = [[] for _ in range(nm)]
        free = [f for f in fill if not isinstance(f, tuple)]
        for f in fill:
            if isinstance(f, tuple):
                gaps[min(f[0], nm - 1)].append(f[1])
        for i, f in enumerate(free):
            gaps[lead + i * (nm - lead) // len(free)].append(f)
        for i in range(nm):
            mf[i]()
            for f in gaps[i]:
                f()

    def dma2(self, voff, srd, soff, m0expr, tag, imm=0, pre=None):
        o = f" offset:{imm}" if imm else ""
        def a():
            if pre:
                self(pre)
            self(m0expr)
        def b():
            self.vmem(f"buffer_load_dwordx4 v{voff}, s[{srd}:{srd+3}], {soff} offen{o} lds", tag)
        return a, b

    def poll(self, voff, srd, soff, cmp, nlanes, stag=None, vtmp=3, sleep=1):
        L, Ld = self.label("L_poll"), self.label("L_polld")
        self(f"s_mov_b64 exec, {hex((1 << nlanes) - 1) if nlanes < 64 else -1}")
        self("s_mov_b32 s27, 0x40000")
        self(f"{L}:")
        self(f"buffer_load_dword v{vtmp}, v{voff}, s[{srd}:{srd+3}], {soff} offen sc1")
        self("s_waitcnt vmcnt(0)")
        if cmp == "ne0":
            self(f"v_cmp_ne_u32 vcc, 0, v{vtmp}")
        else:
            self(f"v_cmp_eq_u32 vcc, s{stag}, v{vtmp}")
        self("s_nop 1")
        self("s_cmp_eq_u64 vcc, exec")
        self(f"s_cbranch_scc1 {Ld}")
        self(f"s_sleep {sleep}")
        self("s_sub_u32 s27, s27, 1")
        self(f"s_cbranch_scc0 {L}")
        self(f"{Ld}:")
        self("s_mov_b64 exec, -1")
```

```python
import sys
from kbase import *

TAGMUL, TAGADD = 0x9E3779B1, 0x7F4A7C15


def wblk(i):
    if i < 24:
        return 65536 + 4096 * i
    if i < 28:
        return 32768 + 4096 * (i - 24)
    return 65536 + 4096 * (i - 28)


def mod7(A, s, tmp, maxv):
    m = 7
    while m * 2 < maxv:
        m *= 2
    while m >= 7:
        A(f"s_cmp_ge_u32 s{s}, {m}\ns_cselect_b32 s{tmp}, {m}, 0\ns_sub_u32 s{s}, s{s}, s{tmp}")
        m //= 2


def code_touch(A):
    L = A.label("L_pc")
    A(f"""
    s_getpc_b64 s[48:49]
    {L}:
    s_sub_u32 s48, s48, {L}-{NAME}
    s_subb_u32 s49, s49, 0
    s_mov_b32 s50, L_code_end-{NAME}
    s_mov_b32 s51, 0x20000
    v_lshlrev_b32 v118, 12, v1
    s_lshl_b32 s3, s{S_J}, 7
    v_add_u32 v118, s3, v118
    s_mov_b64 exec, 0x3ff
    buffer_load_dword v119, v118, s[48:51], 0 offen
    s_mov_b64 exec, -1
    """)


def start_touch(A, opt, what, vb=10):
    fl = opt.get("tfl", "")
    if what == "x":
        A(f"""
        s_lshl_b32 s3, s{S_XCD}, 2
        s_lshr_b32 s27, s{S_J}, 3
        s_add_u32 s3, s3, s27
        s_lshl_b32 s3, s3, 4
        s_and_b32 s27, s{S_J}, 1
        s_lshl_b32 s27, s27, 3
        s_add_u32 s3, s3, s27
        v_lshrrev_b32 v{vb+1}, 3, v1
        v_add_u32 v{vb+1}, s3, v{vb+1}
        s_bfe_u32 s3, s{S_J}, 0x20001
        s_add_u32 s27, s3, 1
        s_and_b32 s27, s27, 2
        s_sub_u32 s27, 1, s27
        v_mul_i32_i24 v{vb+1}, s27, v{vb+1}
        s_cmp_eq_u32 s3, 0
        s_cselect_b32 s27, 0, 1024
        s_cmp_eq_u32 s3, 1
        s_cselect_b32 s27, 2048, s27
        v_add_u32 v{vb+1}, s27, v{vb+1}
        v_mul_u32_u24 v{vb+1}, 896, v{vb+1}
        v_and_b32 v{vb+2}, 7, v1
        v_min_u32 v{vb+2}, 6, v{vb+2}
        v_lshl_add_u32 v{vb+1}, v{vb+2}, 7, v{vb+1}
        buffer_load_dword v{vb+3}, v{vb+1}, s[{sX}:{sX+3}], 0 offen {fl}
        """)
    else:
        A(f"""
        s_cmp_ge_u32 s{S_XCD}, 4
        s_cselect_b32 s{sOUT}, s8, s6
        s_cselect_b32 s{sOUT+1}, s9, s7
        s_and_b32 s{sOUT+1}, s{sOUT+1}, 0xffff
        s_mov_b32 s{sOUT+2}, {2048*4096}
        s_mov_b32 s{sOUT+3}, 0x20000
        s_and_b32 s3, s{S_XCD}, 1
        s_lshl_b32 s3, s3, 5
        s_add_u32 s3, s3, s{S_J}
        s_lshl_b32 s3, s3, 4
        s_bfe_u32 s27, s{S_XCD}, 0x10001
        s_add_u32 s3, s3, s27
        s_lshl_b32 s3, s3, 12
        v_lshrrev_b32 v{vb}, 3, v1
        v_lshlrev_b32 v{vb}, 13, v{vb}
        v_and_b32 v{vb+1}, 7, v1
        v_lshl_add_u32 v{vb}, v{vb+1}, 7, v{vb}
        buffer_load_dword v{vb+2}, v{vb}, s[{sOUT}:{sOUT+3}], s3 offen {fl}
        """)


def gen(stamps=False, opt=None):
    opt = opt or {}
    HST = opt.get("hst", "sc1")
    HLD = opt.get("hld", "")
    TOUCH_AT = opt.get("touch_at", 2)
    HD = opt.get("hd", 12)
    VAT = opt.get("vat", 22)
    A = K(stamps)
    P2 = opt.get('p2', 0)
    st1 = lambda i: None if P2 else A.stamp(i)
    st2 = lambda i: A.stamp(i) if P2 else None
    A.stamp(0)
    A("""
    s_load_dwordx16 s[4:19], s[0:1], 0
    s_load_dwordx4 s[20:23], s[0:1], 64
    s_load_dwordx2 s[24:25], s[0:1], 80
    s_cmp_ge_u32 s2, 256
    s_cbranch_scc1 L_end
    v_lshrrev_b32 v2, 6, v0
    v_and_b32 v1, 63, v0
    """)
    A(f"s_and_b32 s{S_XCD}, s2, 7\ns_lshr_b32 s{S_J}, s2, 3")
    A(f"v_readfirstlane_b32 s{S_W}, v2")
    A(f"s_cmp_ge_u32 s{S_J}, 28\ns_cbranch_scc1 L_dft")

    S_RB, S_FT, S_KX, S_KW, S_MX, S_MW, S_T, S_CT = 63, 96, 97, 98, 99, 100, 101, 26
    S_FTL, S_JX, S_TAG, S_PF = 14, 86, 58, 59
    S_M2, S_K2, S_G2, S_HF, S_PT = 56, 57, 95, 94, 87
    A(f"""
    s_mul_i32 s27, s{S_J}, 37
    s_lshr_b32 s27, s27, 8
    s_mul_i32 s3, s27, 7
    s_sub_u32 s{S_CT}, s{S_J}, s3
    s_and_b32 s{S_RB}, s{S_XCD}, 6
    s_lshl_b32 s{S_RB}, s{S_RB}, 1
    s_add_u32 s{S_RB}, s{S_RB}, s27
    s_lshl_b32 s27, s27, 1
    s_add_u32 s{S_G2}, s{S_CT}, s27
    """)
    mod7(A, S_G2, 3, 14)
    VX, VW1, XA, WA, ONES = 2, 4, 8, 16, 20
    VW2, VEP = 6, 18
    FX = [24, 48]; FW = [40, 64]
    ACC, RS, CS = 72, 104, 108
    A(f"""
    s_lshr_b32 s{S_KW}, s{S_W}, 2
    s_xor_b32 s3, s{S_CT}, s{S_KW}
    s_and_b32 s3, s3, 1
    s_and_b32 s{S_M2}, s{S_W}, 3
    s_lshl_b32 s{S_MX}, s{S_M2}, 2
    s_add_u32 s{S_MW}, s{S_MX}, 16
    s_add_u32 s{S_MX}, s{S_MX}, s3
    s_lshl_b32 s{S_MX}, s{S_MX}, 10
    s_lshl_b32 s{S_KX}, s{S_RB}, 6
    s_lshr_b32 s27, s{S_M2}, 1
    s_add_u32 s{S_KX}, s{S_KX}, s27
    s_lshl_b32 s27, s3, 4
    s_add_u32 s{S_KX}, s{S_KX}, s27
    v_lshrrev_b32 v30, 3, v1
    v_lshl_add_u32 v30, v30, 1, s{S_KX}
    v_lshrrev_b32 v31, 4, v1
    v_and_b32 v32, 7, v1
    v_xor_b32 v32, v32, v31
    s_lshl_b32 s3, s3, 2
    v_xor_b32 v32, s3, v32
    s_bitcmp1_b32 s{S_W}, 0
    s_cselect_b32 s3, -1, 1
    s_cselect_b32 s27, 2048, 0
    v_mul_i32_i24 v30, s3, v30
    v_add_u32 v30, s27, v30
    s_mul_i32 s3, s3, {32*896}
    v_mul_u32_u24 v33, 896, v30
    v_add_u32 v33, s3, v33
    v_lshl_add_u32 v{VX+1}, v32, 4, v33
    """)
    A.fix2048(30, 33)
    A(f"""
    v_mul_u32_u24 v30, 896, v30
    v_lshl_add_u32 v{VX}, v32, 4, v30
    s_and_b32 s{S_JX}, s{S_XCD}, 1
    s_mul_i32 s3, s{S_JX}, 7
    s_add_u32 s{S_FT}, s{S_G2}, s3
    s_xor_b32 s3, s{S_RB}, s{S_KW}
    s_and_b32 s3, s3, 1
    s_add_u32 s{S_MW}, s{S_MW}, s3
    s_sub_u32 s27, s{S_MW}, 16
    s_mul_i32 s27, s27, {4*3584}
    s_lshl_b32 s{S_MW}, s{S_MW}, 10
    s_lshl_b32 s3, s{S_FT}, 8
    s_add_u32 s27, s27, s3
    v_lshlrev_b32 v33, 1, v31
    v_and_b32 v34, 15, v1
    v_xor_b32 v33, v33, v34
    v_mul_u32_u24 v34, 3584, v31
    v_add_u32 v34, s27, v34
    v_lshl_add_u32 v{VW1}, v33, 4, v34
    v_xor_b32 v33, 8, v33
    v_add_u32 v34, {8*3584}, v34
    v_lshl_add_u32 v{VW1+1}, v33, 4, v34
    s_waitcnt lgkmcnt(0)
    """)
    A.srd(sX, 4, 2048 * 896)
    A.srd(sW1, 16, 448 * 3584)

    def p1_dmas(st):
        slot = st % 5
        return ([A.dma2(VX + i, sX, f"s{S_KX}", f"s_add_u32 m0, s{S_MX}, {slot*32768 + i*2048}", ("p1", st),
                        pre=None if i else f"s_movk_i32 s{S_KX}, {st*128}") for i in range(2)] +
                [A.dma2(VW1 + i, sW1, f"s{S_KW}", f"s_add_u32 m0, s{S_MW}, {slot*32768 + i*2048}", ("p1", st),
                        pre=None if i else f"s_mov_b32 s{S_KW}, {st*64*3584}") for i in range(2)])

    def burst(dmas):
        for a_, b_ in dmas:
            a_(); A("s_nop 0"); b_()

    def p1_setup():
        A.srd(sWS, 24, WS_SIZE + (0x40000 if stamps else 0))
        A(f"""
        s_mov_b32 s{S_FTL}, s{S_G2}
        s_lshl_b32 s{S_HF}, s{S_XCD}, 2
        s_and_b32 s3, s{S_RB}, 3
        s_add_u32 s{S_HF}, s{S_HF}, s3
        s_lshl_b32 s{S_HF}, s{S_HF}, 7
        s_add_u32 s{S_HF}, s{S_HF}, {WS_HFLAG}
        s_lshr_b32 s{S_PF}, s2, 1
        s_lshl_b32 s{S_PF}, s{S_PF}, 7
        s_add_u32 s{S_PF}, s{S_PF}, {WS_PFLAG}
        v_mov_b32 v35, 0
        """)
        A.vmem(f"buffer_load_dword v{VEP}, v35, s[{sWS}:{sWS+3}], s{S_HF} offen sc1", "ep")
        A.vmem(f"buffer_load_dword v{VEP+1}, v35, s[{sWS}:{sWS+3}], s{S_PF} offen sc1", "ep")
        A(f"""
        v_and_b32 v32, 15, v1
        v_lshrrev_b32 v33, 1, v32
        v_xor_b32 v33, v33, v31
        v_lshlrev_b32 v33, 4, v33
        v_lshl_add_u32 v33, v32, 7, v33
        s_lshl_b32 s3, s{S_W}, 11
        v_add_u32 v{XA}, s3, v33
        """)
        for rb in range(1, 4):
            A(f"v_xor_b32 v{XA+rb}, {rb*2048}, v{XA}")
        for rb in range(4):
            A(f"v_xor_b32 v{XA+4+rb}, 64, v{XA+rb}")
        A(f"""
        v_bfe_u32 v30, v1, 2, 2
        v_lshl_add_u32 v32, v31, 3, v30
        v_lshlrev_b32 v32, 8, v32
        v_and_b32 v33, 3, v1
        v_lshl_add_u32 v32, v33, 3, v32
        v_add_u32 v32, 16384, v32
        v_and_b32 v33, 1, v31
        v_lshl_or_b32 v33, v33, 2, v30
        s_lshl_b32 s3, s{S_M2}, 1
        s_lshr_b32 s27, s{S_W}, 2
        s_or_b32 s3, s3, s27
        v_xor_b32 v33, s3, v33
        v_lshl_add_u32 v{WA}, v33, 5, v32
        v_xor_b32 v{WA+1}, 32, v{WA}
        """)
        for i in range(4):
            A(f"v_mov_b32 v{ONES+i}, 0x3f803f80")
        A.srd(sW2, 18, 1792 * 896)
        A(f"""
        s_lshl_b32 s{S_T}, s{S_RB}, 1
        s_add_u32 s{S_T}, s{S_T}, s{S_JX}
        v_lshrrev_b32 v30, 3, v1
        v_mul_u32_u24 v32, 896, v30
        v_and_b32 v30, 6, v30
        v_and_b32 v33, 7, v1
        v_xor_b32 v30, v30, v33
        v_lshl_add_u32 v32, v30, 4, v32
        s_lshl_b32 s3, s{S_CT}, 7
        s_mul_i32 s27, s{S_M2}, {16*896}
        s_add_u32 s3, s3, s27
        v_add_u32 v{VW2}, s3, v32
        v_add_u32 v{VW2+1}, {8*896}, v{VW2}
        s_lshl_b32 s{S_M2}, s{S_M2}, 11
        """)

    def wpair_addr(p):
        if p < 12:
            return 65536 + 8192 * p
        if p < 14:
            return 32768 + 8192 * (p - 12)
        return [0, 8192, 49152, 65536, 16384, 24576, 57344, 73728][p - 14]

    def w_dma(p):
        if p < 14:
            srd = sW2
            if p % 2 == 0:
                pre = (f"s_mul_i32 s{S_K2}, s{S_JX}, 7\ns_add_u32 s{S_K2}, s{S_K2}, s{S_G2}\ns_mul_i32 s{S_K2}, s{S_K2}, {128*896}\n"
                       f"s_add_u32 s{S_G2}, s{S_G2}, 1\ns_cmp_eq_u32 s{S_G2}, 7\ns_cselect_b32 s{S_G2}, 0, s{S_G2}")
            else:
                pre = f"s_add_u32 s{S_K2}, s{S_K2}, {64*896}"
        else:
            srd = sWD if p < 18 else sW1
            pre = f"s_mov_b32 s{S_K2}, {((p - 14) % 4)*64*896}"
        return [A.dma2(VW2 + i, srd, f"s{S_K2}", f"s_add_u32 m0, s{S_M2}, {wpair_addr(p) + i*1024}", ("w", p), pre=None if i else pre)
                for i in range(2)]

    def place(dmas, g0, g1):
        r = []
        for k, (a_, b_) in enumerate(dmas):
            g = g0 + 1 + k * (g1 - g0) // len(dmas)
            r += [(g - 1, a_), (g, b_)]
        return r

    def p1_reads(st, q, buf):
        so = ((st % 5) & 1) * 32768
        r = []
        for rb in range(4):
            r.append(lambda rb=rb: A.lds(f"ds_read_b128 {v(FX[buf]+4*rb,4)}, v{XA + 4*q + rb} offset:{so}", ("f", st, q)))
        for cb in range(2):
            for h in range(2):
                r.append(lambda cb=cb, h=h: A.lds(f"ds_read_b64_tr_b16 {v(FW[buf]+4*cb+2*h,2)}, v{WA+cb} offset:{so + q*8192 + h*1024}", ("f", st, q)))
        return r

    def p1_mfma(buf, first):
        z = "0" if first else None
        r = [lambda: A.mfma(RS, ONES, FX[buf], z), lambda: A.mfma(CS, FW[buf], ONES, z)]
        for cb in range(2):
            for rb in range(4):
                r.append(lambda cb=cb, rb=rb: A.mfma(ACC + (cb * 4 + rb) * 4, FW[buf] + 4 * cb, FX[buf] + 4 * rb, z))
        return r

    def p1_addr_step(st):
        d = {2: 65536, 4: 65536, 5: -131072}.get(st)
        if not d:
            return []
        return [(8 + k // 5, lambda r=r: A(f"v_add_u32 v{r}, {d & 0xffffffff}, v{r}"))
                for k, r in enumerate(list(range(XA, XA + 8)) + [WA, WA + 1])]

    def lines(txt, g0, g1):
        ex = [x for x in txt.strip().split("\n") if x.strip()]
        return [(g0 + k * (g1 - g0) // len(ex), lambda x=x: A(x)) for k, x in enumerate(ex)]

    VID = 120
    WPRE = opt.get("wpre", 10)

    def phase1(cls):
        if cls == 0:
            burst(p1_dmas(0) + p1_dmas(1))
            A(f"s_cmp_lg_u32 s{S_W}, 3\ns_cbranch_scc1 L_notouch")
            start_touch(A, opt, "x", 124)
            code_touch(A)
            A("L_notouch:")
            p1_setup()
        else:
            p1_setup()
            burst(p1_dmas(0) + p1_dmas(1))
        st1(1)
        A.wait(vm=("p1", 0))
        A("s_barrier")
        st1(2)
        for f in p1_reads(0, 0, 0):
            f()
        queue = []
        for s_ in range(2, 7):
            for i in range(4):
                first = max(0, 2 * (s_ - 5) + 1)
                if cls == 1:
                    first = max(first, 2 * s_ - opt.get("la1", 5) + i // 2)
                queue.append((first, lambda s_=s_, i=i: p1_dmas(s_)[i]))
        wn = WPRE
        if cls == 0:
            for p in range(WPRE):
                for i in range(2):
                    queue.append((2 * (2 + p // 4) + 1, lambda p=p, i=i: w_dma(p)[i]))
        rate = (opt.get("r0", 3), 4)
        for st in range(7):
            for q in range(2):
                fl = []
                if q == 0:
                    A.wait(lg=("f", st, 0))
                    fl += list(enumerate(p1_reads(st, 1, 1))) + p1_addr_step(st + 1)
                else:
                    if st < 6:
                        A.wait(vm=("p1", st + 1), lg=0)
                        A("s_barrier")
                        fl += list(enumerate(p1_reads(st + 1, 0, 0)))
                    else:
                        A.wait(lg=0)
                dm = []
                blk = 2 * st + q
                while queue and len(dm) < rate[cls] and queue[0][0] <= blk:
                    dm.append(queue.pop(0)[1]())
                if dm:
                    fl += place(dm, 1, 9)
                if (st, q) == (0, 1):
                    fl += lines(f"""
                    v_readfirstlane_b32 s{S_TAG}, v{VEP}
                    v_readfirstlane_b32 s{S_PT}, v{VEP+1}
                    s_getreg_b32 s3, hwreg(HW_REG_XCC_ID, 0, 4)
                    s_lshl_b32 s27, s{S_CT}, 2
                    s_mul_i32 s{S_TAG}, s{S_TAG}, {TAGMUL}
                    s_add_u32 s{S_TAG}, s{S_TAG}, {TAGADD}
                    s_add_u32 s{S_PT}, s{S_PT}, 1
                    s_add_u32 s3, s3, s{S_TAG}
                    s_add_u32 s3, s3, 1
                    v_mov_b32 v{VID}, s3
                    """, 0, 8)
                    A.wait(vm="ep")

                    def ann():
                        A(f"s_cmp_eq_u32 s{S_W}, 7\ns_cselect_b32 s27, s27, {OOB}\nv_mov_b32 v{VID+1}, s27")
                        if cls == 1:
                            A.vmem(f"buffer_store_dword v{VID}, v{VID+1}, s[{sWS}:{sWS+3}], s{S_HF} offen offset:64 sc1")
                    fl.append((9, ann))
                if cls == 0 and (st, q) == (opt.get("cta", 1), 0):
                    def ct():
                        A(f"s_cmp_lg_u32 s{S_W}, 3\ns_cbranch_scc1 L_notouch2")
                        start_touch(A, opt, "c", 124)
                        A("L_notouch2:")
                    fl.append((9, ct))
                if cls == 0 and (st, q) == (opt.get("wta", 2), 1):
                    def wt():
                        A(f"s_cmp_lg_u32 s{S_W}, 2\ns_cbranch_scc1 L_notouch3")
                        A.srd(sWD, 10, 448 * 896)
                        A.srd(sOUT, 12, 448 * 896)
                        A(f"""
                        v_lshlrev_b32 v124, 7, v1
                        s_mul_i32 s3, s2, {56*128}
                        s_lshl_b32 s27, s2, 10
                        s_mov_b32 exec_hi, 0xffffff
                        buffer_load_dword v125, v124, s[{sW2}:{sW2+3}], s3 offen
                        s_mov_b64 exec, 0xff
                        buffer_load_dword v126, v124, s[{sWD}:{sWD+3}], s27 offen
                        buffer_load_dword v127, v124, s[{sOUT}:{sOUT+3}], s27 offen
                        s_mov_b64 exec, -1
                        """)
                        A("L_notouch3:")
                    fl.append((9, wt))
                if (st, q) == (4, 1):
                    fl += lines(f"v_min_u32 v{VID+3}, 6, v1\nv_lshlrev_b32 v{VID+3}, 2, v{VID+3}", 0, 2)
                    fl.append((2, lambda: A.vmem(f"buffer_load_dword v{VID+2}, v{VID+3}, s[{sWS}:{sWS+3}], s{S_HF} offen offset:64 sc1", "ids")))
                if (st, q) == (6, 1):
                    fl += lines(f"""
                    v_and_b32 v30, 15, v1
                    v_lshlrev_b32 v30, 2, v30
                    s_lshl_b32 s3, s{S_W}, 6
                    v_add_u32 v30, s3, v30
                    v_lshrrev_b32 v31, 4, v1
                    v_lshlrev_b32 v31, 4, v31
                    s_and_b32 s27, s{S_W}, 3
                    s_lshl_b32 s27, s27, 7
                    s_lshr_b32 s3, s{S_W}, 2
                    s_lshl_b32 s3, s3, 6
                    s_add_u32 s27, s27, s3
                    v_add_u32 v31, s27, v31
                    v_xor_b32 v32, 64, v30
                    v_xor_b32 v33, 128, v30
                    v_xor_b32 v34, 192, v30
                    v_xor_b32 v35, 64, v31
                    """, 0, 8)
                    fl.append((9, lambda: A.lds(f"ds_write_b32 v30, v{RS}")))
                    fl.append((9, lambda: A.lds(f"ds_write_b128 v31, {v(CS,4)} offset:512")))
                A.weave(p1_mfma(q, st == 0 and q == 0), fl)
        assert not queue, len(queue)
        A.wait(vm="ids")
        return wn
    A(f"s_cmp_ge_u32 s{S_W}, 4\ns_cbranch_scc1 L_p1b")
    WN = phase1(0)
    A("s_branch L_p1done")
    A("L_p1b:")
    A.reset()
    phase1(1)
    A("L_p1done:")
    A.reset()
    st1(3)
    A.wait(lg=0)
    A("s_barrier")
    MB = 24; CS1 = 28
    A.lds(f"ds_read_b32 v{MB+1}, v32")
    A.lds(f"ds_read_b32 v{MB+2}, v33")
    A.lds(f"ds_read_b32 v{MB+3}, v34")
    A.lds(f"ds_read_b128 {v(CS1,4)}, v35 offset:512")
    A(f"""
    s_lshl_b32 s{S_KX}, s{S_RB}, 3
    s_mul_i32 s{S_KX}, s{S_KX}, 56
    s_lshl_b32 s{S_KW}, s{S_FT}, 2
    s_add_u32 s{S_KX}, s{S_KX}, s{S_KW}
    s_and_b32 s27, s{S_W}, 3
    s_add_u32 s{S_KX}, s{S_KX}, s27
    s_lshl_b32 s{S_KX}, s{S_KX}, 10
    v_lshlrev_b32 v16, 4, v1
    s_mov_b32 s3, {0x3b124925}
    v_mul_f32 v{MB}, s3, v{RS}
    """)
    A(f"v_cmp_eq_u32 vcc, v{VID}, v{VID+2}")
    A.wait(lg=0)
    for i in range(1, 4):
        A(f"v_mul_f32 v{MB+i}, s3, v{MB+i}")
    A(f"v_cvt_pk_bf16_f32 v32, v{MB}, v{MB+1}\nv_cvt_pk_bf16_f32 v33, v{MB+2}, v{MB+3}")
    A(f"v_lshlrev_b32 v{MB}, 16, v32\nv_and_b32 v{MB+1}, 0xffff0000, v32\nv_lshlrev_b32 v{MB+2}, 16, v33\nv_and_b32 v{MB+3}, 0xffff0000, v33")
    PK = 36
    for rb in range(4):
        sel = "op_sel:[0,1,0] op_sel_hi:[1,1,1]" if rb & 1 else "op_sel_hi:[1,0,1]"
        d = PK + 4 * rb
        for cb in range(2):
            a0 = ACC + (cb * 4 + rb) * 4
            for hh in range(2):
                A(f"v_pk_fma_f32 {v(a0+2*hh,2)}, {v((CS, CS1)[cb]+2*hh,2)}, {v(MB+(rb&2),2)}, {v(a0+2*hh,2)} {sel} neg_lo:[1,0,0] neg_hi:[1,0,0]")
        for cb in range(2):
            a0 = ACC + (cb * 4 + rb) * 4
            for hh in range(2):
                A(f"v_cvt_pk_bf16_f32 v{d+2*cb+hh}, v{a0+2*hh}, v{a0+2*hh+1}")
        for i in range(4):
            A(f"v_pk_max_i16 v{d+i}, v{d+i}, 0")
    if opt.get("loc", 0):
        A("s_cmp_eq_u64 vcc, exec\ns_cbranch_scc1 L_hlocal")

    def h_stores(fl):
        for rb in range(4):
            A(f"s_xor_b32 s27, s{S_W}, {rb}\ns_mul_i32 s27, s27, {H_STRIDE}\ns_add_u32 s27, s27, s{S_KX}")
            A.vmem(f"buffer_store_dwordx4 {v(PK+4*rb,4)}, v16, s[{sWS}:{sWS+3}], s27 offen {fl}", "hst")
    h_stores("sc1")
    if opt.get("loc", 0):
        A("s_branch L_hdone")
        A("L_hlocal:")
        A.vm = A.vm[:-4]
        h_stores("")
        A("L_hdone:")
    st1(4)
    assert (14 - WN) % 2 == 0
    A(f"s_cmp_ge_u32 s{S_W}, 4")
    A(f"s_cselect_b32 s{S_MW}, {64*896}, 0\ns_cselect_b32 s{S_MX}, 8192, 0\ns_add_u32 s{S_MX}, s{S_MX}, s{S_M2}")
    A(f"s_add_u32 s{S_G2}, s{S_FTL}, {WN // 2}")
    mod7(A, S_G2, 3, 14)
    for p in range(WN, 14, 2):
        A(f"s_mul_i32 s{S_K2}, s{S_JX}, 7\ns_add_u32 s{S_K2}, s{S_K2}, s{S_G2}\ns_mul_i32 s{S_K2}, s{S_K2}, {128*896}\ns_add_u32 s{S_K2}, s{S_K2}, s{S_MW}")
        A(f"s_add_u32 s{S_G2}, s{S_G2}, 1\ns_cmp_eq_u32 s{S_G2}, 7\ns_cselect_b32 s{S_G2}, 0, s{S_G2}")
        for i in range(2):
            A.dma(VW2 + i, sW2, f"s{S_K2}", f"s_add_u32 m0, s{S_MX}, {wpair_addr(p) + i*1024}", ("w", 13))
    WA2, VH, VL, VZ = 8, 2, 16, 3
    FW2 = [24, 40]
    NS = HD + 1
    AC2, HF, VF = 56, 128, 192
    A(f"""
    v_lshrrev_b32 v20, 4, v1
    v_bfe_u32 v21, v1, 2, 2
    v_lshl_add_u32 v22, v20, 2, v21
    v_lshrrev_b32 v23, 1, v22
    v_and_b32 v23, 3, v23
    v_lshlrev_b32 v22, 7, v22
    v_and_b32 v21, 3, v1
    v_lshl_add_u32 v22, v21, 3, v22
    s_lshr_b32 s3, s{S_W}, 2
    s_xor_b32 s3, s3, 1
    s_xor_b32 s3, s3, s{S_T}
    s_and_b32 s27, s3, 1
    s_lshl_b32 s{S_MX}, s27, 11
    s_lshl_b32 s3, s3, 2
    s_and_b32 s27, s{S_W}, 3
    s_add_u32 s3, s3, s27
    s_mul_i32 s3, s3, {H_STRIDE}
    v_add_u32 v{VH}, s3, v{VL}
    v_mov_b32 v{VZ}, 0
    v_add_u32 v22, s{S_MX}, v22
    """)
    for eb in range(4):
        A(f"v_xor_b32 v21, {eb}, v23\nv_lshl_add_u32 v{WA2+eb}, v21, 5, v22")
        A(f"v_xor_b32 v{WA2+4+eb}, 2048, v{WA2+eb}")
    WB = 112
    WC = 72
    for k in range(8):
        A(f"v_add_u32 v{WB+k}, 0x10000, v{WA2+k}\nv_add_u32 v{WC+k}, 0x20000, v{WA2+k}")
    S_H, S_GH = S_KX, S_KW
    A(f"s_mov_b32 s{S_GH}, s{S_FTL}")
    A.srd(sWD, 10, 448 * 896)
    A.srd(sW1, 12, 448 * 896)
    A.wait(vm="hst")
    A("s_barrier")
    A.stamp(5)

    def h_th(i):
        def f():
            if i % 4 == 0:
                A(f"s_mul_i32 s{S_H}, s{S_JX}, 7\ns_add_u32 s{S_H}, s{S_H}, s{S_GH}\ns_lshl_b32 s{S_H}, s{S_H}, 12")
                A(f"s_add_u32 s{S_GH}, s{S_GH}, 1\ns_cmp_eq_u32 s{S_GH}, 7\ns_cselect_b32 s{S_GH}, 0, s{S_GH}")
            A.vmem(f"buffer_load_dwordx4 {v(HF + (i % NS)*4, 4)}, v{VH}, s[{sWS}:{sWS+3}], s{S_H} offen offset:{(i%4)*1024} {HLD}", ("h", i))
        return f

    def w_reads(i):
        r = []
        for eb in range(4):
            for h in range(2):
                if i < 28:
                    a_ = wpair_addr(i >> 1) + (i & 1) * 4096
                    reg, off = (WA2, WB, WC)[a_ >> 16] + 4 * h + eb, a_ & 0xffff
                else:
                    u = i - 28
                    reg, off = ((WA2, u * 4096) if u < 4 else (WB, (u - 4) * 4096 + (8192 if u >= 6 else 0)))
                    reg, off = reg + eb, off + h * 2048
                r.append(lambda reg=reg, off=off, eb=eb, h=h: A.lds(f"ds_read_b64_tr_b16 {v(FW2[i&1]+4*eb+2*h,2)}, v{reg} offset:{off}", ("wf", i, eb >> 1)))
        return r

    A(f"s_cmp_lg_u32 s{S_W}, 7\ns_cbranch_scc1 L_nopub")
    A(f"v_mov_b32 v20, s{S_TAG}\ns_mov_b64 exec, 1")
    A(f"buffer_store_dword v20, v{VID+1}, s[{sWS}:{sWS+3}], s{S_HF} offen offset:16 sc1")
    A("s_mov_b64 exec, -1")
    A("L_nopub:")
    for i in range(4):
        h_th(i)()
    for f in w_reads(0):
        f()
    A(f"s_cmp_lg_u32 s{S_W}, 7\ns_cbranch_scc1 L_nopoll")
    A(f"s_add_u32 s3, s{S_HF}, 16")
    A.poll(VID + 3, sWS, "s3", "eq", 64, S_TAG, vtmp=21)
    A(f"s_cmp_lg_u32 s{S_CT}, 0\ns_cbranch_scc1 L_nopoll")
    A(f"s_mov_b64 exec, 1\nbuffer_store_dword v20, v{VZ}, s[{sWS}:{sWS+3}], s{S_HF} offen sc1\ns_mov_b64 exec, -1")
    A("s_waitcnt vmcnt(0)")
    A("L_nopoll:")
    A.stamp(6)
    A.wait(vm=("w", 13))
    A("s_barrier")
    A.stamp(7)
    for i in range(4, HD):
        h_th(i)()
    A(f"s_cmp_ge_u32 s{S_W}, 4\ns_cbranch_scc1 L_bwave")
    state = (list(A.vm), A.vm_done, list(A.lg), A.lg_done)
    MAT = opt.get("mat", 6)
    def step(i, acc, extra, wd0):
        wd_at = {2: wd0, 4: wd0 + 1, 7: wd0 + 2, 9: wd0 + 3}
        fl = list(extra)
        if i == MAT:
            A.wait(lg=0)
            A("s_barrier")
        if i + 1 < 28:
            fl += [(k // 2, f) for k, f in enumerate(w_reads(i + 1))]
        if i + HD < 28:
            fl.append((1, h_th(i + HD)))
        if i in wd_at:
            (a_, b_), (c_, d_) = w_dma(wd_at[i])
            fl += [(1, a_), (2, b_), (2, c_), (3, d_)]
        mf = []
        for eb in range(4):
            def f(eb=eb):
                if eb % 2 == 0:
                    A.wait(vm=("h", i) if eb == 0 else None, lg=("wf", i, eb >> 1))
                A.mfma(acc + eb * 4, FW2[i & 1] + 4 * eb, HF + (i % NS) * 4, "0" if i == 0 else None)
            mf.append(f)
        A.weave(mf, fl)

    def ready(cmp, sreg):
        A(cmp)
        A("s_nop 1")
        A("s_cmp_eq_u64 vcc, exec")
        A(f"s_cselect_b32 s{sreg}, 0, {OOB}")

    YS, XS, TS = wpair_addr(2), wpair_addr(2) + 24576, wpair_addr(2) + 32768
    if opt.get("prio", 1):
        A(f"s_setprio {opt.get('prio', 1)}")
    RSD, VPOLL, VT, YA, YB = 20, 22, 4, 80, 96
    S_VOK = S_G2
    A.srd(sDBG, 22, 256)
    setup_a = f"""
    s_lshl_b32 s3, s{S_RB}, 6
    s_add_u32 s3, s3, s{S_JX}
    s_and_b32 s27, s{S_W}, 1
    s_lshl_b32 s27, s27, 5
    s_add_u32 s27, s27, s3
    v_and_b32 v{RSD+1}, 15, v1
    v_lshl_add_u32 v{RSD+1}, v{RSD+1}, 1, s27
    s_cmp_ge_u32 s{S_W}, 2
    s_cselect_b32 s3, -1, 1
    s_cselect_b32 s27, 2048, 0
    v_mul_i32_i24 v{RSD+1}, s3, v{RSD+1}
    v_add_u32 v{RSD+1}, s27, v{RSD+1}
    v_lshrrev_b32 v{RSD}, 11, v{RSD+1}
    v_lshlrev_b32 v{RSD}, 10, v{RSD}
    v_sub_u32 v{RSD+1}, v{RSD+1}, v{RSD}
    v_lshlrev_b32 v{RSD+1}, 2, v{RSD+1}
    v_add_u32 v{RSD+1}, {WS_RSTD}, v{RSD+1}
    v_and_b32 v{VPOLL}, 31, v1
    v_lshlrev_b32 v{VPOLL}, 2, v{VPOLL}
    s_lshl_b32 s3, s{S_T}, 1
    s_and_b32 s27, s{S_W}, 1
    s_add_u32 s3, s3, s27
    s_lshl_b32 s{S_FT}, s3, 14
    s_lshr_b32 s27, s{S_W}, 1
    s_lshl_b32 s27, s27, 13
    s_add_u32 s{S_FT}, s{S_FT}, s27
    s_add_u32 s{S_FT}, s{S_FT}, {WS_VV}
    s_cmp_eq_u32 s{S_W}, 0
    s_cselect_b32 s{S_MW}, {WS_VV + 64*16384}, s{S_FT}
    """
    A(setup_a)

    def v_th():
        r = [lambda: A.vmem(f"buffer_load_dword v{RSD}, v{VT+1}, s[{sWS}:{sWS+3}], 0 offen {HLD}", "rstd")]
        for k in range(2):
            for u in range(8):
                def f(u=u, k=k):
                    if u % 4 == 0:
                        A(f"s_add_u32 s27, s{S_MW if k else S_FT}, {u*1024}")
                    A.vmem(f"buffer_load_dwordx4 {v(VF+32*k+4*u,4)}, v{VPOLL+1 if k else VT}, s[{sWS}:{sWS+3}], s27 offen offset:{(u%4)*1024} {HLD}", ("v", k, u))
                r.append(f)
        return r

    def v_offsets():
        A(f"v_or_b32 v{VT}, s{S_VOK}, v{VL}\nv_or_b32 v{VT+1}, s{S_VOK}, v{RSD+1}")
        A(f"s_cmp_eq_u32 s{S_T}, 0\ns_cselect_b32 s27, s{S_VOK}, {OOB}\nv_or_b32 v{VPOLL+1}, s27, v{VL}")
    vq = []
    for i in range(28):
        ex = []
        if i == VAT - opt.get("vlead", 6):
            ex.append((3, lambda: A.vmem(f"buffer_load_dword v{VPOLL+1}, v{VPOLL}, s[{sDBG}:{sDBG+3}], 0 offen offset:128 sc1", "vpoll")))
        if i == VAT:
            A.wait(vm="vpoll")
            ready(f"v_cmp_ne_u32 vcc, 0, v{VPOLL+1}", S_VOK)
            v_offsets()
            vq = v_th()
        if vq:
            per = -(-17 // (28 - VAT))
            ex += [(k % 4, f) for k, f in enumerate(vq[:per])]
            vq = vq[per:]
        step(i, AC2, ex, 14)
    assert not vq
    A.stamp(8)
    A(f"""
    s_lshl_b32 s3, s2, 14
    s_lshl_b32 s27, s{S_W}, 12
    s_add_u32 s3, s3, s27
    s_add_u32 s{S_H}, s3, {WS_PART}
    s_and_b32 s27, s{S_PT}, 0xff
    v_mov_b32 v{WC}, s27
    s_movk_i32 s27, 0xff
    s_lshr_b32 s3, s{S_W}, 1
    s_lshl_b32 s{S_GH}, s3, 14
    s_sub_u32 s{S_GH}, s{S_GH}, s{S_MX}
    s_lshl_b32 s3, s3, 13
    s_add_u32 s3, s3, 49152
    s_sub_u32 s3, s3, s{S_MX}
    """)
    for eb in range(4):
        for r in range(4):
            A(f"v_bfi_b32 v{AC2+4*eb+r}, s27, v{WC}, v{AC2+4*eb+r}")
        A.vmem(f"buffer_store_dwordx4 {v(AC2+4*eb,4)}, v{VL}, s[{sWS}:{sWS+3}], s{S_H} offen offset:{eb*1024} sc1", "pst")
    for eb in range(4):
        A(f"v_add_u32 v{WB+eb}, s3, v{WA2+eb}\nv_add_u32 v{WA2+eb}, s{S_GH}, v{WA2+eb}")
    A.wait(vm=("w", 17))
    A("s_barrier")
    for f in w_reads(28):
        f()
    A(f"s_cmp_eq_u32 s{S_VOK}, 0\ns_cbranch_scc1 L_vok")
    A(f"s_movk_i32 s3, 128")
    A.poll(VPOLL, sDBG, "s3", "ne0", 64, vtmp=VPOLL + 1)
    A(f"s_mov_b32 s{S_VOK}, 0")
    v_offsets()
    sv, sd = list(A.vm), A.vm_done
    for f in v_th():
        f()
    A.vm, A.vm_done = sv, sd
    A("s_waitcnt vmcnt(0)")
    A("L_vok:")
    A.stamp(9)
    A(f"""
    s_lshl_b32 s3, s{S_W}, 12
    s_add_u32 s3, s3, {YS}
    v_add_u32 v{WC+1}, s3, v{VL}
    s_lshl_b32 s3, s{S_W}, 6
    s_add_u32 s3, s3, {YS + 20480}
    v_and_b32 v{WC+2}, 15, v1
    v_lshl_add_u32 v{WC+2}, v{WC+2}, 2, s3
    s_cmp_eq_u32 s{S_T}, 0
    s_cbranch_scc1 L_vspecial
    """)

    def vpart(special):
        for i in range(28, 36):
            u = i - 28
            nm = 8 if special else 4
            fl = [(k * nm // 8, f) for k, f in enumerate(w_reads(i + 1))] if i + 1 < 36 else []
            mf = []
            for eb in range(4):
                def f(eb=eb):
                    if eb % 2 == 0:
                        A.wait(vm=("v", 1 if special else 0, u) if eb == 0 else None, lg=("wf", i, eb >> 1))
                    A.mfma(YA + eb * 4, FW2[i & 1] + 4 * eb, VF + 4 * u, "0" if u == 0 else None)
                mf.append(f)
                if special:
                    mf.append(lambda eb=eb: A.mfma(YB + eb * 4, FW2[i & 1] + 4 * eb, VF + 32 + 4 * u, "0" if u == 0 else None))
            A.weave(mf, fl)
        A(f"ds_write_b32 v{WC+2}, v{RSD}")
        A("s_nop 6")
        for eb in range(4):
            A(f"ds_write_b128 v{WC+1}, {v(YA+4*eb,4)} offset:{eb*1024}")
        if special:
            L = A.label("L_nopm")
            A(f"s_cmp_lg_u32 s{S_W}, 0\ns_cbranch_scc1 {L}")
            A("s_mov_b32 s26, 0x00010001\ns_mov_b32 s27, 0x00010001")
            for r in range(16):
                A(f"v_cndmask_b32 v{YB+r}, v{YA+r}, v{YB+r}, s[26:27]")
            for eb in range(4):
                A(f"ds_write_b128 v{WC+1}, {v(YB+4*eb,4)} offset:{16384 + eb*1024}")
            A(f"{L}:")
    sv = (list(A.vm), A.vm_done, list(A.lg), A.lg_done)
    vpart(False)
    A("s_branch L_vdone")
    A("L_vspecial:")
    A.vm, A.vm_done, A.lg, A.lg_done = sv
    vpart(True)
    A("L_vdone:")
    A("s_waitcnt lgkmcnt(0)")
    A.stamp(10)
    A("s_barrier")
    A.dump_stamps(11)
    A("s_endpgm")

    A("L_bwave:")
    A.vm, A.vm_done, A.lg, A.lg_done = state
    VO, PR, XU, YP = 4, 80, 96, 192
    M2B, PAT = opt.get("m2b", 18), opt.get("pat", 24)
    A.srd(sOUT, 20, 2048 * 896)
    A(f"""
    s_lshl_b32 s3, s{S_RB}, 6
    s_add_u32 s3, s3, s{S_JX}
    s_and_b32 s27, s{S_W}, 1
    s_lshl_b32 s27, s27, 5
    s_add_u32 s27, s27, s3
    v_lshrrev_b32 v20, 3, v1
    v_lshl_add_u32 v21, v20, 1, s27
    s_bitcmp1_b32 s{S_W}, 1
    s_cselect_b32 s3, -1, 1
    s_cselect_b32 s27, 2048, 0
    s_cselect_b32 s{S_MW}, -1.0, 1.0
    v_mul_i32_i24 v21, s3, v21
    v_add_u32 v21, s27, v21
    s_mul_i32 s3, s3, {16*896}
    s_lshl_b32 s27, s{S_CT}, 7
    v_mul_u32_u24 v22, 896, v21
    v_add_u32 v22, s3, v22
    """)
    A.fix2048(21, 23)
    A(f"""
    v_mul_u32_u24 v21, 896, v21
    v_and_b32 v23, 7, v1
    v_xor_b32 v23, v23, v20
    v_lshlrev_b32 v23, 4, v23
    v_add_u32 v23, s27, v23
    v_add_u32 v{VO}, v21, v23
    v_add_u32 v{VO+1}, v22, v23
    s_xor_b32 s3, s2, 1
    s_lshl_b32 s3, s3, 14
    s_and_b32 s27, s{S_W}, 3
    s_lshl_b32 s{S_FT}, s27, 12
    s_add_u32 s{S_FT}, s{S_FT}, s3
    s_add_u32 s{S_FT}, s{S_FT}, {WS_PART}
    s_lshl_b32 s{S_MX}, s27, 11
    """)

    def p_loads(track):
        for eb in range(4):
            t_ = f"buffer_load_dwordx4 {v(PR+4*eb,4)}, v{VL}, s[{sWS}:{sWS+3}], s{S_FT} offen offset:{eb*1024} sc1"
            A.vmem(t_, "part") if track else A(t_)
    for i in range(28):
        ex = []
        if i == M2B:
            A.wait(vm=("w", 21), lg=0)
            A("s_barrier")
            for ps in range(2):
                a_, b_ = A.dma2(VO + ps, sX, "0", f"s_add_u32 m0, s{S_MX}, {XS + ps*1024}", "xr")
                ex += [(2 * ps, a_), (2 * ps + 1, b_)]
        if i == PAT:
            ex.append((3, lambda: p_loads(True)))
        step(i, AC2, ex, 18)
    A.stamp(8)
    A(f"""
    v_and_b32 v20, 15, v1
    v_lshrrev_b32 v21, 4, v1
    v_lshrrev_b32 v22, 1, v21
    v_and_b32 v23, 7, v20
    v_xor_b32 v22, v22, v23
    v_lshlrev_b32 v22, 4, v22
    v_lshl_add_u32 v22, v20, 7, v22
    v_and_b32 v21, 1, v21
    v_lshl_add_u32 v22, v21, 3, v22
    v_add_u32 v22, s{S_MX}, v22
    v_add_u32 v8, {XS}, v22
    """)
    for eb in range(1, 4):
        A(f"v_xor_b32 v{8+eb}, {32*eb}, v8")
    A.wait(vm="xr")
    for eb in range(4):
        A(f"ds_read_b64 {v(24+2*eb,2)}, v{8+eb}")
    A(f"""
    s_and_b32 s3, s{S_W}, 1
    s_lshl_b32 s3, s3, 12
    s_add_u32 s3, s3, {YS}
    v_add_u32 v13, s3, v{VL}
    s_xor_b32 s27, s{S_W}, 6
    s_or_b32 s27, s27, s{S_T}
    s_cmp_eq_u32 s27, 0
    s_cselect_b32 s3, {YS + 16384}, s3
    v_add_u32 v12, s3, v{VL}
    s_lshl_b32 s3, s{S_W}, 6
    s_add_u32 s3, s3, {YS + 20480 - 256}
    v_lshl_add_u32 v14, v20, 2, s3
    v_add_u32 v15, s{S_MX}, v{VL}
    v_add_u32 v15, {TS}, v15
    s_and_b32 s26, s{S_PT}, 0xff
    s_mul_i32 s26, s26, 0x01010101
    s_mov_b32 s27, 0x0c0c0400
    s_waitcnt lgkmcnt(0)
    """)
    for eb in range(4):
        for hh in range(2):
            A(f"v_lshlrev_b32 v{XU+4*eb+2*hh}, 16, v{24+2*eb+hh}\nv_and_b32 v{XU+4*eb+2*hh+1}, 0xffff0000, v{24+2*eb+hh}")
    A(f"s_mov_b32 s{S_KX}, 0x40000")
    A("L_pchk:")
    A("s_waitcnt vmcnt(0)")
    for k in range(8):
        A(f"v_perm_b32 v{32+k}, v{PR+2*k+1}, v{PR+2*k}, s27")
    for k in range(4):
        A(f"v_lshl_or_b32 v{32+2*k}, v{33+2*k}, 16, v{32+2*k}")
    for k in range(4):
        A(f"v_xor_b32 v{32+2*k}, s26, v{32+2*k}")
    A("v_or3_b32 v32, v32, v34, v36\nv_or_b32 v32, v32, v38\nv_cmp_eq_u32 vcc, 0, v32\ns_nop 1\ns_cmp_eq_u64 vcc, exec\ns_cbranch_scc1 L_pok")
    p_loads(False)
    A(f"s_sub_u32 s{S_KX}, s{S_KX}, 1\ns_cbranch_scc0 L_pchk")
    A("L_pok:")
    A.stamp(9)
    for r in range(16):
        A(f"v_and_b32 v{PR+r}, 0xffffff00, v{PR+r}")
    for eb in range(4):
        for hh in range(2):
            A(f"v_pk_add_f32 {v(AC2+4*eb+2*hh,2)}, {v(AC2+4*eb+2*hh,2)}, {v(PR+4*eb+2*hh,2)}")
    A(f"s_xor_b32 s3, s{S_W}, 4\ns_or_b32 s3, s3, s{S_JX}\ns_cmp_eq_u32 s3, 0\ns_cselect_b32 s3, 0, {OOB}\nv_mov_b32 v21, s3\nv_mov_b32 v20, s{S_PT}")
    A(f"buffer_store_dword v20, v21, s[{sWS}:{sWS+3}], s{S_PF} offen sc1")
    A("s_barrier")
    A.stamp(10)
    A("ds_read_b32 v18, v14")
    for eb in range(4):
        A(f"ds_read_b128 {v(YP+4*eb,4)}, v12 offset:{eb*1024}")
    for eb in range(4):
        A(f"ds_read_b128 {v(YP+16+4*eb,4)}, v13 offset:{8192 + eb*1024}")
    A(f"v_mov_b32 v19, s{S_MW}")
    for eb in range(4):
        A(f"v_add_u32 v{8+eb}, {TS - XS}, v{8+eb}")
    A("s_waitcnt lgkmcnt(8)")
    for eb in range(4):
        for hh in range(2):
            A(f"v_pk_fma_f32 {v(XU+4*eb+2*hh,2)}, {v(AC2+4*eb+2*hh,2)}, v[18:19], {v(XU+4*eb+2*hh,2)} op_sel_hi:[1,0,1]")
    A("s_waitcnt lgkmcnt(4)")
    for eb in range(4):
        for hh in range(2):
            A(f"v_pk_add_f32 {v(XU+4*eb+2*hh,2)}, {v(XU+4*eb+2*hh,2)}, {v(YP+4*eb+2*hh,2)}")
    A("s_waitcnt lgkmcnt(0)")
    for eb in range(4):
        for hh in range(2):
            A(f"v_pk_fma_f32 {v(XU+4*eb+2*hh,2)}, {v(YP+16+4*eb+2*hh,2)}, v[18:19], {v(XU+4*eb+2*hh,2)} op_sel:[0,1,0] op_sel_hi:[1,1,1]")
        A(f"v_cvt_pk_bf16_f32 v{24+2*eb}, v{XU+4*eb}, v{XU+4*eb+1}\nv_cvt_pk_bf16_f32 v{25+2*eb}, v{XU+4*eb+2}, v{XU+4*eb+3}")
        A(f"ds_write_b64 v{8+eb}, {v(24+2*eb,2)}")
    A("s_waitcnt lgkmcnt(0)")
    A("ds_read_b128 v[32:35], v15\nds_read_b128 v[36:39], v15 offset:1024")
    A("s_waitcnt lgkmcnt(1)")
    A(f"buffer_store_dwordx4 v[32:35], v{VO}, s[{sOUT}:{sOUT+3}], 0 offen")
    A("s_waitcnt lgkmcnt(0)")
    A(f"buffer_store_dwordx4 v[36:39], v{VO+1}, s[{sOUT}:{sOUT+3}], 0 offen")
    A.dump_stamps(11)
    A("s_endpgm")

    A.reset()
    A("L_dft:")
    S_Q, S_VAR, S_M, S_N, S_P = 63, 96, 97, 98, 99
    A(f"""
    s_sub_u32 s3, s{S_J}, 28
    s_lshl_b32 s{S_Q}, s{S_XCD}, 2
    s_add_u32 s{S_Q}, s{S_Q}, s3
    s_lshr_b32 s{S_VAR}, s{S_XCD}, 1
    s_and_b32 s{S_M}, s{S_XCD}, 1
    s_lshl_b32 s{S_M}, s{S_M}, 1
    s_lshr_b32 s27, s3, 1
    s_add_u32 s{S_M}, s{S_M}, s27
    s_and_b32 s{S_N}, s3, 1
    s_and_b32 s{S_P}, s{S_VAR}, 1
    """)
    RAW, EO, TF, TM, ST = 32, 96, 224, 232, 240
    A(f"""
    s_lshl_b32 s3, s{S_Q}, 4
    s_lshl_b32 s27, s{S_W}, 2
    s_add_u32 s3, s3, s27
    v_lshrrev_b32 v2, 4, v1
    v_add_u32 v2, s3, v2
    v_and_b32 v3, 15, v1
    v_sub_u32 v5, 2048, v2
    v_sub_u32 v6, 1024, v2
    v_add_u32 v7, 1024, v2
    v_cmp_eq_u32 s[100:101], 0, v2
    v_mov_b32 v8, 512
    v_mov_b32 v9, 1536
    v_mov_b32 v4, v2
    v_cndmask_b32 v5, v5, v8, s[100:101]
    v_cndmask_b32 v7, v7, v9, s[100:101]
    v_lshlrev_b32 v8, 4, v3
    v_sub_u32 v9, 880, v8
    v_add_u32 v10, 256, v8
    v_sub_u32 v11, 624, v8
    v_mov_b32 v12, {OOB}
    v_cmp_gt_u32 vcc, 12, v3
    s_waitcnt lgkmcnt(0)
    v_cndmask_b32 v10, v12, v10, vcc
    v_cndmask_b32 v11, v12, v11, vcc
    """)
    A.srd(sX, 4, 2048 * 896)
    A.srd(sWS, 24, WS_SIZE + (0x40000 if stamps else 0))
    A(f"s_cmp_gt_u32 s{S_W}, 4\ns_cbranch_scc1 L_end")
    A(f"s_cmp_eq_u32 s{S_W}, 4\ns_cbranch_scc1 L_dft_helper")
    for rho in range(4):
        A(f"v_mul_u32_u24 v13, 896, v{4+rho}")
        for t in range(2):
            for fm in range(2):
                A(f"v_add_u32 v{14+2*t+fm}, v13, v{8+2*t+fm}")
        for t in range(2):
            for fm in range(2):
                A.vmem(f"buffer_load_dwordx4 {v(RAW + (rho*2+t)*8 + 4*fm, 4)}, v{14+2*t+fm}, s[{sX}:{sX+3}], 0 offen", ("x", rho))
    S_CM = 14
    A(f"""
    s_cmp_ge_u32 s{S_VAR}, 2
    s_cselect_b32 s{sC}, s8, s6
    s_cselect_b32 s{sC+1}, s9, s7
    s_and_b32 s{sC+1}, s{sC+1}, 0xffff
    s_mov_b32 s{sC+2}, {2048*4096}
    s_mov_b32 s{sC+3}, 0x20000
    s_lshl_b32 s3, s{S_M}, 7
    s_lshl_b32 s27, s{S_W}, 5
    s_add_u32 s3, s3, s27
    s_lshl_b32 s3, s3, 1
    s_add_u32 s3, s3, s{S_P}
    s_lshl_b32 s3, s3, 12
    v_lshrrev_b32 v13, 3, v1
    v_lshlrev_b32 v13, 13, v13
    v_add_u32 v13, s3, v13
    v_lshrrev_b32 v14, 4, v1
    v_and_b32 v15, 7, v1
    v_xor_b32 v14, v14, v15
    v_xor_b32 v15, 4, v14
    v_lshl_add_u32 v16, v14, 4, v13
    v_lshl_add_u32 v17, v15, 4, v13
    v_add_u32 v17, {8*8192}, v17
    v_add_u32 v18, {16*8192}, v16
    v_add_u32 v19, {16*8192}, v17
    s_lshl_b32 s{S_CM}, s{S_W}, 12
    """)

    c_dmas = [A.dma2(16 + u, sC, "0", f"s_add_u32 m0, s{S_CM}, {stg*16384 + u*1024 - stg*128}", "c", imm=stg * 128)
              for stg in range(8) for u in range(4)]
    A.stamp(1)
    A(f"""
    v_cmp_eq_u32 s[26:27], 0, v3
    v_mov_b32 v21, 2.0
    v_mov_b32 v23, 0
    v_cndmask_b32 v20, 2.0, 1.0, s[26:27]
    v_cndmask_b32 v23, v23, v21, vcc
    v_cmp_eq_u32 s[26:27], 12, v3
    v_mov_b32 v22, v23
    s_nop 0
    v_cndmask_b32 v22, v22, 1.0, s[26:27]
    """)
    E = lambda rho, t: EO + (rho * 2 + t) * 16
    O = lambda rho, t: EO + (rho * 2 + t) * 16 + 8
    for rho in range(4):
        A.wait(vm=("x", rho))
        if rho == opt.get("cat", 2):
            A.sprinkle(c_dmas, opt.get("cev", 18))
        m0_ = RAW + (rho * 2) * 8 + 4
        m1_ = RAW + (rho * 2 + 1) * 8 + 4
        A(f"v_mov_b32_dpp v24, v{m0_} row_shr:1 row_mask:0xf bank_mask:0xf bound_ctrl:0")
        A(f"v_mov_b32_dpp v25, v{m0_} row_ror:1 row_mask:0xf bank_mask:0xf")
        A("s_nop 1")
        A(f"v_mov_b32_dpp v25, v{m1_} row_shr:1 row_mask:0xf bank_mask:0xf")
        for t in range(2):
            F = RAW + (rho * 2 + t) * 8
            M = F + 4
            for i in range(4):
                A(f"v_lshlrev_b32 v{TF+2*i}, 16, v{F+i}\nv_and_b32 v{TF+2*i+1}, 0xffff0000, v{F+i}")
            A(f"v_lshlrev_b32 v{TM}, 16, v{24+t}")
            for j in range(1, 8):
                k = 8 - j
                if k & 1:
                    A(f"v_and_b32 v{TM+j}, 0xffff0000, v{M + k//2}")
                else:
                    A(f"v_lshlrev_b32 v{TM+j}, 16, v{M + k//2}")
            for i in range(4):
                A(f"v_pk_add_f32 {v(E(rho,t)+2*i,2)}, {v(TF+2*i,2)}, {v(TM+2*i,2)}")
                A(f"v_pk_add_f32 {v(O(rho,t)+2*i,2)}, {v(TF+2*i,2)}, {v(TM+2*i,2)} neg_lo:[0,1] neg_hi:[0,1]")
            sm, sq = ST + 4 * rho, ST + 4 * rho + 2
            for i in range(4):
                if t == 0 and i == 0:
                    A(f"v_pk_add_f32 {v(sm,2)}, {v(E(rho,0),2)}, {v(E(rho,0)+2,2)}")
                elif not (t == 0 and i == 1):
                    A(f"v_pk_add_f32 {v(sm,2)}, {v(sm,2)}, {v(E(rho,t)+2*i,2)}")
                if t == 0 and i == 0:
                    A(f"v_pk_mul_f32 {v(sq,2)}, {v(E(rho,0),2)}, {v(E(rho,0),2)}")
                else:
                    A(f"v_pk_fma_f32 {v(sq,2)}, {v(E(rho,t)+2*i,2)}, {v(E(rho,t)+2*i,2)}, {v(sq,2)}")
                A(f"v_pk_fma_f32 {v(sq,2)}, {v(O(rho,t)+2*i,2)}, {v(O(rho,t)+2*i,2)}, {v(sq,2)}")
    A.stamp(2)
    for rho in range(4):
        A(f"v_add_f32 v{ST+4*rho}, v{ST+4*rho}, v{ST+4*rho+1}\nv_add_f32 v{ST+4*rho+2}, v{ST+4*rho+2}, v{ST+4*rho+3}")
    for sh in (8, 4, 2, 1):
        for i in range(8):
            r = ST + 2 * i
            A(f"v_add_f32_dpp v{r}, v{r}, v{r} row_ror:{sh} row_mask:0xf bank_mask:0xf")
    R_, C_ = 24, 28
    A(f"s_mov_b32 s3, {0x3b124925}\ns_mov_b32 s26, {0x3a924925}\ns_mov_b32 s27, {0x3727c5ac}")
    seq = [
        lambda b: f"v_mul_f32 v{b}, s3, v{b}\nv_mul_f32 v{b+2}, s26, v{b+2}",
        lambda b: f"v_fma_f32 v{b+2}, -v{b}, v{b}, v{b+2}",
        lambda b: f"v_max_f32 v{b+2}, 0, v{b+2}",
        lambda b: f"v_cvt_pk_bf16_f32 v{b+1}, v{b}, v{b+2}",
        lambda b: f"v_lshlrev_b32 v{b}, 16, v{b+1}\nv_and_b32 v{b+2}, 0xffff0000, v{b+1}",
        lambda b: f"v_add_f32 v{b+2}, s27, v{b+2}",
        lambda b: f"v_cvt_pk_bf16_f32 v{b+2}, v{b+2}, v{b+2}",
        lambda b: f"v_and_b32 v{b+2}, 0xffff0000, v{b+2}",
        lambda b: f"v_sqrt_f32 v{b+2}, v{b+2}",
        lambda b: f"v_cvt_pk_bf16_f32 v{b+2}, v{b+2}, v{b+2}",
        lambda b: f"v_and_b32 v{b+2}, 0xffff0000, v{b+2}",
    ]
    for f in seq:
        for rho in range(4):
            A(f(ST + 4 * rho))
    for rho in range(4):
        A(f"v_rcp_f32 v{R_+rho}, v{ST+4*rho+2}")
    A("s_nop 0")
    for rho in range(4):
        A(f"v_mul_f32 v{C_+rho}, v{ST+4*rho}, v{R_+rho}")
    A(f"""
    v_cmp_eq_u32 vcc, 1, v3
    v_cmp_eq_u32 s[26:27], 2, v3
    v_mov_b32 v8, v4
    v_mov_b32 v9, v{R_}
    v_cndmask_b32 v8, v8, v5, vcc
    v_cndmask_b32 v9, v9, v{R_+1}, vcc
    v_cmp_eq_u32 vcc, 3, v3
    v_cndmask_b32 v8, v8, v6, s[26:27]
    v_cndmask_b32 v9, v9, v{R_+2}, s[26:27]
    v_cndmask_b32 v8, v8, v7, vcc
    v_cndmask_b32 v9, v9, v{R_+3}, vcc
    v_cmp_gt_u32 vcc, 4, v3
    v_lshlrev_b32 v8, 2, v8
    v_add_u32 v8, {WS_RSTD}, v8
    v_cndmask_b32 v8, v12, v8, vcc
    """)
    A.vmem(f"buffer_store_dword v9, v8, s[{sWS}:{sWS+3}], 0 offen sc1")
    if len(A.spr["q"]) & 1:
        A("s_nop 0"); A.spr["q"].pop(0)()
    A.spr["on"] = False
    A(f"s_or_b32 s3, s{S_Q}, s{S_W}\ns_cmp_lg_u32 s3, 0\ns_cbranch_scc1 L_no512")
    A(f"v_add_f32 v10, v{C_+1}, v{C_+3}")
    for t in range(2):
        for j in range(8):
            A(f"v_mul_f32 v{TF+j}, v10, v{20+2*t+(1 if j else 0)}")
            A(f"v_fma_f32 v{TF+j}, v{E(1,t)+j}, v{R_+1}, -v{TF+j}")
            A(f"v_fma_f32 v{TF+j}, v{E(3,t)+j}, v{R_+3}, v{TF+j}")
            A(f"v_mul_f32 v{TM+j}, v{O(1,t)+j}, v{R_+1}")
            A(f"v_fma_f32 v{TM+j}, -v{O(3,t)+j}, v{R_+3}, v{TM+j}")
        for i in range(4):
            A(f"v_cvt_pk_bf16_f32 v{RAW+8*t+i}, v{TF+2*i}, v{TF+2*i+1}")
            A(f"v_cvt_pk_bf16_f32 v{RAW+8*t+4+i}, v{TM+2*i}, v{TM+2*i+1}")
    A(f"v_lshlrev_b32 v10, 4, v3\nv_add_u32 v10, {WS_X512}, v10\nv_cndmask_b32 v10, v12, v10, s[100:101]")
    for t in range(2):
        A(f"buffer_store_dwordx4 {v(RAW+8*t,4)}, v10, s[{sWS}:{sWS+3}], 0 offen offset:{256*t} sc1")
        A(f"buffer_store_dwordx4 {v(RAW+8*t+4,4)}, v10, s[{sWS}:{sWS+3}], 0 offen offset:{3*512+256*t} sc1")
    A("s_nop 1")
    A("L_no512:")
    A.spr["on"] = True
    for r in (R_ + 1, R_ + 3, C_ + 1, C_ + 3):
        A(f"v_cndmask_b32 v{r}, v{r}, 0, s[100:101]")
    A(f"v_add_f32 v{C_}, v{C_}, v{C_+1}\nv_add_f32 v{C_+2}, v{C_+2}, v{C_+3}")
    OUT = lambda var, t: RAW + (var * 2 + t) * 8
    bl = "op_sel_hi:[1,0,1]"
    bh = "op_sel:[0,1,0] op_sel_hi:[1,1,1]"
    for t in range(2):
        W = 20 + 2 * t
        A(f"v_pk_mul_f32 v[8:9], {v(W,2)}, {v(C_,2)} op_sel_hi:[1,0] neg_lo:[1,0] neg_hi:[1,0]")
        A(f"v_pk_mul_f32 v[10:11], {v(W,2)}, {v(C_+2,2)} op_sel_hi:[1,0] neg_lo:[1,0] neg_hi:[1,0]")
        for i in range(4):
            s3lo, s3hi = (0, 1) if i == 0 else (1, 1)
            a_, b_ = TF, TF + 2
            A(f"v_pk_fma_f32 {v(a_,2)}, {v(E(0,t)+2*i,2)}, {v(R_,2)}, v[8:9] op_sel:[0,0,{s3lo}] op_sel_hi:[1,0,{s3hi}]")
            A(f"v_pk_fma_f32 {v(b_,2)}, {v(E(2,t)+2*i,2)}, {v(R_+2,2)}, v[10:11] op_sel:[0,0,{s3lo}] op_sel_hi:[1,0,{s3hi}]")
            A(f"v_pk_mul_f32 {v(TM,2)}, {v(O(0,t)+2*i,2)}, {v(R_,2)} op_sel_hi:[1,0]")
            A(f"v_pk_mul_f32 {v(TM+2,2)}, {v(O(3,t)+2*i,2)}, {v(R_+2,2)} op_sel:[0,1] op_sel_hi:[1,1]")
            A(f"v_pk_fma_f32 {v(a_,2)}, {v(E(1,t)+2*i,2)}, {v(R_,2)}, {v(a_,2)} {bh}")
            A(f"v_pk_fma_f32 {v(b_,2)}, {v(E(3,t)+2*i,2)}, {v(R_+2,2)}, {v(b_,2)} {bh}")
            A(f"v_pk_fma_f32 {v(TM,2)}, {v(O(1,t)+2*i,2)}, {v(R_,2)}, {v(TM,2)} {bh} neg_lo:[1,0,0] neg_hi:[1,0,0]")
            A(f"v_pk_fma_f32 {v(TM+2,2)}, {v(O(2,t)+2*i,2)}, {v(R_+2,2)}, {v(TM+2,2)} {bl} neg_lo:[1,0,0] neg_hi:[1,0,0]")
            A(f"v_pk_add_f32 {v(OUT(0,t)+2*i,2)}, {v(a_,2)}, {v(b_,2)}")
            A(f"v_pk_add_f32 {v(OUT(1,t)+2*i,2)}, {v(a_,2)}, {v(b_,2)} neg_lo:[0,1] neg_hi:[0,1]")
            A(f"v_pk_add_f32 {v(OUT(2,t)+2*i,2)}, {v(TM,2)}, {v(TM+2,2)}")
            A(f"v_pk_add_f32 {v(OUT(3,t)+2*i,2)}, {v(TM,2)}, {v(TM+2,2)} neg_lo:[0,1] neg_hi:[0,1]")
    PKD = EO
    FS = 131072
    A(f"""
    v_lshrrev_b32 v8, 4, v1
    v_lshlrev_b32 v8, 13, v8
    v_lshrrev_b32 v9, 1, v3
    v_lshl_add_u32 v8, v9, 9, v8
    v_lshl_add_u32 v8, v9, 4, v8
    v_and_b32 v9, 1, v3
    v_lshl_add_u32 v8, v9, 7, v8
    s_lshr_b32 s3, s{S_W}, 1
    s_lshl_b32 s3, s3, 8
    s_and_b32 s27, s{S_W}, 1
    s_lshl_b32 s27, s27, 3
    s_add_u32 s3, s3, s27
    s_add_u32 s3, s3, {FS}
    v_add_u32 v8, s3, v8
    """)
    for j in range(1, 8):
        A(f"v_xor_b32 v{8+j}, {j<<4}, v8")
    for t in range(2):
        for j in range(8):
            A(f"v_permlane16_swap_b32 v{OUT(0,t)+j}, v{OUT(1,t)+j}")
            A(f"v_permlane16_swap_b32 v{OUT(2,t)+j}, v{OUT(3,t)+j}")
        for j in range(8):
            p = PKD + (t * 8 + j) * 2
            A(f"v_cvt_pk_bf16_f32 v{p}, v{OUT(0,t)+j}, v{OUT(1,t)+j}")
            A(f"v_cvt_pk_bf16_f32 v{p+1}, v{OUT(2,t)+j}, v{OUT(3,t)+j}")
        A("s_nop 0")
        for j in range(8):
            p = PKD + (t * 8 + j) * 2
            A(f"v_permlane32_swap_b32 v{p}, v{p+1}")
        for j in range(8):
            p = PKD + (t * 8 + j) * 2
            A.lds(f"ds_write_b64 v{8+j}, {v(p,2)} offset:{t*4096}")
    A(f"""
    v_lshrrev_b32 v26, 5, v1
    v_and_b32 v27, 31, v1
    v_xor_b32 v28, v27, v26
    v_lshlrev_b32 v28, 4, v28
    v_lshl_add_u32 v28, v26, 9, v28
    s_lshl_b32 s3, s{S_W}, 13
    s_add_u32 s3, s3, {FS}
    v_add_u32 v28, s3, v28
    v_xor_b32 v29, 32, v28
    v_xor_b32 v30, 64, v28
    v_xor_b32 v31, 96, v28
    v_lshlrev_b32 v27, 4, v27
    v_lshl_add_u32 v27, v26, 14, v27
    s_lshr_b32 s3, s{S_Q}, 1
    s_lshl_b32 s3, s3, 10
    s_and_b32 s27, s{S_Q}, 1
    s_lshl_b32 s27, s27, 9
    s_add_u32 s3, s3, s27
    s_lshl_b32 s27, s{S_W}, 18
    s_add_u32 s3, s3, s27
    s_add_u32 s3, s3, {WS_XF}
    """)
    A.sprinkle_flush()
    A.wait(lg=0)
    A("s_barrier")
    for i in range(8):
        A.lds(f"ds_read_b128 {v(RAW+4*i,4)}, v{28 + (i&3)} offset:{i*1024}", ("rb", i))
    for i in range(8):
        A.wait(lg=("rb", i))
        A.vmem(f"buffer_store_dwordx4 {v(RAW+4*i,4)}, v27, s[{sWS}:{sWS+3}], s3 offen sc1", "xst")
        A(f"s_add_u32 s3, s3, 32768")
    A.stamp(3)
    SACC, SEX, CF, XF = 32, 96, [104, 136], 168
    KALT, B512, X5 = 4, 8, [12, 16]
    CA = 22
    S_XA = 15
    A(f"""
    v_and_b32 v2, 15, v1
    v_lshrrev_b32 v3, 4, v1
    v_lshrrev_b32 v26, 1, v2
    v_xor_b32 v26, v26, v3
    v_lshlrev_b32 v26, 4, v26
    v_lshl_add_u32 v{CA}, v2, 7, v26
    v_xor_b32 v{CA+1}, 64, v{CA}
    v_add_u32 v{CA+2}, 0x10000, v{CA}
    v_add_u32 v{CA+3}, 0x10000, v{CA+1}
    v_and_b32 v26, 1, v1
    s_cmp_ge_u32 s{S_VAR}, 2
    s_cselect_b32 s100, 1, 0
    s_cselect_b32 s101, 0x80008000, 0
    v_xor_b32 v26, s100, v26
    v_lshlrev_b32 v26, 15, v26
    v_or_b32 v{B512}, 0x3f80, v26
    s_lshl_b32 s26, s{S_N}, 3
    s_lshl_b32 s27, s{S_W}, 1
    s_add_u32 s26, s26, s27
    s_lshl_b32 s3, s{S_VAR}, 4
    s_add_u32 s3, s3, s26
    s_lshl_b32 s{S_XA}, s3, 14
    s_add_u32 s{S_XA}, s{S_XA}, {WS_XF}
    s_lshl_b32 s26, s26, 5
    s_lshl_b32 s27, s{S_VAR}, 9
    s_add_u32 s26, s26, s27
    s_add_u32 s26, s26, {WS_X512}
    v_lshl_add_u32 v27, v1, 1, s26
    s_add_u32 s3, s{S_VAR}, 1
    s_and_b32 s3, s3, 2
    s_cmp_eq_u32 s3, 0
    s_cselect_b32 s3, 16, 0
    v_cmp_gt_u32 vcc, s3, v1
    v_mov_b32 v26, {OOB}
    v_lshlrev_b32 v28, 4, v1
    v_cndmask_b32 v27, v26, v27, vcc
    v_add_u32 v29, 16384, v28
    s_or_b32 s3, s{S_M}, s{S_VAR}
    s_cmp_eq_u32 s3, 0
    s_cselect_b32 vcc_lo, 1, 0
    s_mov_b32 vcc_hi, 0
    """)
    for i in range(4):
        A(f"v_mov_b32 v{KALT+i}, 0xbf803f80")
    for i in range(1, 4):
        A(f"v_mov_b32 v{B512+i}, 0\nv_mov_b32 v{X5[0]+i}, 0\nv_mov_b32 v{X5[1]+i}, 0")
    for i in range(8):
        A(f"v_mov_b32 v{SEX+i}, 0")
    A.wait(vm="xst")
    A("s_barrier")
    A.stamp(4)
    A.wait(vm=0)

    def c_reads(sb):
        stg, q = sb >> 1, sb & 1
        r = []
        for tb in range(8):
            a_ = stg * 16384 + tb * 2048
            r.append(lambda tb=tb, a_=a_: A.lds(f"ds_read_b128 {v(CF[sb&1]+4*tb,4)}, v{CA + 2*(a_>>16) + q} offset:{a_ & 0xffff}", ("cf", sb)))
        return r

    def x_th(sb):
        r = []
        for a_ in range(2):
            def f(a_=a_):
                if sb and sb % 4 == 0 and a_ == 0:
                    A(f"s_add_u32 s{S_XA}, s{S_XA}, 4096")
                A.vmem(f"buffer_load_dwordx4 {v(XF + (sb % 11)*8 + 4*a_, 4)}, v{28+a_}, s[{sWS}:{sWS+3}], s{S_XA} offen offset:{(sb%4)*1024} {HLD}", ("xf", sb))
            r.append(f)
        return r

    def extra(xa0, xa1):
        L = A.label("L_nx")
        A(f"s_cbranch_vccz {L}")
        A.mfma(SEX, xa0, KALT)
        A.mfma(SEX + 4, xa1, KALT)
        A(f"{L}:")
    for f in c_reads(0):
        f()
    A("s_barrier")
    A.stamp(5)
    XD = opt.get("xd", 5)
    for sb in range(XD):
        for f in x_th(sb):
            f()
    xnext = XD
    for sb in range(16):
        fl = list(enumerate(c_reads(sb + 1))) if sb + 1 < 16 else []
        nx = [k for k in (xnext, xnext + 1) if k <= min(15, sb + 10)]
        xnext += len(nx)
        k0 = 0
        for k in nx:
            for f in x_th(k):
                fl.append((8 + 2 * k0, f)); k0 += 1
        if sb == 8:
            fl.append((13, lambda: A.vmem(f"buffer_load_ushort v{X5[0]}, v27, s[{sWS}:{sWS+3}], 0 offen {HLD}", "x5")))
            fl.append((15, lambda: A.vmem(f"buffer_load_ushort v{X5[1]}, v27, s[{sWS}:{sWS+3}], 0 offen offset:32 {HLD}", "x5")))
        A.wait(vm=("xf", sb), lg=("cf", sb))
        z = "0" if sb == 0 else None
        xa = XF + (sb % 11) * 8
        A.weave([lambda a_=a_, tb=tb: A.mfma(SACC + (a_ * 8 + tb) * 4, xa + 4 * a_, CF[sb & 1] + 4 * tb, z)
                 for a_ in range(2) for tb in range(8)], fl)
        extra(xa, xa + 4)
    A.wait(vm="x5")
    extra(X5[0], X5[1])
    for tb in range(8):
        for a_ in range(2):
            A.mfma(SACC + (a_ * 8 + tb) * 4, X5[a_], B512)
    A.stamp(6)
    A(f"""
    s_lshl_b32 s3, s{S_M}, 3
    s_add_u32 s3, s3, s{S_P}
    s_lshl_b32 s3, s3, 5
    s_lshl_b32 s27, s100, 3
    s_lshl_b32 s26, s{S_N}, 2
    s_add_u32 s27, s27, s26
    s_add_u32 s27, s27, s{S_W}
    s_add_u32 s3, s3, s27
    s_lshl_b32 s3, s3, 10
    s_add_u32 s3, s3, {WS_VV}
    s_lshl_b32 s27, s27, 10
    s_add_u32 s{S_XA}, s27, {WS_VV + 64*16384}
    """)
    D0 = CF[0]
    for tb in range(8):
        d = D0 + 4 * tb
        for a_ in range(2):
            s0 = SACC + (a_ * 8 + tb) * 4
            A(f"v_cvt_pk_bf16_f32 v{d+2*a_}, v{s0}, v{s0+1}\nv_cvt_pk_bf16_f32 v{d+2*a_+1}, v{s0+2}, v{s0+3}")
        for i in range(4):
            A(f"v_xor_b32 v{d+i}, s101, v{d+i}")
        A(f"s_add_u32 s27, s3, {((tb >> 1) * 4 + (tb & 1)) * 16384}")
        A.vmem(f"buffer_store_dwordx4 {v(d,4)}, v28, s[{sWS}:{sWS+3}], s27 offen sc1")
    A("s_cbranch_vccz L_nospecial")
    A("s_mov_b32 s26, 0x00010001\ns_mov_b32 s27, 0x00010001")
    for i in range(4):
        A(f"v_cvt_pk_bf16_f32 v{XF+i}, v{SEX+2*i}, v{SEX+2*i+1}")
    for i in range(4):
        A(f"v_cndmask_b32 v{XF+i}, v{D0+i}, v{XF+i}, s[26:27]")
    A(f"buffer_store_dwordx4 {v(XF,4)}, v28, s[{sWS}:{sWS+3}], s{S_XA} offen sc1")
    A("L_nospecial:")
    A.wait(vm=0)
    A("s_barrier")
    A.stamp(7)
    A.dump_stamps(8)
    A("s_endpgm")

    A.reset()
    A("L_dft_helper:")
    A("s_setprio 3")
    start_touch(A, opt, "x")
    start_touch(A, opt, "c", 20)
    code_touch(A)
    A.srd(sDBG, 22, 256)
    A(f"""
    v_lshlrev_b32 v6, 2, v1
    v_mov_b32 v4, 0
    v_mov_b32 v5, 1
    s_lshl_b32 s{S_KW}, s{S_Q}, 2
    s_barrier
    s_barrier
    s_mov_b64 exec, 1
    buffer_store_dword v5, v4, s[{sDBG}:{sDBG+3}], s{S_KW} offen sc1
    """)
    A.stamp(1)
    A.poll(6, sDBG, "0", "ne0", 32)
    A.stamp(2)
    A("s_barrier")
    A("s_barrier")
    A("s_mov_b64 exec, 1")
    A(f"buffer_store_dword v5, v4, s[{sDBG}:{sDBG+3}], s{S_KW} offen offset:128 sc1")
    A.stamp(3)
    A.dump_stamps(4)
    A("L_end:")
    A("s_endpgm")
    A("L_code_end:")

    hdr = open("parallel_sum__spectral_fnet__dense_activation_relu__prompt.s.ref").read().split("; Override")[0]
    return (hdr + "; @launch grid=(256,1,1) block=(512,1,1) lds=163840\n"
            + ".amdgcn_target \"amdgcn-amd-amdhsa--gfx950\"\n" + kernel_header(NAME) + A.text() + kernel_desc(NAME, 256, 256))


if __name__ == "__main__":
    out = sys.argv[1]
    stamps = len(sys.argv) > 2 and sys.argv[2] == "stamps"
    opt = {}
    for kv in sys.argv[3:]:
        k, x = kv.split("=")
        opt[k] = int(x) if x.lstrip("-").isdigit() else x
    open(out, "w").write(gen(stamps, opt))
```

```python
import sys
from kbase import *

TAGMUL, TAGADD = 0x9E3779B1, 0x7F4A7C15


def wblk(i):
    if i < 24:
        return 65536 + 4096 * i
    if i < 28:
        return 32768 + 4096 * (i - 24)
    return 65536 + 4096 * (i - 28)


def mod7(A, s, tmp, maxv):
    m = 7
    while m * 2 < maxv:
        m *= 2
    while m >= 7:
        A(f"s_cmp_ge_u32 s{s}, {m}\ns_cselect_b32 s{tmp}, {m}, 0\ns_sub_u32 s{s}, s{s}, s{tmp}")
        m //= 2


def code_touch(A, vb=118):
    L = A.label("L_pc")
    A(f"""
    s_getpc_b64 s[48:49]
    {L}:
    s_sub_u32 s48, s48, {L}-{NAME}
    s_subb_u32 s49, s49, 0
    s_mov_b32 s50, L_code_end-{NAME}
    s_mov_b32 s51, 0x20000
    v_lshlrev_b32 v{vb}, 12, v1
    s_lshl_b32 s3, s{S_J}, 7
    v_add_u32 v{vb}, s3, v{vb}
    s_mov_b64 exec, 0x3ff
    buffer_load_dword v{vb+1}, v{vb}, s[48:51], 0 offen
    s_mov_b64 exec, -1
    """)


def start_touch(A, opt, what, vb=10):
    fl = opt.get("tfl", "")
    if what == "x":
        A(f"""
        s_lshl_b32 s3, s{S_XCD}, 2
        s_lshr_b32 s27, s{S_J}, 3
        s_add_u32 s3, s3, s27
        s_lshl_b32 s3, s3, 4
        s_and_b32 s27, s{S_J}, 1
        s_lshl_b32 s27, s27, 3
        s_add_u32 s3, s3, s27
        v_lshrrev_b32 v{vb+1}, 3, v1
        v_add_u32 v{vb+1}, s3, v{vb+1}
        s_bfe_u32 s3, s{S_J}, 0x20001
        s_add_u32 s27, s3, 1
        s_and_b32 s27, s27, 2
        s_sub_u32 s27, 1, s27
        v_mul_i32_i24 v{vb+1}, s27, v{vb+1}
        s_cmp_eq_u32 s3, 0
        s_cselect_b32 s27, 0, 1024
        s_cmp_eq_u32 s3, 1
        s_cselect_b32 s27, 2048, s27
        v_add_u32 v{vb+1}, s27, v{vb+1}
        v_mul_u32_u24 v{vb+1}, 896, v{vb+1}
        v_and_b32 v{vb+2}, 7, v1
        v_min_u32 v{vb+2}, 6, v{vb+2}
        v_lshl_add_u32 v{vb+1}, v{vb+2}, 7, v{vb+1}
        buffer_load_dword v{vb+3}, v{vb+1}, s[{sX}:{sX+3}], 0 offen {fl}
        """)
    else:
        A(f"""
        s_cmp_ge_u32 s{S_XCD}, 4
        s_cselect_b32 s{sOUT}, s8, s6
        s_cselect_b32 s{sOUT+1}, s9, s7
        s_and_b32 s{sOUT+1}, s{sOUT+1}, 0xffff
        s_mov_b32 s{sOUT+2}, {2048*4096}
        s_mov_b32 s{sOUT+3}, 0x20000
        s_and_b32 s3, s{S_XCD}, 1
        s_lshl_b32 s3, s3, 5
        s_add_u32 s3, s3, s{S_J}
        s_lshl_b32 s3, s3, 4
        s_bfe_u32 s27, s{S_XCD}, 0x10001
        s_add_u32 s3, s3, s27
        s_lshl_b32 s3, s3, 12
        v_lshrrev_b32 v{vb}, 3, v1
        v_lshlrev_b32 v{vb}, 13, v{vb}
        v_and_b32 v{vb+1}, 7, v1
        v_lshl_add_u32 v{vb}, v{vb+1}, 7, v{vb}
        buffer_load_dword v{vb+2}, v{vb}, s[{sOUT}:{sOUT+3}], s3 offen {fl}
        """)


def gen(stamps=False, opt=None):
    opt = opt or {}
    HST = opt.get("hst", "sc1")
    HLD = opt.get("hld", "")
    TOUCH_AT = opt.get("touch_at", 2)
    HD = opt.get("hd", 12)
    VAT = opt.get("vat", 22)
    A = K(stamps)
    P2 = opt.get('p2', 0)
    P1 = opt.get('p1', 0)
    st1 = lambda i: None if (P2 or P1) else A.stamp(i)
    _stamp = A.stamp
    if P1:
        A.stamp = lambda i: _stamp(i) if i == 0 else None
    st2 = lambda i: A.stamp(i) if P2 else None
    A.stamp(0)
    A("""
    s_load_dwordx16 s[4:19], s[0:1], 0
    s_load_dwordx4 s[20:23], s[0:1], 64
    s_load_dwordx2 s[24:25], s[0:1], 80
    s_cmp_ge_u32 s2, 256
    s_cbranch_scc1 L_end
    v_lshrrev_b32 v2, 6, v0
    v_and_b32 v1, 63, v0
    """)
    A(f"s_and_b32 s{S_XCD}, s2, 7\ns_lshr_b32 s{S_J}, s2, 3")
    A(f"v_readfirstlane_b32 s{S_W}, v2")
    A(f"s_cmp_ge_u32 s{S_J}, 28\ns_cbranch_scc1 L_dft")

    S_RB, S_FT, S_KX, S_KW, S_MX, S_MW, S_T, S_CT = 63, 96, 97, 98, 99, 100, 101, 26
    S_FTL, S_JX, S_TAG, S_PF = 14, 86, 58, 59
    S_M2, S_K2, S_G2, S_HF, S_PT = 56, 57, 95, 94, 87
    A(f"""
    s_mul_i32 s27, s{S_J}, 37
    s_lshr_b32 s27, s27, 8
    s_mul_i32 s3, s27, 7
    s_sub_u32 s{S_CT}, s{S_J}, s3
    s_and_b32 s{S_RB}, s{S_XCD}, 6
    s_lshl_b32 s{S_RB}, s{S_RB}, 1
    s_add_u32 s{S_RB}, s{S_RB}, s27
    s_lshl_b32 s27, s27, 1
    s_add_u32 s{S_G2}, s{S_CT}, s27
    """)
    mod7(A, S_G2, 3, 14)
    VD, XA, WA, ONES = 2, 8, 16, 20
    VW2, VEP = 6, 18
    FX = [24, 48]; FW = [40, 64]
    ACC, RS, CS = 72, 104, 108
    S_MD = 52
    sL = sW1
    A(f"""
    s_and_b32 s{S_JX}, s{S_XCD}, 1
    s_mul_i32 s3, s{S_JX}, 7
    s_add_u32 s{S_FT}, s{S_G2}, s3
    v_lshrrev_b32 v31, 4, v1
    s_movk_i32 s3, 0xe2
    s_bitcmp1_b32 s3, s{S_W}
    s_cbranch_scc1 L_ldw
    s_max_u32 s{S_KX}, s{S_W}, 1
    s_lshl_b32 s{S_KX}, s{S_KX}, 2
    s_mul_i32 s3, s{S_CT}, 37
    s_lshr_b32 s3, s3, 4
    s_add_u32 s{S_KX}, s{S_KX}, s3
    s_add_u32 s{S_KX}, s{S_KX}, 12
    v_lshrrev_b32 v30, 3, v1
    v_lshlrev_b32 v30, 1, v30
    v_and_b32 v32, 7, v1
    v_xor_b32 v32, v32, v31
    s_lshl_b32 s{S_KW}, s{S_RB}, 6
    """)
    for i in range(4):
        A(f"""
        s_add_u32 s{S_MD+i}, s{S_KX}, {i}
        s_and_b32 s{S_MD+i}, s{S_MD+i}, 15
        s_lshr_b32 s3, s{S_MD+i}, 3
        s_add_u32 s3, s3, s{S_KW}
        s_and_b32 s27, s{S_MD+i}, 3
        s_lshl_b32 s27, s27, 4
        s_add_u32 s3, s3, s27
        v_add_u32 v33, s3, v30
        v_sub_u32 v34, 2048, v33
        v_lshrrev_b32 v35, 11, v34
        v_lshlrev_b32 v35, 10, v35
        v_sub_u32 v34, v34, v35
        s_bitcmp1_b32 s{S_MD+i}, 2
        s_cselect_b64 vcc, -1, 0
        s_and_b32 s27, s{S_MD+i}, 1
        s_lshl_b32 s27, s27, 2
        v_cndmask_b32 v33, v33, v34, vcc
        v_xor_b32 v34, s27, v32
        v_mul_u32_u24 v33, 896, v33
        s_lshl_b32 s{S_MD+i}, s{S_MD+i}, 10
        v_lshl_add_u32 v{VD+i}, v34, 4, v33
        """)
    A(f"s_movk_i32 s{S_MX}, 128\ns_waitcnt lgkmcnt(0)")
    A.srd(sL, 4, 2048 * 896)
    A("s_branch L_ldok")
    A("L_ldw:")
    A(f"""
    s_max_u32 s{S_KX}, s{S_W}, 4
    s_add_u32 s{S_KX}, s{S_KX}, s{S_RB}
    s_lshl_b32 s{S_KX}, s{S_KX}, 2
    v_lshlrev_b32 v33, 1, v31
    v_and_b32 v34, 15, v1
    v_xor_b32 v33, v33, v34
    v_mul_u32_u24 v34, 3584, v31
    v_lshl_add_u32 v32, v33, 4, v34
    v_xor_b32 v33, 128, v32
    s_and_b32 s{S_MD}, s{S_KX}, 15
    s_mul_i32 s27, s{S_MD}, {4*3584}
    s_lshl_b32 s3, s{S_FT}, 8
    s_add_u32 s27, s27, s3
    v_add_u32 v{VD}, s27, v32
    v_add_u32 v{VD+2}, s27, v33
    v_add_u32 v{VD+1}, {4*3584}, v{VD}
    v_add_u32 v{VD+2}, {8*3584}, v{VD+2}
    v_add_u32 v{VD+3}, {4*3584}, v{VD+2}
    s_lshl_b32 s{S_MD}, s{S_MD}, 10
    s_add_u32 s{S_MD}, s{S_MD}, 16384
    s_add_u32 s{S_MD+1}, s{S_MD}, 1024
    s_add_u32 s{S_MD+2}, s{S_MD}, 2048
    s_add_u32 s{S_MD+3}, s{S_MD}, 3072
    s_mov_b32 s{S_MX}, {64*3584}
    s_waitcnt lgkmcnt(0)
    """)
    A.srd(sL, 16, 448 * 3584)
    A("L_ldok:")
    A.srd(sX, 4, 2048 * 896)

    def p1_dmas(st):
        slot = st % 5
        return [A.dma2(VD + i, sL, f"s{S_KX}", f"s_add_u32 m0, s{S_MD+i}, {slot*32768}", ("p1", st),
                       pre=None if i else f"s_mul_i32 s{S_KX}, s{S_MX}, {st}") for i in range(4)]

    def burst(dmas):
        for a_, b_ in dmas:
            a_(); A("s_nop 0"); b_()

    def p1_setup():
        A.srd(sWS, 24, WS_SIZE + (0x40000 if stamps else 0))
        A(f"""
        s_mov_b32 s{S_FTL}, s{S_G2}
        s_lshl_b32 s{S_HF}, s{S_XCD}, 2
        s_and_b32 s3, s{S_RB}, 3
        s_add_u32 s{S_HF}, s{S_HF}, s3
        s_lshl_b32 s{S_HF}, s{S_HF}, 7
        s_add_u32 s{S_HF}, s{S_HF}, {WS_HFLAG}
        s_lshr_b32 s{S_PF}, s2, 1
        s_lshl_b32 s{S_PF}, s{S_PF}, 7
        s_add_u32 s{S_PF}, s{S_PF}, {WS_PFLAG}
        v_mov_b32 v35, 0
        """)
        A.vmem(f"buffer_load_dword v{VEP}, v35, s[{sWS}:{sWS+3}], s{S_HF} offen sc1", "ep")
        A.vmem(f"buffer_load_dword v{VEP+1}, v35, s[{sWS}:{sWS+3}], s{S_PF} offen sc1", "ep")
        A(f"""
        v_and_b32 v32, 15, v1
        v_lshrrev_b32 v33, 1, v32
        v_xor_b32 v33, v33, v31
        v_lshlrev_b32 v33, 4, v33
        v_lshl_add_u32 v33, v32, 7, v33
        s_lshl_b32 s3, s{S_W}, 11
        v_add_u32 v{XA}, s3, v33
        """)
        for rb in range(1, 4):
            A(f"v_xor_b32 v{XA+rb}, {rb*2048}, v{XA}")
        for rb in range(4):
            A(f"v_xor_b32 v{XA+4+rb}, 64, v{XA+rb}")
        A(f"""
        v_bfe_u32 v30, v1, 2, 2
        v_lshl_add_u32 v32, v31, 3, v30
        v_lshlrev_b32 v32, 8, v32
        v_and_b32 v33, 3, v1
        v_lshl_add_u32 v32, v33, 3, v32
        v_add_u32 v32, 16384, v32
        v_and_b32 v33, 1, v31
        v_lshl_or_b32 v33, v33, 2, v30
        s_and_b32 s3, s{S_W}, 3
        s_lshl_b32 s3, s3, 1
        s_lshr_b32 s27, s{S_W}, 2
        s_or_b32 s3, s3, s27
        v_xor_b32 v33, s3, v33
        v_lshl_add_u32 v{WA}, v33, 5, v32
        v_xor_b32 v{WA+1}, 32, v{WA}
        """)
        for i in range(4):
            A(f"v_mov_b32 v{ONES+i}, 0x3f803f80")
        A.srd(sW2, 18, 1792 * 896)
        A(f"""
        s_lshl_b32 s{S_T}, s{S_RB}, 1
        s_add_u32 s{S_T}, s{S_T}, s{S_JX}
        v_lshrrev_b32 v30, 3, v1
        v_mul_u32_u24 v32, 896, v30
        v_and_b32 v30, 6, v30
        v_and_b32 v33, 7, v1
        v_xor_b32 v30, v30, v33
        v_lshl_add_u32 v32, v30, 4, v32
        s_lshl_b32 s3, s{S_CT}, 7
        s_mul_i32 s27, s{S_W}, {8*896}
        s_add_u32 s3, s3, s27
        v_add_u32 v{VW2}, s3, v32
        s_lshl_b32 s{S_M2}, s{S_W}, 10
        """)

    def wpair_addr(p):
        if p < 12:
            return 65536 + 8192 * p
        if p < 14:
            return 16384 + 8192 * (p - 12)
        return [32768, 40960, 0, 65536, 49152, 57344, 8192, 73728][p - 14]

    def w_dma(p):
        if p < 14:
            srd = sW2
            if p % 2 == 0:
                pre = (f"s_mul_i32 s{S_K2}, s{S_JX}, 7\ns_add_u32 s{S_K2}, s{S_K2}, s{S_G2}\ns_mul_i32 s{S_K2}, s{S_K2}, {128*896}\n"
                       f"s_add_u32 s{S_G2}, s{S_G2}, 1\ns_cmp_eq_u32 s{S_G2}, 7\ns_cselect_b32 s{S_G2}, 0, s{S_G2}")
            else:
                pre = f"s_add_u32 s{S_K2}, s{S_K2}, {64*896}"
        else:
            srd = sWD if p < 18 else sW1
            pre = f"s_mov_b32 s{S_K2}, {((p - 14) % 4)*64*896}"
        return A.dma2(VW2, srd, f"s{S_K2}", f"s_add_u32 m0, s{S_M2}, {wpair_addr(p)}", ("w", p), pre=pre)

    def place(dmas, g0, g1):
        r = []
        for k, (a_, b_) in enumerate(dmas):
            g = g0 + 1 + k * (g1 - g0) // len(dmas)
            r += [(g - 1, a_), (g, b_)]
        return r

    def p1_reads(st, q, buf):
        so = ((st % 5) & 1) * 32768
        r = []
        for rb in range(4):
            r.append(lambda rb=rb: A.lds(f"ds_read_b128 {v(FX[buf]+4*rb,4)}, v{XA + 4*q + rb} offset:{so}", ("f", st, q)))
        for cb in range(2):
            for h in range(2):
                r.append(lambda cb=cb, h=h: A.lds(f"ds_read_b64_tr_b16 {v(FW[buf]+4*cb+2*h,2)}, v{WA+cb} offset:{so + q*8192 + h*1024}", ("f", st, q)))
        return r

    def p1_mfma(buf, first):
        z = "0" if first else None
        r = [lambda: A.mfma(RS, ONES, FX[buf], z), lambda: A.mfma(CS, FW[buf], ONES, z)]
        for cb in range(2):
            for rb in range(4):
                r.append(lambda cb=cb, rb=rb: A.mfma(ACC + (cb * 4 + rb) * 4, FW[buf] + 4 * cb, FX[buf] + 4 * rb, z))
        return r

    def p1_addr_step(st):
        d = {2: 65536, 4: 65536, 5: -131072}.get(st)
        if not d:
            return []
        return [(8 + k // 5, lambda r=r: A(f"v_add_u32 v{r}, {d & 0xffffffff}, v{r}"))
                for k, r in enumerate(list(range(XA, XA + 8)) + [WA, WA + 1])]

    def lines(txt, g0, g1):
        ex = [x for x in txt.strip().split("\n") if x.strip()]
        return [(g0 + k * (g1 - g0) // len(ex), lambda x=x: A(x)) for k, x in enumerate(ex)]

    VID = 120
    WA2, WB, WC, VH, VO, VL, VZ = 8, 12, 112, 2, 4, 16, 7
    FW2 = [24, 40]
    AC2, HF, VF = 56, 128, 192
    p2_setup = f"""
    v_lshlrev_b32 v{VL}, 4, v1
    v_mov_b32 v{VZ}, 0
    v_lshrrev_b32 v124, 4, v1
    v_bfe_u32 v125, v1, 2, 2
    v_lshl_add_u32 v126, v124, 2, v125
    v_lshrrev_b32 v127, 1, v126
    v_and_b32 v127, 3, v127
    v_lshlrev_b32 v126, 7, v126
    v_and_b32 v125, 3, v1
    v_lshl_add_u32 v126, v125, 3, v126
    """ + "".join(f"""
    v_xor_b32 v125, {eb}, v127
    v_lshl_add_u32 v{WA2+eb}, v125, 5, v126
    v_add_u32 v{WB+eb}, 0x10000, v{WA2+eb}
    v_add_u32 v{WC+eb}, 0x20000, v{WA2+eb}""" for eb in range(4)) + f"""
    s_lshl_b32 s{S_K2+32}, s{S_T}, 2
    s_and_b32 s{S_K2+33}, s{S_W}, 3
    s_add_u32 s{S_K2+32}, s{S_K2+32}, s{S_K2+33}
    s_mul_i32 s{S_K2+34}, s{S_K2+32}, {H_STRIDE}
    v_add_u32 v{VH}, s{S_K2+34}, v{VL}
    s_xor_b32 s{S_K2+34}, s{S_K2+32}, 4
    s_mul_i32 s{S_K2+34}, s{S_K2+34}, {H_STRIDE}
    v_add_u32 v{VH+1}, s{S_K2+34}, v{VL}
    s_and_b32 s{S_K2+32}, s{S_K2+32}, 7
    s_lshl_b32 s{S_K2+32}, s{S_K2+32}, 12
    s_add_u32 s{S_K2+32}, s{S_K2+32}, 32768
    v_add_u32 v17, s{S_K2+32}, v{VL}
    v_xor_b32 v18, 16384, v17
    s_lshl_b32 s{S_K2+32}, s{S_RB}, 6
    s_add_u32 s{S_K2+32}, s{S_K2+32}, s{S_JX}
    s_and_b32 s{S_K2+33}, s{S_W}, 1
    s_lshl_b32 s{S_K2+33}, s{S_K2+33}, 5
    s_add_u32 s{S_K2+33}, s{S_K2+33}, s{S_K2+32}
    v_lshrrev_b32 v124, 3, v1
    v_lshl_add_u32 v125, v124, 1, s{S_K2+33}
    s_bfe_u32 s{S_K2+32}, s{S_W}, 0x10001
    s_lshl_b32 s{S_K2+33}, s{S_K2+32}, 11
    s_lshl_b32 s{S_K2+32}, s{S_K2+32}, 1
    s_sub_u32 s{S_K2+32}, 1, s{S_K2+32}
    v_mul_i32_i24 v125, s{S_K2+32}, v125
    v_add_u32 v125, s{S_K2+33}, v125
    s_mul_i32 s{S_K2+32}, s{S_K2+32}, {16*896}
    s_lshl_b32 s{S_K2+33}, s{S_CT}, 7
    v_mul_u32_u24 v126, 896, v125
    v_add_u32 v126, s{S_K2+32}, v126
    v_lshrrev_b32 v127, 11, v125
    v_lshlrev_b32 v127, 10, v127
    v_sub_u32 v125, v125, v127
    v_mul_u32_u24 v125, 896, v125
    v_and_b32 v127, 7, v1
    v_xor_b32 v127, v127, v124
    v_lshlrev_b32 v127, 4, v127
    v_add_u32 v127, s{S_K2+33}, v127
    v_add_u32 v{VO}, v125, v127
    v_add_u32 v{VO+1}, v126, v127
    s_mov_b32 s{sWD}, s10
    s_and_b32 s{sWD+1}, s11, 0xffff
    s_mov_b32 s{sWD+2}, {448*896}
    s_mov_b32 s{sWD+3}, 0x20000
    s_mov_b32 s{sW1}, s12
    s_and_b32 s{sW1+1}, s13, 0xffff
    s_mov_b32 s{sW1+2}, {448*896}
    """
    for k in range(3):
        p2_setup = p2_setup.replace(f"s{S_K2+32+k}", f"s{48+k}")
    WPRE = opt.get("wpre", 10)

    def phase1(cls):
        K0 = opt.get("k0", 3) if cls == 0 else 2
        if cls == 0:
            if opt.get("xt", 1) == 2:
                A(f"s_cmp_lg_u32 s{S_W}, 1\ns_cbranch_scc1 L_notouch0")
                start_touch(A, opt, "x", 124)
                A("L_notouch0:")
            for s_ in range(K0):
                burst(p1_dmas(s_))
            A(f"s_cmp_lg_u32 s{S_W}, 0\ns_cbranch_scc1 L_notouch")
            if opt.get("xt", 1) == 1:
                start_touch(A, opt, "x", 124)
            code_touch(A)
            A("L_notouch:")
            p1_setup()
        else:
            p1_setup()
            burst(p1_dmas(0) + p1_dmas(1))
        A.wait(vm=("p1", 0))
        A("s_barrier")
        st1(2)
        if P1: _stamp(1)
        for f in p1_reads(0, 0, 0):
            f()
        queue = []
        for s_ in range(K0, 7):
            for i in range(4):
                first = max(0, 2 * (s_ - 5) + 1)
                if cls == 1:
                    first = max(first, 2 * s_ - opt.get("la1", 5) + i // 2)
                queue.append((first, lambda s_=s_, i=i: p1_dmas(s_)[i]))
        wn = WPRE
        for p in range(WPRE):
            queue.append((max(2 * (2 + p // 4) + 1, opt.get("w0", 9) + p // 2), lambda p=p: w_dma(p)))
        rate = (opt.get("r0", 4), 4)
        for st in range(7):
            for q in range(2):
                fl = []
                if q == 0:
                    A.wait(lg=("f", st, 0))
                    fl += list(enumerate(p1_reads(st, 1, 1))) + p1_addr_step(st + 1)
                else:
                    if st < 6:
                        if P1 == 2: _stamp(st + 2)
                        A.wait(vm=("p1", st + 1), lg=0)
                        if P1 == 3: _stamp(st + 2)
                        A("s_barrier")
                        if P1 == 1: _stamp(st + 2)
                        fl += list(enumerate(p1_reads(st + 1, 0, 0)))
                    else:
                        A.wait(lg=0)
                dm = []
                blk = 2 * st + q
                while queue and len(dm) < rate[cls] and queue[0][0] <= blk:
                    dm.append(queue.pop(0)[1]())
                if dm:
                    fl += place(dm, 1, 9)
                if (st, q) == (0, 1):
                    fl += lines(f"""
                    v_readfirstlane_b32 s{S_TAG}, v{VEP}
                    v_readfirstlane_b32 s{S_PT}, v{VEP+1}
                    s_lshl_b32 s27, s{S_CT}, 2
                    v_mov_b32 v{VID+1}, s27
                    s_mul_i32 s{S_TAG}, s{S_TAG}, {TAGMUL}
                    s_add_u32 s{S_TAG}, s{S_TAG}, {TAGADD}
                    s_add_u32 s{S_PT}, s{S_PT}, 1
                    v_min_u32 v{VID+3}, 6, v1
                    v_lshlrev_b32 v{VID+3}, 2, v{VID+3}
                    """, 0, 8)
                    A.wait(vm="ep")
                if cls == 0 and (st, q) == (opt.get("cta", 1), 0):
                    def ct():
                        A(f"s_cmp_lg_u32 s{S_W}, 0\ns_cbranch_scc1 L_notouch2")
                        start_touch(A, opt, "c", 124)
                        A("L_notouch2:")
                    fl.append((9, ct))
                if cls == 0 and (st, q) == (opt.get("wta", 2), 1):
                    def wt():
                        A(f"s_cmp_lg_u32 s{S_W}, 1\ns_cbranch_scc1 L_notouch3")
                        A.srd(sWD, 10, 448 * 896)
                        A.srd(sOUT, 12, 448 * 896)
                        A(f"""
                        v_lshlrev_b32 v124, 7, v1
                        s_mul_i32 s3, s2, {56*128}
                        s_lshl_b32 s27, s2, 10
                        s_mov_b32 exec_hi, 0xffffff
                        buffer_load_dword v125, v124, s[{sW2}:{sW2+3}], s3 offen
                        s_mov_b64 exec, 0xff
                        buffer_load_dword v126, v124, s[{sWD}:{sWD+3}], s27 offen
                        buffer_load_dword v127, v124, s[{sOUT}:{sOUT+3}], s27 offen
                        s_mov_b64 exec, -1
                        """)
                        A("L_notouch3:")
                    fl.append((9, wt))
                if (st, q) == (6, 1):
                    fl += lines(f"""
                    v_and_b32 v30, 15, v1
                    v_lshlrev_b32 v30, 2, v30
                    s_lshl_b32 s3, s{S_W}, 6
                    v_add_u32 v30, s3, v30
                    v_lshrrev_b32 v31, 4, v1
                    v_lshlrev_b32 v31, 4, v31
                    s_and_b32 s27, s{S_W}, 3
                    s_lshl_b32 s27, s27, 7
                    s_lshr_b32 s3, s{S_W}, 2
                    s_lshl_b32 s3, s3, 6
                    s_add_u32 s27, s27, s3
                    v_add_u32 v31, s27, v31
                    v_xor_b32 v32, 64, v30
                    v_xor_b32 v33, 128, v30
                    v_xor_b32 v34, 192, v30
                    v_xor_b32 v35, 64, v31
                    """, 0, 8)
                    fl += lines(p2_setup, 0, 9)
                    fl.append((9, lambda: A.lds(f"ds_write_b32 v30, v{RS}")))
                    fl.append((9, lambda: A.lds(f"ds_write_b128 v31, {v(CS,4)} offset:512")))
                A.weave(p1_mfma(q, st == 0 and q == 0), fl)
        assert not queue, len(queue)
        A.wait(vm=("w", 1))
        return wn
    A(f"s_cmp_ge_u32 s{S_W}, 2\ns_cbranch_scc1 L_p1b")
    WN = phase1(0)
    A("s_branch L_p1done")
    A("L_p1b:")
    A.reset()
    phase1(1)
    A("L_p1done:")
    A.reset()
    st1(3)
    if P1: _stamp(8)
    A.wait(lg=0)
    A("s_barrier")
    if P1: _stamp(9)
    S_HS = S_MD

    def epilogue(wr):
        A.reset()
        MB = 24; CS1 = 28
        A.lds(f"ds_read_b32 v{MB+1}, v32")
        A.lds(f"ds_read_b32 v{MB+2}, v33")
        A.lds(f"ds_read_b32 v{MB+3}, v34")
        A.lds(f"ds_read_b128 {v(CS1,4)}, v35 offset:512")
        A(f"""
        s_lshl_b32 s{S_KX}, s{S_RB}, 3
        s_mul_i32 s{S_KX}, s{S_KX}, 56
        s_lshl_b32 s{S_KW}, s{S_FT}, 2
        s_add_u32 s{S_KX}, s{S_KX}, s{S_KW}
        s_and_b32 s27, s{S_W}, 3
        s_add_u32 s{S_KX}, s{S_KX}, s27
        s_lshl_b32 s{S_KX}, s{S_KX}, 10
        s_lshl_b32 s27, s27, 10
        s_add_u32 s27, s27, 32768
        v_add_u32 v34, s27, v{VL}
        s_mov_b32 s3, {0x3b124925}
        v_mul_f32 v{MB}, s3, v{RS}
        """)
        A.wait(lg=0)
        for i in range(1, 4):
            A(f"v_mul_f32 v{MB+i}, s3, v{MB+i}")
        A(f"v_cvt_pk_bf16_f32 v32, v{MB}, v{MB+1}\nv_cvt_pk_bf16_f32 v33, v{MB+2}, v{MB+3}")
        A(f"v_lshlrev_b32 v{MB}, 16, v32\nv_and_b32 v{MB+1}, 0xffff0000, v32\nv_lshlrev_b32 v{MB+2}, 16, v33\nv_and_b32 v{MB+3}, 0xffff0000, v33")
        PK = 36
        for rb in range(4):
            sel = "op_sel:[0,1,0] op_sel_hi:[1,1,1]" if rb & 1 else "op_sel_hi:[1,0,1]"
            d = PK + 4 * rb
            for cb in range(2):
                a0 = ACC + (cb * 4 + rb) * 4
                for hh in range(2):
                    A(f"v_pk_fma_f32 {v(a0+2*hh,2)}, {v((CS, CS1)[cb]+2*hh,2)}, {v(MB+(rb&2),2)}, {v(a0+2*hh,2)} {sel} neg_lo:[1,0,0] neg_hi:[1,0,0]")
            for cb in range(2):
                a0 = ACC + (cb * 4 + rb) * 4
                for hh in range(2):
                    A(f"v_cvt_pk_bf16_f32 v{d+2*(cb^wr)+hh}, v{a0+2*hh}, v{a0+2*hh+1}")
            for i in range(4):
                A(f"v_pk_max_i16 v{d+i}, v{d+i}, 0")
            A(f"s_xor_b32 s27, s{S_W}, {rb}\ns_mul_i32 s{S_MD+rb}, s27, {H_STRIDE}\ns_add_u32 s{S_MD+rb}, s{S_MD+rb}, s{S_KX}")
            A.vmem(f"buffer_store_dwordx4 {v(PK+4*rb,4)}, v{VL}, s[{sWS}:{sWS+3}], s{S_MD+rb} offen sc1", ("hst", rb))
            A(f"s_lshl_b32 s27, s27, 12\nv_add_u32 v35, s27, v34")
            A.lds(f"ds_write_b128 v35, {v(PK+4*rb,4)}")
        st1(4)
        if P1: _stamp(10)
        A.wait(lg=0)
        A("s_barrier")
        A.stamp(5)

    S_H, S_GH = S_KX, S_KW
    NAL = opt.get("nal", 12)
    B0 = 4 + NAL

    def w_reads(key, i, both=True):
        r = []
        for eb in range(4):
            for h in range(2):
                if i < 28:
                    a_ = wpair_addr(i >> 1) + (i & 1) * 4096
                    reg, off = (WA2, WB, WC)[a_ >> 16] + eb, (a_ & 0xffff) + h * 2048
                else:
                    u = i - 28
                    reg, off = ((WA2, u * 4096) if u < 4 else ((WB, WC)[(u - 4) >> 1], (u & 1) * 4096))
                    reg, off = reg + eb, off + h * 2048
                r.append(lambda reg=reg, off=off, eb=eb, h=h: A.lds(f"ds_read_b64_tr_b16 {v(FW2[key&1]+4*eb+2*h,2)}, v{reg} offset:{off}", ("wf", key, eb >> 1)))
        return r

    def readbacks(last):
        for rb in range(4):
            A.wait(vm=("hst", rb))
            if rb == 3:
                A("s_barrier")
                last()
            if opt.get("rb", 0):
                A.vmem(f"buffer_load_dwordx4 {v(VF+4*rb,4)}, v{VL}, s[{sWS}:{sWS+3}], s{S_HS+rb} offen")
            burst([w_dma(14 + rb), w_dma(18 + rb)])

    assert B0 <= 16
    YS, ZS = 131072, 16384
    XS = TS = YS + 22528

    A(f"s_cmp_ge_u32 s{S_W}, 4\ns_cbranch_scc1 L_aux")
    epilogue(0)
    seq = [(i, (0, 1)) for i in range(4)] + [(i, (1,)) for i in range(4, B0)] + [(i, (0, 1)) for i in range(B0, 28)] + [(i, (0,)) for i in range(4, B0)]
    hl = [(n, tt) for n, (i, tts) in enumerate(seq) for tt in tts]
    NSL = opt.get("nsl", 16)
    slot = {k: HF + (idx % NSL) * 4 for idx, k in enumerate(hl)}
    state_h = dict(next=8, grp=None)

    def h_next():
        idx = state_h["next"]
        if idx >= len(hl):
            return
        state_h["next"] += 1
        n, tt = hl[idx]
        i = seq[n][0]
        if state_h["grp"] != i // 4 and not (opt.get("hfix") and state_h["grp"]):
            state_h["grp"] = i // 4
            A(f"s_add_u32 s{S_H}, s{S_FTL}, {i // 4}\ns_cmp_ge_u32 s{S_H}, 7\ns_cselect_b32 s3, 7, 0\ns_sub_u32 s{S_H}, s{S_H}, s3")
            A(f"s_add_u32 s{S_H}, s{S_H}, s{S_GH}\ns_lshl_b32 s{S_H}, s{S_H}, 12")
        A.vmem(f"buffer_load_dwordx4 {v(slot[(n, tt)], 4)}, v{VH+tt}, s[{sWS}:{sWS+3}], s{S_H} offen offset:{(i%4)*1024} {HLD}", ("h", n, tt))

    def step(n, extra=()):
        i, tts = seq[n]
        nm = 4 * len(tts)
        fl = list(extra)
        if n + 1 < len(seq) and n != 3:
            fl += [(k * nm // 8, f) for k, f in enumerate(w_reads(n + 1, seq[n + 1][0]))]
        if n >= 5:
            fl += [(1 + 4 * k, h_next) for k in range(len(seq[n - 1][1]))]
        mf = []
        for eb in range(4):
            for tt in tts:
                def f(eb=eb, tt=tt):
                    if eb % 2 == 0 and tt == tts[0]:
                        A.wait(vm=("h", n, tts[-1]) if eb == 0 and n >= 4 else None, lg=("wf", n, eb >> 1))
                    A.mfma(AC2 + (tt * 4 + eb) * 4, FW2[n & 1] + 4 * eb, slot[(n, tt)], "0" if n == 0 else None)
                mf.append(f)
        A.weave(mf, fl)

    for n in range(4):
        for tt in range(2):
            A.lds(f"ds_read_b128 {v(slot[(n, tt)],4)}, v{17+tt} offset:{n*1024}")
    for f in w_reads(0, 0):
        f()
    wq = [w_dma(p) for p in range(WN, 14)]
    for n in range(4):
        step(n, place(wq[n:n + 1], 2, 4))
    A("s_barrier")
    A.stamp(6)
    readbacks(lambda: None)
    A.stamp(7)
    A.srd(sOUT, 20, 2048 * 896)
    A.wait(vm=0)
    A("s_barrier")
    if not P2: A.stamp(1)
    A(f"s_mul_i32 s{S_GH}, s{S_JX}, 7")
    for k in range(NSL):
        h_next()
    for f in w_reads(4, 4):
        f()
    if opt.get("prio", 1):
        A(f"s_setprio {opt.get('prio', 1)}")
    fin = f"""
    v_and_b32 v20, 15, v1
    v_lshrrev_b32 v21, 4, v1
    v_lshrrev_b32 v22, 1, v21
    v_and_b32 v23, 7, v20
    v_xor_b32 v22, v22, v23
    v_lshlrev_b32 v22, 4, v22
    v_lshl_add_u32 v22, v20, 7, v22
    v_and_b32 v21, 1, v21
    v_lshl_add_u32 v22, v21, 3, v22
    s_lshl_b32 s27, s{S_W}, 11
    s_add_u32 s27, s27, {TS}
    v_add_u32 v22, s27, v22
    v_add_u32 v23, s27, v{VL}
    s_lshl_b32 s27, s{S_W}, 6
    s_add_u32 s27, s27, {YS + 20480}
    v_lshl_add_u32 v20, v20, 2, s27
    s_lshl_b32 s27, s{S_W}, 12
    s_add_u32 s27, s27, {ZS}
    v_add_u32 v21, s27, v{VL}
    s_and_b32 s27, s{S_W}, 1
    s_lshl_b32 s27, s27, 12
    s_add_u32 s27, s27, {YS}
    v_add_u32 v19, s27, v{VL}
    s_xor_b32 s{S_MW}, s{S_W}, 2
    s_or_b32 s{S_MW}, s{S_MW}, s{S_T}
    """.strip().split("\n")
    for n in range(4, len(seq)):
        ex = []
        if n == 28:
            A.stamp(8)
            A(f"""
            s_lshl_b32 s3, s2, 14
            s_lshl_b32 s27, s{S_W}, 12
            s_add_u32 s3, s3, s27
            s_add_u32 s{S_MX}, s3, {WS_PART}
            s_and_b32 s27, s{S_PT}, 0xff
            v_mov_b32 v20, s27
            s_movk_i32 s27, 0xff
            s_barrier
            """)
            for eb in range(4):
                for r in range(4):
                    A(f"v_bfi_b32 v{AC2+16+4*eb+r}, s27, v20, v{AC2+16+4*eb+r}")
                A.vmem(f"buffer_store_dwordx4 {v(AC2+16+4*eb,4)}, v{VL}, s[{sWS}:{sWS+3}], s{S_MX} offen offset:{eb*1024} sc1", "pst")
        if n > 28:
            k0 = (n - 29) * 4
            ex += [(k % 4, lambda x=x: A(x)) for k, x in enumerate(fin[k0:k0 + 4])]
        step(n, ex)
    assert (len(seq) - 29) * 4 >= len(fin)
    A(f"s_cmp_eq_u32 s{S_MW}, 0\ns_cselect_b32 s27, {YS + 16384}, s27\nv_add_u32 v18, s27, v{VL}")
    A(f"s_cmp_ge_u32 s{S_W}, 2\ns_cselect_b32 s27, -1.0, 1.0\nv_mov_b32 v{HF+1}, s27")
    A.stamp(9)
    A("s_barrier")
    A.stamp(10)
    ZR, YP = HF + 4, HF + 20
    A(f"ds_read_b32 v{HF}, v20")
    for eb in range(4):
        A(f"ds_read_b128 {v(ZR+4*eb,4)}, v21 offset:{eb*1024}")
    for eb in range(4):
        A(f"ds_read_b128 {v(YP+4*eb,4)}, v18 offset:{eb*1024}")
    for eb in range(4):
        A(f"ds_read_b128 {v(YP+16+4*eb,4)}, v19 offset:{8192 + eb*1024}")
    for eb in range(1, 4):
        A(f"v_xor_b32 v{24+eb}, {32*eb}, v22")
    A("s_waitcnt lgkmcnt(8)")
    for eb in range(4):
        for hh in range(2):
            A(f"v_pk_fma_f32 {v(ZR+4*eb+2*hh,2)}, {v(AC2+4*eb+2*hh,2)}, {v(HF,2)}, {v(ZR+4*eb+2*hh,2)} op_sel_hi:[1,0,1]")
    A("s_waitcnt lgkmcnt(4)")
    for eb in range(4):
        for hh in range(2):
            A(f"v_pk_add_f32 {v(ZR+4*eb+2*hh,2)}, {v(ZR+4*eb+2*hh,2)}, {v(YP+4*eb+2*hh,2)}")
    A("s_waitcnt lgkmcnt(0)")
    for eb in range(4):
        for hh in range(2):
            A(f"v_pk_fma_f32 {v(ZR+4*eb+2*hh,2)}, {v(YP+16+4*eb+2*hh,2)}, {v(HF,2)}, {v(ZR+4*eb+2*hh,2)} op_sel:[0,1,0] op_sel_hi:[1,1,1]")
        A(f"v_cvt_pk_bf16_f32 v{28+2*eb}, v{ZR+4*eb}, v{ZR+4*eb+1}\nv_cvt_pk_bf16_f32 v{29+2*eb}, v{ZR+4*eb+2}, v{ZR+4*eb+3}")
        A(f"ds_write_b64 v{24+eb if eb else 22}, {v(28+2*eb,2)}")
    A("s_waitcnt lgkmcnt(0)")
    A("ds_read_b128 v[36:39], v23\nds_read_b128 v[40:43], v23 offset:1024")
    A("s_waitcnt lgkmcnt(1)")
    A(f"buffer_store_dwordx4 v[36:39], v{VO}, s[{sOUT}:{sOUT+3}], 0 offen")
    A("s_waitcnt lgkmcnt(0)")
    A(f"buffer_store_dwordx4 v[40:43], v{VO+1}, s[{sOUT}:{sOUT+3}], 0 offen")
    A.dump_stamps(11)
    A("s_endpgm")

    A("L_aux:")
    epilogue(1)
    burst([w_dma(p) for p in range(WN, 14)])
    RSD, VPOLL, VT, YA, YB, PR, XU = 20, 22, 24, 56, 72, 128, 144
    S_VOK, S_PA = S_G2, S_MX
    A(f"""
    s_and_b32 s{S_GH}, s{S_W}, 3
    s_lshl_b32 s3, s{S_RB}, 6
    s_add_u32 s3, s3, s{S_JX}
    s_and_b32 s27, s{S_W}, 1
    s_lshl_b32 s27, s27, 5
    s_add_u32 s27, s27, s3
    v_and_b32 v{RSD+1}, 15, v1
    v_lshl_add_u32 v{RSD+1}, v{RSD+1}, 1, s27
    s_bitcmp1_b32 s{S_W}, 1
    s_cselect_b32 s3, -1, 1
    s_cselect_b32 s27, 2048, 0
    v_mul_i32_i24 v{RSD+1}, s3, v{RSD+1}
    v_add_u32 v{RSD+1}, s27, v{RSD+1}
    v_lshrrev_b32 v{RSD}, 11, v{RSD+1}
    v_lshlrev_b32 v{RSD}, 10, v{RSD}
    v_sub_u32 v{RSD+1}, v{RSD+1}, v{RSD}
    v_lshlrev_b32 v{RSD+1}, 2, v{RSD+1}
    v_add_u32 v{RSD+1}, {WS_RSTD}, v{RSD+1}
    v_mov_b32 v{VPOLL}, 0
    s_lshl_b32 s3, s{S_T}, 1
    s_and_b32 s27, s{S_W}, 1
    s_add_u32 s3, s3, s27
    s_lshl_b32 s{S_FT}, s3, 14
    s_lshr_b32 s27, s{S_GH}, 1
    s_lshl_b32 s3, s27, 13
    s_add_u32 s{S_FT}, s{S_FT}, s3
    s_add_u32 s{S_FT}, s{S_FT}, {WS_VV}
    s_cmp_eq_u32 s{S_GH}, 0
    s_cselect_b32 s{S_MW}, {WS_VV + 64*16384}, s{S_FT}
    s_lshl_b32 s27, s27, 14
    s_add_u32 s27, s27, 32768
    """)
    for eb in range(4):
        A(f"v_add_u32 v{WC+eb}, s3, v{WB+eb}\nv_add_u32 v{WB+eb}, s3, v{WA2+eb}\nv_add_u32 v{WA2+eb}, s27, v{WA2+eb}")
    A(f"""
    s_xor_b32 s3, s2, 1
    s_lshl_b32 s3, s3, 14
    s_lshl_b32 s{S_PA}, s{S_GH}, 12
    s_add_u32 s{S_PA}, s{S_PA}, s3
    s_add_u32 s{S_PA}, s{S_PA}, {WS_PART}
    s_barrier
    """)
    A.stamp(6)

    def pub():
        A(f"s_cmp_lg_u32 s{S_W}, 7\ns_cbranch_scc1 L_nopub")
        A(f"v_mov_b32 v26, s{S_TAG}\ns_mov_b64 exec, 1")
        A(f"buffer_store_dword v26, v{VID+1}, s[{sWS}:{sWS+3}], s{S_HF} offen offset:16 sc1")
        A("s_mov_b64 exec, -1")
        A("L_nopub:")
    readbacks(pub)
    A.stamp(7)
    A.srd(sDBG, 22, 256)
    A(f"s_cmp_lg_u32 s{S_W}, 7\ns_cbranch_scc1 L_nopoll")
    A(f"s_add_u32 s3, s{S_HF}, 16")
    A.poll(VID + 3, sWS, "s3", "eq", 64, S_TAG, vtmp=27)
    A(f"s_cmp_lg_u32 s{S_CT}, 0\ns_cbranch_scc1 L_nopoll")
    A(f"s_mov_b64 exec, 1\nbuffer_store_dword v26, v{VZ}, s[{sWS}:{sWS+3}], s{S_HF} offen sc1\ns_mov_b64 exec, -1")
    A("L_nopoll:")
    A.wait(vm=0)
    A("s_barrier")
    if not P2: A.stamp(1)

    def v_loads():
        A(f"s_cmp_eq_u32 s{S_T}, 0\ns_cselect_b32 s27, 0, {OOB}\nv_or_b32 v{VT}, s27, v{VL}")
        A.vmem(f"buffer_load_dword v{RSD}, v{RSD+1}, s[{sWS}:{sWS+3}], 0 offen {HLD}", "rstd")
        for u in range(8):
            for k in range(2):
                if u % 4 == 0:
                    A(f"s_add_u32 s{(27, 3)[k]}, s{S_MW if k else S_FT}, {u*1024}")
                A.vmem(f"buffer_load_dwordx4 {v(VF+32*k+4*u,4)}, v{VT if k else VL}, s[{sWS}:{sWS+3}], s{(27, 3)[k]} offen offset:{(u%4)*1024} {HLD}", ("v", u))
    A(f"s_sleep {opt.get('vsl', 24)}")
    A(f"buffer_load_dword v{VPOLL+1}, v{VPOLL}, s[{sDBG}:{sDBG+3}], 0 offen offset:128 sc1")
    A(f"""
    s_lshl_b32 s3, s{S_GH}, 12
    s_add_u32 s27, s3, {YS}
    v_add_u32 v28, s27, v{VL}
    s_add_u32 s27, s3, {ZS}
    v_add_u32 v29, s27, v{VL}
    s_lshl_b32 s3, s{S_GH}, 6
    s_add_u32 s3, s3, {YS + 20480}
    v_and_b32 v30, 15, v1
    v_lshl_add_u32 v31, v30, 2, s3
    v_lshrrev_b32 v32, 4, v1
    v_lshrrev_b32 v33, 1, v32
    v_and_b32 v34, 7, v30
    v_xor_b32 v33, v33, v34
    v_lshlrev_b32 v33, 4, v33
    v_lshl_add_u32 v33, v30, 7, v33
    v_and_b32 v32, 1, v32
    v_lshl_add_u32 v33, v32, 3, v33
    s_lshl_b32 s{S_H}, s{S_GH}, 11
    s_add_u32 s{S_H}, s{S_H}, {XS}
    v_add_u32 v160, s{S_H}, v33
    v_xor_b32 v161, 32, v160
    v_xor_b32 v162, 64, v160
    v_xor_b32 v163, 96, v160
    v_mov_b32 v164, v28
    v_mov_b32 v165, v29
    v_mov_b32 v166, v31
    s_waitcnt vmcnt(0)
    v_cmp_ne_u32 vcc, 0, v{VPOLL+1}
    s_nop 1
    s_cmp_eq_u64 vcc, exec
    s_cselect_b32 s{S_VOK}, 1, 0
    s_cbranch_scc0 L_vlate
    """)
    A.reset()
    v_loads()
    A("L_vlate:")
    A("s_barrier")
    A.stamp(8)
    A(f"s_cmp_eq_u32 s{S_VOK}, 1\ns_cbranch_scc1 L_vok")
    A(f"s_movk_i32 s3, 128")
    A.poll(VPOLL, sDBG, "s3", "ne0", 64, vtmp=VPOLL + 1, sleep=opt.get("vps", 1))
    A.reset()
    v_loads()
    A("L_vok:")
    A.stamp(9)
    for ps in range(2):
        A.dma(VO + ps, sX, "0", f"s_add_u32 m0, s{S_H}, {ps*1024}", "xr")

    def p_loads(track):
        for eb in range(4):
            t_ = f"buffer_load_dwordx4 {v(PR+4*eb,4)}, v{VL}, s[{sWS}:{sWS+3}], s{S_PA} offen offset:{eb*1024} sc1"
            A.vmem(t_, "part") if track else A(t_)
    for f in w_reads(28, 28):
        f()
    A(f"s_cmp_eq_u32 s{S_T}, 0\ns_cbranch_scc1 L_vspecial")

    def vpart(special):
        for i in range(28, 36):
            u = i - 28
            nm = 8 if special else 4
            fl = [(k * nm // 8, f) for k, f in enumerate(w_reads(i + 1, i + 1))] if i + 1 < 36 else []
            if u == opt.get("pat", 6):
                fl.append((3, lambda: p_loads(True)))
            mf = []
            for eb in range(4):
                def f(eb=eb):
                    if eb % 2 == 0:
                        A.wait(vm=("v", u) if eb == 0 else None, lg=("wf", i, eb >> 1))
                    A.mfma(YA + eb * 4, FW2[i & 1] + 4 * eb, VF + 4 * u, "0" if u == 0 else None)
                mf.append(f)
                if special:
                    mf.append(lambda eb=eb: A.mfma(YB + eb * 4, FW2[i & 1] + 4 * eb, VF + 32 + 4 * u, "0" if u == 0 else None))
            A.weave(mf, fl)
        A.wait(vm="xr")
        for eb in range(4):
            A(f"ds_read_b64 {v(24+2*eb,2)}, v{160+eb}")
        A(f"ds_write_b32 v166, v{RSD}")
        A("s_nop 2")
        for eb in range(4):
            A(f"ds_write_b128 v164, {v(YA+4*eb,4)} offset:{eb*1024}")
        if special:
            L = A.label("L_nopm")
            A(f"s_cmp_lg_u32 s{S_W}, 4\ns_cbranch_scc1 {L}")
            A("s_mov_b32 s26, 0x00010001\ns_mov_b32 s27, 0x00010001")
            for r in range(16):
                A(f"v_cndmask_b32 v{YB+r}, v{YA+r}, v{YB+r}, s[26:27]")
            for eb in range(4):
                A(f"ds_write_b128 v164, {v(YB+4*eb,4)} offset:{16384 + eb*1024}")
            A(f"{L}:")
    sv = (list(A.vm), A.vm_done, list(A.lg), A.lg_done)
    vpart(False)
    A("s_branch L_vdone")
    A("L_vspecial:")
    A.vm, A.vm_done, A.lg, A.lg_done = sv
    vpart(True)
    A("L_vdone:")
    A(f"""
    s_and_b32 s26, s{S_PT}, 0xff
    s_mul_i32 s26, s26, 0x01010101
    s_mov_b32 s27, 0x0c0c0400
    s_mov_b32 s{S_KX}, 0x40000
    s_waitcnt lgkmcnt(0)
    """)
    for eb in range(4):
        for hh in range(2):
            A(f"v_lshlrev_b32 v{XU+4*eb+2*hh}, 16, v{24+2*eb+hh}\nv_and_b32 v{XU+4*eb+2*hh+1}, 0xffff0000, v{24+2*eb+hh}")
    A("L_pchk:")
    A("s_waitcnt vmcnt(0)")
    for k in range(8):
        A(f"v_perm_b32 v{32+k}, v{PR+2*k+1}, v{PR+2*k}, s27")
    for k in range(4):
        A(f"v_lshl_or_b32 v{32+2*k}, v{33+2*k}, 16, v{32+2*k}")
    for k in range(4):
        A(f"v_xor_b32 v{32+2*k}, s26, v{32+2*k}")
    A("v_or3_b32 v32, v32, v34, v36\nv_or_b32 v32, v32, v38\nv_cmp_eq_u32 vcc, 0, v32\ns_nop 1\ns_cmp_eq_u64 vcc, exec\ns_cbranch_scc1 L_pok")
    p_loads(False)
    A(f"s_sub_u32 s{S_KX}, s{S_KX}, 1\ns_cbranch_scc0 L_pchk")
    A("L_pok:")
    for r in range(16):
        A(f"v_and_b32 v{PR+r}, 0xffffff00, v{PR+r}")
    for eb in range(4):
        for hh in range(2):
            A(f"v_pk_fma_f32 {v(XU+4*eb+2*hh,2)}, {v(PR+4*eb+2*hh,2)}, {v(RSD,2)}, {v(XU+4*eb+2*hh,2)} op_sel_hi:[1,0,1]")
        A(f"ds_write_b128 v165, {v(XU+4*eb,4)} offset:{eb*1024}")
    A("s_waitcnt lgkmcnt(0)")
    A.stamp(10)
    A("s_barrier")
    A(f"s_xor_b32 s3, s{S_W}, 4\ns_or_b32 s3, s3, s{S_JX}\ns_cmp_eq_u32 s3, 0\ns_cselect_b32 s3, 0, {OOB}\nv_mov_b32 v21, s3\nv_mov_b32 v20, s{S_PT}")
    A(f"buffer_store_dword v20, v21, s[{sWS}:{sWS+3}], s{S_PF} offen sc1")
    A.dump_stamps(11)
    A("s_endpgm")

    A.reset()
    A("L_dft:")
    S_Q, S_VAR, S_M, S_N, S_P = 63, 96, 97, 98, 99
    A(f"""
    s_sub_u32 s3, s{S_J}, 28
    s_lshl_b32 s{S_Q}, s{S_XCD}, 2
    s_add_u32 s{S_Q}, s{S_Q}, s3
    s_lshr_b32 s{S_VAR}, s{S_XCD}, 1
    s_and_b32 s{S_M}, s{S_XCD}, 1
    s_lshl_b32 s{S_M}, s{S_M}, 1
    s_lshr_b32 s27, s3, 1
    s_add_u32 s{S_M}, s{S_M}, s27
    s_and_b32 s{S_N}, s3, 1
    s_and_b32 s{S_P}, s{S_VAR}, 1
    """)
    RAW, EO, TF, TM, ST = 32, 64, 128, 136, 144
    A(f"""
    s_lshl_b32 s3, s{S_Q}, 4
    s_lshl_b32 s27, s{S_W}, 1
    s_add_u32 s3, s3, s27
    v_lshrrev_b32 v2, 5, v1
    v_add_u32 v4, s3, v2
    v_and_b32 v3, 31, v1
    v_sub_u32 v5, 2048, v4
    v_sub_u32 v6, 1024, v4
    v_add_u32 v7, 1024, v4
    v_cmp_eq_u32 s[100:101], 0, v4
    v_mov_b32 v8, 512
    v_mov_b32 v9, 1536
    v_mov_b32 v12, {OOB}
    v_cndmask_b32 v5, v5, v8, s[100:101]
    v_cndmask_b32 v7, v7, v9, s[100:101]
    v_cmp_gt_u32 vcc, 28, v3
    v_lshlrev_b32 v8, 4, v3
    v_sub_u32 v9, 880, v8
    v_cndmask_b32 v8, v12, v8, vcc
    v_cndmask_b32 v9, v12, v9, vcc
    s_waitcnt lgkmcnt(0)
    """)
    A.srd(sX, 4, 2048 * 896)
    for rho in range(4):
        A(f"v_mul_u32_u24 v13, 896, v{4+rho}\nv_add_u32 v14, v13, v8\nv_add_u32 v15, v13, v9")
        for fm in range(2):
            A.vmem(f"buffer_load_dwordx4 {v(RAW + rho*8 + 4*fm, 4)}, v{14+fm}, s[{sX}:{sX+3}], 0 offen", ("x", rho))
    A.srd(sWS, 24, WS_SIZE + (0x40000 if stamps else 0))
    A(f"s_cmp_lg_u32 s{S_W}, 7\ns_cbranch_scc1 L_dnotouch")
    start_touch(A, opt, "x", 160)
    start_touch(A, opt, "c", 164)
    code_touch(A, 168)
    A("L_dnotouch:")
    S_CM = 14
    A(f"""
    s_cmp_ge_u32 s{S_VAR}, 2
    s_cselect_b32 s{sC}, s8, s6
    s_cselect_b32 s{sC+1}, s9, s7
    s_and_b32 s{sC+1}, s{sC+1}, 0xffff
    s_mov_b32 s{sC+2}, {2048*4096}
    s_mov_b32 s{sC+3}, 0x20000
    s_lshl_b32 s3, s{S_M}, 7
    s_lshl_b32 s27, s{S_W}, 4
    s_add_u32 s3, s3, s27
    s_lshl_b32 s3, s3, 1
    s_add_u32 s3, s3, s{S_P}
    s_lshl_b32 s3, s3, 12
    v_lshrrev_b32 v13, 3, v1
    v_lshlrev_b32 v13, 13, v13
    v_add_u32 v13, s3, v13
    v_lshrrev_b32 v14, 4, v1
    v_and_b32 v15, 7, v1
    v_xor_b32 v14, v14, v15
    v_xor_b32 v15, 4, v14
    v_lshl_add_u32 v16, v14, 4, v13
    v_lshl_add_u32 v17, v15, 4, v13
    v_add_u32 v17, {8*8192}, v17
    s_lshl_b32 s{S_CM}, s{S_W}, 11
    """)
    c_dmas = [A.dma2(16 + u, sC, "0", f"s_add_u32 m0, s{S_CM}, {stg*16384 + u*1024 - stg*128}", "c", imm=stg * 128)
              for stg in range(8) for u in range(2)]
    A.stamp(1)
    A(f"""
    v_cmp_eq_u32 s[26:27], 0, v3
    v_cndmask_b32 v21, 0, 2.0, vcc
    v_cmp_eq_u32 vcc, 28, v3
    v_mov_b32 v24, 0
    v_cndmask_b32 v20, v21, 1.0, s[26:27]
    v_mov_b32 v25, 0
    v_cndmask_b32 v20, v20, 1.0, vcc
    v_mov_b32 v26, 0
    v_mov_b32 v27, 0
    """)
    E = lambda rho: EO + rho * 16
    O = lambda rho: EO + rho * 16 + 8
    for rho in range(4):
        A.wait(vm=("x", rho))
        if rho == opt.get("cat", 3):
            ne = opt.get("cearly", 0)
            A.sprinkle(c_dmas[:ne], opt.get("cev", 16))
        F = RAW + rho * 8
        M = F + 4
        A(f"v_mov_b32_dpp v{24+rho}, v{M} row_bcast:15 row_mask:0xa bank_mask:0xf")
        for i in range(4):
            A(f"v_lshlrev_b32 v{TF+2*i}, 16, v{F+i}\nv_and_b32 v{TF+2*i+1}, 0xffff0000, v{F+i}")
        A(f"v_mov_b32_dpp v{24+rho}, v{M} row_shr:1 row_mask:0xf bank_mask:0xf")
        for j in range(1, 8):
            k = 8 - j
            if k & 1:
                A(f"v_and_b32 v{TM+j}, 0xffff0000, v{M + k//2}")
            else:
                A(f"v_lshlrev_b32 v{TM+j}, 16, v{M + k//2}")
        A(f"v_lshlrev_b32 v{TM}, 16, v{24+rho}")
        for i in range(4):
            A(f"v_pk_add_f32 {v(E(rho)+2*i,2)}, {v(TF+2*i,2)}, {v(TM+2*i,2)}")
            A(f"v_pk_add_f32 {v(O(rho)+2*i,2)}, {v(TF+2*i,2)}, {v(TM+2*i,2)} neg_lo:[0,1] neg_hi:[0,1]")
        sm, sq = ST + 4 * rho, ST + 4 * rho + 2
        for i in range(4):
            if i == 0:
                A(f"v_pk_add_f32 {v(sm,2)}, {v(E(rho),2)}, {v(E(rho)+2,2)}")
                A(f"v_pk_mul_f32 {v(sq,2)}, {v(E(rho),2)}, {v(E(rho),2)}")
            else:
                if i > 1:
                    A(f"v_pk_add_f32 {v(sm,2)}, {v(sm,2)}, {v(E(rho)+2*i,2)}")
                A(f"v_pk_fma_f32 {v(sq,2)}, {v(E(rho)+2*i,2)}, {v(E(rho)+2*i,2)}, {v(sq,2)}")
            A(f"v_pk_fma_f32 {v(sq,2)}, {v(O(rho)+2*i,2)}, {v(O(rho)+2*i,2)}, {v(sq,2)}")
    A.stamp(2)
    for rho in range(4):
        A(f"v_add_f32 v{ST+4*rho}, v{ST+4*rho}, v{ST+4*rho+1}\nv_add_f32 v{ST+4*rho+2}, v{ST+4*rho+2}, v{ST+4*rho+3}")
    for i in range(4):
        A(f"v_permlane16_swap_b32 v{ST+2*i}, v{ST+8+2*i}")
    for i in range(4):
        A(f"v_add_f32 v{ST+2*i}, v{ST+2*i}, v{ST+8+2*i}")
    for sh in (8, 4, 2, 1):
        for i in range(4):
            r = ST + 2 * i
            A(f"v_add_f32_dpp v{r}, v{r}, v{r} row_ror:{sh} row_mask:0xf bank_mask:0xf")
    R_, C_ = 24, 28
    A(f"s_mov_b32 s3, {0x3b124925}\ns_mov_b32 s26, {0x3a924925}\ns_mov_b32 s27, {0x3727c5ac}")
    seq_ = [
        lambda b: f"v_mul_f32 v{b}, s3, v{b}\nv_mul_f32 v{b+2}, s26, v{b+2}",
        lambda b: f"v_fma_f32 v{b+2}, -v{b}, v{b}, v{b+2}",
        lambda b: f"v_max_f32 v{b+2}, 0, v{b+2}",
        lambda b: f"v_cvt_pk_bf16_f32 v{b+1}, v{b}, v{b+2}",
        lambda b: f"v_lshlrev_b32 v{b}, 16, v{b+1}\nv_and_b32 v{b+2}, 0xffff0000, v{b+1}",
        lambda b: f"v_add_f32 v{b+2}, s27, v{b+2}",
        lambda b: f"v_cvt_pk_bf16_f32 v{b+2}, v{b+2}, v{b+2}",
        lambda b: f"v_and_b32 v{b+2}, 0xffff0000, v{b+2}",
        lambda b: f"v_sqrt_f32 v{b+2}, v{b+2}",
        lambda b: f"s_nop 0\nv_cvt_pk_bf16_f32 v{b+2}, v{b+2}, v{b+2}",
        lambda b: f"v_and_b32 v{b+2}, 0xffff0000, v{b+2}",
    ]
    for f in seq_:
        for rho in range(2):
            A(f(ST + 4 * rho))
    for rho in range(2):
        A(f"v_rcp_f32 v{R_+rho}, v{ST+4*rho+2}")
    A("s_nop 0")
    for rho in range(2):
        A(f"v_mul_f32 v{C_+rho}, v{ST+4*rho}, v{R_+rho}")
    for r in (R_, R_ + 1, C_, C_ + 1):
        A(f"v_mov_b32 v{r+2}, v{r}")
    A("s_nop 0")
    for r in (R_, R_ + 1, C_, C_ + 1):
        A(f"v_permlane16_swap_b32 v{r}, v{r+2}")
    A(f"""
    v_cmp_eq_u32 vcc, 1, v3
    v_cmp_eq_u32 s[26:27], 2, v3
    v_mov_b32 v8, v4
    v_mov_b32 v9, v{R_}
    v_cndmask_b32 v8, v8, v5, vcc
    v_cndmask_b32 v9, v9, v{R_+1}, vcc
    v_cmp_eq_u32 vcc, 3, v3
    v_cndmask_b32 v8, v8, v6, s[26:27]
    v_cndmask_b32 v9, v9, v{R_+2}, s[26:27]
    v_cndmask_b32 v8, v8, v7, vcc
    v_cndmask_b32 v9, v9, v{R_+3}, vcc
    v_cmp_gt_u32 vcc, 4, v3
    v_lshlrev_b32 v8, 2, v8
    v_add_u32 v8, {WS_RSTD}, v8
    v_cndmask_b32 v8, v12, v8, vcc
    """)
    A.vmem(f"buffer_store_dword v9, v8, s[{sWS}:{sWS+3}], 0 offen sc1")
    if len(A.spr["q"]) & 1:
        A("s_nop 0"); A.spr["q"].pop(0)()
    A.spr["on"] = False
    A(f"s_or_b32 s3, s{S_Q}, s{S_W}\ns_cmp_lg_u32 s3, 0\ns_cbranch_scc1 L_no512")
    A(f"v_add_f32 v10, v{C_+1}, v{C_+3}")
    for j in range(8):
        A(f"v_mul_f32 v{TF+j}, v10, v{20+(1 if j else 0)}")
        A(f"v_fma_f32 v{TF+j}, v{E(1)+j}, v{R_+1}, -v{TF+j}")
        A(f"v_fma_f32 v{TF+j}, v{E(3)+j}, v{R_+3}, v{TF+j}")
        A(f"v_mul_f32 v{TM+j}, v{O(1)+j}, v{R_+1}")
        A(f"v_fma_f32 v{TM+j}, -v{O(3)+j}, v{R_+3}, v{TM+j}")
    for i in range(4):
        A(f"v_cvt_pk_bf16_f32 v{RAW+i}, v{TF+2*i}, v{TF+2*i+1}")
        A(f"v_cvt_pk_bf16_f32 v{RAW+4+i}, v{TM+2*i}, v{TM+2*i+1}")
    A(f"v_lshlrev_b32 v10, 4, v3\nv_add_u32 v10, {WS_X512}, v10\nv_cndmask_b32 v10, v12, v10, s[100:101]")
    A(f"buffer_store_dwordx4 {v(RAW,4)}, v10, s[{sWS}:{sWS+3}], 0 offen sc1")
    A(f"buffer_store_dwordx4 {v(RAW+4,4)}, v10, s[{sWS}:{sWS+3}], 0 offen offset:{3*512} sc1")
    A("s_nop 1")
    A("L_no512:")
    A.spr["on"] = True
    for r in (R_ + 1, R_ + 3, C_ + 1, C_ + 3):
        A(f"v_cndmask_b32 v{r}, v{r}, 0, s[100:101]")
    A(f"v_add_f32 v{C_}, v{C_}, v{C_+1}\nv_add_f32 v{C_+2}, v{C_+2}, v{C_+3}")
    OUT = lambda var: RAW + var * 8
    bl = "op_sel_hi:[1,0,1]"
    bh = "op_sel:[0,1,0] op_sel_hi:[1,1,1]"
    A(f"v_pk_mul_f32 v[8:9], v[20:21], {v(C_,2)} op_sel_hi:[1,0] neg_lo:[1,0] neg_hi:[1,0]")
    A(f"v_pk_mul_f32 v[10:11], v[20:21], {v(C_+2,2)} op_sel_hi:[1,0] neg_lo:[1,0] neg_hi:[1,0]")
    for i in range(4):
        s3lo, s3hi = (0, 1) if i == 0 else (1, 1)
        a_, b_ = TF, TF + 2
        A(f"v_pk_fma_f32 {v(a_,2)}, {v(E(0)+2*i,2)}, {v(R_,2)}, v[8:9] op_sel:[0,0,{s3lo}] op_sel_hi:[1,0,{s3hi}]")
        A(f"v_pk_fma_f32 {v(b_,2)}, {v(E(2)+2*i,2)}, {v(R_+2,2)}, v[10:11] op_sel:[0,0,{s3lo}] op_sel_hi:[1,0,{s3hi}]")
        A(f"v_pk_mul_f32 {v(TM,2)}, {v(O(0)+2*i,2)}, {v(R_,2)} op_sel_hi:[1,0]")
        A(f"v_pk_mul_f32 {v(TM+2,2)}, {v(O(3)+2*i,2)}, {v(R_+2,2)} op_sel:[0,1] op_sel_hi:[1,1]")
        A(f"v_pk_fma_f32 {v(a_,2)}, {v(E(1)+2*i,2)}, {v(R_,2)}, {v(a_,2)} {bh}")
        A(f"v_pk_fma_f32 {v(b_,2)}, {v(E(3)+2*i,2)}, {v(R_+2,2)}, {v(b_,2)} {bh}")
        A(f"v_pk_fma_f32 {v(TM,2)}, {v(O(1)+2*i,2)}, {v(R_,2)}, {v(TM,2)} {bh} neg_lo:[1,0,0] neg_hi:[1,0,0]")
        A(f"v_pk_fma_f32 {v(TM+2,2)}, {v(O(2)+2*i,2)}, {v(R_+2,2)}, {v(TM+2,2)} {bl} neg_lo:[1,0,0] neg_hi:[1,0,0]")
        A(f"v_pk_add_f32 {v(OUT(0)+2*i,2)}, {v(a_,2)}, {v(b_,2)}")
        A(f"v_pk_add_f32 {v(OUT(1)+2*i,2)}, {v(a_,2)}, {v(b_,2)} neg_lo:[0,1] neg_hi:[0,1]")
        A(f"v_pk_add_f32 {v(OUT(2)+2*i,2)}, {v(TM,2)}, {v(TM+2,2)}")
        A(f"v_pk_add_f32 {v(OUT(3)+2*i,2)}, {v(TM,2)}, {v(TM+2,2)} neg_lo:[0,1] neg_hi:[0,1]")
    PKD = EO
    FS = 131072
    A(f"""
    v_lshlrev_b32 v8, 13, v2
    v_lshrrev_b32 v9, 1, v3
    v_lshl_add_u32 v8, v9, 9, v8
    v_and_b32 v10, 7, v9
    v_lshl_add_u32 v8, v10, 4, v8
    v_and_b32 v10, 1, v3
    v_lshl_add_u32 v8, v10, 7, v8
    v_and_b32 v9, 8, v9
    v_or_b32 v8, v8, v9
    s_lshr_b32 s3, s{S_W}, 2
    s_lshl_b32 s3, s3, 8
    s_and_b32 s27, s{S_W}, 3
    s_lshl_b32 s27, s27, 2
    s_add_u32 s3, s3, s27
    s_add_u32 s3, s3, {FS}
    v_xor_b32 v8, s3, v8
    """)
    for j in range(1, 8):
        A(f"v_xor_b32 v{8+j}, {j<<4}, v8")
    for pr in range(2):
        for j in range(8):
            A(f"v_permlane32_swap_b32 v{OUT(2*pr)+j}, v{OUT(2*pr+1)+j}")
        for j in range(8):
            A(f"v_cvt_pk_bf16_f32 v{PKD+8*pr+j}, v{OUT(2*pr)+j}, v{OUT(2*pr+1)+j}")
        for j in range(8):
            A.lds(f"ds_write_b32 v{8+j}, v{PKD+8*pr+j} offset:{pr*16384}")
    A(f"""
    v_xor_b32 v28, v3, v2
    v_lshlrev_b32 v28, 4, v28
    v_lshl_add_u32 v28, v2, 9, v28
    s_lshl_b32 s3, s{S_W}, 12
    s_and_b32 s27, s{S_W}, 1
    s_lshl_b32 s27, s27, 3
    s_add_u32 s3, s3, s27
    s_add_u32 s3, s3, {FS}
    v_add_u32 v28, s3, v28
    v_lshlrev_b32 v27, 4, v3
    v_lshl_add_u32 v27, v2, 14, v27
    s_lshr_b32 s3, s{S_Q}, 1
    s_lshl_b32 s3, s3, 10
    s_and_b32 s27, s{S_Q}, 1
    s_lshl_b32 s27, s27, 9
    s_add_u32 s3, s3, s27
    s_lshl_b32 s27, s{S_W}, 17
    s_add_u32 s3, s3, s27
    s_add_u32 s3, s3, {WS_XF}
    """)
    for k in range(1, 8):
        A(f"v_xor_b32 v{RAW+16+k}, {(k>>1)*32 + (k&1)*8}, v28")
    A.sprinkle_flush()
    A.wait(lg=0)
    A("s_barrier")
    for i in range(4):
        for hh in range(2):
            k = 2 * i + hh
            A.lds(f"ds_read_b64 {v(RAW+4*i+2*hh,2)}, v{RAW+16+k if k else 28} offset:{i*1024}", ("rb", i))
    for i in range(4):
        A.wait(lg=("rb", i))
        A.vmem(f"buffer_store_dwordx4 {v(RAW+4*i,4)}, v27, s[{sWS}:{sWS+3}], s3 offen sc1", "xst")
        A(f"s_add_u32 s3, s3, 32768")
    A.stamp(3)
    CMID = opt.get("cmid", 4)
    burst(c_dmas[ne:ne + CMID])
    A(f"s_cmp_ge_u32 s{S_W}, 4\ns_cbranch_scc1 L_dft_helper")
    dstate = (list(A.vm), A.vm_done)
    SACC, SEX, CF, XF = 32, 96, [104, 136], 168
    KALT, B512, X5 = 4, 8, [12, 16]
    CA = 22
    S_XA = 15
    A(f"""
    v_and_b32 v2, 15, v1
    v_lshrrev_b32 v3, 4, v1
    v_lshrrev_b32 v26, 1, v2
    v_xor_b32 v26, v26, v3
    v_lshlrev_b32 v26, 4, v26
    v_lshl_add_u32 v{CA}, v2, 7, v26
    v_xor_b32 v{CA+1}, 64, v{CA}
    v_add_u32 v{CA+2}, 0x10000, v{CA}
    v_add_u32 v{CA+3}, 0x10000, v{CA+1}
    v_and_b32 v26, 1, v1
    s_cmp_ge_u32 s{S_VAR}, 2
    s_cselect_b32 s100, 1, 0
    s_cselect_b32 s101, 0x80008000, 0
    v_xor_b32 v26, s100, v26
    v_lshlrev_b32 v26, 15, v26
    v_or_b32 v{B512}, 0x3f80, v26
    s_lshl_b32 s26, s{S_N}, 3
    s_lshl_b32 s27, s{S_W}, 1
    s_add_u32 s26, s26, s27
    s_lshl_b32 s3, s{S_VAR}, 4
    s_add_u32 s3, s3, s26
    s_lshl_b32 s{S_XA}, s3, 14
    s_add_u32 s{S_XA}, s{S_XA}, {WS_XF}
    s_and_b32 s3, s{S_M}, 1
    s_lshl_b32 s95, s3, 13
    s_add_u32 s{S_XA}, s{S_XA}, s95
    s_lshl_b32 s95, s3, 14
    s_sub_u32 s95, 4096, s95
    s_lshl_b32 s3, s3, 16
    v_xor_b32 v{CA}, s3, v{CA}
    v_xor_b32 v{CA+1}, s3, v{CA+1}
    v_xor_b32 v{CA+2}, s3, v{CA+2}
    v_xor_b32 v{CA+3}, s3, v{CA+3}
    s_lshl_b32 s26, s26, 5
    s_lshl_b32 s27, s{S_VAR}, 9
    s_add_u32 s26, s26, s27
    s_add_u32 s26, s26, {WS_X512}
    v_lshl_add_u32 v27, v1, 1, s26
    s_add_u32 s3, s{S_VAR}, 1
    s_and_b32 s3, s3, 2
    s_cmp_eq_u32 s3, 0
    s_cselect_b32 s3, 16, 0
    v_cmp_gt_u32 vcc, s3, v1
    v_mov_b32 v26, {OOB}
    v_lshlrev_b32 v28, 4, v1
    v_cndmask_b32 v27, v26, v27, vcc
    v_add_u32 v29, 16384, v28
    s_or_b32 s3, s{S_M}, s{S_VAR}
    s_cmp_eq_u32 s3, 0
    s_cselect_b32 vcc_lo, 1, 0
    s_mov_b32 vcc_hi, 0
    """)
    for i in range(4):
        A(f"v_mov_b32 v{KALT+i}, 0xbf803f80")
    for i in range(8):
        A(f"v_mov_b32 v{SEX+i}, 0")
    A.wait(vm="xst")
    A("s_barrier")
    A.stamp(4)
    burst(c_dmas[ne + CMID:])
    for i in range(1, 4):
        A(f"v_mov_b32 v{B512+i}, 0\nv_mov_b32 v{X5[0]+i}, 0\nv_mov_b32 v{X5[1]+i}, 0")
    A.wait(vm=0)

    def c_reads(sb):
        stg, q = sb >> 1, sb & 1
        r = []
        for tb in range(8):
            a_ = stg * 16384 + tb * 2048
            r.append(lambda tb=tb, a_=a_: A.lds(f"ds_read_b128 {v(CF[sb&1]+4*tb,4)}, v{CA + 2*(a_>>16) + q} offset:{a_ & 0xffff}", ("cf", sb)))
        return r

    def x_th(sb):
        r = []
        for a_ in range(2):
            def f(a_=a_):
                if sb and sb % 4 == 0 and a_ == 0:
                    A(f"s_add_u32 s{S_XA}, s{S_XA}, {4096 if sb != 8 else 's95'}")
                A.vmem(f"buffer_load_dwordx4 {v(XF + (sb % 11)*8 + 4*a_, 4)}, v{28+a_}, s[{sWS}:{sWS+3}], s{S_XA} offen offset:{(sb%4)*1024} {HLD}", ("xf", sb))
            r.append(f)
        return r

    def extra(xa0, xa1):
        L = A.label("L_nx")
        A(f"s_cbranch_vccz {L}")
        A.mfma(SEX, xa0, KALT)
        A.mfma(SEX + 4, xa1, KALT)
        A(f"{L}:")
    A("s_barrier")
    A.stamp(5)
    XD = opt.get("xd", 5)
    for sb in range(XD):
        for f in x_th(sb):
            f()
    for f in c_reads(0):
        f()
    xnext = XD
    for sb in range(16):
        fl = list(enumerate(c_reads(sb + 1))) if sb + 1 < 16 else []
        nx = [k for k in (xnext, xnext + 1) if k <= min(15, sb + 10)]
        xnext += len(nx)
        k0 = 0
        for k in nx:
            for f in x_th(k):
                fl.append((8 + 2 * k0, f)); k0 += 1
        if sb == 8:
            fl.append((13, lambda: A.vmem(f"buffer_load_ushort v{X5[0]}, v27, s[{sWS}:{sWS+3}], 0 offen {HLD}", "x5")))
            fl.append((15, lambda: A.vmem(f"buffer_load_ushort v{X5[1]}, v27, s[{sWS}:{sWS+3}], 0 offen offset:32 {HLD}", "x5")))
        A.wait(vm=("xf", sb), lg=("cf", sb))
        z = "0" if sb == 0 else None
        xa = XF + (sb % 11) * 8
        A.weave([lambda a_=a_, tb=tb: A.mfma(SACC + (a_ * 8 + tb) * 4, xa + 4 * a_, CF[sb & 1] + 4 * tb, z)
                 for a_ in range(2) for tb in range(8)], fl)
        extra(xa, xa + 4)
    A.wait(vm="x5")
    extra(X5[0], X5[1])
    for tb in range(8):
        for a_ in range(2):
            A.mfma(SACC + (a_ * 8 + tb) * 4, X5[a_], B512)
    A.stamp(6)
    A(f"""
    s_lshl_b32 s3, s{S_M}, 3
    s_add_u32 s3, s3, s{S_P}
    s_lshl_b32 s3, s3, 5
    s_lshl_b32 s27, s100, 3
    s_lshl_b32 s26, s{S_N}, 2
    s_add_u32 s27, s27, s26
    s_add_u32 s27, s27, s{S_W}
    s_add_u32 s3, s3, s27
    s_lshl_b32 s3, s3, 10
    s_add_u32 s3, s3, {WS_VV}
    s_lshl_b32 s27, s27, 10
    s_add_u32 s{S_XA}, s27, {WS_VV + 64*16384}
    """)
    D0 = CF[0]
    for tb in range(8):
        d = D0 + 4 * tb
        for a_ in range(2):
            s0 = SACC + (a_ * 8 + tb) * 4
            A(f"v_cvt_pk_bf16_f32 v{d+2*a_}, v{s0}, v{s0+1}\nv_cvt_pk_bf16_f32 v{d+2*a_+1}, v{s0+2}, v{s0+3}")
        for i in range(4):
            A(f"v_xor_b32 v{d+i}, s101, v{d+i}")
        A(f"s_add_u32 s27, s3, {((tb >> 1) * 4 + (tb & 1)) * 16384}")
        A.vmem(f"buffer_store_dwordx4 {v(d,4)}, v28, s[{sWS}:{sWS+3}], s27 offen sc1")
    A("s_cbranch_vccz L_nospecial")
    A("s_mov_b32 s26, 0x00010001\ns_mov_b32 s27, 0x00010001")
    for i in range(4):
        A(f"v_cvt_pk_bf16_f32 v{XF+i}, v{SEX+2*i}, v{SEX+2*i+1}")
    for i in range(4):
        A(f"v_cndmask_b32 v{XF+i}, v{D0+i}, v{XF+i}, s[26:27]")
    A(f"buffer_store_dwordx4 {v(XF,4)}, v28, s[{sWS}:{sWS+3}], s{S_XA} offen sc1")
    A("L_nospecial:")
    A.wait(vm=0)
    A("s_barrier")
    A.stamp(7)
    A.dump_stamps(8)
    A("s_endpgm")

    A.reset()
    A("L_dft_helper:")
    A.vm, A.vm_done = dstate
    A.srd(sDBG, 22, 256)
    A(f"""
    v_mov_b32 v4, 0
    v_mov_b32 v5, 1
    s_movk_i32 s{S_KW}, 32
    """)
    A.wait(vm="xst")
    A(f"""
    s_barrier
    s_cmp_eq_u32 s{S_W}, 4
    s_cbranch_scc0 L_nox
    s_setprio 3
    s_mov_b64 exec, 1
    buffer_atomic_add v5, v4, s[{sDBG}:{sDBG+3}], 0 offen sc1
    s_mov_b64 exec, -1
    L_nox:
    """)
    A.stamp(4)
    burst(c_dmas[ne + CMID:])
    A(f"""
    s_cmp_eq_u32 s{S_W}, 4
    s_cbranch_scc1 L_xpoll
    s_waitcnt vmcnt(0)
    s_barrier
    s_endpgm
    L_xpoll:
    """)
    A.poll(4, sDBG, "0", "eq", 1, S_KW, sleep=opt.get("xps", 1))
    A.stamp(5)
    A("s_barrier")
    A("s_barrier")
    A(f"""
    s_mov_b64 exec, 1
    buffer_atomic_add v5, v4, s[{sDBG}:{sDBG+3}], 0 offen offset:4 sc0 sc1
    s_waitcnt vmcnt(0)
    v_readfirstlane_b32 s3, v5
    s_nop 3
    s_cmp_lg_u32 s3, 31
    s_cbranch_scc1 L_notlast
    buffer_store_dword v5, v4, s[{sDBG}:{sDBG+3}], 0 offen offset:128 sc1
    L_notlast:
    """)
    A.stamp(6)
    A.dump_stamps(8)
    A("L_end:")
    A("s_endpgm")
    A("L_code_end:")

    hdr = open("parallel_sum__spectral_fnet__dense_activation_relu__prompt.s.ref").read().split("; Override")[0]
    return (hdr + "; @launch grid=(256,1,1) block=(512,1,1) lds=163840\n"
            + ".amdgcn_target \"amdgcn-amd-amdhsa--gfx950\"\n" + kernel_header(NAME) + A.text() + kernel_desc(NAME, 256, 256))


if __name__ == "__main__":
    out = sys.argv[1]
    stamps = len(sys.argv) > 2 and sys.argv[2] == "stamps"
    opt = {}
    for kv in sys.argv[3:]:
        k, x = kv.split("=")
        opt[k] = int(x) if x.lstrip("-").isdigit() else x
    open(out, "w").write(gen(stamps, opt))
```

```python
import sys
from asmlib import *

NAME = "parallel_sum__spectral_fnet__dense_activation_relu__prompt_kernel"

H_STRIDE = 56 * 1024
WS_VV = 0x700000
WS_XF = 0x810000
WS_X512 = 0x910000
WS_RSTD = 0x911000
WS_HFLAG = 0x914000
WS_XFLAG = 0x916000
WS_VFLAG = 0x917000
WS_EPOCH = 0x918000
WS_PART = 0x920000
WS_STAMP = 0xD20000
WS_SIZE = 0xD20000
OOB = 0x7FFFFF00

sX, sW1, sW2, sWS, sWD, sOUT, sDBG, sC = 28, 32, 36, 40, 44, 48, 52, 56
S_W, S_XCD, S_J = 60, 61, 62


class K(Asm):
    def __init__(self, stamps):
        super().__init__()
        self.stamps = stamps
        self.vm = []
        self.lg = []
        self.vm_done = 0
        self.lg_done = 0

    spr = None
    def __call__(self, s):
        for l in s.split("\n"):
            l = l.strip()
            if not l:
                continue
            super().__call__(l)
            if self.spr and self.spr["on"] and l.startswith("v_") and not l.startswith("v_cmp"):
                self.spr["cnt"] -= 1
                if self.spr["cnt"] <= 0 and self.spr["q"]:
                    self.spr["on"] = False
                    self.spr["q"].pop(0)()
                    self.spr["cnt"] = self.spr["gap"][len(self.spr["q"]) & 1]
                    self.spr["on"] = True

    def sprinkle(self, pairs, every):
        q = [f for p in pairs for f in p]
        self.spr = dict(q=q, on=True, cnt=1, gap=(every - 1, 1))

    def sprinkle_flush(self):
        q, self.spr = self.spr["q"], None
        for i, f in enumerate(q):
            if (len(q) - i) & 1:
                self("s_nop 0")
            f()

    def vmem(self, txt, tag=None):
        self(txt)
        if "store" in txt or "atomic" in txt:
            tag = ("ST", tag)
        self.vm.append(tag)

    def lds(self, txt, tag=None):
        self(txt)
        self.lg.append(tag)

    def _n(self, lst, tags):
        last = -1
        for i, t in enumerate(lst):
            if t in tags:
                last = i
        assert last >= 0, tags
        return len(lst) - 1 - last

    def wait(self, vm=None, lg=None):
        parts = []
        if vm is not None:
            if vm != 0 and ("ST", vm) in self.vm:
                vm = 0
            n = 0 if vm == 0 else self._n(self.vm, vm if isinstance(vm, list) else [vm])
            if vm == 0 or len(self.vm) - n > self.vm_done:
                self.vm_done = len(self.vm) - n
                n -= sum(1 for x in self.vm[len(self.vm) - n:] if isinstance(x, tuple) and x[0] == "ST")
                parts.append(f"vmcnt({min(n, 63)})")
        if lg is not None:
            n = 0 if lg == 0 else self._n(self.lg, lg if isinstance(lg, list) else [lg])
            n = min(n, 15)
            if lg == 0 or len(self.lg) - n > self.lg_done:
                parts.append(f"lgkmcnt({n})")
                self.lg_done = len(self.lg) - n
        if parts:
            self("s_waitcnt " + " ".join(parts))

    def reset(self):
        self.vm = []
        self.lg = []
        self.vm_done = 0
        self.lg_done = 0

    def stamp(self, i):
        if self.stamps:
            self(f"s_memtime s[{64+2*i}:{65+2*i}]")
            if i == 0:
                self("s_memrealtime s[92:93]")

    def dump_stamps(self, n):
        if not self.stamps:
            return
        L = self.label("L_st")
        self("s_memrealtime s[90:91]")
        self("s_memtime s[88:89]")
        self("s_waitcnt lgkmcnt(0)")
        self("s_mov_b64 exec, 1")
        self(f"s_lshl_b32 s26, s2, 3\ns_add_u32 s26, s26, s{S_W}\ns_lshl_b32 s26, s26, 7\ns_add_u32 s26, s26, {WS_STAMP}")
        self("v_mov_b32 v2, s26")
        for i in list(range(0, n, 2)) + [12, 14]:
            self(f"v_mov_b32 v4, s{64+2*i}\nv_mov_b32 v5, s{65+2*i}\nv_mov_b32 v6, s{66+2*i}\nv_mov_b32 v7, s{67+2*i}")
            self(f"buffer_store_dwordx4 v[4:7], v2, s[{sWS}:{sWS+3}], 0 offen offset:{8*i}")
            self("s_nop 2")
        self("s_waitcnt vmcnt(0)")

    def srd(self, d, lo, size):
        self(f"s_mov_b32 s{d}, s{lo}\ns_and_b32 s{d+1}, s{lo+1}, 0xffff\ns_mov_b32 s{d+2}, {size}\ns_mov_b32 s{d+3}, 0x20000")

    def fix2048(self, t, tmp):
        self(f"v_lshrrev_b32 v{tmp}, 11, v{t}\nv_lshlrev_b32 v{tmp}, 10, v{tmp}\nv_sub_u32 v{t}, v{t}, v{tmp}")

    def mfma(self, d, a_, b_, c=None):
        cs = v(d, 4) if c is None else c
        self(f"v_mfma_f32_16x16x32_bf16 {v(d,4)}, {v(a_,4)}, {v(b_,4)}, {cs}")

    def dma(self, voff, srd, soff, m0expr, tag, imm=0, flags=""):
        self(m0expr)
        self("s_nop 0")
        o = f" offset:{imm}" if imm else ""
        self.vmem(f"buffer_load_dwordx4 v{voff}, s[{srd}:{srd+3}], {soff} offen{o} lds {flags}".rstrip(), tag)

    def weave(self, mf, fill, lead=0):
        nm = len(mf)
        gaps = [[] for _ in range(nm)]
        free = [f for f in fill if not isinstance(f, tuple)]
        for f in fill:
            if isinstance(f, tuple):
                gaps[min(f[0], nm - 1)].append(f[1])
        for i, f in enumerate(free):
            gaps[lead + i * (nm - lead) // len(free)].append(f)
        for i in range(nm):
            mf[i]()
            for f in gaps[i]:
                f()

    def dma2(self, voff, srd, soff, m0expr, tag, imm=0, pre=None, flags=''):
        o = f" offset:{imm}" if imm else ""
        def a():
            if pre:
                self(pre)
            self(m0expr)
        def b():
            self.vmem(f"buffer_load_dwordx4 v{voff}, s[{srd}:{srd+3}], {soff} offen{o} {flags} lds", tag)
        return a, b

    def poll(self, voff, srd, soff, cmp, nlanes, stag=None, vtmp=3, sleep=1):
        L, Ld = self.label("L_poll"), self.label("L_polld")
        self(f"s_mov_b64 exec, {hex((1 << nlanes) - 1) if nlanes < 64 else -1}")
        self("s_mov_b32 s27, 0x40000")
        self(f"{L}:")
        self(f"buffer_load_dword v{vtmp}, v{voff}, s[{srd}:{srd+3}], {soff} offen sc1")
        self("s_waitcnt vmcnt(0)")
        if cmp == "ne0":
            self(f"v_cmp_ne_u32 vcc, 0, v{vtmp}")
        elif cmp == "lo0":
            self(f"v_and_b32 v{vtmp}, 255, v{vtmp}\nv_cmp_eq_u32 vcc, 0, v{vtmp}")
        elif cmp == "ge":
            self(f"v_cmp_le_u32 vcc, s{stag}, v{vtmp}")
        else:
            self(f"v_cmp_eq_u32 vcc, s{stag}, v{vtmp}")
        self("s_nop 1")
        self("s_cmp_eq_u64 vcc, exec")
        self(f"s_cbranch_scc1 {Ld}")
        self(f"s_sleep {sleep}")
        self("s_sub_u32 s27, s27, 1")
        self(f"s_cbranch_scc0 {L}")
        self(f"{Ld}:")
        self("s_mov_b64 exec, -1")
```

```python
import sys
from kbase import *

TAGMUL, TAGADD = 0x9E3779B1, 0x7F4A7C15


def wblk(i):
    if i < 24:
        return 65536 + 4096 * i
    if i < 28:
        return 32768 + 4096 * (i - 24)
    return 65536 + 4096 * (i - 28)


def mod7(A, s, tmp, maxv):
    m = 7
    while m * 2 < maxv:
        m *= 2
    while m >= 7:
        A(f"s_cmp_ge_u32 s{s}, {m}\ns_cselect_b32 s{tmp}, {m}, 0\ns_sub_u32 s{s}, s{s}, s{tmp}")
        m //= 2


def code_touch(A, vb=118):
    L = A.label("L_pc")
    A(f"""
    s_getpc_b64 s[48:49]
    {L}:
    s_sub_u32 s48, s48, {L}-{NAME}
    s_subb_u32 s49, s49, 0
    s_mov_b32 s50, L_code_end-{NAME}
    s_mov_b32 s51, 0x20000
    v_lshlrev_b32 v{vb}, 12, v1
    s_lshl_b32 s3, s{S_J}, 7
    v_add_u32 v{vb}, s3, v{vb}
    s_mov_b64 exec, 0x3ff
    buffer_load_dword v{vb+1}, v{vb}, s[48:51], 0 offen
    s_mov_b64 exec, -1
    """)


def start_touch(A, opt, what, vb=10):
    fl = opt.get("tfl", "")
    if what == "x":
        A(f"""
        s_lshl_b32 s3, s{S_XCD}, 2
        s_lshr_b32 s27, s{S_J}, 3
        s_add_u32 s3, s3, s27
        s_lshl_b32 s3, s3, 4
        s_and_b32 s27, s{S_J}, 1
        s_lshl_b32 s27, s27, 3
        s_add_u32 s3, s3, s27
        v_lshrrev_b32 v{vb+1}, 3, v1
        v_add_u32 v{vb+1}, s3, v{vb+1}
        s_bfe_u32 s3, s{S_J}, 0x20001
        s_add_u32 s27, s3, 1
        s_and_b32 s27, s27, 2
        s_sub_u32 s27, 1, s27
        v_mul_i32_i24 v{vb+1}, s27, v{vb+1}
        s_cmp_eq_u32 s3, 0
        s_cselect_b32 s27, 0, 1024
        s_cmp_eq_u32 s3, 1
        s_cselect_b32 s27, 2048, s27
        v_add_u32 v{vb+1}, s27, v{vb+1}
        v_mul_u32_u24 v{vb+1}, 896, v{vb+1}
        v_and_b32 v{vb+2}, 7, v1
        v_min_u32 v{vb+2}, 6, v{vb+2}
        v_lshl_add_u32 v{vb+1}, v{vb+2}, 7, v{vb+1}
        buffer_load_dword v{vb+3}, v{vb+1}, s[{sX}:{sX+3}], 0 offen {fl}
        """)
    else:
        A(f"""
        s_cmp_ge_u32 s{S_XCD}, 4
        s_cselect_b32 s{sOUT}, s8, s6
        s_cselect_b32 s{sOUT+1}, s9, s7
        s_and_b32 s{sOUT+1}, s{sOUT+1}, 0xffff
        s_mov_b32 s{sOUT+2}, {2048*4096}
        s_mov_b32 s{sOUT+3}, 0x20000
        s_and_b32 s3, s{S_XCD}, 1
        s_lshl_b32 s3, s3, 5
        s_add_u32 s3, s3, s{S_J}
        s_lshl_b32 s3, s3, 4
        s_bfe_u32 s27, s{S_XCD}, 0x10001
        s_add_u32 s3, s3, s27
        s_lshl_b32 s3, s3, 12
        v_lshrrev_b32 v{vb}, 3, v1
        v_lshlrev_b32 v{vb}, 13, v{vb}
        v_and_b32 v{vb+1}, 7, v1
        v_lshl_add_u32 v{vb}, v{vb+1}, 7, v{vb}
        buffer_load_dword v{vb+2}, v{vb}, s[{sOUT}:{sOUT+3}], s3 offen {fl}
        """)


def gen(stamps=False, opt=None):
    opt = opt or {}
    HST = opt.get("hst", "sc1")
    HLD = opt.get("hld", "")
    TOUCH_AT = opt.get("touch_at", 2)
    HD = opt.get("hd", 12)
    VAT = opt.get("vat", 22)
    A = K(stamps)
    P2 = opt.get('p2', 0)
    P1 = opt.get('p1', 0)
    st1 = lambda i: None if (P2 or P1) else A.stamp(i)
    _stamp = A.stamp
    if opt.get('light'):
        P1 = 0
        A.stamp = lambda i: _stamp(i) if i == 0 else None
    if P1:
        A.stamp = lambda i: _stamp(i) if i == 0 else None
    st2 = lambda i: A.stamp(i) if P2 else None
    A.stamp(0)
    A("""
    s_load_dwordx16 s[4:19], s[0:1], 0
    s_load_dwordx4 s[20:23], s[0:1], 64
    s_load_dwordx2 s[24:25], s[0:1], 80
    s_cmp_ge_u32 s2, 256
    s_cbranch_scc1 L_end
    v_lshrrev_b32 v2, 6, v0
    v_and_b32 v1, 63, v0
    """)
    A(f"s_and_b32 s{S_XCD}, s2, 7\ns_lshr_b32 s{S_J}, s2, 3")
    A(f"v_readfirstlane_b32 s{S_W}, v2")
    A(f"s_cmp_ge_u32 s{S_J}, 28\ns_cbranch_scc1 L_dft")

    S_RB, S_FT, S_KX, S_KW, S_MX, S_MW, S_T, S_CT = 63, 96, 97, 98, 99, 100, 101, 26
    S_FTL, S_JX, S_TAG, S_PF = 14, 86, 58, 59
    S_M2, S_K2, S_G2, S_HF, S_PT = 56, 57, 95, 94, 58
    A(f"""
    s_mul_i32 s27, s{S_J}, 37
    s_lshr_b32 s27, s27, 8
    s_mul_i32 s3, s27, 7
    s_sub_u32 s{S_CT}, s{S_J}, s3
    s_and_b32 s{S_RB}, s{S_XCD}, 6
    s_lshl_b32 s{S_RB}, s{S_RB}, 1
    s_add_u32 s{S_RB}, s{S_RB}, s27
    s_lshl_b32 s27, s27, 1
    s_add_u32 s{S_G2}, s{S_CT}, s27
    """)
    mod7(A, S_G2, 3, 14)
    VD, XA, WA, ONES = 2, 8, 16, 20
    VW2, VEP = 6, 18
    FX = [24, 48]; FW = [40, 64]
    ACC, RS, CS = 72, 104, 108
    S_MD = 52
    sL = sW1
    A(f"""
    s_and_b32 s{S_JX}, s{S_XCD}, 1
    s_mul_i32 s3, s{S_JX}, 7
    s_add_u32 s{S_FT}, s{S_G2}, s3
    v_lshrrev_b32 v31, 4, v1
    s_movk_i32 s3, 0xe2
    s_bitcmp1_b32 s3, s{S_W}
    s_cbranch_scc1 L_ldw
    s_max_u32 s{S_KX}, s{S_W}, 1
    s_lshl_b32 s{S_KX}, s{S_KX}, 2
    s_mul_i32 s3, s{S_CT}, 37
    s_lshr_b32 s3, s3, 4
    s_add_u32 s{S_KX}, s{S_KX}, s3
    s_add_u32 s{S_KX}, s{S_KX}, 12
    v_lshrrev_b32 v30, 3, v1
    v_lshlrev_b32 v30, 1, v30
    v_and_b32 v32, 7, v1
    v_xor_b32 v32, v32, v31
    s_lshl_b32 s{S_KW}, s{S_RB}, 6
    """)
    for i in range(4):
        A(f"""
        s_add_u32 s{S_MD+i}, s{S_KX}, {i}
        s_and_b32 s{S_MD+i}, s{S_MD+i}, 15
        s_lshr_b32 s3, s{S_MD+i}, 3
        s_add_u32 s3, s3, s{S_KW}
        s_and_b32 s27, s{S_MD+i}, 3
        s_lshl_b32 s27, s27, 4
        s_add_u32 s3, s3, s27
        v_add_u32 v33, s3, v30
        v_sub_u32 v34, 2048, v33
        v_lshrrev_b32 v35, 11, v34
        v_lshlrev_b32 v35, 10, v35
        v_sub_u32 v34, v34, v35
        s_bitcmp1_b32 s{S_MD+i}, 2
        s_cselect_b64 vcc, -1, 0
        s_and_b32 s27, s{S_MD+i}, 1
        s_lshl_b32 s27, s27, 2
        v_cndmask_b32 v33, v33, v34, vcc
        v_xor_b32 v34, s27, v32
        v_mul_u32_u24 v33, 896, v33
        s_lshl_b32 s{S_MD+i}, s{S_MD+i}, 10
        v_lshl_add_u32 v{VD+i}, v34, 4, v33
        """)
    A(f"s_movk_i32 s{S_MX}, 128\ns_waitcnt lgkmcnt(0)")
    A.srd(sL, 4, 2048 * 896)
    A("s_branch L_ldok")
    A("L_ldw:")
    A(f"""
    s_max_u32 s{S_KX}, s{S_W}, 4
    s_add_u32 s{S_KX}, s{S_KX}, s{S_RB}
    s_lshl_b32 s{S_KX}, s{S_KX}, 2
    v_lshlrev_b32 v33, 1, v31
    v_and_b32 v34, 15, v1
    v_xor_b32 v33, v33, v34
    v_mul_u32_u24 v34, 3584, v31
    v_lshl_add_u32 v32, v33, 4, v34
    v_xor_b32 v33, 128, v32
    s_and_b32 s{S_MD}, s{S_KX}, 15
    s_mul_i32 s27, s{S_MD}, {4*3584}
    s_lshl_b32 s3, s{S_FT}, 8
    s_add_u32 s27, s27, s3
    v_add_u32 v{VD}, s27, v32
    v_add_u32 v{VD+2}, s27, v33
    v_add_u32 v{VD+1}, {4*3584}, v{VD}
    v_add_u32 v{VD+2}, {8*3584}, v{VD+2}
    v_add_u32 v{VD+3}, {4*3584}, v{VD+2}
    s_lshl_b32 s{S_MD}, s{S_MD}, 10
    s_add_u32 s{S_MD}, s{S_MD}, 16384
    s_add_u32 s{S_MD+1}, s{S_MD}, 1024
    s_add_u32 s{S_MD+2}, s{S_MD}, 2048
    s_add_u32 s{S_MD+3}, s{S_MD}, 3072
    s_mov_b32 s{S_MX}, {64*3584}
    s_waitcnt lgkmcnt(0)
    """)
    A.srd(sL, 16, 448 * 3584)
    A("L_ldok:")
    A.srd(sX, 4, 2048 * 896)

    def p1_dmas(st):
        slot = st % 5
        return [A.dma2(VD + i, sL, f"s{S_KX}", f"s_add_u32 m0, s{S_MD+i}, {slot*32768}", ("p1", st),
                       pre=None if i else f"s_mul_i32 s{S_KX}, s{S_MX}, {st}", flags=p1fl[0]) for i in range(4)]
    p1fl = [""]

    def burst(dmas):
        for a_, b_ in dmas:
            a_(); A("s_nop 0"); b_()

    def p1_setup():
        A.srd(sWS, 24, WS_SIZE + (0x40000 if stamps else 0))
        A(f"""
        s_mov_b32 s{S_FTL}, s{S_G2}
        s_lshl_b32 s{S_HF}, s{S_XCD}, 2
        s_and_b32 s3, s{S_RB}, 3
        s_add_u32 s{S_HF}, s{S_HF}, s3
        s_lshl_b32 s{S_HF}, s{S_HF}, 7
        s_add_u32 s{S_HF}, s{S_HF}, {WS_HFLAG}
        v_mov_b32 v35, {WS_EPOCH}
        """)
        A.vmem(f"buffer_load_dword v{VEP}, v35, s[{sWS}:{sWS+3}], 0 offen sc1", "ep")
        A(f"""
        v_and_b32 v32, 15, v1
        v_lshrrev_b32 v33, 1, v32
        v_xor_b32 v33, v33, v31
        v_lshlrev_b32 v33, 4, v33
        v_lshl_add_u32 v33, v32, 7, v33
        s_lshl_b32 s3, s{S_W}, 11
        v_add_u32 v{XA}, s3, v33
        """)
        for rb in range(1, 4):
            A(f"v_xor_b32 v{XA+rb}, {rb*2048}, v{XA}")
        for rb in range(4):
            A(f"v_xor_b32 v{XA+4+rb}, 64, v{XA+rb}")
        A(f"""
        v_bfe_u32 v30, v1, 2, 2
        v_lshl_add_u32 v32, v31, 3, v30
        v_lshlrev_b32 v32, 8, v32
        v_and_b32 v33, 3, v1
        v_lshl_add_u32 v32, v33, 3, v32
        v_add_u32 v32, 16384, v32
        v_and_b32 v33, 1, v31
        v_lshl_or_b32 v33, v33, 2, v30
        s_and_b32 s3, s{S_W}, 3
        s_lshl_b32 s3, s3, 1
        s_lshr_b32 s27, s{S_W}, 2
        s_or_b32 s3, s3, s27
        v_xor_b32 v33, s3, v33
        v_lshl_add_u32 v{WA}, v33, 5, v32
        v_xor_b32 v{WA+1}, 32, v{WA}
        """)
        for i in range(4):
            A(f"v_mov_b32 v{ONES+i}, 0x3f803f80")
        A.srd(sW2, 18, 1792 * 896)
        A(f"""
        s_lshl_b32 s{S_T}, s{S_RB}, 1
        s_add_u32 s{S_T}, s{S_T}, s{S_JX}
        v_lshrrev_b32 v30, 3, v1
        v_mul_u32_u24 v32, 896, v30
        v_and_b32 v30, 6, v30
        v_and_b32 v33, 7, v1
        v_xor_b32 v30, v30, v33
        v_lshl_add_u32 v32, v30, 4, v32
        s_lshl_b32 s3, s{S_CT}, 7
        s_mul_i32 s27, s{S_W}, {8*896}
        s_add_u32 s3, s3, s27
        v_add_u32 v{VW2}, s3, v32
        s_lshl_b32 s{S_M2}, s{S_W}, 10
        """)

    def wpair_addr(p):
        if p < 12:
            return 65536 + 8192 * p
        if p < 14:
            return 16384 + 8192 * (p - 12)
        return [32768, 40960, 0, 65536, 49152, 57344, 8192, 73728][p - 14]

    def w_dma(p):
        if p < 14:
            srd = sW2
            if p % 2 == 0:
                pre = (f"s_mul_i32 s{S_K2}, s{S_JX}, 7\ns_add_u32 s{S_K2}, s{S_K2}, s{S_G2}\ns_mul_i32 s{S_K2}, s{S_K2}, {128*896}\n"
                       f"s_add_u32 s{S_G2}, s{S_G2}, 1\ns_cmp_eq_u32 s{S_G2}, 7\ns_cselect_b32 s{S_G2}, 0, s{S_G2}")
            else:
                pre = f"s_add_u32 s{S_K2}, s{S_K2}, {64*896}"
        else:
            srd = sWD if p < 18 else sW1
            pre = f"s_mov_b32 s{S_K2}, {((p - 14) % 4)*64*896}"
        return A.dma2(VW2, srd, f"s{S_K2}", f"s_add_u32 m0, s{S_M2}, {wpair_addr(p)}", ("w", p), pre=pre)

    def place(dmas, g0, g1):
        r = []
        for k, (a_, b_) in enumerate(dmas):
            g = g0 + 1 + k * (g1 - g0) // len(dmas)
            r += [(g - 1, a_), (g, b_)]
        return r

    def p1_reads(st, q, buf):
        so = ((st % 5) & 1) * 32768
        r = []
        for rb in range(4):
            r.append(lambda rb=rb: A.lds(f"ds_read_b128 {v(FX[buf]+4*rb,4)}, v{XA + 4*q + rb} offset:{so}", ("f", st, q)))
        for cb in range(2):
            for h in range(2):
                r.append(lambda cb=cb, h=h: A.lds(f"ds_read_b64_tr_b16 {v(FW[buf]+4*cb+2*h,2)}, v{WA+cb} offset:{so + q*8192 + h*1024}", ("f", st, q)))
        return r

    def p1_mfma(buf, first):
        z = "0" if first else None
        r = [lambda: A.mfma(RS, ONES, FX[buf], z), lambda: A.mfma(CS, FW[buf], ONES, z)]
        for cb in range(2):
            for rb in range(4):
                r.append(lambda cb=cb, rb=rb: A.mfma(ACC + (cb * 4 + rb) * 4, FW[buf] + 4 * cb, FX[buf] + 4 * rb, z))
        return r

    def p1_addr_step(st):
        d = {2: 65536, 4: 65536, 5: -131072}.get(st)
        if not d:
            return []
        return [(8 + k // 5, lambda r=r: A(f"v_add_u32 v{r}, {d & 0xffffffff}, v{r}"))
                for k, r in enumerate(list(range(XA, XA + 8)) + [WA, WA + 1])]

    def lines(txt, g0, g1):
        ex = [x for x in txt.strip().split("\n") if x.strip()]
        return [(g0 + k * (g1 - g0) // len(ex), lambda x=x: A(x)) for k, x in enumerate(ex)]

    VID = 120
    WA2, WB, WC, VH, VO, VL, VZ = 8, 12, 112, 2, 4, 16, 7
    FW2 = [24, 40]
    AC2, HF, VF = 56, 128, 192
    p2_setup = f"""
    v_lshlrev_b32 v{VL}, 4, v1
    v_mov_b32 v{VZ}, 0
    v_lshrrev_b32 v124, 4, v1
    v_bfe_u32 v125, v1, 2, 2
    v_lshl_add_u32 v126, v124, 2, v125
    v_lshrrev_b32 v127, 1, v126
    v_and_b32 v127, 3, v127
    v_lshlrev_b32 v126, 7, v126
    v_and_b32 v125, 3, v1
    v_lshl_add_u32 v126, v125, 3, v126
    """ + "".join(f"""
    v_xor_b32 v125, {eb}, v127
    v_lshl_add_u32 v{WA2+eb}, v125, 5, v126
    v_add_u32 v{WB+eb}, 0x10000, v{WA2+eb}
    v_add_u32 v{WC+eb}, 0x20000, v{WA2+eb}""" for eb in range(4)) + f"""
    s_lshl_b32 s{S_K2+32}, s{S_T}, 2
    s_and_b32 s{S_K2+33}, s{S_W}, 3
    s_add_u32 s{S_K2+32}, s{S_K2+32}, s{S_K2+33}
    s_mul_i32 s{S_K2+34}, s{S_K2+32}, {H_STRIDE}
    v_add_u32 v{VH}, s{S_K2+34}, v{VL}
    s_xor_b32 s{S_K2+34}, s{S_K2+32}, 4
    s_mul_i32 s{S_K2+34}, s{S_K2+34}, {H_STRIDE}
    v_add_u32 v{VH+1}, s{S_K2+34}, v{VL}
    s_and_b32 s{S_K2+32}, s{S_K2+32}, 7
    s_lshl_b32 s{S_K2+32}, s{S_K2+32}, 12
    s_add_u32 s{S_K2+32}, s{S_K2+32}, 32768
    v_add_u32 v238, s{S_K2+32}, v{VL}
    v_xor_b32 v239, 16384, v238
    s_lshl_b32 s{S_K2+32}, s{S_RB}, 6
    s_add_u32 s{S_K2+32}, s{S_K2+32}, s{S_JX}
    s_and_b32 s{S_K2+33}, s{S_W}, 1
    s_lshl_b32 s{S_K2+33}, s{S_K2+33}, 5
    s_add_u32 s{S_K2+33}, s{S_K2+33}, s{S_K2+32}
    v_lshrrev_b32 v124, 3, v1
    v_lshl_add_u32 v125, v124, 1, s{S_K2+33}
    s_bfe_u32 s{S_K2+32}, s{S_W}, 0x10001
    s_lshl_b32 s{S_K2+33}, s{S_K2+32}, 11
    s_lshl_b32 s{S_K2+32}, s{S_K2+32}, 1
    s_sub_u32 s{S_K2+32}, 1, s{S_K2+32}
    v_mul_i32_i24 v125, s{S_K2+32}, v125
    v_add_u32 v125, s{S_K2+33}, v125
    s_mul_i32 s{S_K2+32}, s{S_K2+32}, {16*896}
    s_lshl_b32 s{S_K2+33}, s{S_CT}, 7
    v_mul_u32_u24 v126, 896, v125
    v_add_u32 v126, s{S_K2+32}, v126
    v_lshrrev_b32 v127, 11, v125
    v_lshlrev_b32 v127, 10, v127
    v_sub_u32 v125, v125, v127
    v_mul_u32_u24 v125, 896, v125
    v_and_b32 v127, 7, v1
    v_xor_b32 v127, v127, v124
    v_lshlrev_b32 v127, 4, v127
    v_add_u32 v127, s{S_K2+33}, v127
    v_add_u32 v{VO}, v125, v127
    v_add_u32 v{VO+1}, v126, v127
    """
    for k in range(3):
        p2_setup = p2_setup.replace(f"s{S_K2+32+k}", f"s{48+k}")
    WPRE = opt.get("wpre", 12)

    def phase1(cls):
        K0 = opt.get("k0", 2) if cls == 0 else opt.get("k1", 2)
        p1fl[0] = opt.get("shfl", "") if cls == 0 else ""
        if cls == 0:
            if opt.get("xt", 0) == 2:
                A(f"s_cmp_lg_u32 s{S_W}, 1\ns_cbranch_scc1 L_notouch0")
                start_touch(A, opt, "x", 124)
                A("L_notouch0:")
            for s_ in range(K0):
                burst(p1_dmas(s_))
            A(f"s_cmp_lg_u32 s{S_W}, 0\ns_cbranch_scc1 L_notouch")
            if opt.get("xt", 0) == 1:
                start_touch(A, opt, "x", 124)
            code_touch(A)
            A("L_notouch:")
            p1_setup()
        else:
            p1_setup()
            for s_ in range(K0):
                burst(p1_dmas(s_))
        A.wait(vm=("p1", 0))
        A("s_barrier")
        st1(2)
        if P1: _stamp(1)
        for f in p1_reads(0, 0, 0):
            f()
        queue = []
        for s_ in range(K0, 7):
            for i in range(4):
                first = max(0, 2 * (s_ - 5) + 1)
                if cls == 1:
                    first = max(first, 2 * s_ - opt.get("la1", 5) + i // 2)
                queue.append((first, lambda s_=s_, i=i: p1_dmas(s_)[i]))
        wn = WPRE
        for p in range(WPRE):
            queue.append((max(2 * (2 + p // 4) + 1, opt.get("w0", 8) + p // 2), lambda p=p: w_dma(p)))
        rate = (opt.get("r0", 4), 4)
        for st in range(7):
            for q in range(2):
                fl = []
                if q == 0:
                    A.wait(lg=("f", st, 0))
                    fl += list(enumerate(p1_reads(st, 1, 1))) + p1_addr_step(st + 1)
                else:
                    if st < 6:
                        if P1 == 2: _stamp(st + 2)
                        A.wait(vm=("p1", st + 1), lg=0)
                        if P1 == 3: _stamp(st + 2)
                        A("s_barrier")
                        if P1 == 1: _stamp(st + 2)
                        fl += list(enumerate(p1_reads(st + 1, 0, 0)))
                    else:
                        A.wait(lg=0)
                dm = []
                blk = 2 * st + q
                while queue and len(dm) < rate[cls] and queue[0][0] <= blk:
                    dm.append(queue.pop(0)[1]())
                if dm:
                    fl += place(dm, 1, 9)
                if (st, q) == (0, 1):
                    fl += lines(f"""
                    v_readfirstlane_b32 s{S_TAG}, v{VEP}
                    s_lshl_b32 s27, s{S_CT}, 2
                    v_mov_b32 v{VID+1}, s27
                    s_mul_i32 s{S_TAG}, s{S_TAG}, {TAGMUL}
                    s_add_u32 s{S_TAG}, s{S_TAG}, {TAGADD}
                    v_min_u32 v{VID+3}, 6, v1
                    v_lshlrev_b32 v{VID+3}, 2, v{VID+3}
                    """, 0, 8)
                    A.wait(vm="ep")
                if cls == 0 and opt.get("dum", 0) and 2 * st + q == opt.get("dumb", 0):
                    def dummy():
                        for s_ in range(5, 7):
                            A(f"s_mul_i32 s3, s{S_MX}, {s_}")
                            for i in range(4):
                                A.vmem(f"buffer_load_dwordx4 v[252:255], v{VD+i}, s[{sL}:{sL+3}], s3 offen")
                    fl.append((9, dummy))
                if cls == 0 and 2 * st + q == opt.get("wtb", 2):
                    def wt():
                        A(f"s_cmp_lg_u32 s{S_W}, 1\ns_cbranch_scc1 L_notouch3")
                        A(f"""
                        v_lshlrev_b32 v124, 7, v1
                        s_mul_i32 s3, s2, {56*128}
                        s_mov_b32 exec_hi, 0xffffff
                        buffer_load_dword v125, v124, s[{sW2}:{sW2+3}], s3 offen
                        s_mov_b64 exec, -1
                        """)
                        A("L_notouch3:")
                    fl.append((9, wt))
                if (st, q) == (6, 1):
                    fl += lines(f"""
                    v_and_b32 v30, 15, v1
                    v_lshlrev_b32 v30, 2, v30
                    s_lshl_b32 s3, s{S_W}, 6
                    v_add_u32 v30, s3, v30
                    v_lshrrev_b32 v31, 4, v1
                    v_lshlrev_b32 v31, 4, v31
                    s_and_b32 s27, s{S_W}, 3
                    s_lshl_b32 s27, s27, 7
                    s_lshr_b32 s3, s{S_W}, 2
                    s_lshl_b32 s3, s3, 6
                    s_add_u32 s27, s27, s3
                    v_add_u32 v31, s27, v31
                    v_xor_b32 v32, 64, v30
                    v_xor_b32 v33, 128, v30
                    v_xor_b32 v34, 192, v30
                    v_xor_b32 v35, 64, v31
                    """, 0, 8)
                    fl += lines(p2_setup, 0, 9)
                    fl.append((9, lambda: A.lds(f"ds_write_b32 v30, v{RS}")))
                    fl.append((9, lambda: A.lds(f"ds_write_b128 v31, {v(CS,4)} offset:512")))
                A.weave(p1_mfma(q, st == 0 and q == 0), fl)
        assert not queue, len(queue)
        return wn
    A(f"s_cmp_ge_u32 s{S_W}, 2\ns_cbranch_scc1 L_p1b")
    WN = phase1(0)
    A("s_branch L_p1done")
    A("L_p1b:")
    A.reset()
    phase1(1)
    A("L_p1done:")
    A.reset()
    st1(3)
    if P1: _stamp(8)
    A.wait(lg=0)
    A("s_barrier")
    if P1: _stamp(9)
    S_HS = S_MD

    def epilogue(wr):
        A.reset()
        MB = 24; CS1 = 28
        A.lds(f"ds_read_b32 v{MB+1}, v32")
        A.lds(f"ds_read_b32 v{MB+2}, v33")
        A.lds(f"ds_read_b32 v{MB+3}, v34")
        A.lds(f"ds_read_b128 {v(CS1,4)}, v35 offset:512")
        A(f"""
        s_lshl_b32 s{S_KX}, s{S_RB}, 3
        s_mul_i32 s{S_KX}, s{S_KX}, 56
        s_lshl_b32 s{S_KW}, s{S_FT}, 2
        s_add_u32 s{S_KX}, s{S_KX}, s{S_KW}
        s_and_b32 s27, s{S_W}, 3
        s_add_u32 s{S_KX}, s{S_KX}, s27
        s_lshl_b32 s{S_KX}, s{S_KX}, 10
        s_lshl_b32 s27, s27, 10
        s_add_u32 s27, s27, 32768
        v_add_u32 v34, s27, v{VL}
        s_mov_b32 s3, {0x3b124925}
        v_mul_f32 v{MB}, s3, v{RS}
        """)
        A.wait(lg=0)
        for i in range(1, 4):
            A(f"v_mul_f32 v{MB+i}, s3, v{MB+i}")
        A(f"v_cvt_pk_bf16_f32 v32, v{MB}, v{MB+1}\nv_cvt_pk_bf16_f32 v33, v{MB+2}, v{MB+3}")
        A(f"v_lshlrev_b32 v{MB}, 16, v32\nv_and_b32 v{MB+1}, 0xffff0000, v32\nv_lshlrev_b32 v{MB+2}, 16, v33\nv_and_b32 v{MB+3}, 0xffff0000, v33")
        PK = 36
        for rb in range(4):
            sel = "op_sel:[0,1,0] op_sel_hi:[1,1,1]" if rb & 1 else "op_sel_hi:[1,0,1]"
            d = PK + 4 * rb
            for cb in range(2):
                a0 = ACC + (cb * 4 + rb) * 4
                for hh in range(2):
                    A(f"v_pk_fma_f32 {v(a0+2*hh,2)}, {v((CS, CS1)[cb]+2*hh,2)}, {v(MB+(rb&2),2)}, {v(a0+2*hh,2)} {sel} neg_lo:[1,0,0] neg_hi:[1,0,0]")
            for cb in range(2):
                a0 = ACC + (cb * 4 + rb) * 4
                for hh in range(2):
                    A(f"v_cvt_pk_bf16_f32 v{d+2*(cb^wr)+hh}, v{a0+2*hh}, v{a0+2*hh+1}")
            for i in range(4):
                A(f"v_pk_max_i16 v{d+i}, v{d+i}, 0")
            A(f"s_xor_b32 s27, s{S_W}, {rb}\ns_mul_i32 s{S_MD+rb}, s27, {H_STRIDE}\ns_add_u32 s{S_MD+rb}, s{S_MD+rb}, s{S_KX}")
            A.vmem(f"buffer_store_dwordx4 {v(PK+4*rb,4)}, v{VL}, s[{sWS}:{sWS+3}], s{S_MD+rb} offen sc1", ("hst", rb))
            A(f"s_lshl_b32 s27, s27, 12\nv_add_u32 v35, s27, v34")
            A.lds(f"ds_write_b128 v35, {v(PK+4*rb,4)}")
        st1(4)
        if P1: _stamp(10)
        A.stamp(5)

    S_H, S_GH = S_KX, S_KW
    NAL = opt.get("nal", 20)
    B0 = 4 + NAL

    def w_reads(key, i, both=True):
        r = []
        for eb in range(4):
            for h in range(2):
                if i < 28:
                    a_ = wpair_addr(i >> 1) + (i & 1) * 4096
                    reg, off = (WA2, WB, WC)[a_ >> 16] + eb, (a_ & 0xffff) + h * 2048
                else:
                    u = i - 28
                    reg, off = ((WA2, u * 4096) if u < 4 else ((WB, WC)[(u - 4) >> 1], (u & 1) * 4096))
                    reg, off = reg + eb, off + h * 2048
                r.append(lambda reg=reg, off=off, eb=eb, h=h: A.lds(f"ds_read_b64_tr_b16 {v(FW2[key&1]+4*eb+2*h,2)}, v{reg} offset:{off}", ("wf", key, eb >> 1)))
        return r

    YS, ZS = 32768, 0
    XS = TS = 4096

    A(f"s_cmp_ge_u32 s{S_W}, 4\ns_cbranch_scc1 L_aux")
    epilogue(0)
    seq = [(i, (0, 1)) for i in range(4)] + [(i, (1,)) for i in range(4, B0)] + [(i, (0, 1)) for i in range(B0, 28)] + [(i, (0,)) for i in range(4, B0)]
    hl = [(n, tt) for n, (i, tts) in enumerate(seq) for tt in tts]
    NSL = opt.get("nsl", 16)
    slot = {k: HF + (idx % NSL) * 4 for idx, k in enumerate(hl)}
    state_h = dict(next=8, grp=None)

    def h_next():
        idx = state_h["next"]
        if idx >= len(hl):
            return
        state_h["next"] += 1
        n, tt = hl[idx]
        i = seq[n][0]
        if state_h["grp"] != i // 4 and not (opt.get("hfix") and state_h["grp"]):
            state_h["grp"] = i // 4
            A(f"s_add_u32 s{S_H}, s{S_FTL}, {i // 4}\ns_cmp_ge_u32 s{S_H}, 7\ns_cselect_b32 s3, 7, 0\ns_sub_u32 s{S_H}, s{S_H}, s3")
            A(f"s_add_u32 s{S_H}, s{S_H}, s{S_GH}\ns_lshl_b32 s{S_H}, s{S_H}, 12")
        A.vmem(f"buffer_load_dwordx4 {v(slot[(n, tt)], 4)}, v{VH+tt}, s[{sWS}:{sWS+3}], s{S_H} offen offset:{(i%4)*1024} {HLD}", ("h", n, tt))

    def step(n, extra=()):
        i, tts = seq[n]
        nm = 4 * len(tts)
        fl = list(extra)
        if n + 1 < len(seq):
            fl += [(k * nm // 8, f) for k, f in enumerate(w_reads(n + 1, seq[n + 1][0]))]
        if n >= 1:
            fl += [(1 + 4 * k, h_next) for k in range(len(seq[n - 1][1]))]
        mf = []
        for eb in range(4):
            for tt in tts:
                def f(eb=eb, tt=tt):
                    if eb % 2 == 0 and tt == tts[0]:
                        A.wait(vm=("h", n, tts[-1]) if eb == 0 and n >= 4 else None, lg=("wf", n, eb >> 1))
                    A.mfma(AC2 + (tt * 4 + eb) * 4, FW2[n & 1] + 4 * eb, slot[(n, tt)], "0" if n == 0 else None)
                mf.append(f)
        A.weave(mf, fl)

    PR, XU = 192, 208
    fin = f"""
    v_and_b32 v20, 15, v1
    v_lshrrev_b32 v21, 4, v1
    v_lshrrev_b32 v22, 1, v21
    v_and_b32 v23, 7, v20
    v_xor_b32 v22, v22, v23
    v_lshlrev_b32 v22, 4, v22
    v_lshl_add_u32 v22, v20, 7, v22
    v_and_b32 v21, 1, v21
    v_lshl_add_u32 v22, v21, 3, v22
    s_lshl_b32 s27, s{S_W}, 11
    s_add_u32 s27, s27, {TS}
    v_add_u32 v232, s27, v22
    v_add_u32 v23, s27, v{VL}
    v_xor_b32 v233, 32, v232
    v_xor_b32 v234, 64, v232
    v_xor_b32 v235, 96, v232
    ds_read_b64 v[224:225], v232
    ds_read_b64 v[226:227], v233
    ds_read_b64 v[228:229], v234
    ds_read_b64 v[230:231], v235
    s_lshl_b32 s27, s{S_W}, 6
    s_add_u32 s27, s27, {YS + 20480}
    v_lshl_add_u32 v20, v20, 2, s27
    s_and_b32 s27, s{S_W}, 1
    s_lshl_b32 s27, s27, 12
    s_add_u32 s27, s27, {YS}
    v_add_u32 v19, s27, v{VL}
    s_xor_b32 s{S_MW}, s{S_W}, 2
    s_or_b32 s{S_MW}, s{S_MW}, s{S_T}
    s_sub_u32 s{S_MW}, s{S_MW}, 1
    s_lshr_b32 s{S_MW}, s{S_MW}, 31
    s_lshl_b32 s{S_MW}, s{S_MW}, 14
    v_add_u32 v18, s{S_MW}, v19
    s_lshl_b32 s27, s{S_W}, 30
    s_and_b32 s27, s27, 0x80000000
    s_or_b32 s27, s27, 1.0
    v_mov_b32 v237, s27
    s_xor_b32 s{S_FT}, s{S_MX}, 16384
    s_and_b32 s{S_G2}, s{S_PT}, 0xff
    s_mul_i32 s{S_G2}, s{S_G2}, 0x01010101
    """.strip().split("\n")
    fin = [x.strip() for x in fin]
    unp = [f"v_lshlrev_b32 v{XU+2*k}, 16, v{224+k}" if b_ == 0 else f"v_and_b32 v{XU+2*k+1}, 0xffff0000, v{224+k}" for k in range(8) for b_ in range(2)]

    def p_loads(track):
        for eb in range(4):
            t_ = f"buffer_load_dwordx4 {v(PR+4*eb,4)}, v{VL}, s[{sWS}:{sWS+3}], s{S_FT} offen offset:{eb*1024} sc1"
            A.vmem(t_, "part") if track else A(t_)
    A(f"s_lshl_b32 s3, s2, 14\ns_lshl_b32 s27, s{S_W}, 12\ns_add_u32 s3, s3, s27\ns_add_u32 s{S_MX}, s3, {WS_PART}")
    A.srd(sOUT, 20, 2048 * 896)
    A(f"s_lshl_b32 s{S_H}, s{S_W}, 11")
    for ps in range(2):
        A.dma(VO + ps, sX, "0", f"s_add_u32 m0, s{S_H}, {XS + ps*1024}", "xr")
    A.wait(vm=0, lg=0)
    burst([w_dma(p) for p in range(WN, 14)])
    A("s_barrier")
    A.stamp(7)
    for x in fin:
        A.lds(x) if x.startswith("ds_") else A(x)
    for n in range(4):
        for tt in range(2):
            A.lds(f"ds_read_b128 {v(slot[(n, tt)],4)}, v{238+tt} offset:{n*1024}")
    A.wait(lg=0)
    for x in unp:
        A(x)
    A(f"s_mul_i32 s{S_GH}, s{S_JX}, 7")
    A.wait(vm=0)
    A("s_barrier")
    if not P2: A.stamp(1)
    for k in range(NSL - 8):
        h_next()
    for f in w_reads(0, 0):
        f()
    if opt.get("prio", 1):
        A(f"s_setprio {opt.get('prio', 1)}")
    for n in range(len(seq)):
        ex = []
        if n == opt.get("m2n", -1):
            A("s_barrier")
        if n == 28:
            A.stamp(8)
            A(f"""
            s_and_b32 s27, s{S_PT}, 0xff
            v_mov_b32 v236, s27
            s_movk_i32 s27, 0xff
            s_nop 4
            """)
            for eb in range(4):
                for r in range(4):
                    A(f"v_bfi_b32 v{AC2+16+4*eb+r}, s27, v236, v{AC2+16+4*eb+r}")
                A.vmem(f"buffer_store_dwordx4 {v(AC2+16+4*eb,4)}, v{VL}, s[{sWS}:{sWS+3}], s{S_MX} offen offset:{eb*1024} sc1", "pst")
        if n == len(seq) - opt.get("pat", 2):
            ex.append((3, lambda: p_loads(True)))
        step(n, ex)
    A.stamp(9)
    A(f"s_mov_b32 s27, 0x0c0c0400\ns_mov_b32 s{S_KX}, 0x40000")
    A("L_pchk:")
    A("s_waitcnt vmcnt(0)")
    for k in range(8):
        A(f"v_perm_b32 v{24+k}, v{PR+2*k+1}, v{PR+2*k}, s27")
    for k in range(4):
        A(f"v_lshl_or_b32 v{24+2*k}, v{25+2*k}, 16, v{24+2*k}")
    for k in range(4):
        A(f"v_xor_b32 v{24+2*k}, s{S_G2}, v{24+2*k}")
    A("v_or3_b32 v24, v24, v26, v28\nv_or_b32 v24, v24, v30\nv_cmp_eq_u32 vcc, 0, v24\ns_nop 1\ns_cmp_eq_u64 vcc, exec\ns_cbranch_scc1 L_pok")
    p_loads(False)
    A(f"s_sub_u32 s{S_KX}, s{S_KX}, 1\ns_cbranch_scc0 L_pchk")
    A("L_pok:")
    for r in range(16):
        A(f"v_and_b32 v{PR+r}, 0xffffff00, v{PR+r}")
    for r in range(16):
        A(f"v_add_f32 v{AC2+r}, v{AC2+r}, v{PR+r}")
    if P2: A.stamp(2)
    A("s_barrier")
    A.stamp(10)
    YP = HF
    A(f"ds_read_b32 v236, v20")
    for eb in range(4):
        A(f"ds_read_b128 {v(YP+4*eb,4)}, v18 offset:{eb*1024}")
    for eb in range(4):
        A(f"ds_read_b128 {v(YP+16+4*eb,4)}, v19 offset:{8192 + eb*1024}")
    A("s_waitcnt lgkmcnt(8)")
    for eb in range(4):
        for hh in range(2):
            A(f"v_pk_fma_f32 {v(XU+4*eb+2*hh,2)}, {v(AC2+4*eb+2*hh,2)}, v[236:237], {v(XU+4*eb+2*hh,2)} op_sel_hi:[1,0,1]")
    A("s_waitcnt lgkmcnt(4)")
    for eb in range(4):
        for hh in range(2):
            A(f"v_pk_add_f32 {v(XU+4*eb+2*hh,2)}, {v(XU+4*eb+2*hh,2)}, {v(YP+4*eb+2*hh,2)}")
    A("s_waitcnt lgkmcnt(0)")
    for eb in range(4):
        for hh in range(2):
            A(f"v_pk_fma_f32 {v(XU+4*eb+2*hh,2)}, {v(YP+16+4*eb+2*hh,2)}, v[236:237], {v(XU+4*eb+2*hh,2)} op_sel:[0,1,0] op_sel_hi:[1,1,1]")
        A(f"v_cvt_pk_bf16_f32 v{28+2*eb}, v{XU+4*eb}, v{XU+4*eb+1}\nv_cvt_pk_bf16_f32 v{29+2*eb}, v{XU+4*eb+2}, v{XU+4*eb+3}")
        A(f"ds_write_b64 v{232+eb}, {v(28+2*eb,2)}")
    A("s_waitcnt lgkmcnt(0)")
    A("ds_read_b128 v[36:39], v23\nds_read_b128 v[40:43], v23 offset:1024")
    A("s_waitcnt lgkmcnt(1)")
    A(f"buffer_store_dwordx4 v[36:39], v{VO}, s[{sOUT}:{sOUT+3}], 0 offen {opt.get('ofl', '')}")
    A("s_waitcnt lgkmcnt(0)")
    A(f"buffer_store_dwordx4 v[40:43], v{VO+1}, s[{sOUT}:{sOUT+3}], 0 offen {opt.get('ofl', '')}")
    A.dump_stamps(11)
    A("s_endpgm")

    A("L_aux:")
    epilogue(1)
    RSD, VPOLL, VT, YB, YA, V2, VF, WF = 20, 22, 19, 32, 48, 64, 96, 128
    PR, XU = VF, V2
    DF, EF, TA = 24, 8, opt.get('ta', 32)
    S_PA = S_MX
    A(f"""
    s_and_b32 s{S_GH}, s{S_W}, 3
    v_and_b32 v14, 15, v1
    s_lshl_b32 s3, s{S_CT}, 6
    v_add_u32 v{EF}, s3, v14
    v_cvt_f32_u32 v{EF}, v{EF}
    v_lshrrev_b32 v15, 4, v1
    v_lshlrev_b32 v{DF}, 2, v15
    v_cvt_f32_u32 v{DF}, v{DF}
    s_mov_b32 s3, 0x41800000
    v_add_f32 v{EF+1}, s3, v{EF}
    v_add_f32 v{EF+2}, s3, v{EF+1}
    v_add_f32 v{EF+3}, s3, v{EF+2}
    v_add_f32 v{DF+1}, 1.0, v{DF}
    v_add_f32 v{DF+2}, 2.0, v{DF}
    v_add_f32 v{DF+3}, 2.0, v{DF+1}
    v_add_f32 v{DF+4}, s3, v{DF}
    v_add_f32 v{DF+5}, s3, v{DF+1}
    v_add_f32 v{DF+6}, s3, v{DF+2}
    v_add_f32 v{DF+7}, s3, v{DF+3}
    s_mov_b32 s3, {0x3b124925}
    v_mul_f32 v{EF}, s3, v{EF}
    v_mul_f32 v{EF+1}, s3, v{EF+1}
    v_mul_f32 v{EF+2}, s3, v{EF+2}
    v_mul_f32 v{EF+3}, s3, v{EF+3}
    s_bitcmp1_b32 s{S_W}, 1
    s_cselect_b32 s3, 0x3e800000, 0
    v_mov_b32 v{EF+4}, s3
    v_mov_b32 v{EF+5}, 0x42000000
    """)
    gen_ops = []
    CA_, CB_, KK = 64, 72, 80
    for eb in range(4):
        gen_ops.append(f"v_mul_f32 v{KK}, v{EF+5}, v{EF+eb}")
        gen_ops += [f"v_fma_f32 v{CA_+i}, v{DF+i}, v{EF+eb}, v{EF+4}" for i in range(8)]
        gen_ops += [f"v_add_f32 v{CB_+i}, v{KK}, v{CA_+i}" for i in range(8)]
        gen_ops.append(f"v_cos_f32 v{KK}, v{KK}")
        gen_ops += [f"v_cos_f32 v{CA_+i}, v{CA_+i}" for i in range(16)]
        gen_ops.append(f"v_add_f32 v{KK}, v{KK}, v{KK}")
        for u in range(8):
            cur = (CA_, CB_)[u & 1]
            if u >= 2:
                gen_ops += [f"v_fma_f32 v{cur+i}, v{KK}, v{(CB_, CA_)[u & 1]+i}, -v{cur+i}" for i in range(8)]
            gen_ops += [f"v_cvt_pk_bf16_f32 v{WF+16*u+4*eb+i}, v{cur+2*i}, v{cur+2*i+1}" for i in range(4)]

    def wgen(n):
        for x in gen_ops[:16 * n]:
            A(x)
        del gen_ops[:16 * n]
    wgen(opt.get("g1", 16))
    A.wait(vm=0, lg=0)
    burst([w_dma(p) for p in range(WN, 14)])
    A("s_barrier")
    A(f"s_cmp_lg_u32 s{S_W}, 7\ns_cbranch_scc1 L_nopub")
    A(f"v_mov_b32 v18, s{S_TAG}\ns_mov_b64 exec, 1")
    A(f"buffer_store_dword v18, v{VID+1}, s[{sWS}:{sWS+3}], s{S_HF} offen offset:16 sc1")
    A("s_mov_b64 exec, -1")
    A("L_nopub:")
    A.stamp(7)
    wgen(opt.get("g2", 14))
    A(f"s_cmp_lg_u32 s{S_W}, 7\ns_cbranch_scc1 L_nopoll")
    A(f"s_add_u32 s3, s{S_HF}, 16")
    A.poll(VID + 3, sWS, "s3", "eq", 64, S_TAG, vtmp=19)
    A("L_nopoll:")
    A.wait(vm=0)
    A("s_barrier")
    if not P2: A.stamp(1)
    wgen(32)
    A(f"""
    s_lshl_b32 s3, s{S_RB}, 6
    s_add_u32 s3, s3, s{S_JX}
    s_and_b32 s27, s{S_W}, 1
    s_lshl_b32 s27, s27, 5
    s_add_u32 s27, s27, s3
    v_lshl_add_u32 v{RSD+1}, v14, 1, s27
    s_bitcmp1_b32 s{S_W}, 1
    s_cselect_b32 s3, -1, 1
    s_cselect_b32 s27, 2048, 0
    v_mul_i32_i24 v{RSD+1}, s3, v{RSD+1}
    v_add_u32 v{RSD+1}, s27, v{RSD+1}
    v_lshrrev_b32 v{RSD}, 11, v{RSD+1}
    v_lshlrev_b32 v{RSD}, 10, v{RSD}
    v_sub_u32 v{RSD+1}, v{RSD+1}, v{RSD}
    v_lshlrev_b32 v{RSD+1}, 2, v{RSD+1}
    v_add_u32 v{RSD+1}, {WS_RSTD}, v{RSD+1}
    s_lshl_b32 s3, s{S_T}, 1
    s_and_b32 s27, s{S_W}, 1
    s_add_u32 s3, s3, s27
    s_lshl_b32 s{S_FT}, s3, 14
    s_lshr_b32 s27, s{S_GH}, 1
    s_lshl_b32 s3, s27, 13
    s_add_u32 s{S_FT}, s{S_FT}, s3
    s_add_u32 s{S_FT}, s{S_FT}, {WS_VV}
    s_cmp_eq_u32 s{S_GH}, 0
    s_cselect_b32 s{S_MW}, {WS_VV + 64*16384}, s{S_FT}
    s_lshl_b32 s3, s{S_GH}, 12
    s_add_u32 s27, s3, {YS}
    v_add_u32 v28, s27, v{VL}
    s_lshl_b32 s3, s{S_GH}, 6
    s_add_u32 s3, s3, {YS + 20480}
    v_lshl_add_u32 v30, v14, 2, s3
    """)
    A.stamp(8)
    A(f"""
    s_and_b32 s3, s{S_GH}, 2
    s_add_u32 s3, s3, s{S_JX}
    s_lshl_b32 s3, s3, 2
    s_lshr_b32 s27, s{S_T}, 3
    s_add_u32 s3, s3, s27
    s_lshl_b32 s3, s3, 7
    s_add_u32 s3, s3, {WS_VFLAG}
    v_and_b32 v{VPOLL+1}, 1, v1
    v_lshlrev_b32 v{VPOLL+1}, 2, v{VPOLL+1}
    """)
    if opt.get("m2n", -1) >= 0:
        A("s_barrier")
    A.poll(VPOLL + 1, sWS, "s3", "eq", 64, S_TAG, vtmp=VPOLL, sleep=opt.get("vps", 4))
    A.stamp(9)
    A.reset()
    A.vmem(f"buffer_load_dword v{RSD}, v{RSD+1}, s[{sWS}:{sWS+3}], 0 offen {HLD}", "rstd")
    for u in range(8):
        if u % 4 == 0:
            A(f"s_add_u32 s27, s{S_FT}, {u*1024}")
        A.vmem(f"buffer_load_dwordx4 {v(VF+4*u,4)}, v{VL}, s[{sWS}:{sWS+3}], s27 offen offset:{(u%4)*1024} {HLD}", ("v", u))

    A(f"s_cmp_eq_u32 s{S_T}, 0\ns_cbranch_scc1 L_vspecial")

    def vpart(special):
        if special:
            for u in range(8):
                if u % 4 == 0:
                    A(f"s_add_u32 s27, s{S_MW}, {u*1024}")
                A.vmem(f"buffer_load_dwordx4 {v(V2+4*u,4)}, v{VL}, s[{sWS}:{sWS+3}], s27 offen offset:{(u%4)*1024} {HLD}", ("v2", u))
        for u in range(8):
            A.wait(vm=("v", u))
            for eb in range(4):
                A.mfma(YA + eb * 4, WF + 16 * u + 4 * eb, VF + 4 * u, "0" if u == 0 else None)
        if special:
            for u in range(8):
                A.wait(vm=("v2", u))
                for eb in range(4):
                    A.mfma(YB + eb * 4, WF + 16 * u + 4 * eb, V2 + 4 * u, "0" if u == 0 else None)
        A(f"ds_write_b32 v30, v{RSD}")
        A(f"s_nop {opt.get('yn', 6)}")
        for eb in range(4):
            A(f"ds_write_b128 v28, {v(YA+4*eb,4)} offset:{eb*1024}")
        if special:
            L = A.label("L_nopm")
            A(f"s_cmp_lg_u32 s{S_W}, 4\ns_cbranch_scc1 {L}")
            A("s_mov_b32 s26, 0x00010001\ns_mov_b32 s27, 0x00010001")
            for r in range(16):
                A(f"v_cndmask_b32 v{YB+r}, v{YA+r}, v{YB+r}, s[26:27]")
            for eb in range(4):
                A(f"ds_write_b128 v28, {v(YB+4*eb,4)} offset:{16384 + eb*1024}")
            A(f"{L}:")
    sv = (list(A.vm), A.vm_done, list(A.lg), A.lg_done)
    vpart(False)
    A("s_branch L_vdone")
    A("L_vspecial:")
    A.vm, A.vm_done, A.lg, A.lg_done = sv
    vpart(True)
    A("L_vdone:")
    A("s_waitcnt lgkmcnt(0)")
    A.stamp(10)
    A("s_barrier")
    A.dump_stamps(11)
    A("s_endpgm")

    A.reset()
    A("L_dft:")
    S_Q, S_VAR, S_M, S_N, S_P = 63, 96, 97, 98, 99
    A(f"""
    s_sub_u32 s3, s{S_J}, 28
    s_lshl_b32 s{S_Q}, s{S_XCD}, 2
    s_add_u32 s{S_Q}, s{S_Q}, s3
    s_lshr_b32 s{S_VAR}, s{S_XCD}, 1
    s_mov_b32 s{S_M}, s3
    s_and_b32 s{S_N}, s{S_XCD}, 1
    s_and_b32 s{S_P}, s{S_VAR}, 1
    """)
    RAW, EO, TF, TM, ST = 32, 64, 128, 136, 144
    A(f"""
    s_lshl_b32 s3, s{S_Q}, 4
    s_lshl_b32 s27, s{S_W}, 1
    s_add_u32 s3, s3, s27
    v_lshrrev_b32 v2, 5, v1
    v_add_u32 v4, s3, v2
    v_and_b32 v3, 31, v1
    v_sub_u32 v5, 2048, v4
    v_sub_u32 v6, 1024, v4
    v_add_u32 v7, 1024, v4
    v_cmp_eq_u32 s[100:101], 0, v4
    v_mov_b32 v8, 512
    v_mov_b32 v9, 1536
    v_mov_b32 v12, {OOB}
    v_cndmask_b32 v5, v5, v8, s[100:101]
    v_cndmask_b32 v7, v7, v9, s[100:101]
    v_cmp_gt_u32 vcc, 28, v3
    v_lshlrev_b32 v8, 4, v3
    v_sub_u32 v9, 880, v8
    v_cndmask_b32 v8, v12, v8, vcc
    v_cndmask_b32 v9, v12, v9, vcc
    s_waitcnt lgkmcnt(0)
    """)
    A.srd(sX, 4, 2048 * 896)
    for rho in range(4):
        A(f"v_mul_u32_u24 v13, 896, v{4+rho}\nv_add_u32 v14, v13, v8\nv_add_u32 v15, v13, v9")
        for fm in range(2):
            A.vmem(f"buffer_load_dwordx4 {v(RAW + rho*8 + 4*fm, 4)}, v{14+fm}, s[{sX}:{sX+3}], 0 offen", ("x", rho))
    A.srd(sWS, 24, WS_SIZE + (0x40000 if stamps else 0))
    A(f"v_mov_b32 v190, {WS_EPOCH}")
    A.vmem(f"buffer_load_dword v191, v190, s[{sWS}:{sWS+3}], 0 offen sc1", "ep")
    A(f"s_cmp_lg_u32 s{S_W}, 7\ns_cbranch_scc1 L_dnotouch")
    if opt.get("xt", 0):
        start_touch(A, opt, "x", 200)
    code_touch(A, 208)
    A("L_dnotouch:")
    S_R = 14
    GA, GT = 160, 168
    A(f"""
    s_lshl_b32 s3, s{S_M}, 7
    s_lshl_b32 s27, s{S_W}, 4
    s_add_u32 s3, s3, s27
    s_lshl_b32 s3, s3, 1
    s_add_u32 s3, s3, s{S_P}
    v_and_b32 v13, 15, v1
    v_lshl_add_u32 v13, v13, 1, s3
    v_cvt_f32_u32 v13, v13
    v_mul_f32 v13, 0x3a000000, v13
    v_lshrrev_b32 v14, 4, v1
    v_lshlrev_b32 v14, 3, v14
    v_cvt_f32_u32 v14, v14
    s_cmp_ge_u32 s{S_VAR}, 2
    s_cselect_b32 s3, 0x3e800000, 0
    v_fma_f32 v{GA}, v13, v14, s3
    v_mul_f32 v14, 0x42000000, v13
    v_lshlrev_b32 v16, 4, v1
    s_lshl_b32 s3, s{S_W}, 10
    v_add_u32 v16, s3, v16
    v_add_u32 v17, 0x10000, v16
    """)
    for i in range(1, 8):
        A(f"v_add_f32 v{GA+i}, v13, v{GA+i-1}")
    for i in range(8):
        A(f"v_add_f32 v{GT+i}, v14, v{GA+i}")
    A("v_cos_f32 v14, v14")
    for i in range(16):
        A(f"v_cos_f32 v{GA+i}, v{GA+i}")
    A("v_add_f32 v14, v14, v14")
    A("v_mov_b32 v184, v14\nv_mov_b32 v186, v16\nv_mov_b32 v187, v17")
    cg = [0]

    def cgen(n):
        for sb in range(cg[0], min(16, cg[0] + n)):
            cur, oth = (GA, GT) if sb % 2 == 0 else (GT, GA)
            if sb >= 2:
                for i in range(4):
                    A(f"v_pk_fma_f32 {v(cur+2*i,2)}, {v(oth+2*i,2)}, v[184:185], {v(cur+2*i,2)} op_sel_hi:[1,0,1] neg_lo:[0,0,1] neg_hi:[0,0,1]")
            d = GT + 8 + 4 * (sb & 1)
            for i in range(4):
                A(f"v_cvt_pk_bf16_f32 v{d+i}, v{cur+2*i}, v{cur+2*i+1}")
            A.lds(f"ds_write_b128 v{186 + sb//8}, {v(d,4)} offset:{(sb%8)*8192}")
        cg[0] = min(16, cg[0] + n)
    cgen(opt.get("c0", 6))
    A.stamp(1)
    A(f"""
    v_cmp_eq_u32 s[26:27], 0, v3
    v_cndmask_b32 v21, 0, 2.0, vcc
    v_cmp_eq_u32 vcc, 28, v3
    v_mov_b32 v24, 0
    v_cndmask_b32 v20, v21, 1.0, s[26:27]
    v_mov_b32 v25, 0
    v_cndmask_b32 v20, v20, 1.0, vcc
    v_mov_b32 v26, 0
    v_mov_b32 v27, 0
    """)
    E = lambda rho: EO + rho * 16
    O = lambda rho: EO + rho * 16 + 8
    for rho in range(4):
        A.wait(vm=("x", rho))
        F = RAW + rho * 8
        M = F + 4
        A(f"v_mov_b32_dpp v{24+rho}, v{M} row_bcast:15 row_mask:0xa bank_mask:0xf")
        for i in range(4):
            A(f"v_lshlrev_b32 v{TF+2*i}, 16, v{F+i}\nv_and_b32 v{TF+2*i+1}, 0xffff0000, v{F+i}")
        A(f"v_mov_b32_dpp v{24+rho}, v{M} row_shr:1 row_mask:0xf bank_mask:0xf")
        for j in range(1, 8):
            k = 8 - j
            if k & 1:
                A(f"v_and_b32 v{TM+j}, 0xffff0000, v{M + k//2}")
            else:
                A(f"v_lshlrev_b32 v{TM+j}, 16, v{M + k//2}")
        A(f"v_lshlrev_b32 v{TM}, 16, v{24+rho}")
        for i in range(4):
            A(f"v_pk_add_f32 {v(E(rho)+2*i,2)}, {v(TF+2*i,2)}, {v(TM+2*i,2)}")
            A(f"v_pk_add_f32 {v(O(rho)+2*i,2)}, {v(TF+2*i,2)}, {v(TM+2*i,2)} neg_lo:[0,1] neg_hi:[0,1]")
        sm, sq = ST + 4 * rho, ST + 4 * rho + 2
        for i in range(4):
            if i == 0:
                A(f"v_pk_add_f32 {v(sm,2)}, {v(E(rho),2)}, {v(E(rho)+2,2)}")
                A(f"v_pk_mul_f32 {v(sq,2)}, {v(E(rho),2)}, {v(E(rho),2)}")
            else:
                if i > 1:
                    A(f"v_pk_add_f32 {v(sm,2)}, {v(sm,2)}, {v(E(rho)+2*i,2)}")
                A(f"v_pk_fma_f32 {v(sq,2)}, {v(E(rho)+2*i,2)}, {v(E(rho)+2*i,2)}, {v(sq,2)}")
            A(f"v_pk_fma_f32 {v(sq,2)}, {v(O(rho)+2*i,2)}, {v(O(rho)+2*i,2)}, {v(sq,2)}")
    A.stamp(2)
    for rho in range(4):
        A(f"v_add_f32 v{ST+4*rho}, v{ST+4*rho}, v{ST+4*rho+1}\nv_add_f32 v{ST+4*rho+2}, v{ST+4*rho+2}, v{ST+4*rho+3}")
    for i in range(4):
        A(f"v_permlane16_swap_b32 v{ST+2*i}, v{ST+8+2*i}")
    for i in range(4):
        A(f"v_add_f32 v{ST+2*i}, v{ST+2*i}, v{ST+8+2*i}")
    for sh in (8, 4, 2, 1):
        for i in range(4):
            r = ST + 2 * i
            A(f"v_add_f32_dpp v{r}, v{r}, v{r} row_ror:{sh} row_mask:0xf bank_mask:0xf")
    R_, C_ = 24, 28
    A(f"s_mov_b32 s3, {0x3b124925}\ns_mov_b32 s26, {0x3a924925}\ns_mov_b32 s27, {0x3727c5ac}")
    seq_ = [
        lambda b: f"v_mul_f32 v{b}, s3, v{b}\nv_mul_f32 v{b+2}, s26, v{b+2}",
        lambda b: f"v_fma_f32 v{b+2}, -v{b}, v{b}, v{b+2}",
        lambda b: f"v_max_f32 v{b+2}, 0, v{b+2}",
        lambda b: f"v_cvt_pk_bf16_f32 v{b+1}, v{b}, v{b+2}",
        lambda b: f"v_lshlrev_b32 v{b}, 16, v{b+1}\nv_and_b32 v{b+2}, 0xffff0000, v{b+1}",
        lambda b: f"v_add_f32 v{b+2}, s27, v{b+2}",
        lambda b: f"v_cvt_pk_bf16_f32 v{b+2}, v{b+2}, v{b+2}",
        lambda b: f"v_and_b32 v{b+2}, 0xffff0000, v{b+2}",
        lambda b: f"v_sqrt_f32 v{b+2}, v{b+2}",
        lambda b: f"s_nop 0\nv_cvt_pk_bf16_f32 v{b+2}, v{b+2}, v{b+2}",
        lambda b: f"v_and_b32 v{b+2}, 0xffff0000, v{b+2}",
    ]
    for f in seq_:
        for rho in range(2):
            A(f(ST + 4 * rho))
    for rho in range(2):
        A(f"v_rcp_f32 v{R_+rho}, v{ST+4*rho+2}")
    A("s_nop 0")
    for rho in range(2):
        A(f"v_mul_f32 v{C_+rho}, v{ST+4*rho}, v{R_+rho}")
    for r in (R_, R_ + 1, C_, C_ + 1):
        A(f"v_mov_b32 v{r+2}, v{r}")
    A("s_nop 0")
    for r in (R_, R_ + 1, C_, C_ + 1):
        A(f"v_permlane16_swap_b32 v{r}, v{r+2}")
    A(f"""
    v_cmp_eq_u32 vcc, 1, v3
    v_cmp_eq_u32 s[26:27], 2, v3
    v_mov_b32 v8, v4
    v_mov_b32 v9, v{R_}
    v_cndmask_b32 v8, v8, v5, vcc
    v_cndmask_b32 v9, v9, v{R_+1}, vcc
    v_cmp_eq_u32 vcc, 3, v3
    v_cndmask_b32 v8, v8, v6, s[26:27]
    v_cndmask_b32 v9, v9, v{R_+2}, s[26:27]
    v_cndmask_b32 v8, v8, v7, vcc
    v_cndmask_b32 v9, v9, v{R_+3}, vcc
    v_cmp_gt_u32 vcc, 4, v3
    v_lshlrev_b32 v8, 2, v8
    v_add_u32 v8, {WS_RSTD}, v8
    v_cndmask_b32 v8, v12, v8, vcc
    """)
    A.vmem(f"buffer_store_dword v9, v8, s[{sWS}:{sWS+3}], 0 offen sc1")
    A(f"s_or_b32 s3, s{S_Q}, s{S_W}\ns_cmp_lg_u32 s3, 0\ns_cbranch_scc1 L_no512")
    A(f"v_add_f32 v10, v{C_+1}, v{C_+3}")
    for j in range(8):
        A(f"v_mul_f32 v{TF+j}, v10, v{20+(1 if j else 0)}")
        A(f"v_fma_f32 v{TF+j}, v{E(1)+j}, v{R_+1}, -v{TF+j}")
        A(f"v_fma_f32 v{TF+j}, v{E(3)+j}, v{R_+3}, v{TF+j}")
        A(f"v_mul_f32 v{TM+j}, v{O(1)+j}, v{R_+1}")
        A(f"v_fma_f32 v{TM+j}, -v{O(3)+j}, v{R_+3}, v{TM+j}")
    for i in range(4):
        A(f"v_cvt_pk_bf16_f32 v{RAW+i}, v{TF+2*i}, v{TF+2*i+1}")
        A(f"v_cvt_pk_bf16_f32 v{RAW+4+i}, v{TM+2*i}, v{TM+2*i+1}")
    A(f"v_lshlrev_b32 v10, 4, v3\nv_add_u32 v10, {WS_X512}, v10\nv_cndmask_b32 v10, v12, v10, s[100:101]")
    A(f"buffer_store_dwordx4 {v(RAW,4)}, v10, s[{sWS}:{sWS+3}], 0 offen sc1")
    A(f"buffer_store_dwordx4 {v(RAW+4,4)}, v10, s[{sWS}:{sWS+3}], 0 offen offset:{3*512} sc1")
    A("s_nop 1")
    A("L_no512:")
    for r in (R_ + 1, R_ + 3, C_ + 1, C_ + 3):
        A(f"v_cndmask_b32 v{r}, v{r}, 0, s[100:101]")
    A(f"v_add_f32 v{C_}, v{C_}, v{C_+1}\nv_add_f32 v{C_+2}, v{C_+2}, v{C_+3}")
    OUT = lambda var: RAW + var * 8
    bl = "op_sel_hi:[1,0,1]"
    bh = "op_sel:[0,1,0] op_sel_hi:[1,1,1]"
    A(f"v_pk_mul_f32 v[8:9], v[20:21], {v(C_,2)} op_sel_hi:[1,0] neg_lo:[1,0] neg_hi:[1,0]")
    A(f"v_pk_mul_f32 v[10:11], v[20:21], {v(C_+2,2)} op_sel_hi:[1,0] neg_lo:[1,0] neg_hi:[1,0]")
    for i in range(4):
        s3lo, s3hi = (0, 1) if i == 0 else (1, 1)
        a_, b_ = TF, TF + 2
        A(f"v_pk_fma_f32 {v(a_,2)}, {v(E(0)+2*i,2)}, {v(R_,2)}, v[8:9] op_sel:[0,0,{s3lo}] op_sel_hi:[1,0,{s3hi}]")
        A(f"v_pk_fma_f32 {v(b_,2)}, {v(E(2)+2*i,2)}, {v(R_+2,2)}, v[10:11] op_sel:[0,0,{s3lo}] op_sel_hi:[1,0,{s3hi}]")
        A(f"v_pk_mul_f32 {v(TM,2)}, {v(O(0)+2*i,2)}, {v(R_,2)} op_sel_hi:[1,0]")
        A(f"v_pk_mul_f32 {v(TM+2,2)}, {v(O(3)+2*i,2)}, {v(R_+2,2)} op_sel:[0,1] op_sel_hi:[1,1]")
        A(f"v_pk_fma_f32 {v(a_,2)}, {v(E(1)+2*i,2)}, {v(R_,2)}, {v(a_,2)} {bh}")
        A(f"v_pk_fma_f32 {v(b_,2)}, {v(E(3)+2*i,2)}, {v(R_+2,2)}, {v(b_,2)} {bh}")
        A(f"v_pk_fma_f32 {v(TM,2)}, {v(O(1)+2*i,2)}, {v(R_,2)}, {v(TM,2)} {bh} neg_lo:[1,0,0] neg_hi:[1,0,0]")
        A(f"v_pk_fma_f32 {v(TM+2,2)}, {v(O(2)+2*i,2)}, {v(R_+2,2)}, {v(TM+2,2)} {bl} neg_lo:[1,0,0] neg_hi:[1,0,0]")
        A(f"v_pk_add_f32 {v(OUT(0)+2*i,2)}, {v(a_,2)}, {v(b_,2)}")
        A(f"v_pk_add_f32 {v(OUT(1)+2*i,2)}, {v(a_,2)}, {v(b_,2)} neg_lo:[0,1] neg_hi:[0,1]")
        A(f"v_pk_add_f32 {v(OUT(2)+2*i,2)}, {v(TM,2)}, {v(TM+2,2)}")
        A(f"v_pk_add_f32 {v(OUT(3)+2*i,2)}, {v(TM,2)}, {v(TM+2,2)} neg_lo:[0,1] neg_hi:[0,1]")
    PKD = EO
    FS = 131072
    A(f"""
    v_lshlrev_b32 v8, 13, v2
    v_lshrrev_b32 v9, 1, v3
    v_lshl_add_u32 v8, v9, 9, v8
    v_and_b32 v10, 7, v9
    v_lshl_add_u32 v8, v10, 4, v8
    v_and_b32 v10, 1, v3
    v_lshl_add_u32 v8, v10, 7, v8
    v_and_b32 v9, 8, v9
    v_or_b32 v8, v8, v9
    s_lshr_b32 s3, s{S_W}, 2
    s_lshl_b32 s3, s3, 8
    s_and_b32 s27, s{S_W}, 3
    s_lshl_b32 s27, s27, 2
    s_add_u32 s3, s3, s27
    s_add_u32 s3, s3, {FS}
    v_xor_b32 v8, s3, v8
    """)
    for j in range(1, 8):
        A(f"v_xor_b32 v{8+j}, {j<<4}, v8")
    for pr in range(2):
        for j in range(8):
            A(f"v_permlane32_swap_b32 v{OUT(2*pr)+j}, v{OUT(2*pr+1)+j}")
        for j in range(8):
            A(f"v_cvt_pk_bf16_f32 v{PKD+8*pr+j}, v{OUT(2*pr)+j}, v{OUT(2*pr+1)+j}")
        for j in range(8):
            A.lds(f"ds_write_b32 v{8+j}, v{PKD+8*pr+j} offset:{pr*16384}")
    A(f"""
    v_xor_b32 v28, v3, v2
    v_lshlrev_b32 v28, 4, v28
    v_lshl_add_u32 v28, v2, 9, v28
    s_lshl_b32 s3, s{S_W}, 12
    s_and_b32 s27, s{S_W}, 1
    s_lshl_b32 s27, s27, 3
    s_add_u32 s3, s3, s27
    s_add_u32 s3, s3, {FS}
    v_add_u32 v28, s3, v28
    v_lshlrev_b32 v27, 4, v3
    v_lshl_add_u32 v27, v2, 14, v27
    s_lshr_b32 s3, s{S_Q}, 1
    s_lshl_b32 s3, s3, 10
    s_and_b32 s27, s{S_Q}, 1
    s_lshl_b32 s27, s27, 9
    s_add_u32 s3, s3, s27
    s_lshl_b32 s27, s{S_W}, 17
    s_add_u32 s3, s3, s27
    s_add_u32 s3, s3, {WS_XF}
    """)
    for k in range(1, 8):
        A(f"v_xor_b32 v{RAW+16+k}, {(k>>1)*32 + (k&1)*8}, v28")
    A.wait(lg=0)
    A("s_barrier")
    for i in range(4):
        for hh in range(2):
            k = 2 * i + hh
            A.lds(f"ds_read_b64 {v(RAW+4*i+2*hh,2)}, v{RAW+16+k if k else 28} offset:{i*1024}", ("rb", i))
    for i in range(4):
        A.wait(lg=("rb", i))
        A.vmem(f"buffer_store_dwordx4 {v(RAW+4*i,4)}, v27, s[{sWS}:{sWS+3}], s3 offen sc1", "xst")
        A(f"s_add_u32 s3, s3, 32768")
    A.stamp(3)
    cgen(opt.get("c1", 4))
    cg_left = cg[0]
    A(f"s_cmp_ge_u32 s{S_W}, 4\ns_cbranch_scc1 L_dft_helper")
    dstate = (list(A.vm), A.vm_done)
    SACC, SEX, CF, XF = 32, 96, [104, 136], 168
    KALT, B512, X5 = 4, 8, [12, 16]
    CA = 22
    S_XA = 15
    A(f"""
    v_lshlrev_b32 v{CA}, 4, v1
    v_and_b32 v26, 1, v1
    s_cmp_ge_u32 s{S_VAR}, 2
    s_cselect_b32 s100, 1, 0
    s_cselect_b32 s101, 0x80008000, 0
    v_xor_b32 v26, s100, v26
    v_lshlrev_b32 v26, 15, v26
    v_or_b32 v{B512}, 0x3f80, v26
    s_lshl_b32 s26, s{S_N}, 3
    s_lshl_b32 s27, s{S_W}, 1
    s_add_u32 s26, s26, s27
    s_lshl_b32 s3, s{S_VAR}, 4
    s_add_u32 s3, s3, s26
    s_lshl_b32 s{S_XA}, s3, 14
    s_add_u32 s{S_XA}, s{S_XA}, {WS_XF}
    s_lshl_b32 s3, s{S_M}, 15
    v_add_u32 v{CA}, s3, v{CA}
    s_add_u32 s3, s3, 32768
    s_and_b32 s3, s3, 0x1ffff
    v_lshl_add_u32 v{CA+1}, v1, 4, s3
    v_xor_b32 v{CA+2}, 0x10000, v{CA}
    v_xor_b32 v{CA+3}, 0x10000, v{CA+1}
    s_mov_b32 s{S_R}, s{S_M}
    s_lshl_b32 s26, s26, 5
    s_lshl_b32 s27, s{S_VAR}, 9
    s_add_u32 s26, s26, s27
    s_add_u32 s26, s26, {WS_X512}
    v_lshl_add_u32 v27, v1, 1, s26
    s_add_u32 s3, s{S_VAR}, 1
    s_and_b32 s3, s3, 2
    s_cmp_eq_u32 s3, 0
    s_cselect_b32 s3, 16, 0
    v_cmp_gt_u32 vcc, s3, v1
    v_mov_b32 v26, {OOB}
    v_lshlrev_b32 v28, 4, v1
    v_cndmask_b32 v27, v26, v27, vcc
    v_add_u32 v29, 16384, v28
    s_or_b32 s3, s{S_M}, s{S_VAR}
    s_cmp_eq_u32 s3, 0
    s_cselect_b32 vcc_lo, 1, 0
    s_mov_b32 vcc_hi, 0
    """)
    for i in range(4):
        A(f"v_mov_b32 v{KALT+i}, 0xbf803f80")
    for i in range(8):
        A(f"v_mov_b32 v{SEX+i}, 0")
    A.wait(vm="xst")
    A("s_barrier")
    A.stamp(4)
    cgen(16)
    A.wait(lg=0)
    for i in range(1, 4):
        A(f"v_mov_b32 v{B512+i}, 0\nv_mov_b32 v{X5[0]+i}, 0\nv_mov_b32 v{X5[1]+i}, 0")

    def c_reads(sb):
        return [lambda tb=tb: A.lds(f"ds_read_b128 {v(CF[sb&1]+4*tb,4)}, v{CA + sb//4} offset:{(sb%4)*8192 + tb*1024}", ("cf", sb))
                for tb in range(8)]

    def x_th(sb):
        r = []
        for a_ in range(2):
            def f(a_=a_):
                if sb % 4 == 0 and a_ == 0:
                    A(f"s_add_u32 s94, s{S_R}, {sb // 4}\ns_and_b32 s94, s94, 3\ns_lshl_b32 s94, s94, 12\ns_add_u32 s94, s94, s{S_XA}")
                A.vmem(f"buffer_load_dwordx4 {v(XF + (sb % 11)*8 + 4*a_, 4)}, v{28+a_}, s[{sWS}:{sWS+3}], s94 offen offset:{(sb%4)*1024} {HLD}", ("xf", sb))
            r.append(f)
        return r

    def extra(xa0, xa1):
        L = A.label("L_nx")
        A(f"s_cbranch_vccz {L}")
        A.mfma(SEX, xa0, KALT)
        A.mfma(SEX + 4, xa1, KALT)
        A(f"{L}:")
    A("s_barrier")
    A.stamp(5)
    XD = opt.get("xd", 4)
    for sb in range(XD):
        for f in x_th(sb):
            f()
    for f in c_reads(0):
        f()
    xnext = XD
    for sb in range(16):
        fl = list(enumerate(c_reads(sb + 1))) if sb + 1 < 16 else []
        nx = [k for k in (xnext, xnext + 1) if k <= min(15, sb + 10)]
        xnext += len(nx)
        k0 = 0
        for k in nx:
            for f in x_th(k):
                fl.append((8 + 2 * k0, f)); k0 += 1
        if sb == 8:
            fl.append((13, lambda: A.vmem(f"buffer_load_ushort v{X5[0]}, v27, s[{sWS}:{sWS+3}], 0 offen {HLD}", "x5")))
            fl.append((15, lambda: A.vmem(f"buffer_load_ushort v{X5[1]}, v27, s[{sWS}:{sWS+3}], 0 offen offset:32 {HLD}", "x5")))
        A.wait(vm=("xf", sb), lg=("cf", sb))
        z = "0" if sb == 0 else None
        xa = XF + (sb % 11) * 8
        A.weave([lambda a_=a_, tb=tb: A.mfma(SACC + (a_ * 8 + tb) * 4, xa + 4 * a_, CF[sb & 1] + 4 * tb, z)
                 for a_ in range(2) for tb in range(8)], fl)
        extra(xa, xa + 4)
    A.wait(vm="x5")
    extra(X5[0], X5[1])
    for tb in range(8):
        for a_ in range(2):
            A.mfma(SACC + (a_ * 8 + tb) * 4, X5[a_], B512)
    A.stamp(6)
    A(f"""
    s_lshl_b32 s3, s{S_M}, 3
    s_add_u32 s3, s3, s{S_P}
    s_lshl_b32 s3, s3, 5
    s_lshl_b32 s27, s100, 3
    s_lshl_b32 s26, s{S_N}, 2
    s_add_u32 s27, s27, s26
    s_add_u32 s27, s27, s{S_W}
    s_add_u32 s3, s3, s27
    s_lshl_b32 s3, s3, 10
    s_add_u32 s3, s3, {WS_VV}
    s_lshl_b32 s27, s27, 10
    s_add_u32 s{S_XA}, s27, {WS_VV + 64*16384}
    """)
    D0 = CF[0]
    for tb in range(8):
        d = D0 + 4 * tb
        for a_ in range(2):
            s0 = SACC + (a_ * 8 + tb) * 4
            A(f"v_cvt_pk_bf16_f32 v{d+2*a_}, v{s0}, v{s0+1}\nv_cvt_pk_bf16_f32 v{d+2*a_+1}, v{s0+2}, v{s0+3}")
        for i in range(4):
            A(f"v_xor_b32 v{d+i}, s101, v{d+i}")
        A(f"s_add_u32 s27, s3, {((tb >> 1) * 4 + (tb & 1)) * 16384}")
        A.vmem(f"buffer_store_dwordx4 {v(d,4)}, v28, s[{sWS}:{sWS+3}], s27 offen sc1")
    A("s_cbranch_vccz L_nospecial")
    A("s_mov_b32 s26, 0x00010001\ns_mov_b32 s27, 0x00010001")
    for i in range(4):
        A(f"v_cvt_pk_bf16_f32 v{XF+i}, v{SEX+2*i}, v{SEX+2*i+1}")
    for i in range(4):
        A(f"v_cndmask_b32 v{XF+i}, v{D0+i}, v{XF+i}, s[26:27]")
    A(f"buffer_store_dwordx4 {v(XF,4)}, v28, s[{sWS}:{sWS+3}], s{S_XA} offen sc1")
    A("L_nospecial:")
    A.wait(vm=0)
    A("s_barrier")
    A.stamp(7)
    A.dump_stamps(8)
    A("s_endpgm")

    A.reset()
    A("L_dft_helper:")
    A.vm, A.vm_done = dstate
    S_DT = 94
    A.wait(vm="xst")
    A(f"""
    v_readfirstlane_b32 s{S_DT}, v191
    v_lshlrev_b32 v4, 7, v1
    v_lshlrev_b32 v6, 2, v1
    s_lshl_b32 s3, s{S_Q}, 2
    s_add_u32 s3, s3, {WS_XFLAG}
    s_mul_i32 s{S_DT}, s{S_DT}, {TAGMUL}
    s_add_u32 s{S_DT}, s{S_DT}, {TAGADD}
    v_mov_b32 v5, s{S_DT}
    s_barrier
    s_cmp_eq_u32 s{S_W}, 4
    s_cbranch_scc0 L_nox
    s_setprio 3
    s_mov_b64 exec, 0xff
    buffer_store_dword v5, v4, s[{sWS}:{sWS+3}], s3 offen sc1
    s_mov_b64 exec, -1
    L_nox:
    """)
    A.stamp(4)
    cg[0] = cg_left
    cgen(16)
    A(f"""
    s_waitcnt lgkmcnt(0)
    s_cmp_eq_u32 s{S_W}, 4
    s_cbranch_scc0 L_end
    s_lshl_b32 s3, s{S_XCD}, 7
    s_add_u32 s3, s3, {WS_XFLAG}
    """)
    A.poll(6, sWS, "s3", "eq", 32, S_DT, sleep=opt.get("xps", 1))
    A.stamp(5)
    A("s_barrier")
    A("v_mov_b32 v8, 0")
    A(f"""
    s_lshl_b32 s3, s{S_VAR}, 2
    s_add_u32 s3, s3, s{S_M}
    s_lshl_b32 s3, s3, 5
    s_add_u32 s3, s3, s{S_N}
    s_lshl_b32 s3, s3, 2
    s_add_u32 s3, s3, {WS_VFLAG}
    s_barrier
    s_mov_b64 exec, 1
    buffer_store_dword v5, v8, s[{sWS}:{sWS+3}], s3 offen sc1
    """)
    A(f"s_cmp_lg_u32 s{S_Q}, 0\ns_cbranch_scc1 L_noepw")
    A(f"s_mov_b64 exec, -1\nv_and_b32 v9, 7, v1\nv_min_u32 v9, 6, v9\nv_lshlrev_b32 v9, 2, v9\nv_lshrrev_b32 v10, 3, v1\nv_lshl_add_u32 v9, v10, 7, v9")
    for i in range(4):
        A(f"s_mov_b32 s3, {WS_HFLAG + 16 + i*1024}")
        A.poll(9, sWS, "s3", "eq", 64, S_DT)
    A(f"s_mov_b32 s3, {WS_EPOCH}\ns_mov_b64 exec, 1\nbuffer_store_dword v5, v8, s[{sWS}:{sWS+3}], s3 offen sc1")
    A("L_noepw:")
    A.stamp(6)
    A.dump_stamps(8)
    A("L_end:")
    A("s_endpgm")
    A("L_code_end:")

    hdr = open("parallel_sum__spectral_fnet__dense_activation_relu__prompt.s.ref").read().split("; Override")[0]
    return (hdr + "; @launch grid=(256,1,1) block=(512,1,1) lds=163840\n"
            + ".amdgcn_target \"amdgcn-amd-amdhsa--gfx950\"\n" + kernel_header(NAME) + A.text() + kernel_desc(NAME, 256, 256))


if __name__ == "__main__":
    out = sys.argv[1]
    stamps = len(sys.argv) > 2 and sys.argv[2] == "stamps"
    opt = {}
    for kv in sys.argv[3:]:
        k, x = kv.split("=")
        opt[k] = int(x) if x.lstrip("-").isdigit() else x
    open(out, "w").write(gen(stamps, opt))
```

```python
import sys
from kbase import *

TAGMUL, TAGADD = 0x9E3779B1, 0x7F4A7C15


def wblk(i):
    if i < 24:
        return 65536 + 4096 * i
    if i < 28:
        return 32768 + 4096 * (i - 24)
    return 65536 + 4096 * (i - 28)


def mod7(A, s, tmp, maxv):
    m = 7
    while m * 2 < maxv:
        m *= 2
    while m >= 7:
        A(f"s_cmp_ge_u32 s{s}, {m}\ns_cselect_b32 s{tmp}, {m}, 0\ns_sub_u32 s{s}, s{s}, s{tmp}")
        m //= 2


def code_touch(A, vb=118):
    L = A.label("L_pc")
    A(f"""
    s_getpc_b64 s[48:49]
    {L}:
    s_sub_u32 s48, s48, {L}-{NAME}
    s_subb_u32 s49, s49, 0
    s_mov_b32 s50, L_code_end-{NAME}
    s_mov_b32 s51, 0x20000
    v_lshlrev_b32 v{vb}, 12, v1
    s_lshl_b32 s3, s{S_J}, 7
    v_add_u32 v{vb}, s3, v{vb}
    s_mov_b64 exec, 0x3ff
    buffer_load_dword v{vb+1}, v{vb}, s[48:51], 0 offen
    s_mov_b64 exec, -1
    """)


def start_touch(A, opt, what, vb=10):
    fl = opt.get("tfl", "")
    if what == "x":
        A(f"""
        s_lshl_b32 s3, s{S_XCD}, 2
        s_lshr_b32 s27, s{S_J}, 3
        s_add_u32 s3, s3, s27
        s_lshl_b32 s3, s3, 4
        s_and_b32 s27, s{S_J}, 1
        s_lshl_b32 s27, s27, 3
        s_add_u32 s3, s3, s27
        v_lshrrev_b32 v{vb+1}, 3, v1
        v_add_u32 v{vb+1}, s3, v{vb+1}
        s_bfe_u32 s3, s{S_J}, 0x20001
        s_add_u32 s27, s3, 1
        s_and_b32 s27, s27, 2
        s_sub_u32 s27, 1, s27
        v_mul_i32_i24 v{vb+1}, s27, v{vb+1}
        s_cmp_eq_u32 s3, 0
        s_cselect_b32 s27, 0, 1024
        s_cmp_eq_u32 s3, 1
        s_cselect_b32 s27, 2048, s27
        v_add_u32 v{vb+1}, s27, v{vb+1}
        v_mul_u32_u24 v{vb+1}, 896, v{vb+1}
        v_and_b32 v{vb+2}, 7, v1
        v_min_u32 v{vb+2}, 6, v{vb+2}
        v_lshl_add_u32 v{vb+1}, v{vb+2}, 7, v{vb+1}
        buffer_load_dword v{vb+3}, v{vb+1}, s[{sX}:{sX+3}], 0 offen {fl}
        """)
    else:
        A(f"""
        s_cmp_ge_u32 s{S_XCD}, 4
        s_cselect_b32 s{sOUT}, s8, s6
        s_cselect_b32 s{sOUT+1}, s9, s7
        s_and_b32 s{sOUT+1}, s{sOUT+1}, 0xffff
        s_mov_b32 s{sOUT+2}, {2048*4096}
        s_mov_b32 s{sOUT+3}, 0x20000
        s_and_b32 s3, s{S_XCD}, 1
        s_lshl_b32 s3, s3, 5
        s_add_u32 s3, s3, s{S_J}
        s_lshl_b32 s3, s3, 4
        s_bfe_u32 s27, s{S_XCD}, 0x10001
        s_add_u32 s3, s3, s27
        s_lshl_b32 s3, s3, 12
        v_lshrrev_b32 v{vb}, 3, v1
        v_lshlrev_b32 v{vb}, 13, v{vb}
        v_and_b32 v{vb+1}, 7, v1
        v_lshl_add_u32 v{vb}, v{vb+1}, 7, v{vb}
        buffer_load_dword v{vb+2}, v{vb}, s[{sOUT}:{sOUT+3}], s3 offen {fl}
        """)


def gen(stamps=False, opt=None):
    opt = opt or {}
    HST = opt.get("hst", "sc1")
    HLD = opt.get("hld", "")
    TOUCH_AT = opt.get("touch_at", 2)
    HD = opt.get("hd", 12)
    VAT = opt.get("vat", 22)
    A = K(stamps)
    P2 = opt.get('p2', 0)
    P1 = opt.get('p1', 0)
    st1 = lambda i: None if (P2 or P1) else A.stamp(i)
    _stamp = A.stamp
    if opt.get('light'):
        P1 = 0
        A.stamp = lambda i: _stamp(i) if i == 0 else None
    if P1:
        A.stamp = lambda i: _stamp(i) if i == 0 else None
    st2 = lambda i: A.stamp(i) if P2 else None
    A.stamp(0)
    A("""
    s_load_dwordx16 s[4:19], s[0:1], 0
    s_load_dwordx4 s[20:23], s[0:1], 64
    s_load_dwordx2 s[24:25], s[0:1], 80
    s_cmp_ge_u32 s2, 256
    s_cbranch_scc1 L_end
    v_lshrrev_b32 v2, 6, v0
    v_and_b32 v1, 63, v0
    """)
    A(f"s_and_b32 s{S_XCD}, s2, 7\ns_lshr_b32 s{S_J}, s2, 3")
    A(f"v_readfirstlane_b32 s{S_W}, v2")
    A(f"s_cmp_ge_u32 s{S_J}, 28\ns_cbranch_scc1 L_dft")

    S_RB, S_FT, S_KX, S_KW, S_MX, S_MW, S_T, S_CT = 63, 96, 97, 98, 99, 100, 101, 26
    S_FTL, S_JX, S_TAG, S_PF = 14, 86, 58, 59
    S_M2, S_K2, S_G2, S_HF, S_PT = 56, 57, 95, 94, 58
    A(f"""
    s_mul_i32 s27, s{S_J}, 37
    s_lshr_b32 s27, s27, 8
    s_mul_i32 s3, s27, 7
    s_sub_u32 s{S_CT}, s{S_J}, s3
    s_and_b32 s{S_RB}, s{S_XCD}, 6
    s_lshl_b32 s{S_RB}, s{S_RB}, 1
    s_add_u32 s{S_RB}, s{S_RB}, s27
    s_lshl_b32 s27, s27, 1
    s_add_u32 s{S_G2}, s{S_CT}, s27
    """)
    mod7(A, S_G2, 3, 14)
    VD, XA, WA, ONES = 2, 8, 16, 20
    VW2, VEP = 6, 18
    FX = [24, 48]; FW = [40, 64]
    ACC, RS, CS = 72, 104, 108
    S_MD = 52
    sL = sW1
    A(f"""
    s_and_b32 s{S_JX}, s{S_XCD}, 1
    s_mul_i32 s3, s{S_JX}, 7
    s_add_u32 s{S_FT}, s{S_G2}, s3
    v_lshrrev_b32 v31, 4, v1
    s_movk_i32 s3, 0xe2
    s_bitcmp1_b32 s3, s{S_W}
    s_cbranch_scc1 L_ldw
    s_max_u32 s{S_KX}, s{S_W}, 1
    s_lshl_b32 s{S_KX}, s{S_KX}, 2
    s_mul_i32 s3, s{S_CT}, 37
    s_lshr_b32 s3, s3, 4
    s_add_u32 s{S_KX}, s{S_KX}, s3
    s_add_u32 s{S_KX}, s{S_KX}, 12
    v_lshrrev_b32 v30, 3, v1
    v_lshlrev_b32 v30, 1, v30
    v_and_b32 v32, 7, v1
    v_xor_b32 v32, v32, v31
    s_lshl_b32 s{S_KW}, s{S_RB}, 6
    """)
    for i in range(4):
        A(f"""
        s_add_u32 s{S_MD+i}, s{S_KX}, {i}
        s_and_b32 s{S_MD+i}, s{S_MD+i}, 15
        s_lshr_b32 s3, s{S_MD+i}, 3
        s_add_u32 s3, s3, s{S_KW}
        s_and_b32 s27, s{S_MD+i}, 3
        s_lshl_b32 s27, s27, 4
        s_add_u32 s3, s3, s27
        v_add_u32 v33, s3, v30
        v_sub_u32 v34, 2048, v33
        v_lshrrev_b32 v35, 11, v34
        v_lshlrev_b32 v35, 10, v35
        v_sub_u32 v34, v34, v35
        s_bitcmp1_b32 s{S_MD+i}, 2
        s_cselect_b64 vcc, -1, 0
        s_and_b32 s27, s{S_MD+i}, 1
        s_lshl_b32 s27, s27, 2
        v_cndmask_b32 v33, v33, v34, vcc
        v_xor_b32 v34, s27, v32
        v_mul_u32_u24 v33, 896, v33
        s_lshl_b32 s{S_MD+i}, s{S_MD+i}, 10
        v_lshl_add_u32 v{VD+i}, v34, 4, v33
        """)
    A(f"s_movk_i32 s{S_MX}, 128\ns_waitcnt lgkmcnt(0)")
    A.srd(sL, 4, 2048 * 896)
    A("s_branch L_ldok")
    A("L_ldw:")
    A(f"""
    s_max_u32 s{S_KX}, s{S_W}, 4
    s_add_u32 s{S_KX}, s{S_KX}, s{S_RB}
    s_lshl_b32 s{S_KX}, s{S_KX}, 2
    v_lshlrev_b32 v33, 1, v31
    v_and_b32 v34, 15, v1
    v_xor_b32 v33, v33, v34
    v_mul_u32_u24 v34, 3584, v31
    v_lshl_add_u32 v32, v33, 4, v34
    v_xor_b32 v33, 128, v32
    s_and_b32 s{S_MD}, s{S_KX}, 15
    s_mul_i32 s27, s{S_MD}, {4*3584}
    s_lshl_b32 s3, s{S_FT}, 8
    s_add_u32 s27, s27, s3
    v_add_u32 v{VD}, s27, v32
    v_add_u32 v{VD+2}, s27, v33
    v_add_u32 v{VD+1}, {4*3584}, v{VD}
    v_add_u32 v{VD+2}, {8*3584}, v{VD+2}
    v_add_u32 v{VD+3}, {4*3584}, v{VD+2}
    s_lshl_b32 s{S_MD}, s{S_MD}, 10
    s_add_u32 s{S_MD}, s{S_MD}, 16384
    s_add_u32 s{S_MD+1}, s{S_MD}, 1024
    s_add_u32 s{S_MD+2}, s{S_MD}, 2048
    s_add_u32 s{S_MD+3}, s{S_MD}, 3072
    s_mov_b32 s{S_MX}, {64*3584}
    s_waitcnt lgkmcnt(0)
    """)
    A.srd(sL, 16, 448 * 3584)
    A("L_ldok:")
    A.srd(sX, 4, 2048 * 896)

    def p1_dmas(st):
        slot = st % 5
        return [A.dma2(VD + i, sL, f"s{S_KX}", f"s_add_u32 m0, s{S_MD+i}, {slot*32768}", ("p1", st),
                       pre=None if i else f"s_mul_i32 s{S_KX}, s{S_MX}, {st}", flags=p1fl[0]) for i in range(4)]
    p1fl = [""]

    def burst(dmas):
        for a_, b_ in dmas:
            a_(); A("s_nop 0"); b_()

    def p1_setup():
        A.srd(sWS, 24, WS_SIZE + (0x40000 if stamps else 0))
        A(f"""
        s_mov_b32 s{S_FTL}, s{S_G2}
        s_lshl_b32 s{S_HF}, s{S_XCD}, 2
        s_and_b32 s3, s{S_RB}, 3
        s_add_u32 s{S_HF}, s{S_HF}, s3
        s_lshl_b32 s{S_HF}, s{S_HF}, 7
        s_add_u32 s{S_HF}, s{S_HF}, {WS_HFLAG}
        v_mov_b32 v35, {WS_EPOCH}
        """)
        A.vmem(f"buffer_load_dword v{VEP}, v35, s[{sWS}:{sWS+3}], 0 offen sc1", "ep")
        A(f"""
        v_and_b32 v32, 15, v1
        v_lshrrev_b32 v33, 1, v32
        v_xor_b32 v33, v33, v31
        v_lshlrev_b32 v33, 4, v33
        v_lshl_add_u32 v33, v32, 7, v33
        s_lshl_b32 s3, s{S_W}, 11
        v_add_u32 v{XA}, s3, v33
        """)
        for rb in range(1, 4):
            A(f"v_xor_b32 v{XA+rb}, {rb*2048}, v{XA}")
        for rb in range(4):
            A(f"v_xor_b32 v{XA+4+rb}, 64, v{XA+rb}")
        A(f"""
        v_bfe_u32 v30, v1, 2, 2
        v_lshl_add_u32 v32, v31, 3, v30
        v_lshlrev_b32 v32, 8, v32
        v_and_b32 v33, 3, v1
        v_lshl_add_u32 v32, v33, 3, v32
        v_add_u32 v32, 16384, v32
        v_and_b32 v33, 1, v31
        v_lshl_or_b32 v33, v33, 2, v30
        s_and_b32 s3, s{S_W}, 3
        s_lshl_b32 s3, s3, 1
        s_lshr_b32 s27, s{S_W}, 2
        s_or_b32 s3, s3, s27
        v_xor_b32 v33, s3, v33
        v_lshl_add_u32 v{WA}, v33, 5, v32
        v_xor_b32 v{WA+1}, 32, v{WA}
        """)
        for i in range(4):
            A(f"v_mov_b32 v{ONES+i}, 0x3f803f80")
        A.srd(sW2, 18, 1792 * 896)
        A(f"""
        s_lshl_b32 s{S_T}, s{S_RB}, 1
        s_add_u32 s{S_T}, s{S_T}, s{S_JX}
        v_lshrrev_b32 v30, 3, v1
        v_mul_u32_u24 v32, 896, v30
        v_and_b32 v30, 6, v30
        v_and_b32 v33, 7, v1
        v_xor_b32 v30, v30, v33
        v_lshl_add_u32 v32, v30, 4, v32
        s_lshl_b32 s3, s{S_CT}, 7
        s_mul_i32 s27, s{S_W}, {8*896}
        s_add_u32 s3, s3, s27
        v_add_u32 v{VW2}, s3, v32
        s_lshl_b32 s{S_M2}, s{S_W}, 10
        """)

    def wpair_addr(p):
        if p < 12:
            return 65536 + 8192 * p
        if p < 14:
            return 16384 + 8192 * (p - 12)
        return [32768, 40960, 0, 65536, 49152, 57344, 8192, 73728][p - 14]

    def w_dma(p):
        if p < 14:
            srd = sW2
            if p % 2 == 0:
                pre = (f"s_mul_i32 s{S_K2}, s{S_JX}, 7\ns_add_u32 s{S_K2}, s{S_K2}, s{S_G2}\ns_mul_i32 s{S_K2}, s{S_K2}, {128*896}\n"
                       f"s_add_u32 s{S_G2}, s{S_G2}, 1\ns_cmp_eq_u32 s{S_G2}, 7\ns_cselect_b32 s{S_G2}, 0, s{S_G2}")
            else:
                pre = f"s_add_u32 s{S_K2}, s{S_K2}, {64*896}"
        else:
            srd = sWD if p < 18 else sW1
            pre = f"s_mov_b32 s{S_K2}, {((p - 14) % 4)*64*896}"
        return A.dma2(VW2, srd, f"s{S_K2}", f"s_add_u32 m0, s{S_M2}, {wpair_addr(p)}", ("w", p), pre=pre)

    def place(dmas, g0, g1):
        r = []
        for k, (a_, b_) in enumerate(dmas):
            g = g0 + 1 + k * (g1 - g0) // len(dmas)
            r += [(g - 1, a_), (g, b_)]
        return r

    def p1_reads(st, q, buf):
        so = ((st % 5) & 1) * 32768
        r = []
        for rb in range(4):
            r.append(lambda rb=rb: A.lds(f"ds_read_b128 {v(FX[buf]+4*rb,4)}, v{XA + 4*q + rb} offset:{so}", ("f", st, q)))
        for cb in range(2):
            for h in range(2):
                r.append(lambda cb=cb, h=h: A.lds(f"ds_read_b64_tr_b16 {v(FW[buf]+4*cb+2*h,2)}, v{WA+cb} offset:{so + q*8192 + h*1024}", ("f", st, q)))
        return r

    def p1_mfma(buf, first):
        z = "0" if first else None
        r = [lambda: A.mfma(RS, ONES, FX[buf], z), lambda: A.mfma(CS, FW[buf], ONES, z)]
        for cb in range(2):
            for rb in range(4):
                r.append(lambda cb=cb, rb=rb: A.mfma(ACC + (cb * 4 + rb) * 4, FW[buf] + 4 * cb, FX[buf] + 4 * rb, z))
        return r

    def p1_addr_step(st):
        d = {2: 65536, 4: 65536, 5: -131072}.get(st)
        if not d:
            return []
        return [(8 + k // 5, lambda r=r: A(f"v_add_u32 v{r}, {d & 0xffffffff}, v{r}"))
                for k, r in enumerate(list(range(XA, XA + 8)) + [WA, WA + 1])]

    def lines(txt, g0, g1):
        ex = [x for x in txt.strip().split("\n") if x.strip()]
        return [(g0 + k * (g1 - g0) // len(ex), lambda x=x: A(x)) for k, x in enumerate(ex)]

    VID = 120
    WA2, WB, WC, VH, VO, VL, VZ = 8, 12, 112, 2, 4, 16, 7
    FW2 = [24, 40]
    AC2, HF, VF = 56, 128, 192
    p2_setup = f"""
    v_lshlrev_b32 v{VL}, 4, v1
    v_mov_b32 v{VZ}, 0
    v_lshrrev_b32 v124, 4, v1
    v_bfe_u32 v125, v1, 2, 2
    v_lshl_add_u32 v126, v124, 2, v125
    v_lshrrev_b32 v127, 1, v126
    v_and_b32 v127, 3, v127
    v_lshlrev_b32 v126, 7, v126
    v_and_b32 v125, 3, v1
    v_lshl_add_u32 v126, v125, 3, v126
    """ + "".join(f"""
    v_xor_b32 v125, {eb}, v127
    v_lshl_add_u32 v{WA2+eb}, v125, 5, v126
    v_add_u32 v{WB+eb}, 0x10000, v{WA2+eb}
    v_add_u32 v{WC+eb}, 0x20000, v{WA2+eb}""" for eb in range(4)) + f"""
    s_lshl_b32 s{S_K2+32}, s{S_T}, 2
    s_and_b32 s{S_K2+33}, s{S_W}, 3
    s_add_u32 s{S_K2+32}, s{S_K2+32}, s{S_K2+33}
    s_mul_i32 s{S_K2+34}, s{S_K2+32}, {H_STRIDE}
    v_add_u32 v{VH}, s{S_K2+34}, v{VL}
    s_xor_b32 s{S_K2+34}, s{S_K2+32}, 4
    s_mul_i32 s{S_K2+34}, s{S_K2+34}, {H_STRIDE}
    v_add_u32 v{VH+1}, s{S_K2+34}, v{VL}
    s_and_b32 s{S_K2+32}, s{S_K2+32}, 7
    s_lshl_b32 s{S_K2+32}, s{S_K2+32}, 12
    s_add_u32 s{S_K2+32}, s{S_K2+32}, 32768
    v_add_u32 v238, s{S_K2+32}, v{VL}
    v_xor_b32 v239, 16384, v238
    s_lshl_b32 s{S_K2+32}, s{S_RB}, 6
    s_add_u32 s{S_K2+32}, s{S_K2+32}, s{S_JX}
    s_and_b32 s{S_K2+33}, s{S_W}, 1
    s_lshl_b32 s{S_K2+33}, s{S_K2+33}, 5
    s_add_u32 s{S_K2+33}, s{S_K2+33}, s{S_K2+32}
    v_lshrrev_b32 v124, 3, v1
    v_lshl_add_u32 v125, v124, 1, s{S_K2+33}
    s_bfe_u32 s{S_K2+32}, s{S_W}, 0x10001
    s_lshl_b32 s{S_K2+33}, s{S_K2+32}, 11
    s_lshl_b32 s{S_K2+32}, s{S_K2+32}, 1
    s_sub_u32 s{S_K2+32}, 1, s{S_K2+32}
    v_mul_i32_i24 v125, s{S_K2+32}, v125
    v_add_u32 v125, s{S_K2+33}, v125
    s_mul_i32 s{S_K2+32}, s{S_K2+32}, {16*896}
    s_lshl_b32 s{S_K2+33}, s{S_CT}, 7
    v_mul_u32_u24 v126, 896, v125
    v_add_u32 v126, s{S_K2+32}, v126
    v_lshrrev_b32 v127, 11, v125
    v_lshlrev_b32 v127, 10, v127
    v_sub_u32 v125, v125, v127
    v_mul_u32_u24 v125, 896, v125
    v_and_b32 v127, 7, v1
    v_xor_b32 v127, v127, v124
    v_lshlrev_b32 v127, 4, v127
    v_add_u32 v127, s{S_K2+33}, v127
    v_add_u32 v{VO}, v125, v127
    v_add_u32 v{VO+1}, v126, v127
    """
    for k in range(3):
        p2_setup = p2_setup.replace(f"s{S_K2+32+k}", f"s{48+k}")
    WPRE = opt.get("wpre", 12)

    def phase1(cls):
        K0 = opt.get("k0", 2) if cls == 0 else opt.get("k1", 2)
        p1fl[0] = opt.get("shfl", "") if cls == 0 else ""
        if cls == 0:
            if opt.get("xt", 0) == 2:
                A(f"s_cmp_lg_u32 s{S_W}, 1\ns_cbranch_scc1 L_notouch0")
                start_touch(A, opt, "x", 124)
                A("L_notouch0:")
            for s_ in range(K0):
                burst(p1_dmas(s_))
            A(f"s_cmp_lg_u32 s{S_W}, 0\ns_cbranch_scc1 L_notouch")
            if opt.get("xt", 0) == 1:
                start_touch(A, opt, "x", 124)
            code_touch(A)
            A("L_notouch:")
            p1_setup()
        else:
            p1_setup()
            for s_ in range(K0):
                burst(p1_dmas(s_))
        A.wait(vm=("p1", 0))
        A("s_barrier")
        st1(2)
        if P1: _stamp(1)
        for f in p1_reads(0, 0, 0):
            f()
        queue = []
        for s_ in range(K0, 7):
            for i in range(4):
                first = max(0, 2 * (s_ - 5) + 1)
                if cls == 1:
                    first = max(first, 2 * s_ - opt.get("la1", 5) + i // 2)
                queue.append((first, lambda s_=s_, i=i: p1_dmas(s_)[i]))
        wn = WPRE
        for p in range(WPRE):
            queue.append((max(2 * (2 + p // 4) + 1, opt.get("w0", 8) + p // 2), lambda p=p: w_dma(p)))
        rate = (opt.get("r0", 4), 4)
        for st in range(7):
            for q in range(2):
                fl = []
                if q == 0:
                    A.wait(lg=("f", st, 0))
                    fl += list(enumerate(p1_reads(st, 1, 1))) + p1_addr_step(st + 1)
                else:
                    if st < 6:
                        if P1 == 2: _stamp(st + 2)
                        A.wait(vm=("p1", st + 1), lg=0)
                        if P1 == 3: _stamp(st + 2)
                        A("s_barrier")
                        if P1 == 1: _stamp(st + 2)
                        fl += list(enumerate(p1_reads(st + 1, 0, 0)))
                    else:
                        A.wait(lg=0)
                dm = []
                blk = 2 * st + q
                while queue and len(dm) < rate[cls] and queue[0][0] <= blk:
                    dm.append(queue.pop(0)[1]())
                if dm:
                    fl += place(dm, 1, 9)
                if (st, q) == (0, 1):
                    fl += lines(f"""
                    v_readfirstlane_b32 s{S_TAG}, v{VEP}
                    s_lshl_b32 s27, s{S_CT}, 2
                    v_mov_b32 v{VID+1}, s27
                    s_mul_i32 s{S_TAG}, s{S_TAG}, {TAGMUL}
                    s_add_u32 s{S_TAG}, s{S_TAG}, {TAGADD}
                    v_min_u32 v{VID+3}, 6, v1
                    v_lshlrev_b32 v{VID+3}, 2, v{VID+3}
                    """, 0, 8)
                    A.wait(vm="ep")
                if cls == 0 and opt.get("dum", 0) and 2 * st + q == opt.get("dumb", 0):
                    def dummy():
                        for s_ in range(5, 7):
                            A(f"s_mul_i32 s3, s{S_MX}, {s_}")
                            for i in range(4):
                                A.vmem(f"buffer_load_dwordx4 v[252:255], v{VD+i}, s[{sL}:{sL+3}], s3 offen")
                    fl.append((9, dummy))
                if cls == 0 and 2 * st + q == opt.get("wtb", 99):
                    def wt():
                        A(f"s_cmp_lg_u32 s{S_W}, 1\ns_cbranch_scc1 L_notouch3")
                        A(f"""
                        v_lshlrev_b32 v124, 7, v1
                        s_mul_i32 s3, s2, {56*128}
                        s_mov_b32 exec_hi, 0xffffff
                        buffer_load_dword v125, v124, s[{sW2}:{sW2+3}], s3 offen
                        s_mov_b64 exec, -1
                        """)
                        A("L_notouch3:")
                    fl.append((9, wt))
                if (st, q) == (6, 1):
                    fl += lines(f"""
                    v_and_b32 v30, 15, v1
                    v_lshlrev_b32 v30, 2, v30
                    s_lshl_b32 s3, s{S_W}, 6
                    v_add_u32 v30, s3, v30
                    v_lshrrev_b32 v31, 4, v1
                    v_lshlrev_b32 v31, 4, v31
                    s_and_b32 s27, s{S_W}, 3
                    s_lshl_b32 s27, s27, 7
                    s_lshr_b32 s3, s{S_W}, 2
                    s_lshl_b32 s3, s3, 6
                    s_add_u32 s27, s27, s3
                    v_add_u32 v31, s27, v31
                    v_xor_b32 v32, 64, v30
                    v_xor_b32 v33, 128, v30
                    v_xor_b32 v34, 192, v30
                    v_xor_b32 v35, 64, v31
                    """, 0, 8)
                    fl += lines(p2_setup, 0, 9)
                    fl.append((9, lambda: A.lds(f"ds_write_b32 v30, v{RS}")))
                    fl.append((9, lambda: A.lds(f"ds_write_b128 v31, {v(CS,4)} offset:512")))
                A.weave(p1_mfma(q, st == 0 and q == 0), fl)
        assert not queue, len(queue)
        return wn
    A(f"s_cmp_ge_u32 s{S_W}, 2\ns_cbranch_scc1 L_p1b")
    WN = phase1(0)
    A("s_branch L_p1done")
    A("L_p1b:")
    A.reset()
    phase1(1)
    A("L_p1done:")
    A.reset()
    st1(3)
    if P1: _stamp(8)
    A.wait(lg=0)
    A("s_barrier")
    if P1: _stamp(9)
    S_HS = S_MD

    def epilogue(wr):
        A.reset()
        MB = 24; CS1 = 28
        A.lds(f"ds_read_b32 v{MB+1}, v32")
        A.lds(f"ds_read_b32 v{MB+2}, v33")
        A.lds(f"ds_read_b32 v{MB+3}, v34")
        A.lds(f"ds_read_b128 {v(CS1,4)}, v35 offset:512")
        A(f"""
        s_lshl_b32 s{S_KX}, s{S_RB}, 3
        s_mul_i32 s{S_KX}, s{S_KX}, 56
        s_lshl_b32 s{S_KW}, s{S_FT}, 2
        s_add_u32 s{S_KX}, s{S_KX}, s{S_KW}
        s_and_b32 s27, s{S_W}, 3
        s_add_u32 s{S_KX}, s{S_KX}, s27
        s_lshl_b32 s{S_KX}, s{S_KX}, 10
        s_lshl_b32 s27, s27, 10
        s_add_u32 s27, s27, 32768
        v_add_u32 v34, s27, v{VL}
        s_mov_b32 s3, {0x3b124925}
        v_mul_f32 v{MB}, s3, v{RS}
        """)
        A.wait(lg=0)
        for i in range(1, 4):
            A(f"v_mul_f32 v{MB+i}, s3, v{MB+i}")
        A(f"v_cvt_pk_bf16_f32 v32, v{MB}, v{MB+1}\nv_cvt_pk_bf16_f32 v33, v{MB+2}, v{MB+3}")
        A(f"v_lshlrev_b32 v{MB}, 16, v32\nv_and_b32 v{MB+1}, 0xffff0000, v32\nv_lshlrev_b32 v{MB+2}, 16, v33\nv_and_b32 v{MB+3}, 0xffff0000, v33")
        PK = 36
        for rb in range(4):
            sel = "op_sel:[0,1,0] op_sel_hi:[1,1,1]" if rb & 1 else "op_sel_hi:[1,0,1]"
            d = PK + 4 * rb
            for cb in range(2):
                a0 = ACC + (cb * 4 + rb) * 4
                for hh in range(2):
                    A(f"v_pk_fma_f32 {v(a0+2*hh,2)}, {v((CS, CS1)[cb]+2*hh,2)}, {v(MB+(rb&2),2)}, {v(a0+2*hh,2)} {sel} neg_lo:[1,0,0] neg_hi:[1,0,0]")
            for cb in range(2):
                a0 = ACC + (cb * 4 + rb) * 4
                for hh in range(2):
                    A(f"v_cvt_pk_bf16_f32 v{d+2*(cb^wr)+hh}, v{a0+2*hh}, v{a0+2*hh+1}")
            for i in range(4):
                A(f"v_pk_max_i16 v{d+i}, v{d+i}, 0")
            A(f"s_xor_b32 s27, s{S_W}, {rb}\ns_mul_i32 s{S_MD+rb}, s27, {H_STRIDE}\ns_add_u32 s{S_MD+rb}, s{S_MD+rb}, s{S_KX}")
            A.vmem(f"buffer_store_dwordx4 {v(PK+4*rb,4)}, v{VL}, s[{sWS}:{sWS+3}], s{S_MD+rb} offen sc1", ("hst", rb))
            A(f"s_lshl_b32 s27, s27, 12\nv_add_u32 v35, s27, v34")
            A.lds(f"ds_write_b128 v35, {v(PK+4*rb,4)}")
        st1(4)
        if P1: _stamp(10)
        A.stamp(5)

    S_H, S_GH = S_KX, S_KW
    NAL = opt.get("nal", 24)
    B0 = 4 + NAL

    def w_reads(key, i, both=True):
        r = []
        for eb in range(4):
            for h in range(2):
                if i < 28:
                    a_ = wpair_addr(i >> 1) + (i & 1) * 4096
                    reg, off = (WA2, WB, WC)[a_ >> 16] + eb, (a_ & 0xffff) + h * 2048
                else:
                    u = i - 28
                    reg, off = ((WA2, u * 4096) if u < 4 else ((WB, WC)[(u - 4) >> 1], (u & 1) * 4096))
                    reg, off = reg + eb, off + h * 2048
                r.append(lambda reg=reg, off=off, eb=eb, h=h: A.lds(f"ds_read_b64_tr_b16 {v(FW2[key&1]+4*eb+2*h,2)}, v{reg} offset:{off}", ("wf", key, eb >> 1)))
        return r

    YS, ZS = 32768, 0
    XS = TS = 4096

    A(f"s_cmp_ge_u32 s{S_W}, 4\ns_cbranch_scc1 L_aux")
    epilogue(0)
    seq = [(i, (0, 1)) for i in range(4)] + [(i, (1,)) for i in range(4, B0)] + [(i, (0, 1)) for i in range(B0, 28)] + [(i, (0,)) for i in range(4, B0)]
    hl = [(n, tt) for n, (i, tts) in enumerate(seq) for tt in tts]
    NSL = opt.get("nsl", 16)
    slot = {k: HF + (idx % NSL) * 4 for idx, k in enumerate(hl)}
    state_h = dict(next=8, grp=None)

    def h_next():
        idx = state_h["next"]
        if idx >= len(hl):
            return
        state_h["next"] += 1
        n, tt = hl[idx]
        i = seq[n][0]
        if state_h["grp"] != i // 4 and not (opt.get("hfix") and state_h["grp"]):
            state_h["grp"] = i // 4
            A(f"s_add_u32 s{S_H}, s{S_FTL}, {i // 4}\ns_cmp_ge_u32 s{S_H}, 7\ns_cselect_b32 s3, 7, 0\ns_sub_u32 s{S_H}, s{S_H}, s3")
            A(f"s_add_u32 s{S_H}, s{S_H}, s{S_GH}\ns_lshl_b32 s{S_H}, s{S_H}, 12")
        A.vmem(f"buffer_load_dwordx4 {v(slot[(n, tt)], 4)}, v{VH+tt}, s[{sWS}:{sWS+3}], s{S_H} offen offset:{(i%4)*1024} {HLD}", ("h", n, tt))

    def step(n, extra=()):
        i, tts = seq[n]
        nm = 4 * len(tts)
        fl = list(extra)
        if n + 1 < len(seq):
            fl += [(k * nm // 8, f) for k, f in enumerate(w_reads(n + 1, seq[n + 1][0]))]
        if n >= 1:
            fl += [(1 + 4 * k, h_next) for k in range(len(seq[n - 1][1]))]
        mf = []
        for eb in range(4):
            for tt in tts:
                def f(eb=eb, tt=tt):
                    if eb % 2 == 0 and tt == tts[0]:
                        A.wait(vm=("h", n, tts[-1]) if eb == 0 and n >= 4 else None, lg=("wf", n, eb >> 1))
                    A.mfma(AC2 + (tt * 4 + eb) * 4, FW2[n & 1] + 4 * eb, slot[(n, tt)], "0" if n == 0 else None)
                mf.append(f)
        A.weave(mf, fl)

    PR, XU = 192, 208
    fin = f"""
    v_and_b32 v20, 15, v1
    v_lshrrev_b32 v21, 4, v1
    v_lshrrev_b32 v22, 1, v21
    v_and_b32 v23, 7, v20
    v_xor_b32 v22, v22, v23
    v_lshlrev_b32 v22, 4, v22
    v_lshl_add_u32 v22, v20, 7, v22
    v_and_b32 v21, 1, v21
    v_lshl_add_u32 v22, v21, 3, v22
    s_lshl_b32 s27, s{S_W}, 11
    s_add_u32 s27, s27, {TS}
    v_add_u32 v232, s27, v22
    v_add_u32 v23, s27, v{VL}
    v_xor_b32 v233, 32, v232
    v_xor_b32 v234, 64, v232
    v_xor_b32 v235, 96, v232
    ds_read_b64 v[224:225], v232
    ds_read_b64 v[226:227], v233
    ds_read_b64 v[228:229], v234
    ds_read_b64 v[230:231], v235
    s_lshl_b32 s27, s{S_W}, 6
    s_add_u32 s27, s27, {YS + 20480}
    v_lshl_add_u32 v20, v20, 2, s27
    s_and_b32 s27, s{S_W}, 1
    s_lshl_b32 s27, s27, 12
    s_add_u32 s27, s27, {YS}
    v_add_u32 v19, s27, v{VL}
    s_xor_b32 s{S_MW}, s{S_W}, 2
    s_or_b32 s{S_MW}, s{S_MW}, s{S_T}
    s_sub_u32 s{S_MW}, s{S_MW}, 1
    s_lshr_b32 s{S_MW}, s{S_MW}, 31
    s_lshl_b32 s{S_MW}, s{S_MW}, 14
    v_add_u32 v18, s{S_MW}, v19
    s_lshl_b32 s27, s{S_W}, 30
    s_and_b32 s27, s27, 0x80000000
    s_or_b32 s27, s27, 1.0
    v_mov_b32 v237, s27
    s_xor_b32 s{S_FT}, s{S_MX}, 16384
    s_and_b32 s{S_G2}, s{S_PT}, 0xff
    s_mul_i32 s{S_G2}, s{S_G2}, 0x01010101
    """.strip().split("\n")
    fin = [x.strip() for x in fin]
    unp = [f"v_lshlrev_b32 v{XU+2*k}, 16, v{224+k}" if b_ == 0 else f"v_and_b32 v{XU+2*k+1}, 0xffff0000, v{224+k}" for k in range(8) for b_ in range(2)]

    def p_loads(track):
        for eb in range(4):
            t_ = f"buffer_load_dwordx4 {v(PR+4*eb,4)}, v{VL}, s[{sWS}:{sWS+3}], s{S_FT} offen offset:{eb*1024} sc1"
            A.vmem(t_, "part") if track else A(t_)
    A(f"s_lshl_b32 s3, s2, 14\ns_lshl_b32 s27, s{S_W}, 12\ns_add_u32 s3, s3, s27\ns_add_u32 s{S_MX}, s3, {WS_PART}")
    A.srd(sOUT, 20, 2048 * 896)
    A(f"s_lshl_b32 s{S_H}, s{S_W}, 11")
    for ps in range(2):
        A.dma(VO + ps, sX, "0", f"s_add_u32 m0, s{S_H}, {XS + ps*1024}", "xr")
    A.wait(vm=0, lg=0)
    burst([w_dma(p) for p in range(WN, 14)])
    A("s_barrier")
    A.stamp(7)
    for x in fin:
        A.lds(x) if x.startswith("ds_") else A(x)
    for n in range(4):
        for tt in range(2):
            A.lds(f"ds_read_b128 {v(slot[(n, tt)],4)}, v{238+tt} offset:{n*1024}")
    A.wait(lg=0)
    for x in unp:
        A(x)
    A(f"s_mul_i32 s{S_GH}, s{S_JX}, 7")
    A.wait(vm=0)
    A("s_barrier")
    if not P2: A.stamp(1)
    for k in range(NSL - 8):
        h_next()
    for f in w_reads(0, 0):
        f()
    if opt.get("prio", 1):
        A(f"s_setprio {opt.get('prio', 1)}")
    for n in range(len(seq)):
        ex = []
        if n == opt.get("m2n", -1):
            A("s_barrier")
        if n == 28:
            A.stamp(8)
            A(f"""
            s_and_b32 s27, s{S_PT}, 0xff
            v_mov_b32 v236, s27
            s_movk_i32 s27, 0xff
            s_nop 4
            """)
            for eb in range(4):
                for r in range(4):
                    A(f"v_bfi_b32 v{AC2+16+4*eb+r}, s27, v236, v{AC2+16+4*eb+r}")
                A.vmem(f"buffer_store_dwordx4 {v(AC2+16+4*eb,4)}, v{VL}, s[{sWS}:{sWS+3}], s{S_MX} offen offset:{eb*1024} sc1", "pst")
        if n == len(seq) - opt.get("pat", 4):
            ex.append((3, lambda: p_loads(True)))
        step(n, ex)
    A.stamp(9)
    A(f"s_mov_b32 s27, 0x0c0c0400\ns_mov_b32 s{S_KX}, 0x40000")
    A("L_pchk:")
    A("s_waitcnt vmcnt(0)")
    for k in range(8):
        A(f"v_perm_b32 v{24+k}, v{PR+2*k+1}, v{PR+2*k}, s27")
    for k in range(4):
        A(f"v_lshl_or_b32 v{24+2*k}, v{25+2*k}, 16, v{24+2*k}")
    for k in range(4):
        A(f"v_xor_b32 v{24+2*k}, s{S_G2}, v{24+2*k}")
    A("v_or3_b32 v24, v24, v26, v28\nv_or_b32 v24, v24, v30\nv_cmp_eq_u32 vcc, 0, v24\ns_nop 1\ns_cmp_eq_u64 vcc, exec\ns_cbranch_scc1 L_pok")
    p_loads(False)
    A(f"s_sub_u32 s{S_KX}, s{S_KX}, 1\ns_cbranch_scc0 L_pchk")
    A("L_pok:")
    for r in range(16):
        A(f"v_and_b32 v{PR+r}, 0xffffff00, v{PR+r}")
    for r in range(16):
        A(f"v_add_f32 v{AC2+r}, v{AC2+r}, v{PR+r}")
    if P2: A.stamp(2)
    A("s_barrier")
    A.stamp(10)
    YP = HF
    A(f"ds_read_b32 v236, v20")
    for eb in range(4):
        A(f"ds_read_b128 {v(YP+4*eb,4)}, v18 offset:{eb*1024}")
    for eb in range(4):
        A(f"ds_read_b128 {v(YP+16+4*eb,4)}, v19 offset:{8192 + eb*1024}")
    A("s_waitcnt lgkmcnt(8)")
    for eb in range(4):
        for hh in range(2):
            A(f"v_pk_fma_f32 {v(XU+4*eb+2*hh,2)}, {v(AC2+4*eb+2*hh,2)}, v[236:237], {v(XU+4*eb+2*hh,2)} op_sel_hi:[1,0,1]")
    A("s_waitcnt lgkmcnt(4)")
    for eb in range(4):
        for hh in range(2):
            A(f"v_pk_add_f32 {v(XU+4*eb+2*hh,2)}, {v(XU+4*eb+2*hh,2)}, {v(YP+4*eb+2*hh,2)}")
    A("s_waitcnt lgkmcnt(0)")
    for eb in range(4):
        for hh in range(2):
            A(f"v_pk_fma_f32 {v(XU+4*eb+2*hh,2)}, {v(YP+16+4*eb+2*hh,2)}, v[236:237], {v(XU+4*eb+2*hh,2)} op_sel:[0,1,0] op_sel_hi:[1,1,1]")
        A(f"v_cvt_pk_bf16_f32 v{28+2*eb}, v{XU+4*eb}, v{XU+4*eb+1}\nv_cvt_pk_bf16_f32 v{29+2*eb}, v{XU+4*eb+2}, v{XU+4*eb+3}")
        A(f"ds_write_b64 v{232+eb}, {v(28+2*eb,2)}")
    A("s_waitcnt lgkmcnt(0)")
    A("ds_read_b128 v[36:39], v23\nds_read_b128 v[40:43], v23 offset:1024")
    A("s_waitcnt lgkmcnt(1)")
    A(f"buffer_store_dwordx4 v[36:39], v{VO}, s[{sOUT}:{sOUT+3}], 0 offen {opt.get('ofl', '')}")
    A("s_waitcnt lgkmcnt(0)")
    A(f"buffer_store_dwordx4 v[40:43], v{VO+1}, s[{sOUT}:{sOUT+3}], 0 offen {opt.get('ofl', '')}")
    A.dump_stamps(11)
    A("s_endpgm")

    A("L_aux:")
    epilogue(1)
    RSD, VPOLL, VT, YB, YA, V2, VF, WF = 20, 22, 19, 32, 48, 64, 96, 128
    PR, XU = VF, V2
    DF, EF, TA = 24, 8, opt.get('ta', 32)
    S_PA = S_MX
    A(f"""
    s_and_b32 s{S_GH}, s{S_W}, 3
    v_and_b32 v14, 15, v1
    s_lshl_b32 s3, s{S_CT}, 6
    v_add_u32 v{EF}, s3, v14
    v_cvt_f32_u32 v{EF}, v{EF}
    v_lshrrev_b32 v15, 4, v1
    v_lshlrev_b32 v{DF}, 2, v15
    v_cvt_f32_u32 v{DF}, v{DF}
    s_mov_b32 s3, 0x41800000
    v_add_f32 v{EF+1}, s3, v{EF}
    v_add_f32 v{EF+2}, s3, v{EF+1}
    v_add_f32 v{EF+3}, s3, v{EF+2}
    v_add_f32 v{DF+1}, 1.0, v{DF}
    v_add_f32 v{DF+2}, 2.0, v{DF}
    v_add_f32 v{DF+3}, 2.0, v{DF+1}
    v_add_f32 v{DF+4}, s3, v{DF}
    v_add_f32 v{DF+5}, s3, v{DF+1}
    v_add_f32 v{DF+6}, s3, v{DF+2}
    v_add_f32 v{DF+7}, s3, v{DF+3}
    s_mov_b32 s3, {0x3b124925}
    v_mul_f32 v{EF}, s3, v{EF}
    v_mul_f32 v{EF+1}, s3, v{EF+1}
    v_mul_f32 v{EF+2}, s3, v{EF+2}
    v_mul_f32 v{EF+3}, s3, v{EF+3}
    s_bitcmp1_b32 s{S_W}, 1
    s_cselect_b32 s3, 0x3e800000, 0
    v_mov_b32 v{EF+4}, s3
    v_mov_b32 v{EF+5}, 0x42000000
    """)
    gen_ops = []
    CA_, CB_, KK = 64, 72, 80
    for eb in range(4):
        gen_ops.append(f"v_mul_f32 v{KK}, v{EF+5}, v{EF+eb}")
        gen_ops += [f"v_fma_f32 v{CA_+i}, v{DF+i}, v{EF+eb}, v{EF+4}" for i in range(8)]
        gen_ops += [f"v_add_f32 v{CB_+i}, v{KK}, v{CA_+i}" for i in range(8)]
        gen_ops.append(f"v_cos_f32 v{KK}, v{KK}")
        gen_ops += [f"v_cos_f32 v{CA_+i}, v{CA_+i}" for i in range(16)]
        gen_ops.append(f"v_add_f32 v{KK}, v{KK}, v{KK}")
        for u in range(8):
            cur = (CA_, CB_)[u & 1]
            if u >= 2:
                gen_ops += [f"v_fma_f32 v{cur+i}, v{KK}, v{(CB_, CA_)[u & 1]+i}, -v{cur+i}" for i in range(8)]
            gen_ops += [f"v_cvt_pk_bf16_f32 v{WF+16*u+4*eb+i}, v{cur+2*i}, v{cur+2*i+1}" for i in range(4)]

    def wgen(n):
        for x in gen_ops[:16 * n]:
            A(x)
        del gen_ops[:16 * n]
    wgen(opt.get("g1", 16))
    A.wait(vm=0, lg=0)
    burst([w_dma(p) for p in range(WN, 14)])
    A("s_barrier")
    A(f"s_cmp_lg_u32 s{S_W}, 7\ns_cbranch_scc1 L_nopub")
    A(f"v_mov_b32 v18, s{S_TAG}\ns_mov_b64 exec, 1")
    A(f"buffer_store_dword v18, v{VID+1}, s[{sWS}:{sWS+3}], s{S_HF} offen offset:16 sc1")
    A("s_mov_b64 exec, -1")
    A("L_nopub:")
    A.stamp(7)
    wgen(opt.get("g2", 14))
    A(f"s_cmp_lg_u32 s{S_W}, 7\ns_cbranch_scc1 L_nopoll")
    A(f"s_add_u32 s3, s{S_HF}, 16")
    A.poll(VID + 3, sWS, "s3", "eq", 64, S_TAG, vtmp=19)
    A("L_nopoll:")
    A.wait(vm=0)
    A("s_barrier")
    if not P2: A.stamp(1)
    wgen(32)
    A(f"""
    s_lshl_b32 s3, s{S_RB}, 6
    s_add_u32 s3, s3, s{S_JX}
    s_and_b32 s27, s{S_W}, 1
    s_lshl_b32 s27, s27, 5
    s_add_u32 s27, s27, s3
    v_lshl_add_u32 v{RSD+1}, v14, 1, s27
    s_bitcmp1_b32 s{S_W}, 1
    s_cselect_b32 s3, -1, 1
    s_cselect_b32 s27, 2048, 0
    v_mul_i32_i24 v{RSD+1}, s3, v{RSD+1}
    v_add_u32 v{RSD+1}, s27, v{RSD+1}
    v_lshrrev_b32 v{RSD}, 11, v{RSD+1}
    v_lshlrev_b32 v{RSD}, 10, v{RSD}
    v_sub_u32 v{RSD+1}, v{RSD+1}, v{RSD}
    v_lshlrev_b32 v{RSD+1}, 2, v{RSD+1}
    v_add_u32 v{RSD+1}, {WS_RSTD}, v{RSD+1}
    s_lshl_b32 s3, s{S_T}, 1
    s_and_b32 s27, s{S_W}, 1
    s_add_u32 s3, s3, s27
    s_lshl_b32 s{S_FT}, s3, 14
    s_lshr_b32 s27, s{S_GH}, 1
    s_lshl_b32 s3, s27, 13
    s_add_u32 s{S_FT}, s{S_FT}, s3
    s_add_u32 s{S_FT}, s{S_FT}, {WS_VV}
    s_cmp_eq_u32 s{S_GH}, 0
    s_cselect_b32 s{S_MW}, {WS_VV + 64*16384}, s{S_FT}
    s_lshl_b32 s3, s{S_GH}, 12
    s_add_u32 s27, s3, {YS}
    v_add_u32 v28, s27, v{VL}
    s_lshl_b32 s3, s{S_GH}, 6
    s_add_u32 s3, s3, {YS + 20480}
    v_lshl_add_u32 v30, v14, 2, s3
    """)
    A.stamp(8)
    A(f"""
    s_and_b32 s3, s{S_GH}, 2
    s_add_u32 s3, s3, s{S_JX}
    s_lshl_b32 s3, s3, 2
    s_lshr_b32 s27, s{S_T}, 3
    s_add_u32 s3, s3, s27
    s_lshl_b32 s3, s3, 7
    s_add_u32 s3, s3, {WS_VFLAG}
    v_and_b32 v{VPOLL+1}, 1, v1
    v_lshlrev_b32 v{VPOLL+1}, 2, v{VPOLL+1}
    """)
    if opt.get("m2n", -1) >= 0:
        A("s_barrier")
    A.poll(VPOLL + 1, sWS, "s3", "eq", 64, S_TAG, vtmp=VPOLL, sleep=opt.get("vps", 4))
    A.stamp(9)
    A.reset()
    A.vmem(f"buffer_load_dword v{RSD}, v{RSD+1}, s[{sWS}:{sWS+3}], 0 offen {HLD}", "rstd")
    for u in range(8):
        if u % 4 == 0:
            A(f"s_add_u32 s27, s{S_FT}, {u*1024}")
        A.vmem(f"buffer_load_dwordx4 {v(VF+4*u,4)}, v{VL}, s[{sWS}:{sWS+3}], s27 offen offset:{(u%4)*1024} {HLD}", ("v", u))

    A(f"s_cmp_eq_u32 s{S_T}, 0\ns_cbranch_scc1 L_vspecial")

    def vpart(special):
        if special:
            for u in range(8):
                if u % 4 == 0:
                    A(f"s_add_u32 s27, s{S_MW}, {u*1024}")
                A.vmem(f"buffer_load_dwordx4 {v(V2+4*u,4)}, v{VL}, s[{sWS}:{sWS+3}], s27 offen offset:{(u%4)*1024} {HLD}", ("v2", u))
        for u in range(8):
            A.wait(vm=("v", u))
            for eb in range(4):
                A.mfma(YA + eb * 4, WF + 16 * u + 4 * eb, VF + 4 * u, "0" if u == 0 else None)
        if special:
            for u in range(8):
                A.wait(vm=("v2", u))
                for eb in range(4):
                    A.mfma(YB + eb * 4, WF + 16 * u + 4 * eb, V2 + 4 * u, "0" if u == 0 else None)
        A(f"ds_write_b32 v30, v{RSD}")
        A(f"s_nop {opt.get('yn', 6)}")
        for eb in range(4):
            A(f"ds_write_b128 v28, {v(YA+4*eb,4)} offset:{eb*1024}")
        if special:
            L = A.label("L_nopm")
            A(f"s_cmp_lg_u32 s{S_W}, 4\ns_cbranch_scc1 {L}")
            A("s_mov_b32 s26, 0x00010001\ns_mov_b32 s27, 0x00010001")
            for r in range(16):
                A(f"v_cndmask_b32 v{YB+r}, v{YA+r}, v{YB+r}, s[26:27]")
            for eb in range(4):
                A(f"ds_write_b128 v28, {v(YB+4*eb,4)} offset:{16384 + eb*1024}")
            A(f"{L}:")
    sv = (list(A.vm), A.vm_done, list(A.lg), A.lg_done)
    vpart(False)
    A("s_branch L_vdone")
    A("L_vspecial:")
    A.vm, A.vm_done, A.lg, A.lg_done = sv
    vpart(True)
    A("L_vdone:")
    A("s_waitcnt lgkmcnt(0)")
    A.stamp(10)
    A("s_barrier")
    A.dump_stamps(11)
    A("s_endpgm")

    A.reset()
    A("L_dft:")
    S_Q, S_VAR, S_M, S_N, S_P = 63, 96, 97, 98, 99
    A(f"""
    s_sub_u32 s3, s{S_J}, 28
    s_lshl_b32 s{S_Q}, s{S_XCD}, 2
    s_add_u32 s{S_Q}, s{S_Q}, s3
    s_lshr_b32 s{S_VAR}, s{S_XCD}, 1
    s_mov_b32 s{S_M}, s3
    s_and_b32 s{S_N}, s{S_XCD}, 1
    s_and_b32 s{S_P}, s{S_VAR}, 1
    """)
    def wtouch(ptr):
        A.srd(sW1, ptr, 448 * 3584)
        A(f"v_lshlrev_b32 v210, 7, v1\ns_lshl_b32 s3, s{S_Q}, 13\ns_lshl_b32 s27, s{S_W}, 18\ns_add_u32 s3, s3, s27\nv_add_u32 v210, s3, v210")
        A.vmem(f"buffer_load_dword v211, v210, s[{sW1}:{sW1+3}], 0 offen")

    RAW, EO, TF, TM, ST = 32, 64, 128, 136, 144
    A(f"""
    s_lshl_b32 s3, s{S_Q}, 4
    s_lshl_b32 s27, s{S_W}, 1
    s_add_u32 s3, s3, s27
    v_lshrrev_b32 v2, 5, v1
    v_add_u32 v4, s3, v2
    v_and_b32 v3, 31, v1
    v_sub_u32 v5, 2048, v4
    v_sub_u32 v6, 1024, v4
    v_add_u32 v7, 1024, v4
    v_cmp_eq_u32 s[100:101], 0, v4
    v_mov_b32 v8, 512
    v_mov_b32 v9, 1536
    v_mov_b32 v12, {OOB}
    v_cndmask_b32 v5, v5, v8, s[100:101]
    v_cndmask_b32 v7, v7, v9, s[100:101]
    v_cmp_gt_u32 vcc, 28, v3
    v_lshlrev_b32 v8, 4, v3
    v_sub_u32 v9, 880, v8
    v_cndmask_b32 v8, v12, v8, vcc
    v_cndmask_b32 v9, v12, v9, vcc
    s_waitcnt lgkmcnt(0)
    """)
    A.srd(sX, 4, 2048 * 896)
    for rho in range(4):
        A(f"v_mul_u32_u24 v13, 896, v{4+rho}\nv_add_u32 v14, v13, v8\nv_add_u32 v15, v13, v9")
        for fm in range(2):
            A.vmem(f"buffer_load_dwordx4 {v(RAW + rho*8 + 4*fm, 4)}, v{14+fm}, s[{sX}:{sX+3}], 0 offen", ("x", rho))
    A.srd(sWS, 24, WS_SIZE + (0x40000 if stamps else 0))
    if opt.get("t1", 1):
        wtouch(16)
    A(f"v_mov_b32 v190, {WS_EPOCH}")
    A.vmem(f"buffer_load_dword v191, v190, s[{sWS}:{sWS+3}], 0 offen sc1", "ep")
    A(f"s_cmp_lg_u32 s{S_W}, 7\ns_cbranch_scc1 L_dnotouch")
    if opt.get("xt", 0):
        start_touch(A, opt, "x", 200)
    code_touch(A, 208)
    A("L_dnotouch:")

    S_R = 14
    GA, GT = 160, 168
    A(f"""
    s_lshl_b32 s3, s{S_M}, 7
    s_lshl_b32 s27, s{S_W}, 4
    s_add_u32 s3, s3, s27
    s_lshl_b32 s3, s3, 1
    s_add_u32 s3, s3, s{S_P}
    v_and_b32 v13, 15, v1
    v_lshl_add_u32 v13, v13, 1, s3
    v_cvt_f32_u32 v13, v13
    v_mul_f32 v13, 0x3a000000, v13
    v_lshrrev_b32 v14, 4, v1
    v_lshlrev_b32 v14, 3, v14
    v_cvt_f32_u32 v14, v14
    s_cmp_ge_u32 s{S_VAR}, 2
    s_cselect_b32 s3, 0x3e800000, 0
    v_fma_f32 v{GA}, v13, v14, s3
    v_mul_f32 v14, 0x42000000, v13
    v_lshlrev_b32 v16, 4, v1
    s_lshl_b32 s3, s{S_W}, 10
    v_add_u32 v16, s3, v16
    v_add_u32 v17, 0x10000, v16
    """)
    for i in range(1, 8):
        A(f"v_add_f32 v{GA+i}, v13, v{GA+i-1}")
    for i in range(8):
        A(f"v_add_f32 v{GT+i}, v14, v{GA+i}")
    A("v_cos_f32 v14, v14")
    for i in range(16):
        A(f"v_cos_f32 v{GA+i}, v{GA+i}")
    A("v_add_f32 v14, v14, v14")
    A("v_mov_b32 v184, v14\nv_mov_b32 v186, v16\nv_mov_b32 v187, v17")
    cg = [0]

    def cgen(n):
        for sb in range(cg[0], min(16, cg[0] + n)):
            cur, oth = (GA, GT) if sb % 2 == 0 else (GT, GA)
            if sb >= 2:
                for i in range(4):
                    A(f"v_pk_fma_f32 {v(cur+2*i,2)}, {v(oth+2*i,2)}, v[184:185], {v(cur+2*i,2)} op_sel_hi:[1,0,1] neg_lo:[0,0,1] neg_hi:[0,0,1]")
            d = GT + 8 + 4 * (sb & 1)
            for i in range(4):
                A(f"v_cvt_pk_bf16_f32 v{d+i}, v{cur+2*i}, v{cur+2*i+1}")
            A.lds(f"ds_write_b128 v{186 + sb//8}, {v(d,4)} offset:{(sb%8)*8192}")
        cg[0] = min(16, cg[0] + n)
    cgen(opt.get("c0", 6))
    A.stamp(1)
    A(f"""
    v_cmp_eq_u32 s[26:27], 0, v3
    v_cndmask_b32 v21, 0, 2.0, vcc
    v_cmp_eq_u32 vcc, 28, v3
    v_mov_b32 v24, 0
    v_cndmask_b32 v20, v21, 1.0, s[26:27]
    v_mov_b32 v25, 0
    v_cndmask_b32 v20, v20, 1.0, vcc
    v_mov_b32 v26, 0
    v_mov_b32 v27, 0
    """)
    E = lambda rho: EO + rho * 16
    O = lambda rho: EO + rho * 16 + 8
    for rho in range(4):
        A.wait(vm=("x", rho))
        if rho == opt.get("t2", 3):
            wtouch(18)
        F = RAW + rho * 8
        M = F + 4
        A(f"v_mov_b32_dpp v{24+rho}, v{M} row_bcast:15 row_mask:0xa bank_mask:0xf")
        for i in range(4):
            A(f"v_lshlrev_b32 v{TF+2*i}, 16, v{F+i}\nv_and_b32 v{TF+2*i+1}, 0xffff0000, v{F+i}")
        A(f"v_mov_b32_dpp v{24+rho}, v{M} row_shr:1 row_mask:0xf bank_mask:0xf")
        for j in range(1, 8):
            k = 8 - j
            if k & 1:
                A(f"v_and_b32 v{TM+j}, 0xffff0000, v{M + k//2}")
            else:
                A(f"v_lshlrev_b32 v{TM+j}, 16, v{M + k//2}")
        A(f"v_lshlrev_b32 v{TM}, 16, v{24+rho}")
        for i in range(4):
            A(f"v_pk_add_f32 {v(E(rho)+2*i,2)}, {v(TF+2*i,2)}, {v(TM+2*i,2)}")
            A(f"v_pk_add_f32 {v(O(rho)+2*i,2)}, {v(TF+2*i,2)}, {v(TM+2*i,2)} neg_lo:[0,1] neg_hi:[0,1]")
        sm, sq = ST + 4 * rho, ST + 4 * rho + 2
        for i in range(4):
            if i == 0:
                A(f"v_pk_add_f32 {v(sm,2)}, {v(E(rho),2)}, {v(E(rho)+2,2)}")
                A(f"v_pk_mul_f32 {v(sq,2)}, {v(E(rho),2)}, {v(E(rho),2)}")
            else:
                if i > 1:
                    A(f"v_pk_add_f32 {v(sm,2)}, {v(sm,2)}, {v(E(rho)+2*i,2)}")
                A(f"v_pk_fma_f32 {v(sq,2)}, {v(E(rho)+2*i,2)}, {v(E(rho)+2*i,2)}, {v(sq,2)}")
            A(f"v_pk_fma_f32 {v(sq,2)}, {v(O(rho)+2*i,2)}, {v(O(rho)+2*i,2)}, {v(sq,2)}")
    A.stamp(2)
    for rho in range(4):
        A(f"v_add_f32 v{ST+4*rho}, v{ST+4*rho}, v{ST+4*rho+1}\nv_add_f32 v{ST+4*rho+2}, v{ST+4*rho+2}, v{ST+4*rho+3}")
    for i in range(4):
        A(f"v_permlane16_swap_b32 v{ST+2*i}, v{ST+8+2*i}")
    for i in range(4):
        A(f"v_add_f32 v{ST+2*i}, v{ST+2*i}, v{ST+8+2*i}")
    for sh in (8, 4, 2, 1):
        for i in range(4):
            r = ST + 2 * i
            A(f"v_add_f32_dpp v{r}, v{r}, v{r} row_ror:{sh} row_mask:0xf bank_mask:0xf")
    R_, C_ = 24, 28
    A(f"s_mov_b32 s3, {0x3b124925}\ns_mov_b32 s26, {0x3a924925}\ns_mov_b32 s27, {0x3727c5ac}")
    seq_ = [
        lambda b: f"v_mul_f32 v{b}, s3, v{b}\nv_mul_f32 v{b+2}, s26, v{b+2}",
        lambda b: f"v_fma_f32 v{b+2}, -v{b}, v{b}, v{b+2}",
        lambda b: f"v_max_f32 v{b+2}, 0, v{b+2}",
        lambda b: f"v_cvt_pk_bf16_f32 v{b+1}, v{b}, v{b+2}",
        lambda b: f"v_lshlrev_b32 v{b}, 16, v{b+1}\nv_and_b32 v{b+2}, 0xffff0000, v{b+1}",
        lambda b: f"v_add_f32 v{b+2}, s27, v{b+2}",
        lambda b: f"v_cvt_pk_bf16_f32 v{b+2}, v{b+2}, v{b+2}",
        lambda b: f"v_and_b32 v{b+2}, 0xffff0000, v{b+2}",
        lambda b: f"v_sqrt_f32 v{b+2}, v{b+2}",
        lambda b: f"s_nop 0\nv_cvt_pk_bf16_f32 v{b+2}, v{b+2}, v{b+2}",
        lambda b: f"v_and_b32 v{b+2}, 0xffff0000, v{b+2}",
    ]
    for f in seq_:
        for rho in range(2):
            A(f(ST + 4 * rho))
    for rho in range(2):
        A(f"v_rcp_f32 v{R_+rho}, v{ST+4*rho+2}")
    A("s_nop 0")
    for rho in range(2):
        A(f"v_mul_f32 v{C_+rho}, v{ST+4*rho}, v{R_+rho}")
    for r in (R_, R_ + 1, C_, C_ + 1):
        A(f"v_mov_b32 v{r+2}, v{r}")
    A("s_nop 0")
    for r in (R_, R_ + 1, C_, C_ + 1):
        A(f"v_permlane16_swap_b32 v{r}, v{r+2}")
    A(f"""
    v_cmp_eq_u32 vcc, 1, v3
    v_cmp_eq_u32 s[26:27], 2, v3
    v_mov_b32 v8, v4
    v_mov_b32 v9, v{R_}
    v_cndmask_b32 v8, v8, v5, vcc
    v_cndmask_b32 v9, v9, v{R_+1}, vcc
    v_cmp_eq_u32 vcc, 3, v3
    v_cndmask_b32 v8, v8, v6, s[26:27]
    v_cndmask_b32 v9, v9, v{R_+2}, s[26:27]
    v_cndmask_b32 v8, v8, v7, vcc
    v_cndmask_b32 v9, v9, v{R_+3}, vcc
    v_cmp_gt_u32 vcc, 4, v3
    v_lshlrev_b32 v8, 2, v8
    v_add_u32 v8, {WS_RSTD}, v8
    v_cndmask_b32 v8, v12, v8, vcc
    """)
    A.vmem(f"buffer_store_dword v9, v8, s[{sWS}:{sWS+3}], 0 offen sc1")
    A(f"s_or_b32 s3, s{S_Q}, s{S_W}\ns_cmp_lg_u32 s3, 0\ns_cbranch_scc1 L_no512")
    A(f"v_add_f32 v10, v{C_+1}, v{C_+3}")
    for j in range(8):
        A(f"v_mul_f32 v{TF+j}, v10, v{20+(1 if j else 0)}")
        A(f"v_fma_f32 v{TF+j}, v{E(1)+j}, v{R_+1}, -v{TF+j}")
        A(f"v_fma_f32 v{TF+j}, v{E(3)+j}, v{R_+3}, v{TF+j}")
        A(f"v_mul_f32 v{TM+j}, v{O(1)+j}, v{R_+1}")
        A(f"v_fma_f32 v{TM+j}, -v{O(3)+j}, v{R_+3}, v{TM+j}")
    for i in range(4):
        A(f"v_cvt_pk_bf16_f32 v{RAW+i}, v{TF+2*i}, v{TF+2*i+1}")
        A(f"v_cvt_pk_bf16_f32 v{RAW+4+i}, v{TM+2*i}, v{TM+2*i+1}")
    A(f"v_lshlrev_b32 v10, 4, v3\nv_add_u32 v10, {WS_X512}, v10\nv_cndmask_b32 v10, v12, v10, s[100:101]")
    A(f"buffer_store_dwordx4 {v(RAW,4)}, v10, s[{sWS}:{sWS+3}], 0 offen sc1")
    A(f"buffer_store_dwordx4 {v(RAW+4,4)}, v10, s[{sWS}:{sWS+3}], 0 offen offset:{3*512} sc1")
    A("s_nop 1")
    A("L_no512:")
    for r in (R_ + 1, R_ + 3, C_ + 1, C_ + 3):
        A(f"v_cndmask_b32 v{r}, v{r}, 0, s[100:101]")
    A(f"v_add_f32 v{C_}, v{C_}, v{C_+1}\nv_add_f32 v{C_+2}, v{C_+2}, v{C_+3}")
    OUT = lambda var: RAW + var * 8
    bl = "op_sel_hi:[1,0,1]"
    bh = "op_sel:[0,1,0] op_sel_hi:[1,1,1]"
    A(f"v_pk_mul_f32 v[8:9], v[20:21], {v(C_,2)} op_sel_hi:[1,0] neg_lo:[1,0] neg_hi:[1,0]")
    A(f"v_pk_mul_f32 v[10:11], v[20:21], {v(C_+2,2)} op_sel_hi:[1,0] neg_lo:[1,0] neg_hi:[1,0]")
    for i in range(4):
        s3lo, s3hi = (0, 1) if i == 0 else (1, 1)
        a_, b_ = TF, TF + 2
        A(f"v_pk_fma_f32 {v(a_,2)}, {v(E(0)+2*i,2)}, {v(R_,2)}, v[8:9] op_sel:[0,0,{s3lo}] op_sel_hi:[1,0,{s3hi}]")
        A(f"v_pk_fma_f32 {v(b_,2)}, {v(E(2)+2*i,2)}, {v(R_+2,2)}, v[10:11] op_sel:[0,0,{s3lo}] op_sel_hi:[1,0,{s3hi}]")
        A(f"v_pk_mul_f32 {v(TM,2)}, {v(O(0)+2*i,2)}, {v(R_,2)} op_sel_hi:[1,0]")
        A(f"v_pk_mul_f32 {v(TM+2,2)}, {v(O(3)+2*i,2)}, {v(R_+2,2)} op_sel:[0,1] op_sel_hi:[1,1]")
        A(f"v_pk_fma_f32 {v(a_,2)}, {v(E(1)+2*i,2)}, {v(R_,2)}, {v(a_,2)} {bh}")
        A(f"v_pk_fma_f32 {v(b_,2)}, {v(E(3)+2*i,2)}, {v(R_+2,2)}, {v(b_,2)} {bh}")
        A(f"v_pk_fma_f32 {v(TM,2)}, {v(O(1)+2*i,2)}, {v(R_,2)}, {v(TM,2)} {bh} neg_lo:[1,0,0] neg_hi:[1,0,0]")
        A(f"v_pk_fma_f32 {v(TM+2,2)}, {v(O(2)+2*i,2)}, {v(R_+2,2)}, {v(TM+2,2)} {bl} neg_lo:[1,0,0] neg_hi:[1,0,0]")
        A(f"v_pk_add_f32 {v(OUT(0)+2*i,2)}, {v(a_,2)}, {v(b_,2)}")
        A(f"v_pk_add_f32 {v(OUT(1)+2*i,2)}, {v(a_,2)}, {v(b_,2)} neg_lo:[0,1] neg_hi:[0,1]")
        A(f"v_pk_add_f32 {v(OUT(2)+2*i,2)}, {v(TM,2)}, {v(TM+2,2)}")
        A(f"v_pk_add_f32 {v(OUT(3)+2*i,2)}, {v(TM,2)}, {v(TM+2,2)} neg_lo:[0,1] neg_hi:[0,1]")
    PKD = EO
    FS = 131072
    A(f"""
    v_lshlrev_b32 v8, 13, v2
    v_lshrrev_b32 v9, 1, v3
    v_lshl_add_u32 v8, v9, 9, v8
    v_and_b32 v10, 7, v9
    v_lshl_add_u32 v8, v10, 4, v8
    v_and_b32 v10, 1, v3
    v_lshl_add_u32 v8, v10, 7, v8
    v_and_b32 v9, 8, v9
    v_or_b32 v8, v8, v9
    s_lshr_b32 s3, s{S_W}, 2
    s_lshl_b32 s3, s3, 8
    s_and_b32 s27, s{S_W}, 3
    s_lshl_b32 s27, s27, 2
    s_add_u32 s3, s3, s27
    s_add_u32 s3, s3, {FS}
    v_xor_b32 v8, s3, v8
    """)
    for j in range(1, 8):
        A(f"v_xor_b32 v{8+j}, {j<<4}, v8")
    for pr in range(2):
        for j in range(8):
            A(f"v_permlane32_swap_b32 v{OUT(2*pr)+j}, v{OUT(2*pr+1)+j}")
        for j in range(8):
            A(f"v_cvt_pk_bf16_f32 v{PKD+8*pr+j}, v{OUT(2*pr)+j}, v{OUT(2*pr+1)+j}")
        for j in range(8):
            A.lds(f"ds_write_b32 v{8+j}, v{PKD+8*pr+j} offset:{pr*16384}")
    A(f"""
    v_xor_b32 v28, v3, v2
    v_lshlrev_b32 v28, 4, v28
    v_lshl_add_u32 v28, v2, 9, v28
    s_lshl_b32 s3, s{S_W}, 12
    s_and_b32 s27, s{S_W}, 1
    s_lshl_b32 s27, s27, 3
    s_add_u32 s3, s3, s27
    s_add_u32 s3, s3, {FS}
    v_add_u32 v28, s3, v28
    v_lshlrev_b32 v27, 4, v3
    v_lshl_add_u32 v27, v2, 14, v27
    s_lshr_b32 s3, s{S_Q}, 1
    s_lshl_b32 s3, s3, 10
    s_and_b32 s27, s{S_Q}, 1
    s_lshl_b32 s27, s27, 9
    s_add_u32 s3, s3, s27
    s_lshl_b32 s27, s{S_W}, 17
    s_add_u32 s3, s3, s27
    s_add_u32 s3, s3, {WS_XF}
    """)
    for k in range(1, 8):
        A(f"v_xor_b32 v{RAW+16+k}, {(k>>1)*32 + (k&1)*8}, v28")
    A.wait(lg=0)
    A("s_barrier")
    for i in range(4):
        for hh in range(2):
            k = 2 * i + hh
            A.lds(f"ds_read_b64 {v(RAW+4*i+2*hh,2)}, v{RAW+16+k if k else 28} offset:{i*1024}", ("rb", i))
    for i in range(4):
        A.wait(lg=("rb", i))
        A.vmem(f"buffer_store_dwordx4 {v(RAW+4*i,4)}, v27, s[{sWS}:{sWS+3}], s3 offen sc1", "xst")
        A(f"s_add_u32 s3, s3, 32768")
    A.stamp(3)
    cgen(opt.get("c1", 4))
    cg_left = cg[0]
    A(f"s_cmp_ge_u32 s{S_W}, 4\ns_cbranch_scc1 L_dft_helper")
    dstate = (list(A.vm), A.vm_done)
    SACC, SEX, CF, XF = 32, 96, [104, 136], 168
    KALT, B512, X5 = 4, 8, [12, 16]
    CA = 22
    S_XA = 15
    A(f"""
    v_lshlrev_b32 v{CA}, 4, v1
    v_and_b32 v26, 1, v1
    s_cmp_ge_u32 s{S_VAR}, 2
    s_cselect_b32 s100, 1, 0
    s_cselect_b32 s101, 0x80008000, 0
    v_xor_b32 v26, s100, v26
    v_lshlrev_b32 v26, 15, v26
    v_or_b32 v{B512}, 0x3f80, v26
    s_lshl_b32 s26, s{S_N}, 3
    s_lshl_b32 s27, s{S_W}, 1
    s_add_u32 s26, s26, s27
    s_lshl_b32 s3, s{S_VAR}, 4
    s_add_u32 s3, s3, s26
    s_lshl_b32 s{S_XA}, s3, 14
    s_add_u32 s{S_XA}, s{S_XA}, {WS_XF}
    s_lshl_b32 s3, s{S_M}, 15
    v_add_u32 v{CA}, s3, v{CA}
    s_add_u32 s3, s3, 32768
    s_and_b32 s3, s3, 0x1ffff
    v_lshl_add_u32 v{CA+1}, v1, 4, s3
    v_xor_b32 v{CA+2}, 0x10000, v{CA}
    v_xor_b32 v{CA+3}, 0x10000, v{CA+1}
    s_mov_b32 s{S_R}, s{S_M}
    s_lshl_b32 s26, s26, 5
    s_lshl_b32 s27, s{S_VAR}, 9
    s_add_u32 s26, s26, s27
    s_add_u32 s26, s26, {WS_X512}
    v_lshl_add_u32 v27, v1, 1, s26
    s_add_u32 s3, s{S_VAR}, 1
    s_and_b32 s3, s3, 2
    s_cmp_eq_u32 s3, 0
    s_cselect_b32 s3, 16, 0
    v_cmp_gt_u32 vcc, s3, v1
    v_mov_b32 v26, {OOB}
    v_lshlrev_b32 v28, 4, v1
    v_cndmask_b32 v27, v26, v27, vcc
    v_add_u32 v29, 16384, v28
    s_or_b32 s3, s{S_M}, s{S_VAR}
    s_cmp_eq_u32 s3, 0
    s_cselect_b32 vcc_lo, 1, 0
    s_mov_b32 vcc_hi, 0
    """)
    for i in range(4):
        A(f"v_mov_b32 v{KALT+i}, 0xbf803f80")
    for i in range(8):
        A(f"v_mov_b32 v{SEX+i}, 0")
    A.wait(vm="xst")
    A("s_barrier")
    A.stamp(4)
    cgen(16)
    A.wait(lg=0)
    for i in range(1, 4):
        A(f"v_mov_b32 v{B512+i}, 0\nv_mov_b32 v{X5[0]+i}, 0\nv_mov_b32 v{X5[1]+i}, 0")

    def c_reads(sb):
        return [lambda tb=tb: A.lds(f"ds_read_b128 {v(CF[sb&1]+4*tb,4)}, v{CA + sb//4} offset:{(sb%4)*8192 + tb*1024}", ("cf", sb))
                for tb in range(8)]

    def x_th(sb):
        r = []
        for a_ in range(2):
            def f(a_=a_):
                if sb % 4 == 0 and a_ == 0:
                    A(f"s_add_u32 s94, s{S_R}, {sb // 4}\ns_and_b32 s94, s94, 3\ns_lshl_b32 s94, s94, 12\ns_add_u32 s94, s94, s{S_XA}")
                A.vmem(f"buffer_load_dwordx4 {v(XF + (sb % 11)*8 + 4*a_, 4)}, v{28+a_}, s[{sWS}:{sWS+3}], s94 offen offset:{(sb%4)*1024} {HLD}", ("xf", sb))
            r.append(f)
        return r

    def extra(xa0, xa1):
        L = A.label("L_nx")
        A(f"s_cbranch_vccz {L}")
        A.mfma(SEX, xa0, KALT)
        A.mfma(SEX + 4, xa1, KALT)
        A(f"{L}:")
    A("s_barrier")
    A.stamp(5)
    XD = opt.get("xd", 4)
    for sb in range(XD):
        for f in x_th(sb):
            f()
    for f in c_reads(0):
        f()
    xnext = XD
    for sb in range(16):
        fl = list(enumerate(c_reads(sb + 1))) if sb + 1 < 16 else []
        nx = [k for k in (xnext, xnext + 1) if k <= min(15, sb + 10)]
        xnext += len(nx)
        k0 = 0
        for k in nx:
            for f in x_th(k):
                fl.append((8 + 2 * k0, f)); k0 += 1
        if sb == 8:
            fl.append((13, lambda: A.vmem(f"buffer_load_ushort v{X5[0]}, v27, s[{sWS}:{sWS+3}], 0 offen {HLD}", "x5")))
            fl.append((15, lambda: A.vmem(f"buffer_load_ushort v{X5[1]}, v27, s[{sWS}:{sWS+3}], 0 offen offset:32 {HLD}", "x5")))
        A.wait(vm=("xf", sb), lg=("cf", sb))
        z = "0" if sb == 0 else None
        xa = XF + (sb % 11) * 8
        A.weave([lambda a_=a_, tb=tb: A.mfma(SACC + (a_ * 8 + tb) * 4, xa + 4 * a_, CF[sb & 1] + 4 * tb, z)
                 for a_ in range(2) for tb in range(8)], fl)
        extra(xa, xa + 4)
    A.wait(vm="x5")
    extra(X5[0], X5[1])
    for tb in range(8):
        for a_ in range(2):
            A.mfma(SACC + (a_ * 8 + tb) * 4, X5[a_], B512)
    A.stamp(6)
    A(f"""
    s_lshl_b32 s3, s{S_M}, 3
    s_add_u32 s3, s3, s{S_P}
    s_lshl_b32 s3, s3, 5
    s_lshl_b32 s27, s100, 3
    s_lshl_b32 s26, s{S_N}, 2
    s_add_u32 s27, s27, s26
    s_add_u32 s27, s27, s{S_W}
    s_add_u32 s3, s3, s27
    s_lshl_b32 s3, s3, 10
    s_add_u32 s3, s3, {WS_VV}
    s_lshl_b32 s27, s27, 10
    s_add_u32 s{S_XA}, s27, {WS_VV + 64*16384}
    """)
    D0 = CF[0]
    for tb in range(8):
        d = D0 + 4 * tb
        for a_ in range(2):
            s0 = SACC + (a_ * 8 + tb) * 4
            A(f"v_cvt_pk_bf16_f32 v{d+2*a_}, v{s0}, v{s0+1}\nv_cvt_pk_bf16_f32 v{d+2*a_+1}, v{s0+2}, v{s0+3}")
        for i in range(4):
            A(f"v_xor_b32 v{d+i}, s101, v{d+i}")
        A(f"s_add_u32 s27, s3, {((tb >> 1) * 4 + (tb & 1)) * 16384}")
        A.vmem(f"buffer_store_dwordx4 {v(d,4)}, v28, s[{sWS}:{sWS+3}], s27 offen sc1")
    A("s_cbranch_vccz L_nospecial")
    A("s_mov_b32 s26, 0x00010001\ns_mov_b32 s27, 0x00010001")
    for i in range(4):
        A(f"v_cvt_pk_bf16_f32 v{XF+i}, v{SEX+2*i}, v{SEX+2*i+1}")
    for i in range(4):
        A(f"v_cndmask_b32 v{XF+i}, v{D0+i}, v{XF+i}, s[26:27]")
    A(f"buffer_store_dwordx4 {v(XF,4)}, v28, s[{sWS}:{sWS+3}], s{S_XA} offen sc1")
    A("L_nospecial:")
    A.wait(vm=0)
    A("s_barrier")
    A.stamp(7)
    A.dump_stamps(8)
    A("s_endpgm")

    A.reset()
    A("L_dft_helper:")
    A.vm, A.vm_done = dstate
    S_DT = 94
    A.wait(vm="xst")
    A(f"""
    v_readfirstlane_b32 s{S_DT}, v191
    v_lshlrev_b32 v4, 7, v1
    v_lshlrev_b32 v6, 2, v1
    s_lshl_b32 s3, s{S_Q}, 2
    s_add_u32 s3, s3, {WS_XFLAG}
    s_mul_i32 s{S_DT}, s{S_DT}, {TAGMUL}
    s_add_u32 s{S_DT}, s{S_DT}, {TAGADD}
    v_mov_b32 v5, s{S_DT}
    s_barrier
    s_cmp_eq_u32 s{S_W}, 4
    s_cbranch_scc0 L_nox
    s_setprio 3
    s_mov_b64 exec, 0xff
    buffer_store_dword v5, v4, s[{sWS}:{sWS+3}], s3 offen sc1
    s_mov_b64 exec, -1
    L_nox:
    """)
    A.stamp(4)
    cg[0] = cg_left
    cgen(16)
    A(f"""
    s_waitcnt lgkmcnt(0)
    s_cmp_eq_u32 s{S_W}, 4
    s_cbranch_scc0 L_end
    s_lshl_b32 s3, s{S_XCD}, 7
    s_add_u32 s3, s3, {WS_XFLAG}
    """)
    A.poll(6, sWS, "s3", "eq", 32, S_DT, sleep=opt.get("xps", 1))
    A.stamp(5)
    A("s_barrier")
    A("v_mov_b32 v8, 0")
    A(f"""
    s_lshl_b32 s3, s{S_VAR}, 2
    s_add_u32 s3, s3, s{S_M}
    s_lshl_b32 s3, s3, 5
    s_add_u32 s3, s3, s{S_N}
    s_lshl_b32 s3, s3, 2
    s_add_u32 s3, s3, {WS_VFLAG}
    s_barrier
    s_mov_b64 exec, 1
    buffer_store_dword v5, v8, s[{sWS}:{sWS+3}], s3 offen sc1
    """)
    A(f"s_cmp_lg_u32 s{S_Q}, 0\ns_cbranch_scc1 L_noepw")
    A(f"s_mov_b64 exec, -1\nv_and_b32 v9, 7, v1\nv_min_u32 v9, 6, v9\nv_lshlrev_b32 v9, 2, v9\nv_lshrrev_b32 v10, 3, v1\nv_lshl_add_u32 v9, v10, 7, v9")
    for i in range(4):
        A(f"s_mov_b32 s3, {WS_HFLAG + 16 + i*1024}")
        A.poll(9, sWS, "s3", "eq", 64, S_DT)
    A(f"s_mov_b32 s3, {WS_EPOCH}\ns_mov_b64 exec, 1\nbuffer_store_dword v5, v8, s[{sWS}:{sWS+3}], s3 offen sc1")
    A("L_noepw:")
    A.stamp(6)
    A.dump_stamps(8)
    A("L_end:")
    A("s_endpgm")
    A("L_code_end:")

    hdr = open("parallel_sum__spectral_fnet__dense_activation_relu__prompt.s.ref").read().split("; Override")[0]
    return (hdr + "; @launch grid=(256,1,1) block=(512,1,1) lds=163840\n"
            + ".amdgcn_target \"amdgcn-amd-amdhsa--gfx950\"\n" + kernel_header(NAME) + A.text() + kernel_desc(NAME, 256, 256))


if __name__ == "__main__":
    out = sys.argv[1]
    stamps = len(sys.argv) > 2 and sys.argv[2] == "stamps"
    opt = {}
    for kv in sys.argv[3:]:
        k, x = kv.split("=")
        opt[k] = int(x) if x.lstrip("-").isdigit() else x
    open(out, "w").write(gen(stamps, opt))
```

```python
import sys
from kbase import *

TAGMUL, TAGADD = 0x9E3779B1, 0x7F4A7C15


def wblk(i):
    if i < 24:
        return 65536 + 4096 * i
    if i < 28:
        return 32768 + 4096 * (i - 24)
    return 65536 + 4096 * (i - 28)


def mod7(A, s, tmp, maxv):
    m = 7
    while m * 2 < maxv:
        m *= 2
    while m >= 7:
        A(f"s_cmp_ge_u32 s{s}, {m}\ns_cselect_b32 s{tmp}, {m}, 0\ns_sub_u32 s{s}, s{s}, s{tmp}")
        m //= 2


def code_touch(A, vb=118):
    L = A.label("L_pc")
    A(f"""
    s_getpc_b64 s[48:49]
    {L}:
    s_sub_u32 s48, s48, {L}-{NAME}
    s_subb_u32 s49, s49, 0
    s_mov_b32 s50, L_code_end-{NAME}
    s_mov_b32 s51, 0x20000
    v_lshlrev_b32 v{vb}, 12, v1
    s_lshl_b32 s3, s{S_J}, 7
    v_add_u32 v{vb}, s3, v{vb}
    s_mov_b64 exec, 0x3ff
    buffer_load_dword v{vb+1}, v{vb}, s[48:51], 0 offen
    s_mov_b64 exec, -1
    """)


def start_touch(A, opt, what, vb=10):
    fl = opt.get("tfl", "")
    if what == "x":
        A(f"""
        s_lshl_b32 s3, s{S_XCD}, 2
        s_lshr_b32 s27, s{S_J}, 3
        s_add_u32 s3, s3, s27
        s_lshl_b32 s3, s3, 4
        s_and_b32 s27, s{S_J}, 1
        s_lshl_b32 s27, s27, 3
        s_add_u32 s3, s3, s27
        v_lshrrev_b32 v{vb+1}, 3, v1
        v_add_u32 v{vb+1}, s3, v{vb+1}
        s_bfe_u32 s3, s{S_J}, 0x20001
        s_add_u32 s27, s3, 1
        s_and_b32 s27, s27, 2
        s_sub_u32 s27, 1, s27
        v_mul_i32_i24 v{vb+1}, s27, v{vb+1}
        s_cmp_eq_u32 s3, 0
        s_cselect_b32 s27, 0, 1024
        s_cmp_eq_u32 s3, 1
        s_cselect_b32 s27, 2048, s27
        v_add_u32 v{vb+1}, s27, v{vb+1}
        v_mul_u32_u24 v{vb+1}, 896, v{vb+1}
        v_and_b32 v{vb+2}, 7, v1
        v_min_u32 v{vb+2}, 6, v{vb+2}
        v_lshl_add_u32 v{vb+1}, v{vb+2}, 7, v{vb+1}
        buffer_load_dword v{vb+3}, v{vb+1}, s[{sX}:{sX+3}], 0 offen {fl}
        """)
    else:
        A(f"""
        s_cmp_ge_u32 s{S_XCD}, 4
        s_cselect_b32 s{sOUT}, s8, s6
        s_cselect_b32 s{sOUT+1}, s9, s7
        s_and_b32 s{sOUT+1}, s{sOUT+1}, 0xffff
        s_mov_b32 s{sOUT+2}, {2048*4096}
        s_mov_b32 s{sOUT+3}, 0x20000
        s_and_b32 s3, s{S_XCD}, 1
        s_lshl_b32 s3, s3, 5
        s_add_u32 s3, s3, s{S_J}
        s_lshl_b32 s3, s3, 4
        s_bfe_u32 s27, s{S_XCD}, 0x10001
        s_add_u32 s3, s3, s27
        s_lshl_b32 s3, s3, 12
        v_lshrrev_b32 v{vb}, 3, v1
        v_lshlrev_b32 v{vb}, 13, v{vb}
        v_and_b32 v{vb+1}, 7, v1
        v_lshl_add_u32 v{vb}, v{vb+1}, 7, v{vb}
        buffer_load_dword v{vb+2}, v{vb}, s[{sOUT}:{sOUT+3}], s3 offen {fl}
        """)


def gen(stamps=False, opt=None):
    opt = opt or {}
    HST = opt.get("hst", "sc1")
    HLD = opt.get("hld", "")
    TOUCH_AT = opt.get("touch_at", 2)
    HD = opt.get("hd", 12)
    VAT = opt.get("vat", 22)
    A = K(stamps)
    P2 = opt.get('p2', 0)
    P1 = opt.get('p1', 0)
    st1 = lambda i: None if (P2 or P1) else A.stamp(i)
    _stamp = A.stamp
    if opt.get('light'):
        P1 = 0
        A.stamp = lambda i: _stamp(i) if i == 0 else None
    if P1:
        A.stamp = lambda i: _stamp(i) if i == 0 else None
    st2 = lambda i: A.stamp(i) if P2 else None
    A.stamp(0)
    if opt.get("dbg"):
        A("s_memrealtime s[92:93]\ns_memtime s[90:91]")
    A("""
    s_load_dwordx16 s[4:19], s[0:1], 0
    s_load_dwordx4 s[20:23], s[0:1], 64
    s_load_dwordx2 s[24:25], s[0:1], 80
    s_cmp_ge_u32 s2, 256
    s_cbranch_scc1 L_end
    v_lshrrev_b32 v2, 6, v0
    v_and_b32 v1, 63, v0
    """)
    A(f"s_and_b32 s{S_XCD}, s2, 7\ns_lshr_b32 s{S_J}, s2, 3")
    A(f"v_readfirstlane_b32 s{S_W}, v2")
    A(f"s_cmp_ge_u32 s{S_J}, 28\ns_cbranch_scc1 L_dft")

    S_RB, S_FT, S_KX, S_KW, S_MX, S_MW, S_T, S_CT = 63, 96, 97, 98, 99, 100, 101, 26
    S_FTL, S_JX, S_TAG, S_PF = 14, 86, 58, 59
    S_M2, S_K2, S_G2, S_HF, S_PT = 56, 57, 95, 94, 58
    A(f"""
    s_mul_i32 s27, s{S_J}, 37
    s_lshr_b32 s27, s27, 8
    s_mul_i32 s3, s27, 7
    s_sub_u32 s{S_CT}, s{S_J}, s3
    s_and_b32 s{S_RB}, s{S_XCD}, 6
    s_lshl_b32 s{S_RB}, s{S_RB}, 1
    s_add_u32 s{S_RB}, s{S_RB}, s27
    s_lshl_b32 s27, s27, 1
    s_add_u32 s{S_G2}, s{S_CT}, s27
    """)
    mod7(A, S_G2, 3, 14)
    VD, XA, WA, ONES = 2, 8, 16, 20
    VW2, VEP = 6, 18
    FX = [24, 48]; FW = [40, 64]
    ACC, RS, CS = 72, 104, 108
    S_MD = 52
    sL = sW1
    A(f"""
    s_and_b32 s{S_JX}, s{S_XCD}, 1
    s_mul_i32 s3, s{S_JX}, 7
    s_add_u32 s{S_FT}, s{S_G2}, s3
    v_lshrrev_b32 v31, 4, v1
    s_movk_i32 s3, 0xe2
    s_bitcmp1_b32 s3, s{S_W}
    s_cbranch_scc1 L_ldw
    s_max_u32 s{S_KX}, s{S_W}, 1
    s_lshl_b32 s{S_KX}, s{S_KX}, 2
    s_mul_i32 s3, s{S_CT}, 37
    s_lshr_b32 s3, s3, 4
    s_add_u32 s{S_KX}, s{S_KX}, s3
    s_add_u32 s{S_KX}, s{S_KX}, 12
    v_lshrrev_b32 v30, 3, v1
    v_lshlrev_b32 v30, 1, v30
    v_and_b32 v32, 7, v1
    v_xor_b32 v32, v32, v31
    s_lshl_b32 s{S_KW}, s{S_RB}, 6
    """)
    for i in range(4):
        A(f"""
        s_add_u32 s{S_MD+i}, s{S_KX}, {i}
        s_and_b32 s{S_MD+i}, s{S_MD+i}, 15
        s_lshr_b32 s3, s{S_MD+i}, 3
        s_add_u32 s3, s3, s{S_KW}
        s_and_b32 s27, s{S_MD+i}, 3
        s_lshl_b32 s27, s27, 4
        s_add_u32 s3, s3, s27
        v_add_u32 v33, s3, v30
        v_sub_u32 v34, 2048, v33
        v_lshrrev_b32 v35, 11, v34
        v_lshlrev_b32 v35, 10, v35
        v_sub_u32 v34, v34, v35
        s_bitcmp1_b32 s{S_MD+i}, 2
        s_cselect_b64 vcc, -1, 0
        s_and_b32 s27, s{S_MD+i}, 1
        s_lshl_b32 s27, s27, 2
        v_cndmask_b32 v33, v33, v34, vcc
        v_xor_b32 v34, s27, v32
        v_mul_u32_u24 v33, 896, v33
        s_lshl_b32 s{S_MD+i}, s{S_MD+i}, 10
        v_lshl_add_u32 v{VD+i}, v34, 4, v33
        """)
    A(f"s_movk_i32 s{S_MX}, 128\ns_waitcnt lgkmcnt(0)")
    A.srd(sL, 4, 2048 * 896)
    A("s_branch L_ldok")
    A("L_ldw:")
    A(f"""
    s_max_u32 s{S_KX}, s{S_W}, 4
    s_add_u32 s{S_KX}, s{S_KX}, s{S_RB}
    s_lshl_b32 s{S_KX}, s{S_KX}, 2
    v_lshlrev_b32 v33, 1, v31
    v_and_b32 v34, 15, v1
    v_xor_b32 v33, v33, v34
    v_mul_u32_u24 v34, 3584, v31
    v_lshl_add_u32 v32, v33, 4, v34
    v_xor_b32 v33, 128, v32
    s_and_b32 s{S_MD}, s{S_KX}, 15
    s_mul_i32 s27, s{S_MD}, {4*3584}
    s_lshl_b32 s3, s{S_FT}, 8
    s_add_u32 s27, s27, s3
    v_add_u32 v{VD}, s27, v32
    v_add_u32 v{VD+2}, s27, v33
    v_add_u32 v{VD+1}, {4*3584}, v{VD}
    v_add_u32 v{VD+2}, {8*3584}, v{VD+2}
    v_add_u32 v{VD+3}, {4*3584}, v{VD+2}
    s_lshl_b32 s{S_MD}, s{S_MD}, 10
    s_add_u32 s{S_MD}, s{S_MD}, 16384
    s_add_u32 s{S_MD+1}, s{S_MD}, 1024
    s_add_u32 s{S_MD+2}, s{S_MD}, 2048
    s_add_u32 s{S_MD+3}, s{S_MD}, 3072
    s_mov_b32 s{S_MX}, {64*3584}
    s_waitcnt lgkmcnt(0)
    """)
    A.srd(sL, 16, 448 * 3584)
    A("L_ldok:")
    A.srd(sX, 4, 2048 * 896)

    def p1_dmas(st):
        slot = st % 5
        return [A.dma2(VD + i, sL, f"s{S_KX}", f"s_add_u32 m0, s{S_MD+i}, {slot*32768}", ("p1", st),
                       pre=None if i else f"s_mul_i32 s{S_KX}, s{S_MX}, {st}", flags=p1fl[0]) for i in range(4)]
    p1fl = [""]

    def burst(dmas):
        for a_, b_ in dmas:
            a_(); A("s_nop 0"); b_()

    def p1_setup():
        A.srd(sWS, 24, WS_SIZE + (0x40000 if stamps else 0))
        A(f"""
        s_mov_b32 s{S_FTL}, s{S_G2}
        s_lshl_b32 s{S_HF}, s{S_XCD}, 2
        s_and_b32 s3, s{S_RB}, 3
        s_add_u32 s{S_HF}, s{S_HF}, s3
        s_lshl_b32 s{S_HF}, s{S_HF}, 7
        s_add_u32 s{S_HF}, s{S_HF}, {WS_HFLAG}
        v_mov_b32 v35, {WS_EPOCH}
        """)
        A.vmem(f"buffer_load_dword v{VEP}, v35, s[{sWS}:{sWS+3}], 0 offen sc1", "ep")
        A(f"""
        v_and_b32 v32, 15, v1
        v_lshrrev_b32 v33, 1, v32
        v_xor_b32 v33, v33, v31
        v_lshlrev_b32 v33, 4, v33
        v_lshl_add_u32 v33, v32, 7, v33
        s_lshl_b32 s3, s{S_W}, 11
        v_add_u32 v{XA}, s3, v33
        """)
        for rb in range(1, 4):
            A(f"v_xor_b32 v{XA+rb}, {rb*2048}, v{XA}")
        for rb in range(4):
            A(f"v_xor_b32 v{XA+4+rb}, 64, v{XA+rb}")
        A(f"""
        v_bfe_u32 v30, v1, 2, 2
        v_lshl_add_u32 v32, v31, 3, v30
        v_lshlrev_b32 v32, 8, v32
        v_and_b32 v33, 3, v1
        v_lshl_add_u32 v32, v33, 3, v32
        v_add_u32 v32, 16384, v32
        v_and_b32 v33, 1, v31
        v_lshl_or_b32 v33, v33, 2, v30
        s_and_b32 s3, s{S_W}, 3
        s_lshl_b32 s3, s3, 1
        s_lshr_b32 s27, s{S_W}, 2
        s_or_b32 s3, s3, s27
        v_xor_b32 v33, s3, v33
        v_lshl_add_u32 v{WA}, v33, 5, v32
        v_xor_b32 v{WA+1}, 32, v{WA}
        """)
        for i in range(4):
            A(f"v_mov_b32 v{ONES+i}, 0x3f803f80")
        A.srd(sW2, 18, 1792 * 896)
        A(f"""
        s_lshl_b32 s{S_T}, s{S_RB}, 1
        s_add_u32 s{S_T}, s{S_T}, s{S_JX}
        v_lshrrev_b32 v30, 3, v1
        v_mul_u32_u24 v32, 896, v30
        v_and_b32 v30, 6, v30
        v_and_b32 v33, 7, v1
        v_xor_b32 v30, v30, v33
        v_lshl_add_u32 v32, v30, 4, v32
        s_lshl_b32 s3, s{S_CT}, 7
        s_mul_i32 s27, s{S_W}, {8*896}
        s_add_u32 s3, s3, s27
        v_add_u32 v{VW2}, s3, v32
        s_lshl_b32 s{S_M2}, s{S_W}, 10
        """)

    def wpair_addr(p):
        if p < 12:
            return 65536 + 8192 * p
        if p < 14:
            return 16384 + 8192 * (p - 12)
        return [32768, 40960, 0, 65536, 49152, 57344, 8192, 73728][p - 14]

    def w_dma(p):
        if p < 14:
            srd = sW2
            if p % 2 == 0:
                pre = (f"s_mul_i32 s{S_K2}, s{S_JX}, 7\ns_add_u32 s{S_K2}, s{S_K2}, s{S_G2}\ns_mul_i32 s{S_K2}, s{S_K2}, {128*896}\n"
                       f"s_add_u32 s{S_G2}, s{S_G2}, 1\ns_cmp_eq_u32 s{S_G2}, 7\ns_cselect_b32 s{S_G2}, 0, s{S_G2}")
            else:
                pre = f"s_add_u32 s{S_K2}, s{S_K2}, {64*896}"
        else:
            srd = sWD if p < 18 else sW1
            pre = f"s_mov_b32 s{S_K2}, {((p - 14) % 4)*64*896}"
        return A.dma2(VW2, srd, f"s{S_K2}", f"s_add_u32 m0, s{S_M2}, {wpair_addr(p)}", ("w", p), pre=pre)

    def place(dmas, g0, g1):
        r = []
        for k, (a_, b_) in enumerate(dmas):
            g = g0 + 1 + k * (g1 - g0) // len(dmas)
            r += [(g - 1, a_), (g, b_)]
        return r

    def p1_reads(st, q, buf):
        so = ((st % 5) & 1) * 32768
        r = []
        for rb in range(4):
            r.append(lambda rb=rb: A.lds(f"ds_read_b128 {v(FX[buf]+4*rb,4)}, v{XA + 4*q + rb} offset:{so}", ("f", st, q)))
        for cb in range(2):
            for h in range(2):
                r.append(lambda cb=cb, h=h: A.lds(f"ds_read_b64_tr_b16 {v(FW[buf]+4*cb+2*h,2)}, v{WA+cb} offset:{so + q*8192 + h*1024}", ("f", st, q)))
        return r

    def p1_mfma(buf, first):
        z = "0" if first else None
        r = [lambda: A.mfma(RS, ONES, FX[buf], z), lambda: A.mfma(CS, FW[buf], ONES, z)]
        for cb in range(2):
            for rb in range(4):
                r.append(lambda cb=cb, rb=rb: A.mfma(ACC + (cb * 4 + rb) * 4, FW[buf] + 4 * cb, FX[buf] + 4 * rb, z))
        return r

    def p1_addr_step(st):
        d = {2: 65536, 4: 65536, 5: -131072}.get(st)
        if not d:
            return []
        return [(8 + k // 5, lambda r=r: A(f"v_add_u32 v{r}, {d & 0xffffffff}, v{r}"))
                for k, r in enumerate(list(range(XA, XA + 8)) + [WA, WA + 1])]

    def lines(txt, g0, g1):
        ex = [x for x in txt.strip().split("\n") if x.strip()]
        return [(g0 + k * (g1 - g0) // len(ex), lambda x=x: A(x)) for k, x in enumerate(ex)]

    VID = 120
    WA2, WB, WC, VH, VO, VL, VZ = 8, 12, 112, 2, 4, 16, 7
    FW2 = [24, 40]
    AC2, HF, VF = 56, 128, 192
    p2_setup = f"""
    v_lshlrev_b32 v{VL}, 4, v1
    v_mov_b32 v{VZ}, 0
    v_lshrrev_b32 v124, 4, v1
    v_bfe_u32 v125, v1, 2, 2
    v_lshl_add_u32 v126, v124, 2, v125
    v_lshrrev_b32 v127, 1, v126
    v_and_b32 v127, 3, v127
    v_lshlrev_b32 v126, 7, v126
    v_and_b32 v125, 3, v1
    v_lshl_add_u32 v126, v125, 3, v126
    """ + "".join(f"""
    v_xor_b32 v125, {eb}, v127
    v_lshl_add_u32 v{WA2+eb}, v125, 5, v126
    v_add_u32 v{WB+eb}, 0x10000, v{WA2+eb}
    v_add_u32 v{WC+eb}, 0x20000, v{WA2+eb}""" for eb in range(4)) + f"""
    s_lshl_b32 s{S_K2+32}, s{S_T}, 2
    s_and_b32 s{S_K2+33}, s{S_W}, 3
    s_add_u32 s{S_K2+32}, s{S_K2+32}, s{S_K2+33}
    s_mul_i32 s{S_K2+34}, s{S_K2+32}, {H_STRIDE}
    v_add_u32 v{VH}, s{S_K2+34}, v{VL}
    s_xor_b32 s{S_K2+34}, s{S_K2+32}, 4
    s_mul_i32 s{S_K2+34}, s{S_K2+34}, {H_STRIDE}
    v_add_u32 v{VH+1}, s{S_K2+34}, v{VL}
    s_and_b32 s{S_K2+32}, s{S_K2+32}, 7
    s_lshl_b32 s{S_K2+32}, s{S_K2+32}, 12
    s_add_u32 s{S_K2+32}, s{S_K2+32}, 32768
    v_add_u32 v238, s{S_K2+32}, v{VL}
    v_xor_b32 v239, 16384, v238
    s_lshl_b32 s{S_K2+32}, s{S_RB}, 6
    s_add_u32 s{S_K2+32}, s{S_K2+32}, s{S_JX}
    s_and_b32 s{S_K2+33}, s{S_W}, 1
    s_lshl_b32 s{S_K2+33}, s{S_K2+33}, 5
    s_add_u32 s{S_K2+33}, s{S_K2+33}, s{S_K2+32}
    v_lshrrev_b32 v124, 3, v1
    v_lshl_add_u32 v125, v124, 1, s{S_K2+33}
    s_bfe_u32 s{S_K2+32}, s{S_W}, 0x10001
    s_lshl_b32 s{S_K2+33}, s{S_K2+32}, 11
    s_lshl_b32 s{S_K2+32}, s{S_K2+32}, 1
    s_sub_u32 s{S_K2+32}, 1, s{S_K2+32}
    v_mul_i32_i24 v125, s{S_K2+32}, v125
    v_add_u32 v125, s{S_K2+33}, v125
    s_mul_i32 s{S_K2+32}, s{S_K2+32}, {16*896}
    s_lshl_b32 s{S_K2+33}, s{S_CT}, 7
    v_mul_u32_u24 v126, 896, v125
    v_add_u32 v126, s{S_K2+32}, v126
    v_lshrrev_b32 v127, 11, v125
    v_lshlrev_b32 v127, 10, v127
    v_sub_u32 v125, v125, v127
    v_mul_u32_u24 v125, 896, v125
    v_and_b32 v127, 7, v1
    v_xor_b32 v127, v127, v124
    v_lshlrev_b32 v127, 4, v127
    v_add_u32 v127, s{S_K2+33}, v127
    v_add_u32 v{VO}, v125, v127
    v_add_u32 v{VO+1}, v126, v127
    """
    for k in range(3):
        p2_setup = p2_setup.replace(f"s{S_K2+32+k}", f"s{48+k}")
    WPRE = opt.get("wpre", 12)

    def phase1(cls):
        K0 = opt.get("k0", 2) if cls == 0 else opt.get("k1", 2)
        p1fl[0] = opt.get("shfl", "") if cls == 0 else ""
        if cls == 0:
            if opt.get("xt", 0) == 2:
                A(f"s_cmp_lg_u32 s{S_W}, 1\ns_cbranch_scc1 L_notouch0")
                start_touch(A, opt, "x", 124)
                A("L_notouch0:")
            for s_ in range(K0):
                burst(p1_dmas(s_))
            A(f"s_cmp_lg_u32 s{S_W}, 0\ns_cbranch_scc1 L_notouch")
            if opt.get("xt", 0) == 1:
                start_touch(A, opt, "x", 124)
            code_touch(A)
            A("L_notouch:")
            p1_setup()
        else:
            p1_setup()
            for s_ in range(K0):
                burst(p1_dmas(s_))
        A.wait(vm=("p1", 0))
        A("s_barrier")
        st1(2)
        if P1: _stamp(1)
        for f in p1_reads(0, 0, 0):
            f()
        queue = []
        for s_ in range(K0, 7):
            for i in range(4):
                first = max(0, 2 * (s_ - 5) + 1)
                if cls == 1:
                    first = max(first, 2 * s_ - opt.get("la1", 5) + i // 2)
                queue.append((first, lambda s_=s_, i=i: p1_dmas(s_)[i]))
        wn = WPRE
        for p in range(WPRE):
            queue.append((max(2 * (2 + p // 4) + 1, opt.get("w0", 8) + p // 2), lambda p=p: w_dma(p)))
        rate = (opt.get("r0", 4), 4)
        for st in range(7):
            for q in range(2):
                fl = []
                if q == 0:
                    A.wait(lg=("f", st, 0))
                    fl += list(enumerate(p1_reads(st, 1, 1))) + p1_addr_step(st + 1)
                else:
                    if st < 6:
                        if P1 == 2: _stamp(st + 2)
                        A.wait(vm=("p1", st + 1), lg=0)
                        if P1 == 3: _stamp(st + 2)
                        A("s_barrier")
                        if P1 == 1: _stamp(st + 2)
                        fl += list(enumerate(p1_reads(st + 1, 0, 0)))
                    else:
                        A.wait(lg=0)
                dm = []
                blk = 2 * st + q
                while queue and len(dm) < rate[cls] and queue[0][0] <= blk:
                    dm.append(queue.pop(0)[1]())
                if dm:
                    fl += place(dm, 1, 9)
                if (st, q) == (0, 1):
                    fl += lines(f"""
                    v_readfirstlane_b32 s{S_TAG}, v{VEP}
                    s_lshl_b32 s27, s{S_CT}, 2
                    v_mov_b32 v{VID+1}, s27
                    s_mul_i32 s{S_TAG}, s{S_TAG}, {TAGMUL}
                    s_add_u32 s{S_TAG}, s{S_TAG}, {TAGADD}
                    v_min_u32 v{VID+3}, 6, v1
                    v_lshlrev_b32 v{VID+3}, 2, v{VID+3}
                    """, 0, 8)
                    A.wait(vm="ep")
                if cls == 0 and opt.get("dum", 0) and 2 * st + q == opt.get("dumb", 0):
                    def dummy():
                        for s_ in range(5, 7):
                            A(f"s_mul_i32 s3, s{S_MX}, {s_}")
                            for i in range(4):
                                A.vmem(f"buffer_load_dwordx4 v[252:255], v{VD+i}, s[{sL}:{sL+3}], s3 offen")
                    fl.append((9, dummy))
                if cls == 0 and 2 * st + q == opt.get("wtb", 99):
                    def wt():
                        A(f"s_cmp_lg_u32 s{S_W}, 1\ns_cbranch_scc1 L_notouch3")
                        A(f"""
                        v_lshlrev_b32 v124, 7, v1
                        s_mul_i32 s3, s2, {56*128}
                        s_mov_b32 exec_hi, 0xffffff
                        buffer_load_dword v125, v124, s[{sW2}:{sW2+3}], s3 offen
                        s_mov_b64 exec, -1
                        """)
                        A("L_notouch3:")
                    fl.append((9, wt))
                if (st, q) == (6, 1):
                    fl += lines(f"""
                    v_and_b32 v30, 15, v1
                    v_lshlrev_b32 v30, 2, v30
                    s_lshl_b32 s3, s{S_W}, 6
                    v_add_u32 v30, s3, v30
                    v_lshrrev_b32 v31, 4, v1
                    v_lshlrev_b32 v31, 4, v31
                    s_and_b32 s27, s{S_W}, 3
                    s_lshl_b32 s27, s27, 7
                    s_lshr_b32 s3, s{S_W}, 2
                    s_lshl_b32 s3, s3, 6
                    s_add_u32 s27, s27, s3
                    v_add_u32 v31, s27, v31
                    v_xor_b32 v32, 64, v30
                    v_xor_b32 v33, 128, v30
                    v_xor_b32 v34, 192, v30
                    v_xor_b32 v35, 64, v31
                    """, 0, 8)
                    fl += lines(p2_setup, 0, 9)
                    fl.append((9, lambda: A.lds(f"ds_write_b32 v30, v{RS}")))
                    fl.append((9, lambda: A.lds(f"ds_write_b128 v31, {v(CS,4)} offset:512")))
                A.weave(p1_mfma(q, st == 0 and q == 0), fl)
        assert not queue, len(queue)
        return wn
    A(f"s_cmp_ge_u32 s{S_W}, 2\ns_cbranch_scc1 L_p1b")
    WN = phase1(0)
    A("s_branch L_p1done")
    A("L_p1b:")
    A.reset()
    phase1(1)
    A("L_p1done:")
    A.reset()
    st1(3)
    if P1: _stamp(8)
    A.wait(lg=0)
    A("s_barrier")
    if P1: _stamp(9)
    S_HS = S_MD

    def epilogue(wr):
        A.reset()
        MB = 24; CS1 = 28
        A.lds(f"ds_read_b32 v{MB+1}, v32")
        A.lds(f"ds_read_b32 v{MB+2}, v33")
        A.lds(f"ds_read_b32 v{MB+3}, v34")
        A.lds(f"ds_read_b128 {v(CS1,4)}, v35 offset:512")
        A(f"""
        s_lshl_b32 s{S_KX}, s{S_RB}, 3
        s_mul_i32 s{S_KX}, s{S_KX}, 56
        s_lshl_b32 s{S_KW}, s{S_FT}, 2
        s_add_u32 s{S_KX}, s{S_KX}, s{S_KW}
        s_and_b32 s27, s{S_W}, 3
        s_add_u32 s{S_KX}, s{S_KX}, s27
        s_lshl_b32 s{S_KX}, s{S_KX}, 10
        s_lshl_b32 s27, s27, 10
        s_add_u32 s27, s27, 32768
        v_add_u32 v34, s27, v{VL}
        s_mov_b32 s3, {0x3b124925}
        v_mul_f32 v{MB}, s3, v{RS}
        """)
        A.wait(lg=0)
        for i in range(1, 4):
            A(f"v_mul_f32 v{MB+i}, s3, v{MB+i}")
        A(f"v_cvt_pk_bf16_f32 v32, v{MB}, v{MB+1}\nv_cvt_pk_bf16_f32 v33, v{MB+2}, v{MB+3}")
        A(f"v_lshlrev_b32 v{MB}, 16, v32\nv_and_b32 v{MB+1}, 0xffff0000, v32\nv_lshlrev_b32 v{MB+2}, 16, v33\nv_and_b32 v{MB+3}, 0xffff0000, v33")
        PK = 36
        for rb in range(4):
            sel = "op_sel:[0,1,0] op_sel_hi:[1,1,1]" if rb & 1 else "op_sel_hi:[1,0,1]"
            d = PK + 4 * rb
            for cb in range(2):
                a0 = ACC + (cb * 4 + rb) * 4
                for hh in range(2):
                    A(f"v_pk_fma_f32 {v(a0+2*hh,2)}, {v((CS, CS1)[cb]+2*hh,2)}, {v(MB+(rb&2),2)}, {v(a0+2*hh,2)} {sel} neg_lo:[1,0,0] neg_hi:[1,0,0]")
            for cb in range(2):
                a0 = ACC + (cb * 4 + rb) * 4
                for hh in range(2):
                    A(f"v_cvt_pk_bf16_f32 v{d+2*(cb^wr)+hh}, v{a0+2*hh}, v{a0+2*hh+1}")
            for i in range(4):
                A(f"v_pk_max_i16 v{d+i}, v{d+i}, 0")
            A(f"s_xor_b32 s27, s{S_W}, {rb}\ns_mul_i32 s{S_MD+rb}, s27, {H_STRIDE}\ns_add_u32 s{S_MD+rb}, s{S_MD+rb}, s{S_KX}")
            A.vmem(f"buffer_store_dwordx4 {v(PK+4*rb,4)}, v{VL}, s[{sWS}:{sWS+3}], s{S_MD+rb} offen sc1", ("hst", rb))
            A(f"s_lshl_b32 s27, s27, 12\nv_add_u32 v35, s27, v34")
            A.lds(f"ds_write_b128 v35, {v(PK+4*rb,4)}")
        st1(4)
        if P1: _stamp(10)
        A.stamp(5)

    S_H, S_GH = S_KX, S_KW
    NAL = opt.get("nal", 24)
    B0 = 4 + NAL

    def w_reads(key, i, both=True):
        r = []
        for eb in range(4):
            for h in range(2):
                if i < 28:
                    a_ = wpair_addr(i >> 1) + (i & 1) * 4096
                    reg, off = (WA2, WB, WC)[a_ >> 16] + eb, (a_ & 0xffff) + h * 2048
                else:
                    u = i - 28
                    reg, off = ((WA2, u * 4096) if u < 4 else ((WB, WC)[(u - 4) >> 1], (u & 1) * 4096))
                    reg, off = reg + eb, off + h * 2048
                r.append(lambda reg=reg, off=off, eb=eb, h=h: A.lds(f"ds_read_b64_tr_b16 {v(FW2[key&1]+4*eb+2*h,2)}, v{reg} offset:{off}", ("wf", key, eb >> 1)))
        return r

    YS, ZS = 32768, 0
    XS = TS = 4096

    A(f"s_cmp_ge_u32 s{S_W}, 4\ns_cbranch_scc1 L_aux")
    epilogue(0)
    seq = [(i, (0, 1)) for i in range(4)] + [(i, (1,)) for i in range(4, B0)] + [(i, (0, 1)) for i in range(B0, 28)] + [(i, (0,)) for i in range(4, B0)]
    hl = [(n, tt) for n, (i, tts) in enumerate(seq) for tt in tts]
    NSL = opt.get("nsl", 16)
    slot = {k: HF + (idx % NSL) * 4 for idx, k in enumerate(hl)}
    state_h = dict(next=8, grp=None)

    def h_next():
        idx = state_h["next"]
        if idx >= len(hl):
            return
        state_h["next"] += 1
        n, tt = hl[idx]
        i = seq[n][0]
        if state_h["grp"] != i // 4 and not (opt.get("hfix") and state_h["grp"]):
            state_h["grp"] = i // 4
            A(f"s_add_u32 s{S_H}, s{S_FTL}, {i // 4}\ns_cmp_ge_u32 s{S_H}, 7\ns_cselect_b32 s3, 7, 0\ns_sub_u32 s{S_H}, s{S_H}, s3")
            A(f"s_add_u32 s{S_H}, s{S_H}, s{S_GH}\ns_lshl_b32 s{S_H}, s{S_H}, 12")
        A.vmem(f"buffer_load_dwordx4 {v(slot[(n, tt)], 4)}, v{VH+tt}, s[{sWS}:{sWS+3}], s{S_H} offen offset:{(i%4)*1024} {HLD}", ("h", n, tt))

    def step(n, extra=()):
        i, tts = seq[n]
        nm = 4 * len(tts)
        fl = list(extra)
        if n + 1 < len(seq):
            fl += [(k * nm // 8, f) for k, f in enumerate(w_reads(n + 1, seq[n + 1][0]))]
        if n >= 1:
            fl += [(1 + 4 * k, h_next) for k in range(len(seq[n - 1][1]))]
        mf = []
        for eb in range(4):
            for tt in tts:
                def f(eb=eb, tt=tt):
                    if eb % 2 == 0 and tt == tts[0]:
                        A.wait(vm=("h", n, tts[-1]) if eb == 0 and n >= 4 else None, lg=("wf", n, eb >> 1))
                    A.mfma(AC2 + (tt * 4 + eb) * 4, FW2[n & 1] + 4 * eb, slot[(n, tt)], "0" if n == 0 else None)
                mf.append(f)
        A.weave(mf, fl)

    PR, XU = 192, 208
    fin = f"""
    v_and_b32 v20, 15, v1
    v_lshrrev_b32 v21, 4, v1
    v_lshrrev_b32 v22, 1, v21
    v_and_b32 v23, 7, v20
    v_xor_b32 v22, v22, v23
    v_lshlrev_b32 v22, 4, v22
    v_lshl_add_u32 v22, v20, 7, v22
    v_and_b32 v21, 1, v21
    v_lshl_add_u32 v22, v21, 3, v22
    s_lshl_b32 s27, s{S_W}, 11
    s_add_u32 s27, s27, {TS}
    v_add_u32 v232, s27, v22
    v_add_u32 v23, s27, v{VL}
    v_xor_b32 v233, 32, v232
    v_xor_b32 v234, 64, v232
    v_xor_b32 v235, 96, v232
    ds_read_b64 v[224:225], v232
    ds_read_b64 v[226:227], v233
    ds_read_b64 v[228:229], v234
    ds_read_b64 v[230:231], v235
    s_lshl_b32 s27, s{S_W}, 6
    s_add_u32 s27, s27, {YS + 20480}
    v_lshl_add_u32 v20, v20, 2, s27
    s_and_b32 s27, s{S_W}, 1
    s_lshl_b32 s27, s27, 12
    s_add_u32 s27, s27, {YS}
    v_add_u32 v19, s27, v{VL}
    s_xor_b32 s{S_MW}, s{S_W}, 2
    s_or_b32 s{S_MW}, s{S_MW}, s{S_T}
    s_sub_u32 s{S_MW}, s{S_MW}, 1
    s_lshr_b32 s{S_MW}, s{S_MW}, 31
    s_lshl_b32 s{S_MW}, s{S_MW}, 14
    v_add_u32 v18, s{S_MW}, v19
    s_lshl_b32 s27, s{S_W}, 30
    s_and_b32 s27, s27, 0x80000000
    s_or_b32 s27, s27, 1.0
    v_mov_b32 v237, s27
    s_xor_b32 s{S_FT}, s{S_MX}, 16384
    s_and_b32 s{S_G2}, s{S_PT}, 0xff
    s_mul_i32 s{S_G2}, s{S_G2}, 0x01010101
    """.strip().split("\n")
    fin = [x.strip() for x in fin]
    unp = [f"v_lshlrev_b32 v{XU+2*k}, 16, v{224+k}" if b_ == 0 else f"v_and_b32 v{XU+2*k+1}, 0xffff0000, v{224+k}" for k in range(8) for b_ in range(2)]

    def p_loads(track):
        for eb in range(4):
            t_ = f"buffer_load_dwordx4 {v(PR+4*eb,4)}, v{VL}, s[{sWS}:{sWS+3}], s{S_FT} offen offset:{eb*1024} sc1"
            A.vmem(t_, "part") if track else A(t_)
    A(f"s_lshl_b32 s3, s2, 14\ns_lshl_b32 s27, s{S_W}, 12\ns_add_u32 s3, s3, s27\ns_add_u32 s{S_MX}, s3, {WS_PART}")
    A.srd(sOUT, 20, 2048 * 896)
    A(f"s_lshl_b32 s{S_H}, s{S_W}, 11")
    for ps in range(2):
        A.dma(VO + ps, sX, "0", f"s_add_u32 m0, s{S_H}, {XS + ps*1024}", "xr")
    A.wait(vm=0, lg=0)
    burst([w_dma(p) for p in range(WN, 14)])
    A("s_barrier")
    A.stamp(7)
    for x in fin:
        A.lds(x) if x.startswith("ds_") else A(x)
    for n in range(4):
        for tt in range(2):
            A.lds(f"ds_read_b128 {v(slot[(n, tt)],4)}, v{238+tt} offset:{n*1024}")
    A.wait(lg=0)
    for x in unp:
        A(x)
    A(f"s_mul_i32 s{S_GH}, s{S_JX}, 7")
    A.wait(vm=0)
    A("s_barrier")
    if not P2: A.stamp(1)
    for k in range(NSL - 8):
        h_next()
    for f in w_reads(0, 0):
        f()
    if opt.get("prio", 1):
        A(f"s_setprio {opt.get('prio', 1)}")
    for n in range(len(seq)):
        ex = []
        if n == opt.get("m2n", -1):
            A("s_barrier")
        if n == 28:
            A.stamp(8)
            A(f"""
            s_and_b32 s27, s{S_PT}, 0xff
            v_mov_b32 v236, s27
            s_movk_i32 s27, 0xff
            s_nop 4
            """)
            for eb in range(4):
                for r in range(4):
                    A(f"v_bfi_b32 v{AC2+16+4*eb+r}, s27, v236, v{AC2+16+4*eb+r}")
                A.vmem(f"buffer_store_dwordx4 {v(AC2+16+4*eb,4)}, v{VL}, s[{sWS}:{sWS+3}], s{S_MX} offen offset:{eb*1024} sc1", "pst")
        if n == len(seq) - opt.get("pat", 4):
            ex.append((3, lambda: p_loads(True)))
        step(n, ex)
    A.stamp(9)
    A(f"s_mov_b32 s27, 0x0c0c0400\ns_mov_b32 s{S_KX}, 0x40000")
    A("L_pchk:")
    A("s_waitcnt vmcnt(0)")
    for k in range(8):
        A(f"v_perm_b32 v{24+k}, v{PR+2*k+1}, v{PR+2*k}, s27")
    for k in range(4):
        A(f"v_lshl_or_b32 v{24+2*k}, v{25+2*k}, 16, v{24+2*k}")
    for k in range(4):
        A(f"v_xor_b32 v{24+2*k}, s{S_G2}, v{24+2*k}")
    A("v_or3_b32 v24, v24, v26, v28\nv_or_b32 v24, v24, v30\nv_cmp_eq_u32 vcc, 0, v24\ns_nop 1\ns_cmp_eq_u64 vcc, exec\ns_cbranch_scc1 L_pok")
    p_loads(False)
    A(f"s_sub_u32 s{S_KX}, s{S_KX}, 1\ns_cbranch_scc0 L_pchk")
    A("L_pok:")
    for r in range(16):
        A(f"v_and_b32 v{PR+r}, 0xffffff00, v{PR+r}")
    for r in range(16):
        A(f"v_add_f32 v{AC2+r}, v{AC2+r}, v{PR+r}")
    if P2: A.stamp(2)
    A("s_barrier")
    A.stamp(10)
    YP = HF
    A(f"ds_read_b32 v236, v20")
    for eb in range(4):
        A(f"ds_read_b128 {v(YP+4*eb,4)}, v18 offset:{eb*1024}")
    for eb in range(4):
        A(f"ds_read_b128 {v(YP+16+4*eb,4)}, v19 offset:{8192 + eb*1024}")
    A("s_waitcnt lgkmcnt(8)")
    for eb in range(4):
        for hh in range(2):
            A(f"v_pk_fma_f32 {v(XU+4*eb+2*hh,2)}, {v(AC2+4*eb+2*hh,2)}, v[236:237], {v(XU+4*eb+2*hh,2)} op_sel_hi:[1,0,1]")
    A("s_waitcnt lgkmcnt(4)")
    for eb in range(4):
        for hh in range(2):
            A(f"v_pk_add_f32 {v(XU+4*eb+2*hh,2)}, {v(XU+4*eb+2*hh,2)}, {v(YP+4*eb+2*hh,2)}")
    A("s_waitcnt lgkmcnt(0)")
    for eb in range(4):
        for hh in range(2):
            A(f"v_pk_fma_f32 {v(XU+4*eb+2*hh,2)}, {v(YP+16+4*eb+2*hh,2)}, v[236:237], {v(XU+4*eb+2*hh,2)} op_sel:[0,1,0] op_sel_hi:[1,1,1]")
        A(f"v_cvt_pk_bf16_f32 v{28+2*eb}, v{XU+4*eb}, v{XU+4*eb+1}\nv_cvt_pk_bf16_f32 v{29+2*eb}, v{XU+4*eb+2}, v{XU+4*eb+3}")
        A(f"ds_write_b64 v{232+eb}, {v(28+2*eb,2)}")
    A("s_waitcnt lgkmcnt(0)")
    A("ds_read_b128 v[36:39], v23\nds_read_b128 v[40:43], v23 offset:1024")
    A("s_waitcnt lgkmcnt(1)")
    A(f"buffer_store_dwordx4 v[36:39], v{VO}, s[{sOUT}:{sOUT+3}], 0 offen {opt.get('ofl', '')}")
    A("s_waitcnt lgkmcnt(0)")
    A(f"buffer_store_dwordx4 v[40:43], v{VO+1}, s[{sOUT}:{sOUT+3}], 0 offen {opt.get('ofl', '')}")
    if opt.get("dbg"):
        A.srd(sDBG, 22, 256)
        A("""
        s_waitcnt vmcnt(0)
        s_memrealtime s[88:89]
        s_memtime s[84:85]
        s_waitcnt lgkmcnt(0)
        s_not_b32 s92, s92
        s_sub_u32 s84, s84, s90
        v_mov_b32 v2, s88
        v_mov_b32 v3, s92
        v_mov_b32 v4, s84
        v_mov_b32 v5, 0
        s_and_b32 s3, s2, 7
        s_lshl_b32 s3, s3, 2
        s_mov_b64 exec, 1
        """)
        A(f"buffer_atomic_umax v2, v5, s[{sDBG}:{sDBG+3}], 0 offen sc1")
        A(f"buffer_atomic_umax v3, v5, s[{sDBG}:{sDBG+3}], 0 offen offset:4 sc1")
        A(f"buffer_atomic_umax v4, v5, s[{sDBG}:{sDBG+3}], 0 offen offset:8 sc1")
        A(f"buffer_atomic_umax v3, v5, s[{sDBG}:{sDBG+3}], s3 offen offset:16 sc1")
    A.dump_stamps(11)
    A("s_endpgm")

    A("L_aux:")
    epilogue(1)
    RSD, VPOLL, VT, YB, YA, V2, VF, WF = 20, 22, 19, 32, 48, 64, 96, 128
    PR, XU = VF, V2
    DF, EF, TA = 24, 8, opt.get('ta', 32)
    S_PA = S_MX
    A(f"""
    s_and_b32 s{S_GH}, s{S_W}, 3
    v_and_b32 v14, 15, v1
    s_lshl_b32 s3, s{S_CT}, 6
    v_add_u32 v{EF}, s3, v14
    v_cvt_f32_u32 v{EF}, v{EF}
    v_lshrrev_b32 v15, 4, v1
    v_lshlrev_b32 v{DF}, 2, v15
    v_cvt_f32_u32 v{DF}, v{DF}
    s_mov_b32 s3, 0x41800000
    v_add_f32 v{EF+1}, s3, v{EF}
    v_add_f32 v{EF+2}, s3, v{EF+1}
    v_add_f32 v{EF+3}, s3, v{EF+2}
    v_add_f32 v{DF+1}, 1.0, v{DF}
    v_add_f32 v{DF+2}, 2.0, v{DF}
    v_add_f32 v{DF+3}, 2.0, v{DF+1}
    v_add_f32 v{DF+4}, s3, v{DF}
    v_add_f32 v{DF+5}, s3, v{DF+1}
    v_add_f32 v{DF+6}, s3, v{DF+2}
    v_add_f32 v{DF+7}, s3, v{DF+3}
    s_mov_b32 s3, {0x3b124925}
    v_mul_f32 v{EF}, s3, v{EF}
    v_mul_f32 v{EF+1}, s3, v{EF+1}
    v_mul_f32 v{EF+2}, s3, v{EF+2}
    v_mul_f32 v{EF+3}, s3, v{EF+3}
    s_bitcmp1_b32 s{S_W}, 1
    s_cselect_b32 s3, 0x3e800000, 0
    v_mov_b32 v{EF+4}, s3
    v_mov_b32 v{EF+5}, 0x42000000
    """)
    gen_ops = []
    CA_, CB_, KK = 64, 72, 80
    for eb in range(4):
        gen_ops.append(f"v_mul_f32 v{KK}, v{EF+5}, v{EF+eb}")
        gen_ops += [f"v_fma_f32 v{CA_+i}, v{DF+i}, v{EF+eb}, v{EF+4}" for i in range(8)]
        gen_ops += [f"v_add_f32 v{CB_+i}, v{KK}, v{CA_+i}" for i in range(8)]
        gen_ops.append(f"v_cos_f32 v{KK}, v{KK}")
        gen_ops += [f"v_cos_f32 v{CA_+i}, v{CA_+i}" for i in range(16)]
        gen_ops.append(f"v_add_f32 v{KK}, v{KK}, v{KK}")
        for u in range(8):
            cur = (CA_, CB_)[u & 1]
            if u >= 2:
                gen_ops += [f"v_fma_f32 v{cur+i}, v{KK}, v{(CB_, CA_)[u & 1]+i}, -v{cur+i}" for i in range(8)]
            gen_ops += [f"v_cvt_pk_bf16_f32 v{WF+16*u+4*eb+i}, v{cur+2*i}, v{cur+2*i+1}" for i in range(4)]

    def wgen(n):
        for x in gen_ops[:16 * n]:
            A(x)
        del gen_ops[:16 * n]
    wgen(opt.get("g1", 16))
    A.wait(vm=0, lg=0)
    burst([w_dma(p) for p in range(WN, 14)])
    A("s_barrier")
    A(f"s_cmp_lg_u32 s{S_W}, 7\ns_cbranch_scc1 L_nopub")
    A(f"v_mov_b32 v18, s{S_TAG}\ns_mov_b64 exec, 1")
    A(f"buffer_store_dword v18, v{VID+1}, s[{sWS}:{sWS+3}], s{S_HF} offen offset:16 sc1")
    A("s_mov_b64 exec, -1")
    A("L_nopub:")
    A.stamp(7)
    wgen(opt.get("g2", 14))
    A(f"s_cmp_lg_u32 s{S_W}, 7\ns_cbranch_scc1 L_nopoll")
    A(f"s_add_u32 s3, s{S_HF}, 16")
    A.poll(VID + 3, sWS, "s3", "eq", 64, S_TAG, vtmp=19)
    A("L_nopoll:")
    A.wait(vm=0)
    A("s_barrier")
    if not P2: A.stamp(1)
    wgen(32)
    A(f"""
    s_lshl_b32 s3, s{S_RB}, 6
    s_add_u32 s3, s3, s{S_JX}
    s_and_b32 s27, s{S_W}, 1
    s_lshl_b32 s27, s27, 5
    s_add_u32 s27, s27, s3
    v_lshl_add_u32 v{RSD+1}, v14, 1, s27
    s_bitcmp1_b32 s{S_W}, 1
    s_cselect_b32 s3, -1, 1
    s_cselect_b32 s27, 2048, 0
    v_mul_i32_i24 v{RSD+1}, s3, v{RSD+1}
    v_add_u32 v{RSD+1}, s27, v{RSD+1}
    v_lshrrev_b32 v{RSD}, 11, v{RSD+1}
    v_lshlrev_b32 v{RSD}, 10, v{RSD}
    v_sub_u32 v{RSD+1}, v{RSD+1}, v{RSD}
    v_lshlrev_b32 v{RSD+1}, 2, v{RSD+1}
    v_add_u32 v{RSD+1}, {WS_RSTD}, v{RSD+1}
    s_lshl_b32 s3, s{S_T}, 1
    s_and_b32 s27, s{S_W}, 1
    s_add_u32 s3, s3, s27
    s_lshl_b32 s{S_FT}, s3, 14
    s_lshr_b32 s27, s{S_GH}, 1
    s_lshl_b32 s3, s27, 13
    s_add_u32 s{S_FT}, s{S_FT}, s3
    s_add_u32 s{S_FT}, s{S_FT}, {WS_VV}
    s_cmp_eq_u32 s{S_GH}, 0
    s_cselect_b32 s{S_MW}, {WS_VV + 64*16384}, s{S_FT}
    s_lshl_b32 s3, s{S_GH}, 12
    s_add_u32 s27, s3, {YS}
    v_add_u32 v28, s27, v{VL}
    s_lshl_b32 s3, s{S_GH}, 6
    s_add_u32 s3, s3, {YS + 20480}
    v_lshl_add_u32 v30, v14, 2, s3
    """)
    A.stamp(8)
    A(f"""
    s_and_b32 s3, s{S_GH}, 2
    s_add_u32 s3, s3, s{S_JX}
    s_lshl_b32 s3, s3, 2
    s_lshr_b32 s27, s{S_T}, 3
    s_add_u32 s3, s3, s27
    s_lshl_b32 s3, s3, 7
    s_add_u32 s3, s3, {WS_VFLAG}
    v_and_b32 v{VPOLL+1}, 1, v1
    v_lshlrev_b32 v{VPOLL+1}, 2, v{VPOLL+1}
    """)
    if opt.get("m2n", -1) >= 0:
        A("s_barrier")
    A.poll(VPOLL + 1, sWS, "s3", "eq", 64, S_TAG, vtmp=VPOLL, sleep=opt.get("vps", 4))
    A.stamp(9)
    A.reset()
    A.vmem(f"buffer_load_dword v{RSD}, v{RSD+1}, s[{sWS}:{sWS+3}], 0 offen {HLD}", "rstd")
    for u in range(8):
        if u % 4 == 0:
            A(f"s_add_u32 s27, s{S_FT}, {u*1024}")
        A.vmem(f"buffer_load_dwordx4 {v(VF+4*u,4)}, v{VL}, s[{sWS}:{sWS+3}], s27 offen offset:{(u%4)*1024} {HLD}", ("v", u))

    A(f"s_cmp_eq_u32 s{S_T}, 0\ns_cbranch_scc1 L_vspecial")

    def vpart(special):
        if special:
            for u in range(8):
                if u % 4 == 0:
                    A(f"s_add_u32 s27, s{S_MW}, {u*1024}")
                A.vmem(f"buffer_load_dwordx4 {v(V2+4*u,4)}, v{VL}, s[{sWS}:{sWS+3}], s27 offen offset:{(u%4)*1024} {HLD}", ("v2", u))
        for u in range(8):
            A.wait(vm=("v", u))
            for eb in range(4):
                A.mfma(YA + eb * 4, WF + 16 * u + 4 * eb, VF + 4 * u, "0" if u == 0 else None)
        if special:
            for u in range(8):
                A.wait(vm=("v2", u))
                for eb in range(4):
                    A.mfma(YB + eb * 4, WF + 16 * u + 4 * eb, V2 + 4 * u, "0" if u == 0 else None)
        A(f"ds_write_b32 v30, v{RSD}")
        A(f"s_nop {opt.get('yn', 6)}")
        for eb in range(4):
            A(f"ds_write_b128 v28, {v(YA+4*eb,4)} offset:{eb*1024}")
        if special:
            L = A.label("L_nopm")
            A(f"s_cmp_lg_u32 s{S_W}, 4\ns_cbranch_scc1 {L}")
            A("s_mov_b32 s26, 0x00010001\ns_mov_b32 s27, 0x00010001")
            for r in range(16):
                A(f"v_cndmask_b32 v{YB+r}, v{YA+r}, v{YB+r}, s[26:27]")
            for eb in range(4):
                A(f"ds_write_b128 v28, {v(YB+4*eb,4)} offset:{16384 + eb*1024}")
            A(f"{L}:")
    sv = (list(A.vm), A.vm_done, list(A.lg), A.lg_done)
    vpart(False)
    A("s_branch L_vdone")
    A("L_vspecial:")
    A.vm, A.vm_done, A.lg, A.lg_done = sv
    vpart(True)
    A("L_vdone:")
    A("s_waitcnt lgkmcnt(0)")
    A.stamp(10)
    A("s_barrier")
    A.dump_stamps(11)
    A("s_endpgm")

    A.reset()
    A("L_dft:")
    S_Q, S_VAR, S_M, S_N, S_P = 63, 96, 97, 98, 99
    A(f"""
    s_sub_u32 s3, s{S_J}, 28
    s_lshl_b32 s{S_Q}, s{S_XCD}, 2
    s_add_u32 s{S_Q}, s{S_Q}, s3
    s_lshr_b32 s{S_VAR}, s{S_XCD}, 1
    s_mov_b32 s{S_M}, s3
    s_and_b32 s{S_N}, s{S_XCD}, 1
    s_and_b32 s{S_P}, s{S_VAR}, 1
    """)
    def wtouch(ptr):
        A.srd(sW1, ptr, 448 * 3584)
        A(f"v_lshlrev_b32 v210, 7, v1\ns_lshl_b32 s3, s{S_Q}, 13\ns_lshl_b32 s27, s{S_W}, 18\ns_add_u32 s3, s3, s27\nv_add_u32 v210, s3, v210")
        A.vmem(f"buffer_load_dword v211, v210, s[{sW1}:{sW1+3}], 0 offen")

    RAW, EO, TF, TM, ST = 32, 64, 128, 136, 144
    A(f"""
    s_lshl_b32 s3, s{S_Q}, 4
    s_lshl_b32 s27, s{S_W}, 1
    s_add_u32 s3, s3, s27
    v_lshrrev_b32 v2, 5, v1
    v_add_u32 v4, s3, v2
    v_and_b32 v3, 31, v1
    v_sub_u32 v5, 2048, v4
    v_sub_u32 v6, 1024, v4
    v_add_u32 v7, 1024, v4
    v_cmp_eq_u32 s[100:101], 0, v4
    v_mov_b32 v8, 512
    v_mov_b32 v9, 1536
    v_mov_b32 v12, {OOB}
    v_cndmask_b32 v5, v5, v8, s[100:101]
    v_cndmask_b32 v7, v7, v9, s[100:101]
    v_cmp_gt_u32 vcc, 28, v3
    v_lshlrev_b32 v8, 4, v3
    v_sub_u32 v9, 880, v8
    v_cndmask_b32 v8, v12, v8, vcc
    v_cndmask_b32 v9, v12, v9, vcc
    s_waitcnt lgkmcnt(0)
    """)
    A.srd(sX, 4, 2048 * 896)
    for rho in range(4):
        A(f"v_mul_u32_u24 v13, 896, v{4+rho}\nv_add_u32 v14, v13, v8\nv_add_u32 v15, v13, v9")
        for fm in range(2):
            A.vmem(f"buffer_load_dwordx4 {v(RAW + rho*8 + 4*fm, 4)}, v{14+fm}, s[{sX}:{sX+3}], 0 offen", ("x", rho))
    A.srd(sWS, 24, WS_SIZE + (0x40000 if stamps else 0))
    if opt.get("t1", 1):
        wtouch(16)
    A(f"v_mov_b32 v190, {WS_EPOCH}")
    A.vmem(f"buffer_load_dword v191, v190, s[{sWS}:{sWS+3}], 0 offen sc1", "ep")
    A(f"s_cmp_lg_u32 s{S_W}, 7\ns_cbranch_scc1 L_dnotouch")
    if opt.get("xt", 0):
        start_touch(A, opt, "x", 200)
    code_touch(A, 208)
    A("L_dnotouch:")

    S_R = 14
    GA, GT = 160, 168
    A(f"""
    s_lshl_b32 s3, s{S_M}, 7
    s_lshl_b32 s27, s{S_W}, 4
    s_add_u32 s3, s3, s27
    s_lshl_b32 s3, s3, 1
    s_add_u32 s3, s3, s{S_P}
    v_and_b32 v13, 15, v1
    v_lshl_add_u32 v13, v13, 1, s3
    v_cvt_f32_u32 v13, v13
    v_mul_f32 v13, 0x3a000000, v13
    v_lshrrev_b32 v14, 4, v1
    v_lshlrev_b32 v14, 3, v14
    v_cvt_f32_u32 v14, v14
    s_cmp_ge_u32 s{S_VAR}, 2
    s_cselect_b32 s3, 0x3e800000, 0
    v_fma_f32 v{GA}, v13, v14, s3
    v_mul_f32 v14, 0x42000000, v13
    v_lshlrev_b32 v16, 4, v1
    s_lshl_b32 s3, s{S_W}, 10
    v_add_u32 v16, s3, v16
    v_add_u32 v17, 0x10000, v16
    """)
    for i in range(1, 8):
        A(f"v_add_f32 v{GA+i}, v13, v{GA+i-1}")
    for i in range(8):
        A(f"v_add_f32 v{GT+i}, v14, v{GA+i}")
    A("v_cos_f32 v14, v14")
    for i in range(16):
        A(f"v_cos_f32 v{GA+i}, v{GA+i}")
    A("v_add_f32 v14, v14, v14")
    A("v_mov_b32 v184, v14\nv_mov_b32 v186, v16\nv_mov_b32 v187, v17")
    cg = [0]

    def cgen(n):
        for sb in range(cg[0], min(16, cg[0] + n)):
            cur, oth = (GA, GT) if sb % 2 == 0 else (GT, GA)
            if sb >= 2:
                for i in range(4):
                    A(f"v_pk_fma_f32 {v(cur+2*i,2)}, {v(oth+2*i,2)}, v[184:185], {v(cur+2*i,2)} op_sel_hi:[1,0,1] neg_lo:[0,0,1] neg_hi:[0,0,1]")
            d = GT + 8 + 4 * (sb & 1)
            for i in range(4):
                A(f"v_cvt_pk_bf16_f32 v{d+i}, v{cur+2*i}, v{cur+2*i+1}")
            A.lds(f"ds_write_b128 v{186 + sb//8}, {v(d,4)} offset:{(sb%8)*8192}")
        cg[0] = min(16, cg[0] + n)
    cgen(opt.get("c0", 6))
    A.stamp(1)
    A(f"""
    v_cmp_eq_u32 s[26:27], 0, v3
    v_cndmask_b32 v21, 0, 2.0, vcc
    v_cmp_eq_u32 vcc, 28, v3
    v_mov_b32 v24, 0
    v_cndmask_b32 v20, v21, 1.0, s[26:27]
    v_mov_b32 v25, 0
    v_cndmask_b32 v20, v20, 1.0, vcc
    v_mov_b32 v26, 0
    v_mov_b32 v27, 0
    """)
    E = lambda rho: EO + rho * 16
    O = lambda rho: EO + rho * 16 + 8
    for rho in range(4):
        A.wait(vm=("x", rho))
        if rho == opt.get("t2", 3):
            wtouch(18)
        F = RAW + rho * 8
        M = F + 4
        A(f"v_mov_b32_dpp v{24+rho}, v{M} row_bcast:15 row_mask:0xa bank_mask:0xf")
        for i in range(4):
            A(f"v_lshlrev_b32 v{TF+2*i}, 16, v{F+i}\nv_and_b32 v{TF+2*i+1}, 0xffff0000, v{F+i}")
        A(f"v_mov_b32_dpp v{24+rho}, v{M} row_shr:1 row_mask:0xf bank_mask:0xf")
        for j in range(1, 8):
            k = 8 - j
            if k & 1:
                A(f"v_and_b32 v{TM+j}, 0xffff0000, v{M + k//2}")
            else:
                A(f"v_lshlrev_b32 v{TM+j}, 16, v{M + k//2}")
        A(f"v_lshlrev_b32 v{TM}, 16, v{24+rho}")
        for i in range(4):
            A(f"v_pk_add_f32 {v(E(rho)+2*i,2)}, {v(TF+2*i,2)}, {v(TM+2*i,2)}")
            A(f"v_pk_add_f32 {v(O(rho)+2*i,2)}, {v(TF+2*i,2)}, {v(TM+2*i,2)} neg_lo:[0,1] neg_hi:[0,1]")
        sm, sq = ST + 4 * rho, ST + 4 * rho + 2
        for i in range(4):
            if i == 0:
                A(f"v_pk_add_f32 {v(sm,2)}, {v(E(rho),2)}, {v(E(rho)+2,2)}")
                A(f"v_pk_mul_f32 {v(sq,2)}, {v(E(rho),2)}, {v(E(rho),2)}")
            else:
                if i > 1:
                    A(f"v_pk_add_f32 {v(sm,2)}, {v(sm,2)}, {v(E(rho)+2*i,2)}")
                A(f"v_pk_fma_f32 {v(sq,2)}, {v(E(rho)+2*i,2)}, {v(E(rho)+2*i,2)}, {v(sq,2)}")
            A(f"v_pk_fma_f32 {v(sq,2)}, {v(O(rho)+2*i,2)}, {v(O(rho)+2*i,2)}, {v(sq,2)}")
    A.stamp(2)
    for rho in range(4):
        A(f"v_add_f32 v{ST+4*rho}, v{ST+4*rho}, v{ST+4*rho+1}\nv_add_f32 v{ST+4*rho+2}, v{ST+4*rho+2}, v{ST+4*rho+3}")
    for i in range(4):
        A(f"v_permlane16_swap_b32 v{ST+2*i}, v{ST+8+2*i}")
    for i in range(4):
        A(f"v_add_f32 v{ST+2*i}, v{ST+2*i}, v{ST+8+2*i}")
    for sh in (8, 4, 2, 1):
        for i in range(4):
            r = ST + 2 * i
            A(f"v_add_f32_dpp v{r}, v{r}, v{r} row_ror:{sh} row_mask:0xf bank_mask:0xf")
    R_, C_ = 24, 28
    A(f"s_mov_b32 s3, {0x3b124925}\ns_mov_b32 s26, {0x3a924925}\ns_mov_b32 s27, {0x3727c5ac}")
    seq_ = [
        lambda b: f"v_mul_f32 v{b}, s3, v{b}\nv_mul_f32 v{b+2}, s26, v{b+2}",
        lambda b: f"v_fma_f32 v{b+2}, -v{b}, v{b}, v{b+2}",
        lambda b: f"v_max_f32 v{b+2}, 0, v{b+2}",
        lambda b: f"v_cvt_pk_bf16_f32 v{b+1}, v{b}, v{b+2}",
        lambda b: f"v_lshlrev_b32 v{b}, 16, v{b+1}\nv_and_b32 v{b+2}, 0xffff0000, v{b+1}",
        lambda b: f"v_add_f32 v{b+2}, s27, v{b+2}",
        lambda b: f"v_cvt_pk_bf16_f32 v{b+2}, v{b+2}, v{b+2}",
        lambda b: f"v_and_b32 v{b+2}, 0xffff0000, v{b+2}",
        lambda b: f"v_sqrt_f32 v{b+2}, v{b+2}",
        lambda b: f"s_nop 0\nv_cvt_pk_bf16_f32 v{b+2}, v{b+2}, v{b+2}",
        lambda b: f"v_and_b32 v{b+2}, 0xffff0000, v{b+2}",
    ]
    for f in seq_:
        for rho in range(2):
            A(f(ST + 4 * rho))
    for rho in range(2):
        A(f"v_rcp_f32 v{R_+rho}, v{ST+4*rho+2}")
    A("s_nop 0")
    for rho in range(2):
        A(f"v_mul_f32 v{C_+rho}, v{ST+4*rho}, v{R_+rho}")
    for r in (R_, R_ + 1, C_, C_ + 1):
        A(f"v_mov_b32 v{r+2}, v{r}")
    A("s_nop 0")
    for r in (R_, R_ + 1, C_, C_ + 1):
        A(f"v_permlane16_swap_b32 v{r}, v{r+2}")
    A(f"""
    v_cmp_eq_u32 vcc, 1, v3
    v_cmp_eq_u32 s[26:27], 2, v3
    v_mov_b32 v8, v4
    v_mov_b32 v9, v{R_}
    v_cndmask_b32 v8, v8, v5, vcc
    v_cndmask_b32 v9, v9, v{R_+1}, vcc
    v_cmp_eq_u32 vcc, 3, v3
    v_cndmask_b32 v8, v8, v6, s[26:27]
    v_cndmask_b32 v9, v9, v{R_+2}, s[26:27]
    v_cndmask_b32 v8, v8, v7, vcc
    v_cndmask_b32 v9, v9, v{R_+3}, vcc
    v_cmp_gt_u32 vcc, 4, v3
    v_lshlrev_b32 v8, 2, v8
    v_add_u32 v8, {WS_RSTD}, v8
    v_cndmask_b32 v8, v12, v8, vcc
    """)
    A.vmem(f"buffer_store_dword v9, v8, s[{sWS}:{sWS+3}], 0 offen sc1")
    A(f"s_or_b32 s3, s{S_Q}, s{S_W}\ns_cmp_lg_u32 s3, 0\ns_cbranch_scc1 L_no512")
    A(f"v_add_f32 v10, v{C_+1}, v{C_+3}")
    for j in range(8):
        A(f"v_mul_f32 v{TF+j}, v10, v{20+(1 if j else 0)}")
        A(f"v_fma_f32 v{TF+j}, v{E(1)+j}, v{R_+1}, -v{TF+j}")
        A(f"v_fma_f32 v{TF+j}, v{E(3)+j}, v{R_+3}, v{TF+j}")
        A(f"v_mul_f32 v{TM+j}, v{O(1)+j}, v{R_+1}")
        A(f"v_fma_f32 v{TM+j}, -v{O(3)+j}, v{R_+3}, v{TM+j}")
    for i in range(4):
        A(f"v_cvt_pk_bf16_f32 v{RAW+i}, v{TF+2*i}, v{TF+2*i+1}")
        A(f"v_cvt_pk_bf16_f32 v{RAW+4+i}, v{TM+2*i}, v{TM+2*i+1}")
    A(f"v_lshlrev_b32 v10, 4, v3\nv_add_u32 v10, {WS_X512}, v10\nv_cndmask_b32 v10, v12, v10, s[100:101]")
    A(f"buffer_store_dwordx4 {v(RAW,4)}, v10, s[{sWS}:{sWS+3}], 0 offen sc1")
    A(f"buffer_store_dwordx4 {v(RAW+4,4)}, v10, s[{sWS}:{sWS+3}], 0 offen offset:{3*512} sc1")
    A("s_nop 1")
    A("L_no512:")
    for r in (R_ + 1, R_ + 3, C_ + 1, C_ + 3):
        A(f"v_cndmask_b32 v{r}, v{r}, 0, s[100:101]")
    A(f"v_add_f32 v{C_}, v{C_}, v{C_+1}\nv_add_f32 v{C_+2}, v{C_+2}, v{C_+3}")
    OUT = lambda var: RAW + var * 8
    bl = "op_sel_hi:[1,0,1]"
    bh = "op_sel:[0,1,0] op_sel_hi:[1,1,1]"
    A(f"v_pk_mul_f32 v[8:9], v[20:21], {v(C_,2)} op_sel_hi:[1,0] neg_lo:[1,0] neg_hi:[1,0]")
    A(f"v_pk_mul_f32 v[10:11], v[20:21], {v(C_+2,2)} op_sel_hi:[1,0] neg_lo:[1,0] neg_hi:[1,0]")
    for i in range(4):
        s3lo, s3hi = (0, 1) if i == 0 else (1, 1)
        a_, b_ = TF, TF + 2
        A(f"v_pk_fma_f32 {v(a_,2)}, {v(E(0)+2*i,2)}, {v(R_,2)}, v[8:9] op_sel:[0,0,{s3lo}] op_sel_hi:[1,0,{s3hi}]")
        A(f"v_pk_fma_f32 {v(b_,2)}, {v(E(2)+2*i,2)}, {v(R_+2,2)}, v[10:11] op_sel:[0,0,{s3lo}] op_sel_hi:[1,0,{s3hi}]")
        A(f"v_pk_mul_f32 {v(TM,2)}, {v(O(0)+2*i,2)}, {v(R_,2)} op_sel_hi:[1,0]")
        A(f"v_pk_mul_f32 {v(TM+2,2)}, {v(O(3)+2*i,2)}, {v(R_+2,2)} op_sel:[0,1] op_sel_hi:[1,1]")
        A(f"v_pk_fma_f32 {v(a_,2)}, {v(E(1)+2*i,2)}, {v(R_,2)}, {v(a_,2)} {bh}")
        A(f"v_pk_fma_f32 {v(b_,2)}, {v(E(3)+2*i,2)}, {v(R_+2,2)}, {v(b_,2)} {bh}")
        A(f"v_pk_fma_f32 {v(TM,2)}, {v(O(1)+2*i,2)}, {v(R_,2)}, {v(TM,2)} {bh} neg_lo:[1,0,0] neg_hi:[1,0,0]")
        A(f"v_pk_fma_f32 {v(TM+2,2)}, {v(O(2)+2*i,2)}, {v(R_+2,2)}, {v(TM+2,2)} {bl} neg_lo:[1,0,0] neg_hi:[1,0,0]")
        A(f"v_pk_add_f32 {v(OUT(0)+2*i,2)}, {v(a_,2)}, {v(b_,2)}")
        A(f"v_pk_add_f32 {v(OUT(1)+2*i,2)}, {v(a_,2)}, {v(b_,2)} neg_lo:[0,1] neg_hi:[0,1]")
        A(f"v_pk_add_f32 {v(OUT(2)+2*i,2)}, {v(TM,2)}, {v(TM+2,2)}")
        A(f"v_pk_add_f32 {v(OUT(3)+2*i,2)}, {v(TM,2)}, {v(TM+2,2)} neg_lo:[0,1] neg_hi:[0,1]")
    PKD = EO
    FS = 131072
    A(f"""
    v_lshlrev_b32 v8, 13, v2
    v_lshrrev_b32 v9, 1, v3
    v_lshl_add_u32 v8, v9, 9, v8
    v_and_b32 v10, 7, v9
    v_lshl_add_u32 v8, v10, 4, v8
    v_and_b32 v10, 1, v3
    v_lshl_add_u32 v8, v10, 7, v8
    v_and_b32 v9, 8, v9
    v_or_b32 v8, v8, v9
    s_lshr_b32 s3, s{S_W}, 2
    s_lshl_b32 s3, s3, 8
    s_and_b32 s27, s{S_W}, 3
    s_lshl_b32 s27, s27, 2
    s_add_u32 s3, s3, s27
    s_add_u32 s3, s3, {FS}
    v_xor_b32 v8, s3, v8
    """)
    for j in range(1, 8):
        A(f"v_xor_b32 v{8+j}, {j<<4}, v8")
    for pr in range(2):
        for j in range(8):
            A(f"v_permlane32_swap_b32 v{OUT(2*pr)+j}, v{OUT(2*pr+1)+j}")
        for j in range(8):
            A(f"v_cvt_pk_bf16_f32 v{PKD+8*pr+j}, v{OUT(2*pr)+j}, v{OUT(2*pr+1)+j}")
        for j in range(8):
            A.lds(f"ds_write_b32 v{8+j}, v{PKD+8*pr+j} offset:{pr*16384}")
    A(f"""
    v_xor_b32 v28, v3, v2
    v_lshlrev_b32 v28, 4, v28
    v_lshl_add_u32 v28, v2, 9, v28
    s_lshl_b32 s3, s{S_W}, 12
    s_and_b32 s27, s{S_W}, 1
    s_lshl_b32 s27, s27, 3
    s_add_u32 s3, s3, s27
    s_add_u32 s3, s3, {FS}
    v_add_u32 v28, s3, v28
    v_lshlrev_b32 v27, 4, v3
    v_lshl_add_u32 v27, v2, 14, v27
    s_lshr_b32 s3, s{S_Q}, 1
    s_lshl_b32 s3, s3, 10
    s_and_b32 s27, s{S_Q}, 1
    s_lshl_b32 s27, s27, 9
    s_add_u32 s3, s3, s27
    s_lshl_b32 s27, s{S_W}, 17
    s_add_u32 s3, s3, s27
    s_add_u32 s3, s3, {WS_XF}
    """)
    for k in range(1, 8):
        A(f"v_xor_b32 v{RAW+16+k}, {(k>>1)*32 + (k&1)*8}, v28")
    A.wait(lg=0)
    A("s_barrier")
    for i in range(4):
        for hh in range(2):
            k = 2 * i + hh
            A.lds(f"ds_read_b64 {v(RAW+4*i+2*hh,2)}, v{RAW+16+k if k else 28} offset:{i*1024}", ("rb", i))
    for i in range(4):
        A.wait(lg=("rb", i))
        A.vmem(f"buffer_store_dwordx4 {v(RAW+4*i,4)}, v27, s[{sWS}:{sWS+3}], s3 offen sc1", "xst")
        A(f"s_add_u32 s3, s3, 32768")
    A.stamp(3)
    cgen(opt.get("c1", 4))
    cg_left = cg[0]
    A(f"s_cmp_ge_u32 s{S_W}, 4\ns_cbranch_scc1 L_dft_helper")
    dstate = (list(A.vm), A.vm_done)
    SACC, SEX, CF, XF = 32, 96, [104, 136], 168
    KALT, B512, X5 = 4, 8, [12, 16]
    CA = 22
    S_XA = 15
    A(f"""
    v_lshlrev_b32 v{CA}, 4, v1
    v_and_b32 v26, 1, v1
    s_cmp_ge_u32 s{S_VAR}, 2
    s_cselect_b32 s100, 1, 0
    s_cselect_b32 s101, 0x80008000, 0
    v_xor_b32 v26, s100, v26
    v_lshlrev_b32 v26, 15, v26
    v_or_b32 v{B512}, 0x3f80, v26
    s_lshl_b32 s26, s{S_N}, 3
    s_lshl_b32 s27, s{S_W}, 1
    s_add_u32 s26, s26, s27
    s_lshl_b32 s3, s{S_VAR}, 4
    s_add_u32 s3, s3, s26
    s_lshl_b32 s{S_XA}, s3, 14
    s_add_u32 s{S_XA}, s{S_XA}, {WS_XF}
    s_lshl_b32 s3, s{S_M}, 15
    v_add_u32 v{CA}, s3, v{CA}
    s_add_u32 s3, s3, 32768
    s_and_b32 s3, s3, 0x1ffff
    v_lshl_add_u32 v{CA+1}, v1, 4, s3
    v_xor_b32 v{CA+2}, 0x10000, v{CA}
    v_xor_b32 v{CA+3}, 0x10000, v{CA+1}
    s_mov_b32 s{S_R}, s{S_M}
    s_lshl_b32 s26, s26, 5
    s_lshl_b32 s27, s{S_VAR}, 9
    s_add_u32 s26, s26, s27
    s_add_u32 s26, s26, {WS_X512}
    v_lshl_add_u32 v27, v1, 1, s26
    s_add_u32 s3, s{S_VAR}, 1
    s_and_b32 s3, s3, 2
    s_cmp_eq_u32 s3, 0
    s_cselect_b32 s3, 16, 0
    v_cmp_gt_u32 vcc, s3, v1
    v_mov_b32 v26, {OOB}
    v_lshlrev_b32 v28, 4, v1
    v_cndmask_b32 v27, v26, v27, vcc
    v_add_u32 v29, 16384, v28
    s_or_b32 s3, s{S_M}, s{S_VAR}
    s_cmp_eq_u32 s3, 0
    s_cselect_b32 vcc_lo, 1, 0
    s_mov_b32 vcc_hi, 0
    """)
    for i in range(4):
        A(f"v_mov_b32 v{KALT+i}, 0xbf803f80")
    for i in range(8):
        A(f"v_mov_b32 v{SEX+i}, 0")
    A.wait(vm="xst")
    A("s_barrier")
    A.stamp(4)
    cgen(16)
    A.wait(lg=0)
    for i in range(1, 4):
        A(f"v_mov_b32 v{B512+i}, 0\nv_mov_b32 v{X5[0]+i}, 0\nv_mov_b32 v{X5[1]+i}, 0")

    def c_reads(sb):
        return [lambda tb=tb: A.lds(f"ds_read_b128 {v(CF[sb&1]+4*tb,4)}, v{CA + sb//4} offset:{(sb%4)*8192 + tb*1024}", ("cf", sb))
                for tb in range(8)]

    def x_th(sb):
        r = []
        for a_ in range(2):
            def f(a_=a_):
                if sb % 4 == 0 and a_ == 0:
                    A(f"s_add_u32 s94, s{S_R}, {sb // 4}\ns_and_b32 s94, s94, 3\ns_lshl_b32 s94, s94, 12\ns_add_u32 s94, s94, s{S_XA}")
                A.vmem(f"buffer_load_dwordx4 {v(XF + (sb % 11)*8 + 4*a_, 4)}, v{28+a_}, s[{sWS}:{sWS+3}], s94 offen offset:{(sb%4)*1024} {HLD}", ("xf", sb))
            r.append(f)
        return r

    def extra(xa0, xa1):
        L = A.label("L_nx")
        A(f"s_cbranch_vccz {L}")
        A.mfma(SEX, xa0, KALT)
        A.mfma(SEX + 4, xa1, KALT)
        A(f"{L}:")
    A("s_barrier")
    A.stamp(5)
    XD = opt.get("xd", 4)
    for sb in range(XD):
        for f in x_th(sb):
            f()
    for f in c_reads(0):
        f()
    xnext = XD
    for sb in range(16):
        fl = list(enumerate(c_reads(sb + 1))) if sb + 1 < 16 else []
        nx = [k for k in (xnext, xnext + 1) if k <= min(15, sb + 10)]
        xnext += len(nx)
        k0 = 0
        for k in nx:
            for f in x_th(k):
                fl.append((8 + 2 * k0, f)); k0 += 1
        if sb == 8:
            fl.append((13, lambda: A.vmem(f"buffer_load_ushort v{X5[0]}, v27, s[{sWS}:{sWS+3}], 0 offen {HLD}", "x5")))
            fl.append((15, lambda: A.vmem(f"buffer_load_ushort v{X5[1]}, v27, s[{sWS}:{sWS+3}], 0 offen offset:32 {HLD}", "x5")))
        A.wait(vm=("xf", sb), lg=("cf", sb))
        z = "0" if sb == 0 else None
        xa = XF + (sb % 11) * 8
        A.weave([lambda a_=a_, tb=tb: A.mfma(SACC + (a_ * 8 + tb) * 4, xa + 4 * a_, CF[sb & 1] + 4 * tb, z)
                 for a_ in range(2) for tb in range(8)], fl)
        extra(xa, xa + 4)
    A.wait(vm="x5")
    extra(X5[0], X5[1])
    for tb in range(8):
        for a_ in range(2):
            A.mfma(SACC + (a_ * 8 + tb) * 4, X5[a_], B512)
    A.stamp(6)
    A(f"""
    s_lshl_b32 s3, s{S_M}, 3
    s_add_u32 s3, s3, s{S_P}
    s_lshl_b32 s3, s3, 5
    s_lshl_b32 s27, s100, 3
    s_lshl_b32 s26, s{S_N}, 2
    s_add_u32 s27, s27, s26
    s_add_u32 s27, s27, s{S_W}
    s_add_u32 s3, s3, s27
    s_lshl_b32 s3, s3, 10
    s_add_u32 s3, s3, {WS_VV}
    s_lshl_b32 s27, s27, 10
    s_add_u32 s{S_XA}, s27, {WS_VV + 64*16384}
    """)
    D0 = CF[0]
    for tb in range(8):
        d = D0 + 4 * tb
        for a_ in range(2):
            s0 = SACC + (a_ * 8 + tb) * 4
            A(f"v_cvt_pk_bf16_f32 v{d+2*a_}, v{s0}, v{s0+1}\nv_cvt_pk_bf16_f32 v{d+2*a_+1}, v{s0+2}, v{s0+3}")
        for i in range(4):
            A(f"v_xor_b32 v{d+i}, s101, v{d+i}")
        A(f"s_add_u32 s27, s3, {((tb >> 1) * 4 + (tb & 1)) * 16384}")
        A.vmem(f"buffer_store_dwordx4 {v(d,4)}, v28, s[{sWS}:{sWS+3}], s27 offen sc1")
    A("s_cbranch_vccz L_nospecial")
    A("s_mov_b32 s26, 0x00010001\ns_mov_b32 s27, 0x00010001")
    for i in range(4):
        A(f"v_cvt_pk_bf16_f32 v{XF+i}, v{SEX+2*i}, v{SEX+2*i+1}")
    for i in range(4):
        A(f"v_cndmask_b32 v{XF+i}, v{D0+i}, v{XF+i}, s[26:27]")
    A(f"buffer_store_dwordx4 {v(XF,4)}, v28, s[{sWS}:{sWS+3}], s{S_XA} offen sc1")
    A("L_nospecial:")
    A.wait(vm=0)
    A("s_barrier")
    A.stamp(7)
    A.dump_stamps(8)
    A("s_endpgm")

    A.reset()
    A("L_dft_helper:")
    A.vm, A.vm_done = dstate
    S_DT = 94
    A.wait(vm="xst")
    A(f"""
    v_readfirstlane_b32 s{S_DT}, v191
    v_lshlrev_b32 v4, 7, v1
    v_lshlrev_b32 v6, 2, v1
    s_lshl_b32 s3, s{S_Q}, 2
    s_add_u32 s3, s3, {WS_XFLAG}
    s_mul_i32 s{S_DT}, s{S_DT}, {TAGMUL}
    s_add_u32 s{S_DT}, s{S_DT}, {TAGADD}
    v_mov_b32 v5, s{S_DT}
    s_barrier
    s_cmp_eq_u32 s{S_W}, 4
    s_cbranch_scc0 L_nox
    s_setprio 3
    s_mov_b64 exec, 0xff
    buffer_store_dword v5, v4, s[{sWS}:{sWS+3}], s3 offen sc1
    s_mov_b64 exec, -1
    L_nox:
    """)
    A.stamp(4)
    cg[0] = cg_left
    cgen(16)
    A(f"""
    s_waitcnt lgkmcnt(0)
    s_cmp_eq_u32 s{S_W}, 4
    s_cbranch_scc0 L_end
    s_lshl_b32 s3, s{S_XCD}, 7
    s_add_u32 s3, s3, {WS_XFLAG}
    """)
    A.poll(6, sWS, "s3", "eq", 32, S_DT, sleep=opt.get("xps", 1))
    A.stamp(5)
    A("s_barrier")
    A("v_mov_b32 v8, 0")
    A(f"""
    s_lshl_b32 s3, s{S_VAR}, 2
    s_add_u32 s3, s3, s{S_M}
    s_lshl_b32 s3, s3, 5
    s_add_u32 s3, s3, s{S_N}
    s_lshl_b32 s3, s3, 2
    s_add_u32 s3, s3, {WS_VFLAG}
    s_barrier
    s_mov_b64 exec, 1
    buffer_store_dword v5, v8, s[{sWS}:{sWS+3}], s3 offen sc1
    """)
    A(f"s_cmp_lg_u32 s{S_Q}, 0\ns_cbranch_scc1 L_noepw")
    A(f"s_mov_b64 exec, -1\nv_and_b32 v9, 7, v1\nv_min_u32 v9, 6, v9\nv_lshlrev_b32 v9, 2, v9\nv_lshrrev_b32 v10, 3, v1\nv_lshl_add_u32 v9, v10, 7, v9")
    for i in range(4):
        A(f"s_mov_b32 s3, {WS_HFLAG + 16 + i*1024}")
        A.poll(9, sWS, "s3", "eq", 64, S_DT)
    A(f"s_mov_b32 s3, {WS_EPOCH}\ns_mov_b64 exec, 1\nbuffer_store_dword v5, v8, s[{sWS}:{sWS+3}], s3 offen sc1")
    A("L_noepw:")
    A.stamp(6)
    A.dump_stamps(8)
    A("L_end:")
    A("s_endpgm")
    A("L_code_end:")

    hdr = open("parallel_sum__spectral_fnet__dense_activation_relu__prompt.s.ref").read().split("; Override")[0]
    return (hdr + "; @launch grid=(256,1,1) block=(512,1,1) lds=163840\n"
            + ".amdgcn_target \"amdgcn-amd-amdhsa--gfx950\"\n" + kernel_header(NAME) + A.text() + kernel_desc(NAME, 256, 256))


if __name__ == "__main__":
    out = sys.argv[1]
    stamps = len(sys.argv) > 2 and sys.argv[2] == "stamps"
    opt = {}
    for kv in sys.argv[3:]:
        k, x = kv.split("=")
        opt[k] = int(x) if x.lstrip("-").isdigit() else x
    open(out, "w").write(gen(stamps, opt))
```

```python
import sys
from kbase import *

TAGMUL, TAGADD = 0x9E3779B1, 0x7F4A7C15


def wblk(i):
    if i < 24:
        return 65536 + 4096 * i
    if i < 28:
        return 32768 + 4096 * (i - 24)
    return 65536 + 4096 * (i - 28)


def mod7(A, s, tmp, maxv):
    m = 7
    while m * 2 < maxv:
        m *= 2
    while m >= 7:
        A(f"s_cmp_ge_u32 s{s}, {m}\ns_cselect_b32 s{tmp}, {m}, 0\ns_sub_u32 s{s}, s{s}, s{tmp}")
        m //= 2


def code_touch(A, vb=118):
    L = A.label("L_pc")
    A(f"""
    s_getpc_b64 s[48:49]
    {L}:
    s_sub_u32 s48, s48, {L}-{NAME}
    s_subb_u32 s49, s49, 0
    s_mov_b32 s50, L_code_end-{NAME}
    s_mov_b32 s51, 0x20000
    v_lshlrev_b32 v{vb}, 12, v1
    s_lshl_b32 s3, s{S_J}, 7
    v_add_u32 v{vb}, s3, v{vb}
    s_mov_b64 exec, 0x3ff
    buffer_load_dword v{vb+1}, v{vb}, s[48:51], 0 offen
    s_mov_b64 exec, -1
    """)


def start_touch(A, opt, what, vb=10):
    fl = opt.get("tfl", "")
    if what == "x":
        A(f"""
        s_lshl_b32 s3, s{S_XCD}, 2
        s_lshr_b32 s27, s{S_J}, 3
        s_add_u32 s3, s3, s27
        s_lshl_b32 s3, s3, 4
        s_and_b32 s27, s{S_J}, 1
        s_lshl_b32 s27, s27, 3
        s_add_u32 s3, s3, s27
        v_lshrrev_b32 v{vb+1}, 3, v1
        v_add_u32 v{vb+1}, s3, v{vb+1}
        s_bfe_u32 s3, s{S_J}, 0x20001
        s_add_u32 s27, s3, 1
        s_and_b32 s27, s27, 2
        s_sub_u32 s27, 1, s27
        v_mul_i32_i24 v{vb+1}, s27, v{vb+1}
        s_cmp_eq_u32 s3, 0
        s_cselect_b32 s27, 0, 1024
        s_cmp_eq_u32 s3, 1
        s_cselect_b32 s27, 2048, s27
        v_add_u32 v{vb+1}, s27, v{vb+1}
        v_mul_u32_u24 v{vb+1}, 896, v{vb+1}
        v_and_b32 v{vb+2}, 7, v1
        v_min_u32 v{vb+2}, 6, v{vb+2}
        v_lshl_add_u32 v{vb+1}, v{vb+2}, 7, v{vb+1}
        buffer_load_dword v{vb+3}, v{vb+1}, s[{sX}:{sX+3}], 0 offen {fl}
        """)
    else:
        A(f"""
        s_cmp_ge_u32 s{S_XCD}, 4
        s_cselect_b32 s{sOUT}, s8, s6
        s_cselect_b32 s{sOUT+1}, s9, s7
        s_and_b32 s{sOUT+1}, s{sOUT+1}, 0xffff
        s_mov_b32 s{sOUT+2}, {2048*4096}
        s_mov_b32 s{sOUT+3}, 0x20000
        s_and_b32 s3, s{S_XCD}, 1
        s_lshl_b32 s3, s3, 5
        s_add_u32 s3, s3, s{S_J}
        s_lshl_b32 s3, s3, 4
        s_bfe_u32 s27, s{S_XCD}, 0x10001
        s_add_u32 s3, s3, s27
        s_lshl_b32 s3, s3, 12
        v_lshrrev_b32 v{vb}, 3, v1
        v_lshlrev_b32 v{vb}, 13, v{vb}
        v_and_b32 v{vb+1}, 7, v1
        v_lshl_add_u32 v{vb}, v{vb+1}, 7, v{vb}
        buffer_load_dword v{vb+2}, v{vb}, s[{sOUT}:{sOUT+3}], s3 offen {fl}
        """)


def gen(stamps=False, opt=None):
    opt = opt or {}
    HST = opt.get("hst", "sc1")
    HLD = opt.get("hld", "")
    TOUCH_AT = opt.get("touch_at", 2)
    HD = opt.get("hd", 12)
    VAT = opt.get("vat", 22)
    A = K(stamps)
    P2 = opt.get('p2', 0)
    P1 = opt.get('p1', 0)
    st1 = lambda i: None if (P2 or P1) else A.stamp(i)
    _stamp = A.stamp
    if opt.get('light'):
        P1 = 0
        A.stamp = lambda i: _stamp(i) if i == 0 else None
    if P1:
        A.stamp = lambda i: _stamp(i) if i == 0 else None
    st2 = lambda i: A.stamp(i) if P2 else None
    A.stamp(0)
    if opt.get("dbg"):
        A("s_memrealtime s[92:93]\ns_memtime s[90:91]")
    A("""
    s_load_dwordx16 s[4:19], s[0:1], 0
    s_load_dwordx4 s[20:23], s[0:1], 64
    s_load_dwordx2 s[24:25], s[0:1], 80
    s_cmp_ge_u32 s2, 256
    s_cbranch_scc1 L_end
    v_lshrrev_b32 v2, 6, v0
    v_and_b32 v1, 63, v0
    """)
    A(f"s_and_b32 s{S_XCD}, s2, 7\ns_lshr_b32 s{S_J}, s2, 3")
    A(f"v_readfirstlane_b32 s{S_W}, v2")
    A(f"s_cmp_ge_u32 s{S_J}, 28\ns_cbranch_scc1 L_dft")

    S_RB, S_FT, S_KX, S_KW, S_MX, S_MW, S_T, S_CT = 63, 96, 97, 98, 99, 100, 101, 26
    S_FTL, S_JX, S_TAG, S_PF = 14, 86, 58, 59
    S_M2, S_K2, S_G2, S_HF, S_PT = 56, 57, 95, 94, 58
    A(f"""
    s_mul_i32 s27, s{S_J}, 37
    s_lshr_b32 s27, s27, 8
    s_mul_i32 s3, s27, 7
    s_sub_u32 s{S_CT}, s{S_J}, s3
    s_and_b32 s{S_RB}, s{S_XCD}, 6
    s_lshl_b32 s{S_RB}, s{S_RB}, 1
    s_add_u32 s{S_RB}, s{S_RB}, s27
    s_lshl_b32 s27, s27, 1
    s_add_u32 s{S_G2}, s{S_CT}, s27
    """)
    mod7(A, S_G2, 3, 14)
    VD, XA, WA, ONES = 2, 8, 16, 20
    VW2, VEP = 6, 18
    FX = [24, 48]; FW = [40, 64]
    ACC, RS, CS = 72, 104, 108
    S_MD = 52
    sL = sW1
    A(f"""
    s_and_b32 s{S_JX}, s{S_XCD}, 1
    s_mul_i32 s3, s{S_JX}, 7
    s_add_u32 s{S_FT}, s{S_G2}, s3
    v_lshrrev_b32 v31, 4, v1
    s_movk_i32 s3, 0xe2
    s_bitcmp1_b32 s3, s{S_W}
    s_cbranch_scc1 L_ldw
    s_max_u32 s{S_KX}, s{S_W}, 1
    s_lshl_b32 s{S_KX}, s{S_KX}, 2
    s_mul_i32 s3, s{S_CT}, 37
    s_lshr_b32 s3, s3, 4
    s_add_u32 s{S_KX}, s{S_KX}, s3
    s_add_u32 s{S_KX}, s{S_KX}, 12
    v_lshrrev_b32 v30, 3, v1
    v_lshlrev_b32 v30, 1, v30
    v_and_b32 v32, 7, v1
    v_xor_b32 v32, v32, v31
    s_lshl_b32 s{S_KW}, s{S_RB}, 6
    """)
    for i in range(4):
        A(f"""
        s_add_u32 s{S_MD+i}, s{S_KX}, {i}
        s_and_b32 s{S_MD+i}, s{S_MD+i}, 15
        s_lshr_b32 s3, s{S_MD+i}, 3
        s_add_u32 s3, s3, s{S_KW}
        s_and_b32 s27, s{S_MD+i}, 3
        s_lshl_b32 s27, s27, 4
        s_add_u32 s3, s3, s27
        v_add_u32 v33, s3, v30
        v_sub_u32 v34, 2048, v33
        v_lshrrev_b32 v35, 11, v34
        v_lshlrev_b32 v35, 10, v35
        v_sub_u32 v34, v34, v35
        s_bitcmp1_b32 s{S_MD+i}, 2
        s_cselect_b64 vcc, -1, 0
        s_and_b32 s27, s{S_MD+i}, 1
        s_lshl_b32 s27, s27, 2
        v_cndmask_b32 v33, v33, v34, vcc
        v_xor_b32 v34, s27, v32
        v_mul_u32_u24 v33, 896, v33
        s_lshl_b32 s{S_MD+i}, s{S_MD+i}, 10
        v_lshl_add_u32 v{VD+i}, v34, 4, v33
        """)
    A(f"s_movk_i32 s{S_MX}, 128\ns_waitcnt lgkmcnt(0)")
    A.srd(sL, 4, 2048 * 896)
    A("s_branch L_ldok")
    A("L_ldw:")
    A(f"""
    s_max_u32 s{S_KX}, s{S_W}, 4
    s_add_u32 s{S_KX}, s{S_KX}, s{S_RB}
    s_lshl_b32 s{S_KX}, s{S_KX}, 2
    v_lshlrev_b32 v33, 1, v31
    v_and_b32 v34, 15, v1
    v_xor_b32 v33, v33, v34
    v_mul_u32_u24 v34, 3584, v31
    v_lshl_add_u32 v32, v33, 4, v34
    v_xor_b32 v33, 128, v32
    s_and_b32 s{S_MD}, s{S_KX}, 15
    s_mul_i32 s27, s{S_MD}, {4*3584}
    s_lshl_b32 s3, s{S_FT}, 8
    s_add_u32 s27, s27, s3
    v_add_u32 v{VD}, s27, v32
    v_add_u32 v{VD+2}, s27, v33
    v_add_u32 v{VD+1}, {4*3584}, v{VD}
    v_add_u32 v{VD+2}, {8*3584}, v{VD+2}
    v_add_u32 v{VD+3}, {4*3584}, v{VD+2}
    s_lshl_b32 s{S_MD}, s{S_MD}, 10
    s_add_u32 s{S_MD}, s{S_MD}, 16384
    s_add_u32 s{S_MD+1}, s{S_MD}, 1024
    s_add_u32 s{S_MD+2}, s{S_MD}, 2048
    s_add_u32 s{S_MD+3}, s{S_MD}, 3072
    s_mov_b32 s{S_MX}, {64*3584}
    s_waitcnt lgkmcnt(0)
    """)
    A.srd(sL, 16, 448 * 3584)
    A("L_ldok:")
    A.srd(sX, 4, 2048 * 896)

    def p1_dmas(st):
        slot = st % 5
        return [A.dma2(VD + i, sL, f"s{S_KX}", f"s_add_u32 m0, s{S_MD+i}, {slot*32768}", ("p1", st),
                       pre=None if i else f"s_mul_i32 s{S_KX}, s{S_MX}, {st}", flags=p1fl[0]) for i in range(4)]
    p1fl = [""]

    def burst(dmas):
        for a_, b_ in dmas:
            a_(); A("s_nop 0"); b_()

    def p1_setup():
        A.srd(sWS, 24, WS_SIZE + (0x40000 if stamps else 0))
        A(f"""
        s_mov_b32 s{S_FTL}, s{S_G2}
        s_lshl_b32 s{S_HF}, s{S_XCD}, 2
        s_and_b32 s3, s{S_RB}, 3
        s_add_u32 s{S_HF}, s{S_HF}, s3
        s_lshl_b32 s{S_HF}, s{S_HF}, 7
        s_add_u32 s{S_HF}, s{S_HF}, {WS_HFLAG}
        v_mov_b32 v35, {WS_EPOCH}
        """)
        A.vmem(f"buffer_load_dword v{VEP}, v35, s[{sWS}:{sWS+3}], 0 offen sc1", "ep")
        A(f"""
        v_and_b32 v32, 15, v1
        v_lshrrev_b32 v33, 1, v32
        v_xor_b32 v33, v33, v31
        v_lshlrev_b32 v33, 4, v33
        v_lshl_add_u32 v33, v32, 7, v33
        s_lshl_b32 s3, s{S_W}, 11
        v_add_u32 v{XA}, s3, v33
        """)
        for rb in range(1, 4):
            A(f"v_xor_b32 v{XA+rb}, {rb*2048}, v{XA}")
        for rb in range(4):
            A(f"v_xor_b32 v{XA+4+rb}, 64, v{XA+rb}")
        A(f"""
        v_bfe_u32 v30, v1, 2, 2
        v_lshl_add_u32 v32, v31, 3, v30
        v_lshlrev_b32 v32, 8, v32
        v_and_b32 v33, 3, v1
        v_lshl_add_u32 v32, v33, 3, v32
        v_add_u32 v32, 16384, v32
        v_and_b32 v33, 1, v31
        v_lshl_or_b32 v33, v33, 2, v30
        s_and_b32 s3, s{S_W}, 3
        s_lshl_b32 s3, s3, 1
        s_lshr_b32 s27, s{S_W}, 2
        s_or_b32 s3, s3, s27
        v_xor_b32 v33, s3, v33
        v_lshl_add_u32 v{WA}, v33, 5, v32
        v_xor_b32 v{WA+1}, 32, v{WA}
        """)
        for i in range(4):
            A(f"v_mov_b32 v{ONES+i}, 0x3f803f80")
        A.srd(sW2, 18, 1792 * 896)
        A(f"""
        s_lshl_b32 s{S_T}, s{S_RB}, 1
        s_add_u32 s{S_T}, s{S_T}, s{S_JX}
        v_lshrrev_b32 v30, 3, v1
        v_mul_u32_u24 v32, 896, v30
        v_and_b32 v30, 6, v30
        v_and_b32 v33, 7, v1
        v_xor_b32 v30, v30, v33
        v_lshl_add_u32 v32, v30, 4, v32
        s_lshl_b32 s3, s{S_CT}, 7
        s_mul_i32 s27, s{S_W}, {8*896}
        s_add_u32 s3, s3, s27
        v_add_u32 v{VW2}, s3, v32
        s_lshl_b32 s{S_M2}, s{S_W}, 10
        """)

    def wpair_addr(p):
        if p < 12:
            return 65536 + 8192 * p
        if p < 14:
            return 16384 + 8192 * (p - 12)
        return [32768, 40960, 0, 65536, 49152, 57344, 8192, 73728][p - 14]

    def w_dma(p):
        if p < 14:
            srd = sW2
            if p % 2 == 0:
                pre = (f"s_mul_i32 s{S_K2}, s{S_JX}, 7\ns_add_u32 s{S_K2}, s{S_K2}, s{S_G2}\ns_mul_i32 s{S_K2}, s{S_K2}, {128*896}\n"
                       f"s_add_u32 s{S_G2}, s{S_G2}, 1\ns_cmp_eq_u32 s{S_G2}, 7\ns_cselect_b32 s{S_G2}, 0, s{S_G2}")
            else:
                pre = f"s_add_u32 s{S_K2}, s{S_K2}, {64*896}"
        else:
            srd = sWD if p < 18 else sW1
            pre = f"s_mov_b32 s{S_K2}, {((p - 14) % 4)*64*896}"
        return A.dma2(VW2, srd, f"s{S_K2}", f"s_add_u32 m0, s{S_M2}, {wpair_addr(p)}", ("w", p), pre=pre)

    def place(dmas, g0, g1):
        r = []
        for k, (a_, b_) in enumerate(dmas):
            g = g0 + 1 + k * (g1 - g0) // len(dmas)
            r += [(g - 1, a_), (g, b_)]
        return r

    def p1_reads(st, q, buf):
        so = ((st % 5) & 1) * 32768
        r = []
        for rb in range(4):
            r.append(lambda rb=rb: A.lds(f"ds_read_b128 {v(FX[buf]+4*rb,4)}, v{XA + 4*q + rb} offset:{so}", ("f", st, q)))
        for cb in range(2):
            for h in range(2):
                r.append(lambda cb=cb, h=h: A.lds(f"ds_read_b64_tr_b16 {v(FW[buf]+4*cb+2*h,2)}, v{WA+cb} offset:{so + q*8192 + h*1024}", ("f", st, q)))
        return r

    def p1_mfma(buf, first):
        z = "0" if first else None
        r = [lambda: A.mfma(RS, ONES, FX[buf], z), lambda: A.mfma(CS, FW[buf], ONES, z)]
        for cb in range(2):
            for rb in range(4):
                r.append(lambda cb=cb, rb=rb: A.mfma(ACC + (cb * 4 + rb) * 4, FW[buf] + 4 * cb, FX[buf] + 4 * rb, z))
        return r

    def p1_addr_step(st):
        d = {2: 65536, 4: 65536, 5: -131072}.get(st)
        if not d:
            return []
        return [(8 + k // 5, lambda r=r: A(f"v_add_u32 v{r}, {d & 0xffffffff}, v{r}"))
                for k, r in enumerate(list(range(XA, XA + 8)) + [WA, WA + 1])]

    def lines(txt, g0, g1):
        ex = [x for x in txt.strip().split("\n") if x.strip()]
        return [(g0 + k * (g1 - g0) // len(ex), lambda x=x: A(x)) for k, x in enumerate(ex)]

    VID = 120
    WA2, WB, WC, VH, VO, VL, VZ = 8, 12, 112, 2, 4, 16, 7
    FW2 = [24, 40]
    AC2, HF, VF = 56, 128, 192
    p2_setup = f"""
    v_lshlrev_b32 v{VL}, 4, v1
    v_mov_b32 v{VZ}, 0
    v_lshrrev_b32 v124, 4, v1
    v_bfe_u32 v125, v1, 2, 2
    v_lshl_add_u32 v126, v124, 2, v125
    v_lshrrev_b32 v127, 1, v126
    v_and_b32 v127, 3, v127
    v_lshlrev_b32 v126, 7, v126
    v_and_b32 v125, 3, v1
    v_lshl_add_u32 v126, v125, 3, v126
    """ + "".join(f"""
    v_xor_b32 v125, {eb}, v127
    v_lshl_add_u32 v{WA2+eb}, v125, 5, v126
    v_add_u32 v{WB+eb}, 0x10000, v{WA2+eb}
    v_add_u32 v{WC+eb}, 0x20000, v{WA2+eb}""" for eb in range(4)) + f"""
    s_lshl_b32 s{S_K2+32}, s{S_T}, 2
    s_and_b32 s{S_K2+33}, s{S_W}, 3
    s_add_u32 s{S_K2+32}, s{S_K2+32}, s{S_K2+33}
    s_mul_i32 s{S_K2+34}, s{S_K2+32}, {H_STRIDE}
    v_add_u32 v{VH}, s{S_K2+34}, v{VL}
    s_xor_b32 s{S_K2+34}, s{S_K2+32}, 4
    s_mul_i32 s{S_K2+34}, s{S_K2+34}, {H_STRIDE}
    v_add_u32 v{VH+1}, s{S_K2+34}, v{VL}
    s_and_b32 s{S_K2+32}, s{S_K2+32}, 7
    s_lshl_b32 s{S_K2+32}, s{S_K2+32}, 12
    s_add_u32 s{S_K2+32}, s{S_K2+32}, 32768
    v_add_u32 v238, s{S_K2+32}, v{VL}
    v_xor_b32 v239, 16384, v238
    s_lshl_b32 s{S_K2+32}, s{S_RB}, 6
    s_add_u32 s{S_K2+32}, s{S_K2+32}, s{S_JX}
    s_and_b32 s{S_K2+33}, s{S_W}, 1
    s_lshl_b32 s{S_K2+33}, s{S_K2+33}, 5
    s_add_u32 s{S_K2+33}, s{S_K2+33}, s{S_K2+32}
    v_lshrrev_b32 v124, 3, v1
    v_lshl_add_u32 v125, v124, 1, s{S_K2+33}
    s_bfe_u32 s{S_K2+32}, s{S_W}, 0x10001
    s_lshl_b32 s{S_K2+33}, s{S_K2+32}, 11
    s_lshl_b32 s{S_K2+32}, s{S_K2+32}, 1
    s_sub_u32 s{S_K2+32}, 1, s{S_K2+32}
    v_mul_i32_i24 v125, s{S_K2+32}, v125
    v_add_u32 v125, s{S_K2+33}, v125
    s_mul_i32 s{S_K2+32}, s{S_K2+32}, {16*896}
    s_lshl_b32 s{S_K2+33}, s{S_CT}, 7
    v_mul_u32_u24 v126, 896, v125
    v_add_u32 v126, s{S_K2+32}, v126
    v_lshrrev_b32 v127, 11, v125
    v_lshlrev_b32 v127, 10, v127
    v_sub_u32 v125, v125, v127
    v_mul_u32_u24 v125, 896, v125
    v_and_b32 v127, 7, v1
    v_xor_b32 v127, v127, v124
    v_lshlrev_b32 v127, 4, v127
    v_add_u32 v127, s{S_K2+33}, v127
    v_add_u32 v{VO}, v125, v127
    v_add_u32 v{VO+1}, v126, v127
    """
    for k in range(3):
        p2_setup = p2_setup.replace(f"s{S_K2+32+k}", f"s{48+k}")
    WPRE = opt.get("wpre", 12)

    def phase1(cls):
        K0 = opt.get("k0", 2) if cls == 0 else opt.get("k1", 2)
        p1fl[0] = opt.get("shfl", "") if cls == 0 else ""
        if cls == 0:
            if opt.get("xt", 0) == 2:
                A(f"s_cmp_lg_u32 s{S_W}, 1\ns_cbranch_scc1 L_notouch0")
                start_touch(A, opt, "x", 124)
                A("L_notouch0:")
            for s_ in range(K0):
                burst(p1_dmas(s_))
            A(f"s_cmp_lg_u32 s{S_W}, 0\ns_cbranch_scc1 L_notouch")
            if opt.get("xt", 0) == 1:
                start_touch(A, opt, "x", 124)
            code_touch(A)
            A("L_notouch:")
            p1_setup()
        else:
            p1_setup()
            for s_ in range(K0):
                burst(p1_dmas(s_))
        A.wait(vm=("p1", 0))
        A("s_barrier")
        st1(2)
        if P1: _stamp(1)
        for f in p1_reads(0, 0, 0):
            f()
        queue = []
        for s_ in range(K0, 7):
            for i in range(4):
                first = max(0, 2 * (s_ - 5) + 1)
                if cls == 1:
                    first = max(first, 2 * s_ - opt.get("la1", 5) + i // 2)
                queue.append((first, lambda s_=s_, i=i: p1_dmas(s_)[i]))
        wn = WPRE
        for p in range(WPRE):
            queue.append((max(2 * (2 + p // 4) + 1, opt.get("w0", 8) + p // 2), lambda p=p: w_dma(p)))
        rate = (opt.get("r0", 4), 4)
        for st in range(7):
            for q in range(2):
                fl = []
                if q == 0:
                    A.wait(lg=("f", st, 0))
                    fl += list(enumerate(p1_reads(st, 1, 1))) + p1_addr_step(st + 1)
                else:
                    if st < 6:
                        if P1 == 2: _stamp(st + 2)
                        A.wait(vm=("p1", st + 1), lg=0)
                        if P1 == 3: _stamp(st + 2)
                        A("s_barrier")
                        if P1 == 1: _stamp(st + 2)
                        fl += list(enumerate(p1_reads(st + 1, 0, 0)))
                    else:
                        A.wait(lg=0)
                dm = []
                blk = 2 * st + q
                while queue and len(dm) < rate[cls] and queue[0][0] <= blk:
                    dm.append(queue.pop(0)[1]())
                if dm:
                    fl += place(dm, 1, 9)
                if (st, q) == (0, 1):
                    fl += lines(f"""
                    v_readfirstlane_b32 s{S_TAG}, v{VEP}
                    s_lshl_b32 s27, s{S_CT}, 2
                    v_mov_b32 v{VID+1}, s27
                    s_mul_i32 s{S_TAG}, s{S_TAG}, {TAGMUL}
                    s_add_u32 s{S_TAG}, s{S_TAG}, {TAGADD}
                    v_min_u32 v{VID+3}, 6, v1
                    v_lshlrev_b32 v{VID+3}, 2, v{VID+3}
                    """, 0, 8)
                    A.wait(vm="ep")
                if cls == 0 and opt.get("dum", 0) and 2 * st + q == opt.get("dumb", 0):
                    def dummy():
                        for s_ in range(5, 7):
                            A(f"s_mul_i32 s3, s{S_MX}, {s_}")
                            for i in range(4):
                                A.vmem(f"buffer_load_dwordx4 v[252:255], v{VD+i}, s[{sL}:{sL+3}], s3 offen")
                    fl.append((9, dummy))
                if cls == 0 and 2 * st + q == opt.get("wtb", 99):
                    def wt():
                        A(f"s_cmp_lg_u32 s{S_W}, 1\ns_cbranch_scc1 L_notouch3")
                        A(f"""
                        v_lshlrev_b32 v124, 7, v1
                        s_mul_i32 s3, s2, {56*128}
                        s_mov_b32 exec_hi, 0xffffff
                        buffer_load_dword v125, v124, s[{sW2}:{sW2+3}], s3 offen
                        s_mov_b64 exec, -1
                        """)
                        A("L_notouch3:")
                    fl.append((9, wt))
                if (st, q) == (6, 1):
                    fl += lines(f"""
                    v_and_b32 v30, 15, v1
                    v_lshlrev_b32 v30, 2, v30
                    s_lshl_b32 s3, s{S_W}, 6
                    v_add_u32 v30, s3, v30
                    v_lshrrev_b32 v31, 4, v1
                    v_lshlrev_b32 v31, 4, v31
                    s_and_b32 s27, s{S_W}, 3
                    s_lshl_b32 s27, s27, 7
                    s_lshr_b32 s3, s{S_W}, 2
                    s_lshl_b32 s3, s3, 6
                    s_add_u32 s27, s27, s3
                    v_add_u32 v31, s27, v31
                    v_xor_b32 v32, 64, v30
                    v_xor_b32 v33, 128, v30
                    v_xor_b32 v34, 192, v30
                    v_xor_b32 v35, 64, v31
                    """, 0, 8)
                    fl += lines(p2_setup, 0, 9)
                    fl.append((9, lambda: A.lds(f"ds_write_b32 v30, v{RS}")))
                    fl.append((9, lambda: A.lds(f"ds_write_b128 v31, {v(CS,4)} offset:512")))
                A.weave(p1_mfma(q, st == 0 and q == 0), fl)
        assert not queue, len(queue)
        return wn
    A(f"s_cmp_ge_u32 s{S_W}, 2\ns_cbranch_scc1 L_p1b")
    WN = phase1(0)
    A("s_branch L_p1done")
    A("L_p1b:")
    A.reset()
    phase1(1)
    A("L_p1done:")
    A.reset()
    st1(3)
    if P1: _stamp(8)
    A.wait(lg=0)
    A("s_barrier")
    if P1: _stamp(9)
    S_HS = S_MD

    def epilogue(wr):
        A.reset()
        MB = 24; CS1 = 28
        A.lds(f"ds_read_b32 v{MB+1}, v32")
        A.lds(f"ds_read_b32 v{MB+2}, v33")
        A.lds(f"ds_read_b32 v{MB+3}, v34")
        A.lds(f"ds_read_b128 {v(CS1,4)}, v35 offset:512")
        A(f"""
        s_lshl_b32 s{S_KX}, s{S_RB}, 3
        s_mul_i32 s{S_KX}, s{S_KX}, 56
        s_lshl_b32 s{S_KW}, s{S_FT}, 2
        s_add_u32 s{S_KX}, s{S_KX}, s{S_KW}
        s_and_b32 s27, s{S_W}, 3
        s_add_u32 s{S_KX}, s{S_KX}, s27
        s_lshl_b32 s{S_KX}, s{S_KX}, 10
        s_lshl_b32 s27, s27, 10
        s_add_u32 s27, s27, 32768
        v_add_u32 v34, s27, v{VL}
        s_mov_b32 s3, {0x3b124925}
        v_mul_f32 v{MB}, s3, v{RS}
        """)
        A.wait(lg=0)
        for i in range(1, 4):
            A(f"v_mul_f32 v{MB+i}, s3, v{MB+i}")
        A(f"v_cvt_pk_bf16_f32 v32, v{MB}, v{MB+1}\nv_cvt_pk_bf16_f32 v33, v{MB+2}, v{MB+3}")
        A(f"v_lshlrev_b32 v{MB}, 16, v32\nv_and_b32 v{MB+1}, 0xffff0000, v32\nv_lshlrev_b32 v{MB+2}, 16, v33\nv_and_b32 v{MB+3}, 0xffff0000, v33")
        PK = 36
        for rb in range(4):
            sel = "op_sel:[0,1,0] op_sel_hi:[1,1,1]" if rb & 1 else "op_sel_hi:[1,0,1]"
            d = PK + 4 * rb
            for cb in range(2):
                a0 = ACC + (cb * 4 + rb) * 4
                for hh in range(2):
                    A(f"v_pk_fma_f32 {v(a0+2*hh,2)}, {v((CS, CS1)[cb]+2*hh,2)}, {v(MB+(rb&2),2)}, {v(a0+2*hh,2)} {sel} neg_lo:[1,0,0] neg_hi:[1,0,0]")
            for cb in range(2):
                a0 = ACC + (cb * 4 + rb) * 4
                for hh in range(2):
                    A(f"v_cvt_pk_bf16_f32 v{d+2*(cb^wr)+hh}, v{a0+2*hh}, v{a0+2*hh+1}")
            for i in range(4):
                A(f"v_pk_max_i16 v{d+i}, v{d+i}, 0")
            A(f"s_xor_b32 s27, s{S_W}, {rb}\ns_mul_i32 s{S_MD+rb}, s27, {H_STRIDE}\ns_add_u32 s{S_MD+rb}, s{S_MD+rb}, s{S_KX}")
            A.vmem(f"buffer_store_dwordx4 {v(PK+4*rb,4)}, v{VL}, s[{sWS}:{sWS+3}], s{S_MD+rb} offen sc1", ("hst", rb))
            A(f"s_lshl_b32 s27, s27, 12\nv_add_u32 v35, s27, v34")
            A.lds(f"ds_write_b128 v35, {v(PK+4*rb,4)}")
        st1(4)
        if P1: _stamp(10)
        A.stamp(5)

    S_H, S_GH = S_KX, S_KW
    NAL = opt.get("nal", 24)
    B0 = 4 + NAL

    def w_reads(key, i, both=True):
        r = []
        for eb in range(4):
            for h in range(2):
                if i < 28:
                    a_ = wpair_addr(i >> 1) + (i & 1) * 4096
                    reg, off = (WA2, WB, WC)[a_ >> 16] + eb, (a_ & 0xffff) + h * 2048
                else:
                    u = i - 28
                    reg, off = ((WA2, u * 4096) if u < 4 else ((WB, WC)[(u - 4) >> 1], (u & 1) * 4096))
                    reg, off = reg + eb, off + h * 2048
                r.append(lambda reg=reg, off=off, eb=eb, h=h: A.lds(f"ds_read_b64_tr_b16 {v(FW2[key&1]+4*eb+2*h,2)}, v{reg} offset:{off}", ("wf", key, eb >> 1)))
        return r

    YS, ZS = 32768, 0
    XS = TS = 4096

    A(f"s_cmp_ge_u32 s{S_W}, 4\ns_cbranch_scc1 L_aux")
    epilogue(0)
    seq = [(i, (0, 1)) for i in range(4)] + [(i, (1,)) for i in range(4, B0)] + [(i, (0, 1)) for i in range(B0, 28)] + [(i, (0,)) for i in range(4, B0)]
    hl = [(n, tt) for n, (i, tts) in enumerate(seq) for tt in tts]
    NSL = opt.get("nsl", 16)
    slot = {k: HF + (idx % NSL) * 4 for idx, k in enumerate(hl)}
    state_h = dict(next=8, grp=None)

    def h_next():
        idx = state_h["next"]
        if idx >= len(hl):
            return
        state_h["next"] += 1
        n, tt = hl[idx]
        i = seq[n][0]
        if state_h["grp"] != i // 4 and not (opt.get("hfix") and state_h["grp"]):
            state_h["grp"] = i // 4
            A(f"s_add_u32 s{S_H}, s{S_FTL}, {i // 4}\ns_cmp_ge_u32 s{S_H}, 7\ns_cselect_b32 s3, 7, 0\ns_sub_u32 s{S_H}, s{S_H}, s3")
            A(f"s_add_u32 s{S_H}, s{S_H}, s{S_GH}\ns_lshl_b32 s{S_H}, s{S_H}, 12")
        A.vmem(f"buffer_load_dwordx4 {v(slot[(n, tt)], 4)}, v{VH+tt}, s[{sWS}:{sWS+3}], s{S_H} offen offset:{(i%4)*1024} {HLD}", ("h", n, tt))

    def step(n, extra=()):
        i, tts = seq[n]
        nm = 4 * len(tts)
        fl = list(extra)
        if n + 1 < len(seq):
            fl += [(k * nm // 8, f) for k, f in enumerate(w_reads(n + 1, seq[n + 1][0]))]
        if n >= 1:
            fl += [(1 + 4 * k, h_next) for k in range(len(seq[n - 1][1]))]
        mf = []
        for eb in range(4):
            for tt in tts:
                def f(eb=eb, tt=tt):
                    if eb % 2 == 0 and tt == tts[0]:
                        A.wait(vm=("h", n, tts[-1]) if eb == 0 and n >= 4 else None, lg=("wf", n, eb >> 1))
                    A.mfma(AC2 + (tt * 4 + eb) * 4, FW2[n & 1] + 4 * eb, slot[(n, tt)], "0" if n == 0 else None)
                mf.append(f)
        A.weave(mf, fl)

    PR, XU = 192, 208
    fin = f"""
    v_and_b32 v20, 15, v1
    v_lshrrev_b32 v21, 4, v1
    v_lshrrev_b32 v22, 1, v21
    v_and_b32 v23, 7, v20
    v_xor_b32 v22, v22, v23
    v_lshlrev_b32 v22, 4, v22
    v_lshl_add_u32 v22, v20, 7, v22
    v_and_b32 v21, 1, v21
    v_lshl_add_u32 v22, v21, 3, v22
    s_lshl_b32 s27, s{S_W}, 11
    s_add_u32 s27, s27, {TS}
    v_add_u32 v232, s27, v22
    v_add_u32 v23, s27, v{VL}
    v_xor_b32 v233, 32, v232
    v_xor_b32 v234, 64, v232
    v_xor_b32 v235, 96, v232
    ds_read_b64 v[224:225], v232
    ds_read_b64 v[226:227], v233
    ds_read_b64 v[228:229], v234
    ds_read_b64 v[230:231], v235
    s_lshl_b32 s27, s{S_W}, 6
    s_add_u32 s27, s27, {YS + 20480}
    v_lshl_add_u32 v20, v20, 2, s27
    s_and_b32 s27, s{S_W}, 1
    s_lshl_b32 s27, s27, 12
    s_add_u32 s27, s27, {YS}
    v_add_u32 v19, s27, v{VL}
    s_xor_b32 s{S_MW}, s{S_W}, 2
    s_or_b32 s{S_MW}, s{S_MW}, s{S_T}
    s_sub_u32 s{S_MW}, s{S_MW}, 1
    s_lshr_b32 s{S_MW}, s{S_MW}, 31
    s_lshl_b32 s{S_MW}, s{S_MW}, 14
    v_add_u32 v18, s{S_MW}, v19
    s_lshl_b32 s27, s{S_W}, 30
    s_and_b32 s27, s27, 0x80000000
    s_or_b32 s27, s27, 1.0
    v_mov_b32 v237, s27
    s_xor_b32 s{S_FT}, s{S_MX}, 16384
    s_and_b32 s{S_G2}, s{S_PT}, 0xff
    s_mul_i32 s{S_G2}, s{S_G2}, 0x01010101
    """.strip().split("\n")
    fin = [x.strip() for x in fin]
    unp = [f"v_lshlrev_b32 v{XU+2*k}, 16, v{224+k}" if b_ == 0 else f"v_and_b32 v{XU+2*k+1}, 0xffff0000, v{224+k}" for k in range(8) for b_ in range(2)]

    def p_loads(track):
        for eb in range(4):
            t_ = f"buffer_load_dwordx4 {v(PR+4*eb,4)}, v{VL}, s[{sWS}:{sWS+3}], s{S_FT} offen offset:{eb*1024} sc1"
            A.vmem(t_, "part") if track else A(t_)
    A(f"s_lshl_b32 s3, s2, 14\ns_lshl_b32 s27, s{S_W}, 12\ns_add_u32 s3, s3, s27\ns_add_u32 s{S_MX}, s3, {WS_PART}")
    A.srd(sOUT, 20, 2048 * 896)
    A(f"s_lshl_b32 s{S_H}, s{S_W}, 11")
    for ps in range(2):
        A.dma(VO + ps, sX, "0", f"s_add_u32 m0, s{S_H}, {XS + ps*1024}", "xr")
    A.wait(vm=0, lg=0)
    burst([w_dma(p) for p in range(WN, 14)])
    A("s_barrier")
    A.stamp(7)
    for x in fin:
        A.lds(x) if x.startswith("ds_") else A(x)
    for n in range(4):
        for tt in range(2):
            A.lds(f"ds_read_b128 {v(slot[(n, tt)],4)}, v{238+tt} offset:{n*1024}")
    A.wait(lg=0)
    for x in unp:
        A(x)
    A(f"s_mul_i32 s{S_GH}, s{S_JX}, 7")
    A.wait(vm=0)
    A("s_barrier")
    if not P2: A.stamp(1)
    for k in range(NSL - 8):
        h_next()
    for f in w_reads(0, 0):
        f()
    if opt.get("prio", 1):
        A(f"s_setprio {opt.get('prio', 1)}")
    for n in range(len(seq)):
        ex = []
        if n == opt.get("m2n", -1):
            A("s_barrier")
        if n == 28:
            A.stamp(8)
            A(f"""
            s_and_b32 s27, s{S_PT}, 0xff
            v_mov_b32 v236, s27
            s_movk_i32 s27, 0xff
            s_nop 4
            """)
            for eb in range(4):
                for r in range(4):
                    A(f"v_bfi_b32 v{AC2+16+4*eb+r}, s27, v236, v{AC2+16+4*eb+r}")
                A.vmem(f"buffer_store_dwordx4 {v(AC2+16+4*eb,4)}, v{VL}, s[{sWS}:{sWS+3}], s{S_MX} offen offset:{eb*1024} sc1", "pst")
        if n == len(seq) - opt.get("pat", 4):
            ex.append((3, lambda: p_loads(True)))
        step(n, ex)
    A.stamp(9)
    A(f"s_mov_b32 s27, 0x0c0c0400\ns_mov_b32 s{S_KX}, 0x40000")
    A("L_pchk:")
    A("s_waitcnt vmcnt(0)")
    for k in range(8):
        A(f"v_perm_b32 v{24+k}, v{PR+2*k+1}, v{PR+2*k}, s27")
    for k in range(4):
        A(f"v_lshl_or_b32 v{24+2*k}, v{25+2*k}, 16, v{24+2*k}")
    for k in range(4):
        A(f"v_xor_b32 v{24+2*k}, s{S_G2}, v{24+2*k}")
    A("v_or3_b32 v24, v24, v26, v28\nv_or_b32 v24, v24, v30\nv_cmp_eq_u32 vcc, 0, v24\ns_nop 1\ns_cmp_eq_u64 vcc, exec\ns_cbranch_scc1 L_pok")
    p_loads(False)
    A(f"s_sub_u32 s{S_KX}, s{S_KX}, 1\ns_cbranch_scc0 L_pchk")
    A("L_pok:")
    for r in range(16):
        A(f"v_and_b32 v{PR+r}, 0xffffff00, v{PR+r}")
    for r in range(16):
        A(f"v_add_f32 v{AC2+r}, v{AC2+r}, v{PR+r}")
    if P2: A.stamp(2)
    A("s_barrier")
    A.stamp(10)
    YP = HF
    A(f"ds_read_b32 v236, v20")
    for eb in range(4):
        A(f"ds_read_b128 {v(YP+4*eb,4)}, v18 offset:{eb*1024}")
    for eb in range(4):
        A(f"ds_read_b128 {v(YP+16+4*eb,4)}, v19 offset:{8192 + eb*1024}")
    A("s_waitcnt lgkmcnt(8)")
    for eb in range(4):
        for hh in range(2):
            A(f"v_pk_fma_f32 {v(XU+4*eb+2*hh,2)}, {v(AC2+4*eb+2*hh,2)}, v[236:237], {v(XU+4*eb+2*hh,2)} op_sel_hi:[1,0,1]")
    A("s_waitcnt lgkmcnt(4)")
    for eb in range(4):
        for hh in range(2):
            A(f"v_pk_add_f32 {v(XU+4*eb+2*hh,2)}, {v(XU+4*eb+2*hh,2)}, {v(YP+4*eb+2*hh,2)}")
    A("s_waitcnt lgkmcnt(0)")
    for eb in range(4):
        for hh in range(2):
            A(f"v_pk_fma_f32 {v(XU+4*eb+2*hh,2)}, {v(YP+16+4*eb+2*hh,2)}, v[236:237], {v(XU+4*eb+2*hh,2)} op_sel:[0,1,0] op_sel_hi:[1,1,1]")
        A(f"v_cvt_pk_bf16_f32 v{28+2*eb}, v{XU+4*eb}, v{XU+4*eb+1}\nv_cvt_pk_bf16_f32 v{29+2*eb}, v{XU+4*eb+2}, v{XU+4*eb+3}")
        A(f"ds_write_b64 v{232+eb}, {v(28+2*eb,2)}")
    A("s_waitcnt lgkmcnt(0)")
    A("ds_read_b128 v[36:39], v23\nds_read_b128 v[40:43], v23 offset:1024")
    A("s_waitcnt lgkmcnt(1)")
    A(f"buffer_store_dwordx4 v[36:39], v{VO}, s[{sOUT}:{sOUT+3}], 0 offen {opt.get('ofl', '')}")
    A("s_waitcnt lgkmcnt(0)")
    A(f"buffer_store_dwordx4 v[40:43], v{VO+1}, s[{sOUT}:{sOUT+3}], 0 offen {opt.get('ofl', '')}")
    if opt.get("dbg"):
        A.srd(sDBG, 22, 256)
        A("""
        s_waitcnt vmcnt(0)
        s_memrealtime s[88:89]
        s_memtime s[84:85]
        s_waitcnt lgkmcnt(0)
        s_sub_u32 s84, s84, s90
        s_sub_u32 s88, s88, s92
        s_lshl_b32 s88, s88, 16
        s_and_b32 s92, s92, 0xffff
        s_or_b32 s88, s88, s92
        v_mov_b32 v2, s88
        v_mov_b32 v3, s84
        s_lshl_b32 s3, s2, 3
        s_lshl_b32 s27, s60, 8
        s_add_u32 s3, s3, s27
        v_mov_b32 v5, s3
        s_mov_b64 exec, 1
        """)
        A(f"buffer_store_dwordx2 v[2:3], v5, s[{sDBG}:{sDBG+3}], 0 offen")
    A.dump_stamps(11)
    A("s_endpgm")

    A("L_aux:")
    epilogue(1)
    RSD, VPOLL, VT, YB, YA, V2, VF, WF = 20, 22, 19, 32, 48, 64, 96, 128
    PR, XU = VF, V2
    DF, EF, TA = 24, 8, opt.get('ta', 32)
    S_PA = S_MX
    A(f"""
    s_and_b32 s{S_GH}, s{S_W}, 3
    v_and_b32 v14, 15, v1
    s_lshl_b32 s3, s{S_CT}, 6
    v_add_u32 v{EF}, s3, v14
    v_cvt_f32_u32 v{EF}, v{EF}
    v_lshrrev_b32 v15, 4, v1
    v_lshlrev_b32 v{DF}, 2, v15
    v_cvt_f32_u32 v{DF}, v{DF}
    s_mov_b32 s3, 0x41800000
    v_add_f32 v{EF+1}, s3, v{EF}
    v_add_f32 v{EF+2}, s3, v{EF+1}
    v_add_f32 v{EF+3}, s3, v{EF+2}
    v_add_f32 v{DF+1}, 1.0, v{DF}
    v_add_f32 v{DF+2}, 2.0, v{DF}
    v_add_f32 v{DF+3}, 2.0, v{DF+1}
    v_add_f32 v{DF+4}, s3, v{DF}
    v_add_f32 v{DF+5}, s3, v{DF+1}
    v_add_f32 v{DF+6}, s3, v{DF+2}
    v_add_f32 v{DF+7}, s3, v{DF+3}
    s_mov_b32 s3, {0x3b124925}
    v_mul_f32 v{EF}, s3, v{EF}
    v_mul_f32 v{EF+1}, s3, v{EF+1}
    v_mul_f32 v{EF+2}, s3, v{EF+2}
    v_mul_f32 v{EF+3}, s3, v{EF+3}
    s_bitcmp1_b32 s{S_W}, 1
    s_cselect_b32 s3, 0x3e800000, 0
    v_mov_b32 v{EF+4}, s3
    v_mov_b32 v{EF+5}, 0x42000000
    """)
    gen_ops = []
    CA_, CB_, KK = 64, 72, 80
    for eb in range(4):
        gen_ops.append(f"v_mul_f32 v{KK}, v{EF+5}, v{EF+eb}")
        gen_ops += [f"v_fma_f32 v{CA_+i}, v{DF+i}, v{EF+eb}, v{EF+4}" for i in range(8)]
        gen_ops += [f"v_add_f32 v{CB_+i}, v{KK}, v{CA_+i}" for i in range(8)]
        gen_ops.append(f"v_cos_f32 v{KK}, v{KK}")
        gen_ops += [f"v_cos_f32 v{CA_+i}, v{CA_+i}" for i in range(16)]
        gen_ops.append(f"v_add_f32 v{KK}, v{KK}, v{KK}")
        for u in range(8):
            cur = (CA_, CB_)[u & 1]
            if u >= 2:
                gen_ops += [f"v_fma_f32 v{cur+i}, v{KK}, v{(CB_, CA_)[u & 1]+i}, -v{cur+i}" for i in range(8)]
            gen_ops += [f"v_cvt_pk_bf16_f32 v{WF+16*u+4*eb+i}, v{cur+2*i}, v{cur+2*i+1}" for i in range(4)]

    def wgen(n):
        for x in gen_ops[:16 * n]:
            A(x)
        del gen_ops[:16 * n]
    wgen(opt.get("g1", 16))
    A.wait(vm=0, lg=0)
    burst([w_dma(p) for p in range(WN, 14)])
    A("s_barrier")
    A(f"s_cmp_lg_u32 s{S_W}, 7\ns_cbranch_scc1 L_nopub")
    A(f"v_mov_b32 v18, s{S_TAG}\ns_mov_b64 exec, 1")
    A(f"buffer_store_dword v18, v{VID+1}, s[{sWS}:{sWS+3}], s{S_HF} offen offset:16 sc1")
    A("s_mov_b64 exec, -1")
    A("L_nopub:")
    A.stamp(7)
    wgen(opt.get("g2", 14))
    A(f"s_cmp_lg_u32 s{S_W}, 7\ns_cbranch_scc1 L_nopoll")
    A(f"s_add_u32 s3, s{S_HF}, 16")
    A.poll(VID + 3, sWS, "s3", "eq", 64, S_TAG, vtmp=19)
    A("L_nopoll:")
    A.wait(vm=0)
    A("s_barrier")
    if not P2: A.stamp(1)
    wgen(32)
    A(f"""
    s_lshl_b32 s3, s{S_RB}, 6
    s_add_u32 s3, s3, s{S_JX}
    s_and_b32 s27, s{S_W}, 1
    s_lshl_b32 s27, s27, 5
    s_add_u32 s27, s27, s3
    v_lshl_add_u32 v{RSD+1}, v14, 1, s27
    s_bitcmp1_b32 s{S_W}, 1
    s_cselect_b32 s3, -1, 1
    s_cselect_b32 s27, 2048, 0
    v_mul_i32_i24 v{RSD+1}, s3, v{RSD+1}
    v_add_u32 v{RSD+1}, s27, v{RSD+1}
    v_lshrrev_b32 v{RSD}, 11, v{RSD+1}
    v_lshlrev_b32 v{RSD}, 10, v{RSD}
    v_sub_u32 v{RSD+1}, v{RSD+1}, v{RSD}
    v_lshlrev_b32 v{RSD+1}, 2, v{RSD+1}
    v_add_u32 v{RSD+1}, {WS_RSTD}, v{RSD+1}
    s_lshl_b32 s3, s{S_T}, 1
    s_and_b32 s27, s{S_W}, 1
    s_add_u32 s3, s3, s27
    s_lshl_b32 s{S_FT}, s3, 14
    s_lshr_b32 s27, s{S_GH}, 1
    s_lshl_b32 s3, s27, 13
    s_add_u32 s{S_FT}, s{S_FT}, s3
    s_add_u32 s{S_FT}, s{S_FT}, {WS_VV}
    s_cmp_eq_u32 s{S_GH}, 0
    s_cselect_b32 s{S_MW}, {WS_VV + 64*16384}, s{S_FT}
    s_lshl_b32 s3, s{S_GH}, 12
    s_add_u32 s27, s3, {YS}
    v_add_u32 v28, s27, v{VL}
    s_lshl_b32 s3, s{S_GH}, 6
    s_add_u32 s3, s3, {YS + 20480}
    v_lshl_add_u32 v30, v14, 2, s3
    """)
    A.stamp(8)
    A(f"""
    s_and_b32 s3, s{S_GH}, 2
    s_add_u32 s3, s3, s{S_JX}
    s_lshl_b32 s3, s3, 2
    s_lshr_b32 s27, s{S_T}, 3
    s_add_u32 s3, s3, s27
    s_lshl_b32 s3, s3, 7
    s_add_u32 s3, s3, {WS_VFLAG}
    v_and_b32 v{VPOLL+1}, 1, v1
    v_lshlrev_b32 v{VPOLL+1}, 2, v{VPOLL+1}
    """)
    if opt.get("m2n", -1) >= 0:
        A("s_barrier")
    A.poll(VPOLL + 1, sWS, "s3", "eq", 64, S_TAG, vtmp=VPOLL, sleep=opt.get("vps", 4))
    A.stamp(9)
    A.reset()
    A.vmem(f"buffer_load_dword v{RSD}, v{RSD+1}, s[{sWS}:{sWS+3}], 0 offen {HLD}", "rstd")
    for u in range(8):
        if u % 4 == 0:
            A(f"s_add_u32 s27, s{S_FT}, {u*1024}")
        A.vmem(f"buffer_load_dwordx4 {v(VF+4*u,4)}, v{VL}, s[{sWS}:{sWS+3}], s27 offen offset:{(u%4)*1024} {HLD}", ("v", u))

    A(f"s_cmp_eq_u32 s{S_T}, 0\ns_cbranch_scc1 L_vspecial")

    def vpart(special):
        if special:
            for u in range(8):
                if u % 4 == 0:
                    A(f"s_add_u32 s27, s{S_MW}, {u*1024}")
                A.vmem(f"buffer_load_dwordx4 {v(V2+4*u,4)}, v{VL}, s[{sWS}:{sWS+3}], s27 offen offset:{(u%4)*1024} {HLD}", ("v2", u))
        for u in range(8):
            A.wait(vm=("v", u))
            for eb in range(4):
                A.mfma(YA + eb * 4, WF + 16 * u + 4 * eb, VF + 4 * u, "0" if u == 0 else None)
        if special:
            for u in range(8):
                A.wait(vm=("v2", u))
                for eb in range(4):
                    A.mfma(YB + eb * 4, WF + 16 * u + 4 * eb, V2 + 4 * u, "0" if u == 0 else None)
        A(f"ds_write_b32 v30, v{RSD}")
        A(f"s_nop {opt.get('yn', 6)}")
        for eb in range(4):
            A(f"ds_write_b128 v28, {v(YA+4*eb,4)} offset:{eb*1024}")
        if special:
            L = A.label("L_nopm")
            A(f"s_cmp_lg_u32 s{S_W}, 4\ns_cbranch_scc1 {L}")
            A("s_mov_b32 s26, 0x00010001\ns_mov_b32 s27, 0x00010001")
            for r in range(16):
                A(f"v_cndmask_b32 v{YB+r}, v{YA+r}, v{YB+r}, s[26:27]")
            for eb in range(4):
                A(f"ds_write_b128 v28, {v(YB+4*eb,4)} offset:{16384 + eb*1024}")
            A(f"{L}:")
    sv = (list(A.vm), A.vm_done, list(A.lg), A.lg_done)
    vpart(False)
    A("s_branch L_vdone")
    A("L_vspecial:")
    A.vm, A.vm_done, A.lg, A.lg_done = sv
    vpart(True)
    A("L_vdone:")
    A("s_waitcnt lgkmcnt(0)")
    A.stamp(10)
    A("s_barrier")
    A.dump_stamps(11)
    A("s_endpgm")

    A.reset()
    A("L_dft:")
    S_Q, S_VAR, S_M, S_N, S_P = 63, 96, 97, 98, 99
    A(f"""
    s_sub_u32 s3, s{S_J}, 28
    s_lshl_b32 s{S_Q}, s{S_XCD}, 2
    s_add_u32 s{S_Q}, s{S_Q}, s3
    s_lshr_b32 s{S_VAR}, s{S_XCD}, 1
    s_mov_b32 s{S_M}, s3
    s_and_b32 s{S_N}, s{S_XCD}, 1
    s_and_b32 s{S_P}, s{S_VAR}, 1
    """)
    def wtouch(ptr):
        A.srd(sW1, ptr, 448 * 3584)
        A(f"v_lshlrev_b32 v210, 7, v1\ns_lshl_b32 s3, s{S_Q}, 13\ns_lshl_b32 s27, s{S_W}, 18\ns_add_u32 s3, s3, s27\nv_add_u32 v210, s3, v210")
        A.vmem(f"buffer_load_dword v211, v210, s[{sW1}:{sW1+3}], 0 offen")

    RAW, EO, TF, TM, ST = 32, 64, 128, 136, 144
    A(f"""
    s_lshl_b32 s3, s{S_Q}, 4
    s_lshl_b32 s27, s{S_W}, 1
    s_add_u32 s3, s3, s27
    v_lshrrev_b32 v2, 5, v1
    v_add_u32 v4, s3, v2
    v_and_b32 v3, 31, v1
    v_sub_u32 v5, 2048, v4
    v_sub_u32 v6, 1024, v4
    v_add_u32 v7, 1024, v4
    v_cmp_eq_u32 s[100:101], 0, v4
    v_mov_b32 v8, 512
    v_mov_b32 v9, 1536
    v_mov_b32 v12, {OOB}
    v_cndmask_b32 v5, v5, v8, s[100:101]
    v_cndmask_b32 v7, v7, v9, s[100:101]
    v_cmp_gt_u32 vcc, 28, v3
    v_lshlrev_b32 v8, 4, v3
    v_sub_u32 v9, 880, v8
    v_cndmask_b32 v8, v12, v8, vcc
    v_cndmask_b32 v9, v12, v9, vcc
    s_waitcnt lgkmcnt(0)
    """)
    A.srd(sX, 4, 2048 * 896)
    for rho in range(4):
        A(f"v_mul_u32_u24 v13, 896, v{4+rho}\nv_add_u32 v14, v13, v8\nv_add_u32 v15, v13, v9")
        for fm in range(2):
            A.vmem(f"buffer_load_dwordx4 {v(RAW + rho*8 + 4*fm, 4)}, v{14+fm}, s[{sX}:{sX+3}], 0 offen", ("x", rho))
    A.srd(sWS, 24, WS_SIZE + (0x40000 if stamps else 0))
    if opt.get("t1", 1):
        wtouch(16)
    A(f"v_mov_b32 v190, {WS_EPOCH}")
    A.vmem(f"buffer_load_dword v191, v190, s[{sWS}:{sWS+3}], 0 offen sc1", "ep")
    A(f"s_cmp_lg_u32 s{S_W}, 7\ns_cbranch_scc1 L_dnotouch")
    if opt.get("xt", 0):
        start_touch(A, opt, "x", 200)
    code_touch(A, 208)
    A("L_dnotouch:")

    S_R = 14
    GA, GT = 160, 168
    A(f"""
    s_lshl_b32 s3, s{S_M}, 7
    s_lshl_b32 s27, s{S_W}, 4
    s_add_u32 s3, s3, s27
    s_lshl_b32 s3, s3, 1
    s_add_u32 s3, s3, s{S_P}
    v_and_b32 v13, 15, v1
    v_lshl_add_u32 v13, v13, 1, s3
    v_cvt_f32_u32 v13, v13
    v_mul_f32 v13, 0x3a000000, v13
    v_lshrrev_b32 v14, 4, v1
    v_lshlrev_b32 v14, 3, v14
    v_cvt_f32_u32 v14, v14
    s_cmp_ge_u32 s{S_VAR}, 2
    s_cselect_b32 s3, 0x3e800000, 0
    v_fma_f32 v{GA}, v13, v14, s3
    v_mul_f32 v14, 0x42000000, v13
    v_lshlrev_b32 v16, 4, v1
    s_lshl_b32 s3, s{S_W}, 10
    v_add_u32 v16, s3, v16
    v_add_u32 v17, 0x10000, v16
    """)
    for i in range(1, 8):
        A(f"v_add_f32 v{GA+i}, v13, v{GA+i-1}")
    for i in range(8):
        A(f"v_add_f32 v{GT+i}, v14, v{GA+i}")
    A("v_cos_f32 v14, v14")
    for i in range(16):
        A(f"v_cos_f32 v{GA+i}, v{GA+i}")
    A("v_add_f32 v14, v14, v14")
    A("v_mov_b32 v184, v14\nv_mov_b32 v186, v16\nv_mov_b32 v187, v17")
    cg = [0]

    def cgen(n):
        for sb in range(cg[0], min(16, cg[0] + n)):
            cur, oth = (GA, GT) if sb % 2 == 0 else (GT, GA)
            if sb >= 2:
                for i in range(4):
                    A(f"v_pk_fma_f32 {v(cur+2*i,2)}, {v(oth+2*i,2)}, v[184:185], {v(cur+2*i,2)} op_sel_hi:[1,0,1] neg_lo:[0,0,1] neg_hi:[0,0,1]")
            d = GT + 8 + 4 * (sb & 1)
            for i in range(4):
                A(f"v_cvt_pk_bf16_f32 v{d+i}, v{cur+2*i}, v{cur+2*i+1}")
            A.lds(f"ds_write_b128 v{186 + sb//8}, {v(d,4)} offset:{(sb%8)*8192}")
        cg[0] = min(16, cg[0] + n)
    cgen(opt.get("c0", 6))
    A.stamp(1)
    A(f"""
    v_cmp_eq_u32 s[26:27], 0, v3
    v_cndmask_b32 v21, 0, 2.0, vcc
    v_cmp_eq_u32 vcc, 28, v3
    v_mov_b32 v24, 0
    v_cndmask_b32 v20, v21, 1.0, s[26:27]
    v_mov_b32 v25, 0
    v_cndmask_b32 v20, v20, 1.0, vcc
    v_mov_b32 v26, 0
    v_mov_b32 v27, 0
    """)
    E = lambda rho: EO + rho * 16
    O = lambda rho: EO + rho * 16 + 8
    for rho in range(4):
        A.wait(vm=("x", rho))
        if rho == opt.get("t2", 3):
            wtouch(18)
        F = RAW + rho * 8
        M = F + 4
        A(f"v_mov_b32_dpp v{24+rho}, v{M} row_bcast:15 row_mask:0xa bank_mask:0xf")
        for i in range(4):
            A(f"v_lshlrev_b32 v{TF+2*i}, 16, v{F+i}\nv_and_b32 v{TF+2*i+1}, 0xffff0000, v{F+i}")
        A(f"v_mov_b32_dpp v{24+rho}, v{M} row_shr:1 row_mask:0xf bank_mask:0xf")
        for j in range(1, 8):
            k = 8 - j
            if k & 1:
                A(f"v_and_b32 v{TM+j}, 0xffff0000, v{M + k//2}")
            else:
                A(f"v_lshlrev_b32 v{TM+j}, 16, v{M + k//2}")
        A(f"v_lshlrev_b32 v{TM}, 16, v{24+rho}")
        for i in range(4):
            A(f"v_pk_add_f32 {v(E(rho)+2*i,2)}, {v(TF+2*i,2)}, {v(TM+2*i,2)}")
            A(f"v_pk_add_f32 {v(O(rho)+2*i,2)}, {v(TF+2*i,2)}, {v(TM+2*i,2)} neg_lo:[0,1] neg_hi:[0,1]")
        sm, sq = ST + 4 * rho, ST + 4 * rho + 2
        for i in range(4):
            if i == 0:
                A(f"v_pk_add_f32 {v(sm,2)}, {v(E(rho),2)}, {v(E(rho)+2,2)}")
                A(f"v_pk_mul_f32 {v(sq,2)}, {v(E(rho),2)}, {v(E(rho),2)}")
            else:
                if i > 1:
                    A(f"v_pk_add_f32 {v(sm,2)}, {v(sm,2)}, {v(E(rho)+2*i,2)}")
                A(f"v_pk_fma_f32 {v(sq,2)}, {v(E(rho)+2*i,2)}, {v(E(rho)+2*i,2)}, {v(sq,2)}")
            A(f"v_pk_fma_f32 {v(sq,2)}, {v(O(rho)+2*i,2)}, {v(O(rho)+2*i,2)}, {v(sq,2)}")
    A.stamp(2)
    for rho in range(4):
        A(f"v_add_f32 v{ST+4*rho}, v{ST+4*rho}, v{ST+4*rho+1}\nv_add_f32 v{ST+4*rho+2}, v{ST+4*rho+2}, v{ST+4*rho+3}")
    for i in range(4):
        A(f"v_permlane16_swap_b32 v{ST+2*i}, v{ST+8+2*i}")
    for i in range(4):
        A(f"v_add_f32 v{ST+2*i}, v{ST+2*i}, v{ST+8+2*i}")
    for sh in (8, 4, 2, 1):
        for i in range(4):
            r = ST + 2 * i
            A(f"v_add_f32_dpp v{r}, v{r}, v{r} row_ror:{sh} row_mask:0xf bank_mask:0xf")
    R_, C_ = 24, 28
    A(f"s_mov_b32 s3, {0x3b124925}\ns_mov_b32 s26, {0x3a924925}\ns_mov_b32 s27, {0x3727c5ac}")
    seq_ = [
        lambda b: f"v_mul_f32 v{b}, s3, v{b}\nv_mul_f32 v{b+2}, s26, v{b+2}",
        lambda b: f"v_fma_f32 v{b+2}, -v{b}, v{b}, v{b+2}",
        lambda b: f"v_max_f32 v{b+2}, 0, v{b+2}",
        lambda b: f"v_cvt_pk_bf16_f32 v{b+1}, v{b}, v{b+2}",
        lambda b: f"v_lshlrev_b32 v{b}, 16, v{b+1}\nv_and_b32 v{b+2}, 0xffff0000, v{b+1}",
        lambda b: f"v_add_f32 v{b+2}, s27, v{b+2}",
        lambda b: f"v_cvt_pk_bf16_f32 v{b+2}, v{b+2}, v{b+2}",
        lambda b: f"v_and_b32 v{b+2}, 0xffff0000, v{b+2}",
        lambda b: f"v_sqrt_f32 v{b+2}, v{b+2}",
        lambda b: f"s_nop 0\nv_cvt_pk_bf16_f32 v{b+2}, v{b+2}, v{b+2}",
        lambda b: f"v_and_b32 v{b+2}, 0xffff0000, v{b+2}",
    ]
    for f in seq_:
        for rho in range(2):
            A(f(ST + 4 * rho))
    for rho in range(2):
        A(f"v_rcp_f32 v{R_+rho}, v{ST+4*rho+2}")
    A("s_nop 0")
    for rho in range(2):
        A(f"v_mul_f32 v{C_+rho}, v{ST+4*rho}, v{R_+rho}")
    for r in (R_, R_ + 1, C_, C_ + 1):
        A(f"v_mov_b32 v{r+2}, v{r}")
    A("s_nop 0")
    for r in (R_, R_ + 1, C_, C_ + 1):
        A(f"v_permlane16_swap_b32 v{r}, v{r+2}")
    A(f"""
    v_cmp_eq_u32 vcc, 1, v3
    v_cmp_eq_u32 s[26:27], 2, v3
    v_mov_b32 v8, v4
    v_mov_b32 v9, v{R_}
    v_cndmask_b32 v8, v8, v5, vcc
    v_cndmask_b32 v9, v9, v{R_+1}, vcc
    v_cmp_eq_u32 vcc, 3, v3
    v_cndmask_b32 v8, v8, v6, s[26:27]
    v_cndmask_b32 v9, v9, v{R_+2}, s[26:27]
    v_cndmask_b32 v8, v8, v7, vcc
    v_cndmask_b32 v9, v9, v{R_+3}, vcc
    v_cmp_gt_u32 vcc, 4, v3
    v_lshlrev_b32 v8, 2, v8
    v_add_u32 v8, {WS_RSTD}, v8
    v_cndmask_b32 v8, v12, v8, vcc
    """)
    A.vmem(f"buffer_store_dword v9, v8, s[{sWS}:{sWS+3}], 0 offen sc1")
    A(f"s_or_b32 s3, s{S_Q}, s{S_W}\ns_cmp_lg_u32 s3, 0\ns_cbranch_scc1 L_no512")
    A(f"v_add_f32 v10, v{C_+1}, v{C_+3}")
    for j in range(8):
        A(f"v_mul_f32 v{TF+j}, v10, v{20+(1 if j else 0)}")
        A(f"v_fma_f32 v{TF+j}, v{E(1)+j}, v{R_+1}, -v{TF+j}")
        A(f"v_fma_f32 v{TF+j}, v{E(3)+j}, v{R_+3}, v{TF+j}")
        A(f"v_mul_f32 v{TM+j}, v{O(1)+j}, v{R_+1}")
        A(f"v_fma_f32 v{TM+j}, -v{O(3)+j}, v{R_+3}, v{TM+j}")
    for i in range(4):
        A(f"v_cvt_pk_bf16_f32 v{RAW+i}, v{TF+2*i}, v{TF+2*i+1}")
        A(f"v_cvt_pk_bf16_f32 v{RAW+4+i}, v{TM+2*i}, v{TM+2*i+1}")
    A(f"v_lshlrev_b32 v10, 4, v3\nv_add_u32 v10, {WS_X512}, v10\nv_cndmask_b32 v10, v12, v10, s[100:101]")
    A(f"buffer_store_dwordx4 {v(RAW,4)}, v10, s[{sWS}:{sWS+3}], 0 offen sc1")
    A(f"buffer_store_dwordx4 {v(RAW+4,4)}, v10, s[{sWS}:{sWS+3}], 0 offen offset:{3*512} sc1")
    A("s_nop 1")
    A("L_no512:")
    for r in (R_ + 1, R_ + 3, C_ + 1, C_ + 3):
        A(f"v_cndmask_b32 v{r}, v{r}, 0, s[100:101]")
    A(f"v_add_f32 v{C_}, v{C_}, v{C_+1}\nv_add_f32 v{C_+2}, v{C_+2}, v{C_+3}")
    OUT = lambda var: RAW + var * 8
    bl = "op_sel_hi:[1,0,1]"
    bh = "op_sel:[0,1,0] op_sel_hi:[1,1,1]"
    A(f"v_pk_mul_f32 v[8:9], v[20:21], {v(C_,2)} op_sel_hi:[1,0] neg_lo:[1,0] neg_hi:[1,0]")
    A(f"v_pk_mul_f32 v[10:11], v[20:21], {v(C_+2,2)} op_sel_hi:[1,0] neg_lo:[1,0] neg_hi:[1,0]")
    for i in range(4):
        s3lo, s3hi = (0, 1) if i == 0 else (1, 1)
        a_, b_ = TF, TF + 2
        A(f"v_pk_fma_f32 {v(a_,2)}, {v(E(0)+2*i,2)}, {v(R_,2)}, v[8:9] op_sel:[0,0,{s3lo}] op_sel_hi:[1,0,{s3hi}]")
        A(f"v_pk_fma_f32 {v(b_,2)}, {v(E(2)+2*i,2)}, {v(R_+2,2)}, v[10:11] op_sel:[0,0,{s3lo}] op_sel_hi:[1,0,{s3hi}]")
        A(f"v_pk_mul_f32 {v(TM,2)}, {v(O(0)+2*i,2)}, {v(R_,2)} op_sel_hi:[1,0]")
        A(f"v_pk_mul_f32 {v(TM+2,2)}, {v(O(3)+2*i,2)}, {v(R_+2,2)} op_sel:[0,1] op_sel_hi:[1,1]")
        A(f"v_pk_fma_f32 {v(a_,2)}, {v(E(1)+2*i,2)}, {v(R_,2)}, {v(a_,2)} {bh}")
        A(f"v_pk_fma_f32 {v(b_,2)}, {v(E(3)+2*i,2)}, {v(R_+2,2)}, {v(b_,2)} {bh}")
        A(f"v_pk_fma_f32 {v(TM,2)}, {v(O(1)+2*i,2)}, {v(R_,2)}, {v(TM,2)} {bh} neg_lo:[1,0,0] neg_hi:[1,0,0]")
        A(f"v_pk_fma_f32 {v(TM+2,2)}, {v(O(2)+2*i,2)}, {v(R_+2,2)}, {v(TM+2,2)} {bl} neg_lo:[1,0,0] neg_hi:[1,0,0]")
        A(f"v_pk_add_f32 {v(OUT(0)+2*i,2)}, {v(a_,2)}, {v(b_,2)}")
        A(f"v_pk_add_f32 {v(OUT(1)+2*i,2)}, {v(a_,2)}, {v(b_,2)} neg_lo:[0,1] neg_hi:[0,1]")
        A(f"v_pk_add_f32 {v(OUT(2)+2*i,2)}, {v(TM,2)}, {v(TM+2,2)}")
        A(f"v_pk_add_f32 {v(OUT(3)+2*i,2)}, {v(TM,2)}, {v(TM+2,2)} neg_lo:[0,1] neg_hi:[0,1]")
    PKD = EO
    FS = 131072
    A(f"""
    v_lshlrev_b32 v8, 13, v2
    v_lshrrev_b32 v9, 1, v3
    v_lshl_add_u32 v8, v9, 9, v8
    v_and_b32 v10, 7, v9
    v_lshl_add_u32 v8, v10, 4, v8
    v_and_b32 v10, 1, v3
    v_lshl_add_u32 v8, v10, 7, v8
    v_and_b32 v9, 8, v9
    v_or_b32 v8, v8, v9
    s_lshr_b32 s3, s{S_W}, 2
    s_lshl_b32 s3, s3, 8
    s_and_b32 s27, s{S_W}, 3
    s_lshl_b32 s27, s27, 2
    s_add_u32 s3, s3, s27
    s_add_u32 s3, s3, {FS}
    v_xor_b32 v8, s3, v8
    """)
    for j in range(1, 8):
        A(f"v_xor_b32 v{8+j}, {j<<4}, v8")
    for pr in range(2):
        for j in range(8):
            A(f"v_permlane32_swap_b32 v{OUT(2*pr)+j}, v{OUT(2*pr+1)+j}")
        for j in range(8):
            A(f"v_cvt_pk_bf16_f32 v{PKD+8*pr+j}, v{OUT(2*pr)+j}, v{OUT(2*pr+1)+j}")
        for j in range(8):
            A.lds(f"ds_write_b32 v{8+j}, v{PKD+8*pr+j} offset:{pr*16384}")
    A(f"""
    v_xor_b32 v28, v3, v2
    v_lshlrev_b32 v28, 4, v28
    v_lshl_add_u32 v28, v2, 9, v28
    s_lshl_b32 s3, s{S_W}, 12
    s_and_b32 s27, s{S_W}, 1
    s_lshl_b32 s27, s27, 3
    s_add_u32 s3, s3, s27
    s_add_u32 s3, s3, {FS}
    v_add_u32 v28, s3, v28
    v_lshlrev_b32 v27, 4, v3
    v_lshl_add_u32 v27, v2, 14, v27
    s_lshr_b32 s3, s{S_Q}, 1
    s_lshl_b32 s3, s3, 10
    s_and_b32 s27, s{S_Q}, 1
    s_lshl_b32 s27, s27, 9
    s_add_u32 s3, s3, s27
    s_lshl_b32 s27, s{S_W}, 17
    s_add_u32 s3, s3, s27
    s_add_u32 s3, s3, {WS_XF}
    """)
    for k in range(1, 8):
        A(f"v_xor_b32 v{RAW+16+k}, {(k>>1)*32 + (k&1)*8}, v28")
    A.wait(lg=0)
    A("s_barrier")
    for i in range(4):
        for hh in range(2):
            k = 2 * i + hh
            A.lds(f"ds_read_b64 {v(RAW+4*i+2*hh,2)}, v{RAW+16+k if k else 28} offset:{i*1024}", ("rb", i))
    for i in range(4):
        A.wait(lg=("rb", i))
        A.vmem(f"buffer_store_dwordx4 {v(RAW+4*i,4)}, v27, s[{sWS}:{sWS+3}], s3 offen sc1", "xst")
        A(f"s_add_u32 s3, s3, 32768")
    A.stamp(3)
    cgen(opt.get("c1", 4))
    cg_left = cg[0]
    A(f"s_cmp_ge_u32 s{S_W}, 4\ns_cbranch_scc1 L_dft_helper")
    dstate = (list(A.vm), A.vm_done)
    SACC, SEX, CF, XF = 32, 96, [104, 136], 168
    KALT, B512, X5 = 4, 8, [12, 16]
    CA = 22
    S_XA = 15
    A(f"""
    v_lshlrev_b32 v{CA}, 4, v1
    v_and_b32 v26, 1, v1
    s_cmp_ge_u32 s{S_VAR}, 2
    s_cselect_b32 s100, 1, 0
    s_cselect_b32 s101, 0x80008000, 0
    v_xor_b32 v26, s100, v26
    v_lshlrev_b32 v26, 15, v26
    v_or_b32 v{B512}, 0x3f80, v26
    s_lshl_b32 s26, s{S_N}, 3
    s_lshl_b32 s27, s{S_W}, 1
    s_add_u32 s26, s26, s27
    s_lshl_b32 s3, s{S_VAR}, 4
    s_add_u32 s3, s3, s26
    s_lshl_b32 s{S_XA}, s3, 14
    s_add_u32 s{S_XA}, s{S_XA}, {WS_XF}
    s_lshl_b32 s3, s{S_M}, 15
    v_add_u32 v{CA}, s3, v{CA}
    s_add_u32 s3, s3, 32768
    s_and_b32 s3, s3, 0x1ffff
    v_lshl_add_u32 v{CA+1}, v1, 4, s3
    v_xor_b32 v{CA+2}, 0x10000, v{CA}
    v_xor_b32 v{CA+3}, 0x10000, v{CA+1}
    s_mov_b32 s{S_R}, s{S_M}
    s_lshl_b32 s26, s26, 5
    s_lshl_b32 s27, s{S_VAR}, 9
    s_add_u32 s26, s26, s27
    s_add_u32 s26, s26, {WS_X512}
    v_lshl_add_u32 v27, v1, 1, s26
    s_add_u32 s3, s{S_VAR}, 1
    s_and_b32 s3, s3, 2
    s_cmp_eq_u32 s3, 0
    s_cselect_b32 s3, 16, 0
    v_cmp_gt_u32 vcc, s3, v1
    v_mov_b32 v26, {OOB}
    v_lshlrev_b32 v28, 4, v1
    v_cndmask_b32 v27, v26, v27, vcc
    v_add_u32 v29, 16384, v28
    s_or_b32 s3, s{S_M}, s{S_VAR}
    s_cmp_eq_u32 s3, 0
    s_cselect_b32 vcc_lo, 1, 0
    s_mov_b32 vcc_hi, 0
    """)
    for i in range(4):
        A(f"v_mov_b32 v{KALT+i}, 0xbf803f80")
    for i in range(8):
        A(f"v_mov_b32 v{SEX+i}, 0")
    A.wait(vm="xst")
    A("s_barrier")
    A.stamp(4)
    cgen(16)
    A.wait(lg=0)
    for i in range(1, 4):
        A(f"v_mov_b32 v{B512+i}, 0\nv_mov_b32 v{X5[0]+i}, 0\nv_mov_b32 v{X5[1]+i}, 0")

    def c_reads(sb):
        return [lambda tb=tb: A.lds(f"ds_read_b128 {v(CF[sb&1]+4*tb,4)}, v{CA + sb//4} offset:{(sb%4)*8192 + tb*1024}", ("cf", sb))
                for tb in range(8)]

    def x_th(sb):
        r = []
        for a_ in range(2):
            def f(a_=a_):
                if sb % 4 == 0 and a_ == 0:
                    A(f"s_add_u32 s94, s{S_R}, {sb // 4}\ns_and_b32 s94, s94, 3\ns_lshl_b32 s94, s94, 12\ns_add_u32 s94, s94, s{S_XA}")
                A.vmem(f"buffer_load_dwordx4 {v(XF + (sb % 11)*8 + 4*a_, 4)}, v{28+a_}, s[{sWS}:{sWS+3}], s94 offen offset:{(sb%4)*1024} {HLD}", ("xf", sb))
            r.append(f)
        return r

    def extra(xa0, xa1):
        L = A.label("L_nx")
        A(f"s_cbranch_vccz {L}")
        A.mfma(SEX, xa0, KALT)
        A.mfma(SEX + 4, xa1, KALT)
        A(f"{L}:")
    A("s_barrier")
    A.stamp(5)
    XD = opt.get("xd", 4)
    for sb in range(XD):
        for f in x_th(sb):
            f()
    for f in c_reads(0):
        f()
    xnext = XD
    for sb in range(16):
        fl = list(enumerate(c_reads(sb + 1))) if sb + 1 < 16 else []
        nx = [k for k in (xnext, xnext + 1) if k <= min(15, sb + 10)]
        xnext += len(nx)
        k0 = 0
        for k in nx:
            for f in x_th(k):
                fl.append((8 + 2 * k0, f)); k0 += 1
        if sb == 8:
            fl.append((13, lambda: A.vmem(f"buffer_load_ushort v{X5[0]}, v27, s[{sWS}:{sWS+3}], 0 offen {HLD}", "x5")))
            fl.append((15, lambda: A.vmem(f"buffer_load_ushort v{X5[1]}, v27, s[{sWS}:{sWS+3}], 0 offen offset:32 {HLD}", "x5")))
        A.wait(vm=("xf", sb), lg=("cf", sb))
        z = "0" if sb == 0 else None
        xa = XF + (sb % 11) * 8
        A.weave([lambda a_=a_, tb=tb: A.mfma(SACC + (a_ * 8 + tb) * 4, xa + 4 * a_, CF[sb & 1] + 4 * tb, z)
                 for a_ in range(2) for tb in range(8)], fl)
        extra(xa, xa + 4)
    A.wait(vm="x5")
    extra(X5[0], X5[1])
    for tb in range(8):
        for a_ in range(2):
            A.mfma(SACC + (a_ * 8 + tb) * 4, X5[a_], B512)
    A.stamp(6)
    A(f"""
    s_lshl_b32 s3, s{S_M}, 3
    s_add_u32 s3, s3, s{S_P}
    s_lshl_b32 s3, s3, 5
    s_lshl_b32 s27, s100, 3
    s_lshl_b32 s26, s{S_N}, 2
    s_add_u32 s27, s27, s26
    s_add_u32 s27, s27, s{S_W}
    s_add_u32 s3, s3, s27
    s_lshl_b32 s3, s3, 10
    s_add_u32 s3, s3, {WS_VV}
    s_lshl_b32 s27, s27, 10
    s_add_u32 s{S_XA}, s27, {WS_VV + 64*16384}
    """)
    D0 = CF[0]
    for tb in range(8):
        d = D0 + 4 * tb
        for a_ in range(2):
            s0 = SACC + (a_ * 8 + tb) * 4
            A(f"v_cvt_pk_bf16_f32 v{d+2*a_}, v{s0}, v{s0+1}\nv_cvt_pk_bf16_f32 v{d+2*a_+1}, v{s0+2}, v{s0+3}")
        for i in range(4):
            A(f"v_xor_b32 v{d+i}, s101, v{d+i}")
        A(f"s_add_u32 s27, s3, {((tb >> 1) * 4 + (tb & 1)) * 16384}")
        A.vmem(f"buffer_store_dwordx4 {v(d,4)}, v28, s[{sWS}:{sWS+3}], s27 offen sc1")
    A("s_cbranch_vccz L_nospecial")
    A("s_mov_b32 s26, 0x00010001\ns_mov_b32 s27, 0x00010001")
    for i in range(4):
        A(f"v_cvt_pk_bf16_f32 v{XF+i}, v{SEX+2*i}, v{SEX+2*i+1}")
    for i in range(4):
        A(f"v_cndmask_b32 v{XF+i}, v{D0+i}, v{XF+i}, s[26:27]")
    A(f"buffer_store_dwordx4 {v(XF,4)}, v28, s[{sWS}:{sWS+3}], s{S_XA} offen sc1")
    A("L_nospecial:")
    A.wait(vm=0)
    A("s_barrier")
    A.stamp(7)
    A.dump_stamps(8)
    A("s_endpgm")

    A.reset()
    A("L_dft_helper:")
    A.vm, A.vm_done = dstate
    S_DT = 94
    A.wait(vm="xst")
    A(f"""
    v_readfirstlane_b32 s{S_DT}, v191
    v_lshlrev_b32 v4, 7, v1
    v_lshlrev_b32 v6, 2, v1
    s_lshl_b32 s3, s{S_Q}, 2
    s_add_u32 s3, s3, {WS_XFLAG}
    s_mul_i32 s{S_DT}, s{S_DT}, {TAGMUL}
    s_add_u32 s{S_DT}, s{S_DT}, {TAGADD}
    v_mov_b32 v5, s{S_DT}
    s_barrier
    s_cmp_eq_u32 s{S_W}, 4
    s_cbranch_scc0 L_nox
    s_setprio 3
    s_mov_b64 exec, 0xff
    buffer_store_dword v5, v4, s[{sWS}:{sWS+3}], s3 offen sc1
    s_mov_b64 exec, -1
    L_nox:
    """)
    A.stamp(4)
    cg[0] = cg_left
    cgen(16)
    A(f"""
    s_waitcnt lgkmcnt(0)
    s_cmp_eq_u32 s{S_W}, 4
    s_cbranch_scc0 L_end
    s_lshl_b32 s3, s{S_XCD}, 7
    s_add_u32 s3, s3, {WS_XFLAG}
    """)
    A.poll(6, sWS, "s3", "eq", 32, S_DT, sleep=opt.get("xps", 1))
    A.stamp(5)
    A("s_barrier")
    A("v_mov_b32 v8, 0")
    A(f"""
    s_lshl_b32 s3, s{S_VAR}, 2
    s_add_u32 s3, s3, s{S_M}
    s_lshl_b32 s3, s3, 5
    s_add_u32 s3, s3, s{S_N}
    s_lshl_b32 s3, s3, 2
    s_add_u32 s3, s3, {WS_VFLAG}
    s_barrier
    s_mov_b64 exec, 1
    buffer_store_dword v5, v8, s[{sWS}:{sWS+3}], s3 offen sc1
    """)
    A(f"s_cmp_lg_u32 s{S_Q}, 0\ns_cbranch_scc1 L_noepw")
    A(f"s_mov_b64 exec, -1\nv_and_b32 v9, 7, v1\nv_min_u32 v9, 6, v9\nv_lshlrev_b32 v9, 2, v9\nv_lshrrev_b32 v10, 3, v1\nv_lshl_add_u32 v9, v10, 7, v9")
    for i in range(4):
        A(f"s_mov_b32 s3, {WS_HFLAG + 16 + i*1024}")
        A.poll(9, sWS, "s3", "eq", 64, S_DT)
    A(f"s_mov_b32 s3, {WS_EPOCH}\ns_mov_b64 exec, 1\nbuffer_store_dword v5, v8, s[{sWS}:{sWS+3}], s3 offen sc1")
    A("L_noepw:")
    A.stamp(6)
    A.dump_stamps(8)
    A("L_end:")
    A("s_endpgm")
    A("L_code_end:")

    hdr = open("parallel_sum__spectral_fnet__dense_activation_relu__prompt.s.ref").read().split("; Override")[0]
    return (hdr + "; @launch grid=(256,1,1) block=(512,1,1) lds=163840\n"
            + ".amdgcn_target \"amdgcn-amd-amdhsa--gfx950\"\n" + kernel_header(NAME) + A.text() + kernel_desc(NAME, 256, 256))


if __name__ == "__main__":
    out = sys.argv[1]
    stamps = len(sys.argv) > 2 and sys.argv[2] == "stamps"
    opt = {}
    for kv in sys.argv[3:]:
        k, x = kv.split("=")
        opt[k] = int(x) if x.lstrip("-").isdigit() else x
    open(out, "w").write(gen(stamps, opt))
```

```python
import sys
from kbase import *

TAGMUL, TAGADD = 0x9E3779B1, 0x7F4A7C15


def wblk(i):
    if i < 24:
        return 65536 + 4096 * i
    if i < 28:
        return 32768 + 4096 * (i - 24)
    return 65536 + 4096 * (i - 28)


def mod7(A, s, tmp, maxv):
    m = 7
    while m * 2 < maxv:
        m *= 2
    while m >= 7:
        A(f"s_cmp_ge_u32 s{s}, {m}\ns_cselect_b32 s{tmp}, {m}, 0\ns_sub_u32 s{s}, s{s}, s{tmp}")
        m //= 2


def code_touch(A, vb=118):
    L = A.label("L_pc")
    A(f"""
    s_getpc_b64 s[48:49]
    {L}:
    s_sub_u32 s48, s48, {L}-{NAME}
    s_subb_u32 s49, s49, 0
    s_mov_b32 s50, L_code_end-{NAME}
    s_mov_b32 s51, 0x20000
    v_lshlrev_b32 v{vb}, 12, v1
    s_lshl_b32 s3, s{S_J}, 7
    v_add_u32 v{vb}, s3, v{vb}
    s_mov_b64 exec, 0x3ff
    buffer_load_dword v{vb+1}, v{vb}, s[48:51], 0 offen
    s_mov_b64 exec, -1
    """)


def start_touch(A, opt, what, vb=10):
    fl = opt.get("tfl", "")
    if what == "x":
        A(f"""
        s_lshl_b32 s3, s{S_XCD}, 2
        s_lshr_b32 s27, s{S_J}, 3
        s_add_u32 s3, s3, s27
        s_lshl_b32 s3, s3, 4
        s_and_b32 s27, s{S_J}, 1
        s_lshl_b32 s27, s27, 3
        s_add_u32 s3, s3, s27
        v_lshrrev_b32 v{vb+1}, 3, v1
        v_add_u32 v{vb+1}, s3, v{vb+1}
        s_bfe_u32 s3, s{S_J}, 0x20001
        s_add_u32 s27, s3, 1
        s_and_b32 s27, s27, 2
        s_sub_u32 s27, 1, s27
        v_mul_i32_i24 v{vb+1}, s27, v{vb+1}
        s_cmp_eq_u32 s3, 0
        s_cselect_b32 s27, 0, 1024
        s_cmp_eq_u32 s3, 1
        s_cselect_b32 s27, 2048, s27
        v_add_u32 v{vb+1}, s27, v{vb+1}
        v_mul_u32_u24 v{vb+1}, 896, v{vb+1}
        v_and_b32 v{vb+2}, 7, v1
        v_min_u32 v{vb+2}, 6, v{vb+2}
        v_lshl_add_u32 v{vb+1}, v{vb+2}, 7, v{vb+1}
        buffer_load_dword v{vb+3}, v{vb+1}, s[{sX}:{sX+3}], 0 offen {fl}
        """)
    else:
        A(f"""
        s_cmp_ge_u32 s{S_XCD}, 4
        s_cselect_b32 s{sOUT}, s8, s6
        s_cselect_b32 s{sOUT+1}, s9, s7
        s_and_b32 s{sOUT+1}, s{sOUT+1}, 0xffff
        s_mov_b32 s{sOUT+2}, {2048*4096}
        s_mov_b32 s{sOUT+3}, 0x20000
        s_and_b32 s3, s{S_XCD}, 1
        s_lshl_b32 s3, s3, 5
        s_add_u32 s3, s3, s{S_J}
        s_lshl_b32 s3, s3, 4
        s_bfe_u32 s27, s{S_XCD}, 0x10001
        s_add_u32 s3, s3, s27
        s_lshl_b32 s3, s3, 12
        v_lshrrev_b32 v{vb}, 3, v1
        v_lshlrev_b32 v{vb}, 13, v{vb}
        v_and_b32 v{vb+1}, 7, v1
        v_lshl_add_u32 v{vb}, v{vb+1}, 7, v{vb}
        buffer_load_dword v{vb+2}, v{vb}, s[{sOUT}:{sOUT+3}], s3 offen {fl}
        """)


def gen(stamps=False, opt=None):
    opt = opt or {}
    HST = opt.get("hst", "sc1")
    HLD = opt.get("hld", "")
    TOUCH_AT = opt.get("touch_at", 2)
    HD = opt.get("hd", 12)
    VAT = opt.get("vat", 22)
    A = K(stamps)
    P2 = opt.get('p2', 0)
    P1 = opt.get('p1', 0)
    st1 = lambda i: None if (P2 or P1) else A.stamp(i)
    _stamp = A.stamp
    if opt.get('p3'):
        st1 = lambda i: None
        A.stamp = lambda i: _stamp(i) if i in (0, 1, 8, 9, 10) else None
    if opt.get('light'):
        P1 = 0
        A.stamp = lambda i: _stamp(i) if i == 0 else None
    if P1:
        A.stamp = lambda i: _stamp(i) if i == 0 else None
    st2 = lambda i: A.stamp(i) if P2 else None
    A.stamp(0)
    if opt.get("dbg"):
        A("s_memrealtime s[92:93]\ns_memtime s[90:91]")
    A("""
    s_load_dwordx16 s[4:19], s[0:1], 0
    s_load_dwordx4 s[20:23], s[0:1], 64
    s_load_dwordx2 s[24:25], s[0:1], 80
    s_cmp_ge_u32 s2, 256
    s_cbranch_scc1 L_end
    v_lshrrev_b32 v2, 6, v0
    v_and_b32 v1, 63, v0
    """)
    A(f"s_and_b32 s{S_XCD}, s2, 7\ns_lshr_b32 s{S_J}, s2, 3")
    A(f"v_readfirstlane_b32 s{S_W}, v2")
    A(f"s_cmp_ge_u32 s{S_J}, 28\ns_cbranch_scc1 L_dft")

    S_RB, S_FT, S_KX, S_KW, S_MX, S_MW, S_T, S_CT = 63, 96, 97, 98, 99, 100, 101, 26
    S_FTL, S_JX, S_TAG, S_PF = 14, 86, 58, 59
    S_M2, S_K2, S_G2, S_HF, S_PT = 56, 57, 95, 94, 58
    A(f"""
    s_mul_i32 s27, s{S_J}, 37
    s_lshr_b32 s27, s27, 8
    s_mul_i32 s3, s27, 7
    s_sub_u32 s{S_CT}, s{S_J}, s3
    s_and_b32 s{S_RB}, s{S_XCD}, 6
    s_lshl_b32 s{S_RB}, s{S_RB}, 1
    s_add_u32 s{S_RB}, s{S_RB}, s27
    s_lshl_b32 s27, s27, 1
    s_add_u32 s{S_G2}, s{S_CT}, s27
    """)
    mod7(A, S_G2, 3, 14)
    VD, XA, WA, ONES = 2, 8, 16, 20
    VW2, VEP = 6, 18
    FX = [24, 48]; FW = [40, 64]
    ACC, RS, CS = 72, 104, 108
    S_MD = 52
    sL = sW1
    A(f"""
    s_and_b32 s{S_JX}, s{S_XCD}, 1
    s_mul_i32 s3, s{S_JX}, 7
    s_add_u32 s{S_FT}, s{S_G2}, s3
    v_lshrrev_b32 v31, 4, v1
    s_movk_i32 s3, 0xe2
    s_bitcmp1_b32 s3, s{S_W}
    s_cbranch_scc1 L_ldw
    s_max_u32 s{S_KX}, s{S_W}, 1
    s_lshl_b32 s{S_KX}, s{S_KX}, 2
    s_mul_i32 s3, s{S_CT}, 37
    s_lshr_b32 s3, s3, 4
    s_add_u32 s{S_KX}, s{S_KX}, s3
    s_add_u32 s{S_KX}, s{S_KX}, 12
    v_lshrrev_b32 v30, 3, v1
    v_lshlrev_b32 v30, 1, v30
    v_and_b32 v32, 7, v1
    v_xor_b32 v32, v32, v31
    s_lshl_b32 s{S_KW}, s{S_RB}, 6
    """)
    for i in range(4):
        A(f"""
        s_add_u32 s{S_MD+i}, s{S_KX}, {i}
        s_and_b32 s{S_MD+i}, s{S_MD+i}, 15
        s_lshr_b32 s3, s{S_MD+i}, 3
        s_add_u32 s3, s3, s{S_KW}
        s_and_b32 s27, s{S_MD+i}, 3
        s_lshl_b32 s27, s27, 4
        s_add_u32 s3, s3, s27
        v_add_u32 v33, s3, v30
        v_sub_u32 v34, 2048, v33
        v_lshrrev_b32 v35, 11, v34
        v_lshlrev_b32 v35, 10, v35
        v_sub_u32 v34, v34, v35
        s_bitcmp1_b32 s{S_MD+i}, 2
        s_cselect_b64 vcc, -1, 0
        s_and_b32 s27, s{S_MD+i}, 1
        s_lshl_b32 s27, s27, 2
        v_cndmask_b32 v33, v33, v34, vcc
        v_xor_b32 v34, s27, v32
        v_mul_u32_u24 v33, 896, v33
        s_lshl_b32 s{S_MD+i}, s{S_MD+i}, 10
        v_lshl_add_u32 v{VD+i}, v34, 4, v33
        """)
    A(f"s_movk_i32 s{S_MX}, 128\ns_waitcnt lgkmcnt(0)")
    A.srd(sL, 4, 2048 * 896)
    A("s_branch L_ldok")
    A("L_ldw:")
    A(f"""
    s_max_u32 s{S_KX}, s{S_W}, 4
    s_add_u32 s{S_KX}, s{S_KX}, s{S_RB}
    s_lshl_b32 s{S_KX}, s{S_KX}, 2
    v_lshlrev_b32 v33, 1, v31
    v_and_b32 v34, 15, v1
    v_xor_b32 v33, v33, v34
    v_mul_u32_u24 v34, 3584, v31
    v_lshl_add_u32 v32, v33, 4, v34
    v_xor_b32 v33, 128, v32
    s_and_b32 s{S_MD}, s{S_KX}, 15
    s_mul_i32 s27, s{S_MD}, {4*3584}
    s_lshl_b32 s3, s{S_FT}, 8
    s_add_u32 s27, s27, s3
    v_add_u32 v{VD}, s27, v32
    v_add_u32 v{VD+2}, s27, v33
    v_add_u32 v{VD+1}, {4*3584}, v{VD}
    v_add_u32 v{VD+2}, {8*3584}, v{VD+2}
    v_add_u32 v{VD+3}, {4*3584}, v{VD+2}
    s_lshl_b32 s{S_MD}, s{S_MD}, 10
    s_add_u32 s{S_MD}, s{S_MD}, 16384
    s_add_u32 s{S_MD+1}, s{S_MD}, 1024
    s_add_u32 s{S_MD+2}, s{S_MD}, 2048
    s_add_u32 s{S_MD+3}, s{S_MD}, 3072
    s_mov_b32 s{S_MX}, {64*3584}
    s_waitcnt lgkmcnt(0)
    """)
    A.srd(sL, 16, 448 * 3584)
    A("L_ldok:")
    A.srd(sX, 4, 2048 * 896)

    def p1_dmas(st):
        slot = st % 5
        return [A.dma2(VD + i, sL, f"s{S_KX}", f"s_add_u32 m0, s{S_MD+i}, {slot*32768}", ("p1", st),
                       pre=None if i else f"s_mul_i32 s{S_KX}, s{S_MX}, {st}", flags=p1fl[0]) for i in range(4)]
    p1fl = [""]

    def burst(dmas):
        for a_, b_ in dmas:
            a_(); A("s_nop 0"); b_()

    def p1_setup():
        A.srd(sWS, 24, WS_SIZE + (0x40000 if stamps else 0))
        A(f"""
        s_mov_b32 s{S_FTL}, s{S_G2}
        s_lshl_b32 s{S_HF}, s{S_XCD}, 2
        s_and_b32 s3, s{S_RB}, 3
        s_add_u32 s{S_HF}, s{S_HF}, s3
        s_lshl_b32 s{S_HF}, s{S_HF}, 7
        s_add_u32 s{S_HF}, s{S_HF}, {WS_HFLAG}
        v_mov_b32 v35, {WS_EPOCH}
        """)
        A.vmem(f"buffer_load_dword v{VEP}, v35, s[{sWS}:{sWS+3}], 0 offen sc1", "ep")
        A(f"""
        v_and_b32 v32, 15, v1
        v_lshrrev_b32 v33, 1, v32
        v_xor_b32 v33, v33, v31
        v_lshlrev_b32 v33, 4, v33
        v_lshl_add_u32 v33, v32, 7, v33
        s_lshl_b32 s3, s{S_W}, 11
        v_add_u32 v{XA}, s3, v33
        """)
        for rb in range(1, 4):
            A(f"v_xor_b32 v{XA+rb}, {rb*2048}, v{XA}")
        for rb in range(4):
            A(f"v_xor_b32 v{XA+4+rb}, 64, v{XA+rb}")
        A(f"""
        v_bfe_u32 v30, v1, 2, 2
        v_lshl_add_u32 v32, v31, 3, v30
        v_lshlrev_b32 v32, 8, v32
        v_and_b32 v33, 3, v1
        v_lshl_add_u32 v32, v33, 3, v32
        v_add_u32 v32, 16384, v32
        v_and_b32 v33, 1, v31
        v_lshl_or_b32 v33, v33, 2, v30
        s_and_b32 s3, s{S_W}, 3
        s_lshl_b32 s3, s3, 1
        s_lshr_b32 s27, s{S_W}, 2
        s_or_b32 s3, s3, s27
        v_xor_b32 v33, s3, v33
        v_lshl_add_u32 v{WA}, v33, 5, v32
        v_xor_b32 v{WA+1}, 32, v{WA}
        """)
        for i in range(4):
            A(f"v_mov_b32 v{ONES+i}, 0x3f803f80")
        A.srd(sW2, 18, 1792 * 896)
        A(f"""
        s_lshl_b32 s{S_T}, s{S_RB}, 1
        s_add_u32 s{S_T}, s{S_T}, s{S_JX}
        v_lshrrev_b32 v30, 3, v1
        v_mul_u32_u24 v32, 896, v30
        v_and_b32 v30, 6, v30
        v_and_b32 v33, 7, v1
        v_xor_b32 v30, v30, v33
        v_lshl_add_u32 v32, v30, 4, v32
        s_lshl_b32 s3, s{S_CT}, 7
        s_mul_i32 s27, s{S_W}, {8*896}
        s_add_u32 s3, s3, s27
        v_add_u32 v{VW2}, s3, v32
        s_lshl_b32 s{S_M2}, s{S_W}, 10
        """)

    def wpair_addr(p):
        if p < 12:
            return 65536 + 8192 * p
        if p < 14:
            return 16384 + 8192 * (p - 12)
        return [32768, 40960, 0, 65536, 49152, 57344, 8192, 73728][p - 14]

    def w_dma(p):
        if p < 14:
            srd = sW2
            if p % 2 == 0:
                pre = (f"s_mul_i32 s{S_K2}, s{S_JX}, 7\ns_add_u32 s{S_K2}, s{S_K2}, s{S_G2}\ns_mul_i32 s{S_K2}, s{S_K2}, {128*896}\n"
                       f"s_add_u32 s{S_G2}, s{S_G2}, 1\ns_cmp_eq_u32 s{S_G2}, 7\ns_cselect_b32 s{S_G2}, 0, s{S_G2}")
            else:
                pre = f"s_add_u32 s{S_K2}, s{S_K2}, {64*896}"
        else:
            srd = sWD if p < 18 else sW1
            pre = f"s_mov_b32 s{S_K2}, {((p - 14) % 4)*64*896}"
        return A.dma2(VW2, srd, f"s{S_K2}", f"s_add_u32 m0, s{S_M2}, {wpair_addr(p)}", ("w", p), pre=pre)

    def place(dmas, g0, g1):
        r = []
        for k, (a_, b_) in enumerate(dmas):
            g = g0 + 1 + k * (g1 - g0) // len(dmas)
            r += [(g - 1, a_), (g, b_)]
        return r

    def p1_reads(st, q, buf):
        so = ((st % 5) & 1) * 32768
        r = []
        for rb in range(4):
            r.append(lambda rb=rb: A.lds(f"ds_read_b128 {v(FX[buf]+4*rb,4)}, v{XA + 4*q + rb} offset:{so}", ("f", st, q)))
        for cb in range(2):
            for h in range(2):
                r.append(lambda cb=cb, h=h: A.lds(f"ds_read_b64_tr_b16 {v(FW[buf]+4*cb+2*h,2)}, v{WA+cb} offset:{so + q*8192 + h*1024}", ("f", st, q)))
        return r

    def p1_mfma(buf, first):
        z = "0" if first else None
        r = [lambda: A.mfma(RS, ONES, FX[buf], z), lambda: A.mfma(CS, FW[buf], ONES, z)]
        for cb in range(2):
            for rb in range(4):
                r.append(lambda cb=cb, rb=rb: A.mfma(ACC + (cb * 4 + rb) * 4, FW[buf] + 4 * cb, FX[buf] + 4 * rb, z))
        return r

    def p1_addr_step(st):
        d = {2: 65536, 4: 65536, 5: -131072}.get(st)
        if not d:
            return []
        return [(8 + k // 5, lambda r=r: A(f"v_add_u32 v{r}, {d & 0xffffffff}, v{r}"))
                for k, r in enumerate(list(range(XA, XA + 8)) + [WA, WA + 1])]

    def lines(txt, g0, g1):
        ex = [x for x in txt.strip().split("\n") if x.strip()]
        return [(g0 + k * (g1 - g0) // len(ex), lambda x=x: A(x)) for k, x in enumerate(ex)]

    VID = 120
    WA2, WB, WC, VH, VO, VL, VZ = 8, 12, 112, 2, 4, 16, 7
    FW2 = [24, 40]
    AC2, HF, VF = 56, 128, 192
    p2_setup = f"""
    v_lshlrev_b32 v{VL}, 4, v1
    v_mov_b32 v{VZ}, 0
    v_lshrrev_b32 v124, 4, v1
    v_bfe_u32 v125, v1, 2, 2
    v_lshl_add_u32 v126, v124, 2, v125
    v_lshrrev_b32 v127, 1, v126
    v_and_b32 v127, 3, v127
    v_lshlrev_b32 v126, 7, v126
    v_and_b32 v125, 3, v1
    v_lshl_add_u32 v126, v125, 3, v126
    """ + "".join(f"""
    v_xor_b32 v125, {eb}, v127
    v_lshl_add_u32 v{WA2+eb}, v125, 5, v126
    v_add_u32 v{WB+eb}, 0x10000, v{WA2+eb}
    v_add_u32 v{WC+eb}, 0x20000, v{WA2+eb}""" for eb in range(4)) + f"""
    s_lshl_b32 s{S_K2+32}, s{S_T}, 2
    s_and_b32 s{S_K2+33}, s{S_W}, 3
    s_add_u32 s{S_K2+32}, s{S_K2+32}, s{S_K2+33}
    s_mul_i32 s{S_K2+34}, s{S_K2+32}, {H_STRIDE}
    v_add_u32 v{VH}, s{S_K2+34}, v{VL}
    s_xor_b32 s{S_K2+34}, s{S_K2+32}, 4
    s_mul_i32 s{S_K2+34}, s{S_K2+34}, {H_STRIDE}
    v_add_u32 v{VH+1}, s{S_K2+34}, v{VL}
    s_and_b32 s{S_K2+32}, s{S_K2+32}, 7
    s_lshl_b32 s{S_K2+32}, s{S_K2+32}, 12
    s_add_u32 s{S_K2+32}, s{S_K2+32}, 32768
    v_add_u32 v238, s{S_K2+32}, v{VL}
    v_xor_b32 v239, 16384, v238
    s_lshl_b32 s{S_K2+32}, s{S_RB}, 6
    s_add_u32 s{S_K2+32}, s{S_K2+32}, s{S_JX}
    s_and_b32 s{S_K2+33}, s{S_W}, 1
    s_lshl_b32 s{S_K2+33}, s{S_K2+33}, 5
    s_add_u32 s{S_K2+33}, s{S_K2+33}, s{S_K2+32}
    v_lshrrev_b32 v124, 3, v1
    v_lshl_add_u32 v125, v124, 1, s{S_K2+33}
    s_bfe_u32 s{S_K2+32}, s{S_W}, 0x10001
    s_lshl_b32 s{S_K2+33}, s{S_K2+32}, 11
    s_lshl_b32 s{S_K2+32}, s{S_K2+32}, 1
    s_sub_u32 s{S_K2+32}, 1, s{S_K2+32}
    v_mul_i32_i24 v125, s{S_K2+32}, v125
    v_add_u32 v125, s{S_K2+33}, v125
    s_mul_i32 s{S_K2+32}, s{S_K2+32}, {16*896}
    s_lshl_b32 s{S_K2+33}, s{S_CT}, 7
    v_mul_u32_u24 v126, 896, v125
    v_add_u32 v126, s{S_K2+32}, v126
    v_lshrrev_b32 v127, 11, v125
    v_lshlrev_b32 v127, 10, v127
    v_sub_u32 v125, v125, v127
    v_mul_u32_u24 v125, 896, v125
    v_and_b32 v127, 7, v1
    v_xor_b32 v127, v127, v124
    v_lshlrev_b32 v127, 4, v127
    v_add_u32 v127, s{S_K2+33}, v127
    v_add_u32 v{VO}, v125, v127
    v_add_u32 v{VO+1}, v126, v127
    """
    for k in range(3):
        p2_setup = p2_setup.replace(f"s{S_K2+32+k}", f"s{48+k}")
    WPRE = opt.get("wpre", 12)

    def phase1(cls):
        K0 = opt.get("k0", 2) if cls == 0 else opt.get("k1", 2)
        p1fl[0] = opt.get("shfl", "") if cls == 0 else ""
        if cls == 0:
            if opt.get("xt", 0) == 2:
                A(f"s_cmp_lg_u32 s{S_W}, 1\ns_cbranch_scc1 L_notouch0")
                start_touch(A, opt, "x", 124)
                A("L_notouch0:")
            for s_ in range(K0):
                burst(p1_dmas(s_))
            A(f"s_cmp_lg_u32 s{S_W}, 0\ns_cbranch_scc1 L_notouch")
            if opt.get("xt", 0) == 1:
                start_touch(A, opt, "x", 124)
            code_touch(A)
            A("L_notouch:")
            p1_setup()
        else:
            p1_setup()
            for s_ in range(K0):
                burst(p1_dmas(s_))
        A.wait(vm=("p1", 0))
        A("s_barrier")
        st1(2)
        if P1: _stamp(1)
        for f in p1_reads(0, 0, 0):
            f()
        queue = []
        for s_ in range(K0, 7):
            for i in range(4):
                first = max(0, 2 * (s_ - 5) + 1)
                if cls == 1:
                    first = max(first, 2 * s_ - opt.get("la1", 5) + i // 2)
                queue.append((first, lambda s_=s_, i=i: p1_dmas(s_)[i]))
        wn = WPRE
        for p in range(WPRE):
            queue.append((max(2 * (2 + p // 4) + 1 if p < 12 else 13, min(13, opt.get("w0", 8) + p // 2)), lambda p=p: w_dma(p)))
        rate = (opt.get("r0", 4), 4)
        for st in range(7):
            for q in range(2):
                fl = []
                if q == 0:
                    A.wait(lg=("f", st, 0))
                    fl += list(enumerate(p1_reads(st, 1, 1))) + p1_addr_step(st + 1)
                else:
                    if st < 6:
                        if P1 == 2: _stamp(st + 2)
                        A.wait(vm=("p1", st + 1), lg=0)
                        if P1 == 3: _stamp(st + 2)
                        A("s_barrier")
                        if P1 == 1: _stamp(st + 2)
                        fl += list(enumerate(p1_reads(st + 1, 0, 0)))
                    else:
                        A.wait(lg=0)
                dm = []
                blk = 2 * st + q
                while queue and len(dm) < rate[cls] and queue[0][0] <= blk:
                    dm.append(queue.pop(0)[1]())
                if dm:
                    fl += place(dm, 1, 9)
                if (st, q) == (0, 1):
                    fl += lines(f"""
                    v_readfirstlane_b32 s{S_TAG}, v{VEP}
                    s_lshl_b32 s27, s{S_CT}, 2
                    v_mov_b32 v{VID+1}, s27
                    s_mul_i32 s{S_TAG}, s{S_TAG}, {TAGMUL}
                    s_add_u32 s{S_TAG}, s{S_TAG}, {TAGADD}
                    v_min_u32 v{VID+3}, 6, v1
                    v_lshlrev_b32 v{VID+3}, 2, v{VID+3}
                    """, 0, 8)
                    A.wait(vm="ep")
                if cls == 0 and opt.get("dum", 0) and 2 * st + q == opt.get("dumb", 0):
                    def dummy():
                        for s_ in range(5, 7):
                            A(f"s_mul_i32 s3, s{S_MX}, {s_}")
                            for i in range(4):
                                A.vmem(f"buffer_load_dwordx4 v[252:255], v{VD+i}, s[{sL}:{sL+3}], s3 offen")
                    fl.append((9, dummy))
                if cls == 0 and 2 * st + q == opt.get("wtb", 2):
                    def wt():
                        A(f"s_cmp_lg_u32 s{S_W}, 1\ns_cbranch_scc1 L_notouch3")
                        A(f"""
                        v_lshlrev_b32 v124, 7, v1
                        s_mul_i32 s3, s2, {56*128}
                        s_mov_b32 exec_hi, 0xffffff
                        buffer_load_dword v125, v124, s[{sW2}:{sW2+3}], s3 offen
                        s_mov_b64 exec, -1
                        """)
                        A("L_notouch3:")
                    fl.append((9, wt))
                if (st, q) == (6, 1):
                    fl += lines(f"""
                    v_and_b32 v30, 15, v1
                    v_lshlrev_b32 v30, 2, v30
                    s_lshl_b32 s3, s{S_W}, 6
                    v_add_u32 v30, s3, v30
                    v_lshrrev_b32 v31, 4, v1
                    v_lshlrev_b32 v31, 4, v31
                    s_and_b32 s27, s{S_W}, 3
                    s_lshl_b32 s27, s27, 7
                    s_lshr_b32 s3, s{S_W}, 2
                    s_lshl_b32 s3, s3, 6
                    s_add_u32 s27, s27, s3
                    v_add_u32 v31, s27, v31
                    v_xor_b32 v32, 64, v30
                    v_xor_b32 v33, 128, v30
                    v_xor_b32 v34, 192, v30
                    v_xor_b32 v35, 64, v31
                    """, 0, 8)
                    fl += lines(p2_setup, 0, 9)
                    fl.append((9, lambda: A.lds(f"ds_write_b32 v30, v{RS}")))
                    fl.append((9, lambda: A.lds(f"ds_write_b128 v31, {v(CS,4)} offset:512")))
                A.weave(p1_mfma(q, st == 0 and q == 0), fl)
        assert not queue, len(queue)
        if opt.get("tre", 0):
            A.wait(vm=("w", 2 * opt.get("tre", 0) - 1))
        return wn
    A(f"s_cmp_ge_u32 s{S_W}, 2\ns_cbranch_scc1 L_p1b")
    WN = phase1(0)
    A("s_branch L_p1done")
    A("L_p1b:")
    A.reset()
    phase1(1)
    A("L_p1done:")
    A.reset()
    st1(3)
    if P1: _stamp(8)
    A.wait(lg=0)
    A("s_barrier")
    if P1: _stamp(9)
    S_HS = S_MD

    def epilogue(wr):
        A.reset()
        MB = 24; CS1 = 28
        A.lds(f"ds_read_b32 v{MB+1}, v32")
        A.lds(f"ds_read_b32 v{MB+2}, v33")
        A.lds(f"ds_read_b32 v{MB+3}, v34")
        A.lds(f"ds_read_b128 {v(CS1,4)}, v35 offset:512")
        A(f"""
        s_lshl_b32 s{S_KX}, s{S_RB}, 3
        s_mul_i32 s{S_KX}, s{S_KX}, 56
        s_lshl_b32 s{S_KW}, s{S_FT}, 2
        s_add_u32 s{S_KX}, s{S_KX}, s{S_KW}
        s_and_b32 s27, s{S_W}, 3
        s_add_u32 s{S_KX}, s{S_KX}, s27
        s_lshl_b32 s{S_KX}, s{S_KX}, 10
        s_mov_b32 s59, s{S_KX}
        s_lshl_b32 s27, s27, 10
        s_add_u32 s27, s27, 32768
        v_add_u32 v34, s27, v{VL}
        s_mov_b32 s3, {0x3b124925}
        v_mul_f32 v{MB}, s3, v{RS}
        """)
        A.wait(lg=0)
        for i in range(1, 4):
            A(f"v_mul_f32 v{MB+i}, s3, v{MB+i}")
        A(f"v_cvt_pk_bf16_f32 v32, v{MB}, v{MB+1}\nv_cvt_pk_bf16_f32 v33, v{MB+2}, v{MB+3}")
        A(f"v_lshlrev_b32 v{MB}, 16, v32\nv_and_b32 v{MB+1}, 0xffff0000, v32\nv_lshlrev_b32 v{MB+2}, 16, v33\nv_and_b32 v{MB+3}, 0xffff0000, v33")
        PK = 36
        for rb in range(4):
            sel = "op_sel:[0,1,0] op_sel_hi:[1,1,1]" if rb & 1 else "op_sel_hi:[1,0,1]"
            d = PK + 4 * rb
            for cb in range(2):
                a0 = ACC + (cb * 4 + rb) * 4
                for hh in range(2):
                    A(f"v_pk_fma_f32 {v(a0+2*hh,2)}, {v((CS, CS1)[cb]+2*hh,2)}, {v(MB+(rb&2),2)}, {v(a0+2*hh,2)} {sel} neg_lo:[1,0,0] neg_hi:[1,0,0]")
            for cb in range(2):
                a0 = ACC + (cb * 4 + rb) * 4
                for hh in range(2):
                    A(f"v_cvt_pk_bf16_f32 v{d+2*(cb^wr)+hh}, v{a0+2*hh}, v{a0+2*hh+1}")
            for i in range(4):
                A(f"v_pk_max_i16 v{d+i}, v{d+i}, 0")
            A(f"s_xor_b32 s27, s{S_W}, {rb}\ns_mul_i32 s{S_MD+rb}, s27, {H_STRIDE}\ns_add_u32 s{S_MD+rb}, s{S_MD+rb}, s{S_KX}")
            A.vmem(f"buffer_store_dwordx4 {v(PK+4*rb,4)}, v{VL}, s[{sWS}:{sWS+3}], s{S_MD+rb} offen sc1", ("hst", rb))
            A(f"s_lshl_b32 s27, s27, 12\nv_add_u32 v35, s27, v34")
            A.lds(f"ds_write_b128 v35, {v(PK+4*rb,4)}")
        st1(4)
        if P1: _stamp(10)
        A.stamp(5)

    def readback(vb):
        if opt.get("rb", 0):
            A(f"""
            v_lshrrev_b32 v{vb}, 3, v1
            v_xor_b32 v{vb}, s{S_W}, v{vb}
            v_mul_u32_u24 v{vb}, {H_STRIDE}, v{vb}
            v_and_b32 v{vb+1}, 7, v1
            v_lshl_add_u32 v{vb}, v{vb+1}, 7, v{vb}
            s_mov_b32 exec_hi, 0
            """)
            A.vmem(f"buffer_load_dword v{vb+1}, v{vb}, s[{sWS}:{sWS+3}], s{S_HB} offen")
            A("s_mov_b32 exec_hi, -1")
    S_HB = 59
    S_H, S_GH = S_KX, S_KW
    TRB = opt.get("trb", 0)
    assert TRB <= 2 * WN and TRB % 4 == 0
    NAL = opt.get("nal", 24)
    B0 = 4 + NAL

    def w_reads(key, i, both=True):
        r = []
        if i < TRB:
            a_ = wpair_addr(i >> 1) + (i & 1) * 4096
            return [lambda eb=eb: A.lds(f"ds_read_b128 {v(FW2[key&1]+4*eb,4)}, v{240+(a_>>16)} offset:{(a_ & 0xffff) + eb*1024}", ("wf", key, eb >> 1))
                    for eb in range(4)]
        for eb in range(4):
            for h in range(2):
                if i < 28:
                    a_ = wpair_addr(i >> 1) + (i & 1) * 4096
                    reg, off = (WA2, WB, WC)[a_ >> 16] + eb, (a_ & 0xffff) + h * 2048
                else:
                    u = i - 28
                    reg, off = ((WA2, u * 4096) if u < 4 else ((WB, WC)[(u - 4) >> 1], (u & 1) * 4096))
                    reg, off = reg + eb, off + h * 2048
                r.append(lambda reg=reg, off=off, eb=eb, h=h: A.lds(f"ds_read_b64_tr_b16 {v(FW2[key&1]+4*eb+2*h,2)}, v{reg} offset:{off}", ("wf", key, eb >> 1)))
        return r

    YS, ZS = 32768, 0
    XS = TS = 4096

    A(f"s_cmp_ge_u32 s{S_W}, 4\ns_cbranch_scc1 L_aux")
    epilogue(0)
    seq = [(i, (0, 1)) for i in range(4)] + [(i, (1,)) for i in range(4, B0)] + [(i, (0, 1)) for i in range(B0, 28)] + [(i, (0,)) for i in range(4, B0)]
    hl = [(n, tt) for n, (i, tts) in enumerate(seq) for tt in tts]
    NSL = opt.get("nsl", 16)
    slot = {k: HF + (idx % NSL) * 4 for idx, k in enumerate(hl)}
    state_h = dict(next=8, grp=None)

    def h_next():
        idx = state_h["next"]
        if idx >= len(hl):
            return
        state_h["next"] += 1
        n, tt = hl[idx]
        i = seq[n][0]
        if state_h["grp"] != i // 4 and not (opt.get("hfix") and state_h["grp"]):
            state_h["grp"] = i // 4
            A(f"s_add_u32 s{S_H}, s{S_FTL}, {i // 4}\ns_cmp_ge_u32 s{S_H}, 7\ns_cselect_b32 s3, 7, 0\ns_sub_u32 s{S_H}, s{S_H}, s3")
            A(f"s_add_u32 s{S_H}, s{S_H}, s{S_GH}\ns_lshl_b32 s{S_H}, s{S_H}, 12")
        if opt.get("noh"):
            A.vm.append(("h", n, tt)); A.vm_done = len(A.vm)
            return
        A.vmem(f"buffer_load_dwordx4 {v(slot[(n, tt)], 4)}, v{VH+tt}, s[{sWS}:{sWS+3}], s{S_H} offen offset:{(i%4)*1024} {HLD}", ("h", n, tt))

    def step(n, extra=()):
        i, tts = seq[n]
        nm = 4 * len(tts)
        fl = list(extra)
        if n + 1 < len(seq):
            rd = w_reads(n + 1, seq[n + 1][0])
            fl += [(k * nm // len(rd), f) for k, f in enumerate(rd)]
        if n >= 1:
            fl += [(1 + 4 * k, h_next) for k in range(len(seq[n - 1][1]))]
        mf = []
        for eb in range(4):
            for tt in tts:
                def f(eb=eb, tt=tt):
                    if eb % 2 == 0 and tt == tts[0]:
                        A.wait(vm=("h", n, tts[-1]) if eb == 0 and n >= 4 else None, lg=("wf", n, eb >> 1))
                    A.mfma(AC2 + (tt * 4 + eb) * 4, FW2[n & 1] + 4 * eb, slot[(n, tt)], "0" if n == 0 else None)
                mf.append(f)
        A.weave(mf, fl)

    PR, XU = 192, 208
    fin = f"""
    v_and_b32 v20, 15, v1
    v_lshrrev_b32 v21, 4, v1
    v_lshrrev_b32 v22, 1, v21
    v_and_b32 v23, 7, v20
    v_xor_b32 v22, v22, v23
    v_lshlrev_b32 v22, 4, v22
    v_lshl_add_u32 v22, v20, 7, v22
    v_and_b32 v21, 1, v21
    v_lshl_add_u32 v22, v21, 3, v22
    s_lshl_b32 s27, s{S_W}, 11
    s_add_u32 s27, s27, {TS}
    v_add_u32 v232, s27, v22
    v_add_u32 v23, s27, v{VL}
    v_xor_b32 v233, 32, v232
    v_xor_b32 v234, 64, v232
    v_xor_b32 v235, 96, v232
    ds_read_b64 v[224:225], v232
    ds_read_b64 v[226:227], v233
    ds_read_b64 v[228:229], v234
    ds_read_b64 v[230:231], v235
    s_lshl_b32 s27, s{S_W}, 6
    s_add_u32 s27, s27, {YS + 20480}
    v_lshl_add_u32 v20, v20, 2, s27
    s_and_b32 s27, s{S_W}, 1
    s_lshl_b32 s27, s27, 12
    s_add_u32 s27, s27, {YS}
    v_add_u32 v19, s27, v{VL}
    s_xor_b32 s{S_MW}, s{S_W}, 2
    s_or_b32 s{S_MW}, s{S_MW}, s{S_T}
    s_sub_u32 s{S_MW}, s{S_MW}, 1
    s_lshr_b32 s{S_MW}, s{S_MW}, 31
    s_lshl_b32 s{S_MW}, s{S_MW}, 14
    v_add_u32 v18, s{S_MW}, v19
    s_lshl_b32 s27, s{S_W}, 30
    s_and_b32 s27, s27, 0x80000000
    s_or_b32 s27, s27, 1.0
    v_mov_b32 v237, s27
    s_xor_b32 s{S_FT}, s{S_MX}, 16384
    s_and_b32 s{S_G2}, s{S_PT}, 0xff
    """.strip().split("\n")
    fin = [x.strip() for x in fin]
    unp = [f"v_lshlrev_b32 v{XU+2*k}, 16, v{224+k}" if b_ == 0 else f"v_and_b32 v{XU+2*k+1}, 0xffff0000, v{224+k}" for k in range(8) for b_ in range(2)]

    def p_loads(track):
        for eb in range(4):
            t_ = f"buffer_load_dwordx4 {v(PR+4*eb,4)}, v{VL}, s[{sWS}:{sWS+3}], s{S_FT} offen offset:{eb*1024} sc1"
            A.vmem(t_, "part") if track else A(t_)
    TRE = min(opt.get("tre", 0), TRB // 4)

    def transpose(b0, b1):
        def tr_in(b):
            a_ = wpair_addr(2 * b)
            for eb in range(4):
                for h in range(2):
                    A.lds(f"ds_read_b64_tr_b16 {v(160+16*(b&1)+4*eb+2*h,2)}, v{240+4*(a_>>16)+eb} offset:{(a_ & 0xffff) + h*2048}", ("tr", b))
        if b0 < b1:
            tr_in(b0)
        for b in range(b0, b1):
            if b + 1 < b1:
                tr_in(b + 1)
            A.wait(lg=("tr", b))
            a_ = wpair_addr(2 * b)
            for eb in range(4):
                A.lds(f"ds_write_b128 v{252+(a_>>16)}, {v(160+16*(b&1)+4*eb,4)} offset:{(a_ & 0xffff) + eb*1024}")
    A(f"s_lshl_b32 s3, s2, 14\ns_lshl_b32 s27, s{S_W}, 12\ns_add_u32 s3, s3, s27\ns_add_u32 s{S_MX}, s3, {WS_PART}")
    A.srd(sOUT, 20, 2048 * 896)
    A(f"s_lshl_b32 s{S_H}, s{S_W}, 11")
    for ps in range(2):
        A.dma(VO + ps, sX, "0", f"s_add_u32 m0, s{S_H}, {XS + ps*1024}", "xr")
    if TRB:
        A(f"s_lshl_b32 s3, s{S_W}, 12")
        for k, base in enumerate((WA2, WB, WC)):
            for eb in range(4):
                A(f"v_add_u32 v{240+4*k+eb}, s3, v{base+eb}")
            A(f"v_add_u32 v{252+k}, s3, v{VL}" + (f"\nv_add_u32 v{252+k}, {k << 16}, v{252+k}" if k else ""))
    transpose(0, TRE)
    A.wait(vm=0, lg=0)
    burst([w_dma(p) for p in range(WN, 14)])
    A("s_barrier")
    A.stamp(7)
    for x in fin:
        A.lds(x) if x.startswith("ds_") else A(x)
    for n in range(4):
        for tt in range(2):
            A.lds(f"ds_read_b128 {v(slot[(n, tt)],4)}, v{238+tt} offset:{n*1024}")
    A.wait(lg=0)
    for x in unp:
        A(x)
    A(f"s_mul_i32 s{S_GH}, s{S_JX}, 7")
    transpose(TRE, TRB // 4)
    if TRB:
        A(f"v_add_u32 v241, 0x10000, v{VL}\nv_add_u32 v242, 0x20000, v{VL}\nv_mov_b32 v240, v{VL}")
    A.wait(vm=0, lg=0)
    A("s_barrier")
    if not P2: A.stamp(1)
    for k in range(NSL - 8):
        h_next()
    for f in w_reads(0, 0):
        f()
    if opt.get("prio", 1):
        A(f"s_setprio {opt.get('prio', 1)}")
    for n in range(len(seq)):
        ex = []
        if opt.get("p3") and n in (0, 4, 12, 20, 36, 44):
            _stamp({0: 2, 4: 3, 12: 4, 20: 5, 36: 6, 44: 7}[n])
        if n == opt.get("m2n", -1):
            A("s_barrier")
        if n == 28:
            A.stamp(8)
            A(f"""
            s_and_b32 s27, s{S_PT}, 0xff
            v_mov_b32 v236, s27
            s_movk_i32 s27, 0xff
            s_nop 4
            """)
            for eb in range(4):
                for r in range(4):
                    A(f"v_bfi_b32 v{AC2+16+4*eb+r}, s27, v236, v{AC2+16+4*eb+r}")
                A.vmem(f"buffer_store_dwordx4 {v(AC2+16+4*eb,4)}, v{VL}, s[{sWS}:{sWS+3}], s{S_MX} offen offset:{eb*1024} sc1", "pst")
        if n == len(seq) - opt.get("pat", 4):
            ex.append((3, lambda: p_loads(True)))
        step(n, ex)
    A.stamp(9)
    A(f"s_mov_b32 s{S_KX}, 0x40000")
    A("L_pchk:")
    A("s_waitcnt vmcnt(0)")
    for r in range(16):
        A(f"v_xor_b32 v{PR+r}, s{S_G2}, v{PR+r}")
    A(f"v_or3_b32 v24, v{PR}, v{PR+1}, v{PR+2}")
    for k in range(6):
        A(f"v_or3_b32 v24, v24, v{PR+3+2*k}, v{PR+4+2*k}")
    A(f"v_or_b32 v24, v24, v{PR+15}\nv_and_b32 v24, 0xff, v24\nv_cmp_eq_u32 vcc, 0, v24\ns_nop 1\ns_cmp_eq_u64 vcc, exec\ns_cbranch_scc1 L_pok")
    p_loads(False)
    A(f"s_sub_u32 s{S_KX}, s{S_KX}, 1\ns_cbranch_scc0 L_pchk")
    A("L_pok:")
    for r in range(16):
        A(f"v_add_f32 v{AC2+r}, v{AC2+r}, v{PR+r}")
    if P2: A.stamp(2)
    A("s_barrier")
    A.stamp(10)
    YP = HF
    A(f"ds_read_b32 v236, v20")
    for eb in range(4):
        A(f"ds_read_b128 {v(YP+4*eb,4)}, v18 offset:{eb*1024}")
    for eb in range(4):
        A(f"ds_read_b128 {v(YP+16+4*eb,4)}, v19 offset:{8192 + eb*1024}")
    A("s_waitcnt lgkmcnt(8)")
    for eb in range(4):
        for hh in range(2):
            A(f"v_pk_fma_f32 {v(XU+4*eb+2*hh,2)}, {v(AC2+4*eb+2*hh,2)}, v[236:237], {v(XU+4*eb+2*hh,2)} op_sel_hi:[1,0,1]")
    A("s_waitcnt lgkmcnt(4)")
    for eb in range(4):
        for hh in range(2):
            A(f"v_pk_add_f32 {v(XU+4*eb+2*hh,2)}, {v(XU+4*eb+2*hh,2)}, {v(YP+4*eb+2*hh,2)}")
    A("s_waitcnt lgkmcnt(0)")
    for eb in range(4):
        for hh in range(2):
            A(f"v_pk_fma_f32 {v(XU+4*eb+2*hh,2)}, {v(YP+16+4*eb+2*hh,2)}, v[236:237], {v(XU+4*eb+2*hh,2)} op_sel:[0,1,0] op_sel_hi:[1,1,1]")
        A(f"v_cvt_pk_bf16_f32 v{28+2*eb}, v{XU+4*eb}, v{XU+4*eb+1}\nv_cvt_pk_bf16_f32 v{29+2*eb}, v{XU+4*eb+2}, v{XU+4*eb+3}")
        A(f"ds_write_b64 v{232+eb}, {v(28+2*eb,2)}")
    A("s_waitcnt lgkmcnt(0)")
    A("ds_read_b128 v[36:39], v23\nds_read_b128 v[40:43], v23 offset:1024")
    A("s_waitcnt lgkmcnt(1)")
    A(f"buffer_store_dwordx4 v[36:39], v{VO}, s[{sOUT}:{sOUT+3}], 0 offen {opt.get('ofl', 'sc1')}")
    A("s_waitcnt lgkmcnt(0)")
    A(f"buffer_store_dwordx4 v[40:43], v{VO+1}, s[{sOUT}:{sOUT+3}], 0 offen {opt.get('ofl', 'sc1')}")
    if opt.get("dbg"):
        A.srd(sDBG, 22, 256)
        A("""
        s_waitcnt vmcnt(0)
        s_memrealtime s[88:89]
        s_memtime s[84:85]
        s_waitcnt lgkmcnt(0)
        s_sub_u32 s84, s84, s90
        s_sub_u32 s88, s88, s92
        s_lshl_b32 s88, s88, 16
        s_and_b32 s92, s92, 0xffff
        s_or_b32 s88, s88, s92
        v_mov_b32 v2, s88
        v_mov_b32 v3, s84
        s_lshl_b32 s3, s2, 3
        s_lshl_b32 s27, s60, 8
        s_add_u32 s3, s3, s27
        v_mov_b32 v5, s3
        s_mov_b64 exec, 1
        """)
        A(f"buffer_store_dwordx2 v[2:3], v5, s[{sDBG}:{sDBG+3}], 0 offen")
    A.dump_stamps(11)
    A("s_endpgm")

    A("L_aux:")
    epilogue(1)
    RSD, VPOLL, VT, YB, YA, V2, VF, WF = 20, 22, 19, 32, 48, 64, 96, 128
    PR, XU = VF, V2
    DF, EF, TA = 24, 8, opt.get('ta', 32)
    S_PA = S_MX
    A(f"""
    s_and_b32 s{S_GH}, s{S_W}, 3
    v_and_b32 v14, 15, v1
    s_lshl_b32 s3, s{S_CT}, 6
    v_add_u32 v{EF}, s3, v14
    v_cvt_f32_u32 v{EF}, v{EF}
    v_lshrrev_b32 v15, 4, v1
    v_lshlrev_b32 v{DF}, 2, v15
    v_cvt_f32_u32 v{DF}, v{DF}
    s_mov_b32 s3, 0x41800000
    v_add_f32 v{EF+1}, s3, v{EF}
    v_add_f32 v{EF+2}, s3, v{EF+1}
    v_add_f32 v{EF+3}, s3, v{EF+2}
    v_add_f32 v{DF+1}, 1.0, v{DF}
    v_add_f32 v{DF+2}, 2.0, v{DF}
    v_add_f32 v{DF+3}, 2.0, v{DF+1}
    v_add_f32 v{DF+4}, s3, v{DF}
    v_add_f32 v{DF+5}, s3, v{DF+1}
    v_add_f32 v{DF+6}, s3, v{DF+2}
    v_add_f32 v{DF+7}, s3, v{DF+3}
    s_mov_b32 s3, {0x3b124925}
    v_mul_f32 v{EF}, s3, v{EF}
    v_mul_f32 v{EF+1}, s3, v{EF+1}
    v_mul_f32 v{EF+2}, s3, v{EF+2}
    v_mul_f32 v{EF+3}, s3, v{EF+3}
    s_bitcmp1_b32 s{S_W}, 1
    s_cselect_b32 s3, 0x3e800000, 0
    v_mov_b32 v{EF+4}, s3
    v_mov_b32 v{EF+5}, 0x42000000
    """)
    gen_ops = []
    CA_, CB_, KK = 64, 72, 80
    for eb in range(4):
        gen_ops.append(f"v_mul_f32 v{KK}, v{EF+5}, v{EF+eb}")
        gen_ops += [f"v_fma_f32 v{CA_+i}, v{DF+i}, v{EF+eb}, v{EF+4}" for i in range(8)]
        gen_ops += [f"v_add_f32 v{CB_+i}, v{KK}, v{CA_+i}" for i in range(8)]
        gen_ops.append(f"v_cos_f32 v{KK}, v{KK}")
        gen_ops += [f"v_cos_f32 v{CA_+i}, v{CA_+i}" for i in range(16)]
        gen_ops.append(f"v_add_f32 v{KK}, v{KK}, v{KK}")
        for u in range(8):
            cur = (CA_, CB_)[u & 1]
            if u >= 2:
                gen_ops += [f"v_fma_f32 v{cur+i}, v{KK}, v{(CB_, CA_)[u & 1]+i}, -v{cur+i}" for i in range(8)]
            gen_ops += [f"v_cvt_pk_bf16_f32 v{WF+16*u+4*eb+i}, v{cur+2*i}, v{cur+2*i+1}" for i in range(4)]

    def wgen(n):
        for x in gen_ops[:16 * n]:
            A(x)
        del gen_ops[:16 * n]
    wgen(opt.get("g1", 16))
    A.wait(vm=0, lg=0)
    burst([w_dma(p) for p in range(WN, 14)])
    A("s_barrier")
    A(f"s_cmp_lg_u32 s{S_W}, 7\ns_cbranch_scc1 L_nopub")
    A(f"v_mov_b32 v18, s{S_TAG}\ns_mov_b64 exec, 1")
    A(f"buffer_store_dword v18, v{VID+1}, s[{sWS}:{sWS+3}], s{S_HF} offen offset:16 sc1")
    A("s_mov_b64 exec, -1")
    A("L_nopub:")
    A.stamp(7)
    wgen(32)
    A(f"""
    s_lshl_b32 s3, s{S_RB}, 6
    s_add_u32 s3, s3, s{S_JX}
    s_and_b32 s27, s{S_W}, 1
    s_lshl_b32 s27, s27, 5
    s_add_u32 s27, s27, s3
    v_lshl_add_u32 v{RSD+1}, v14, 1, s27
    s_bitcmp1_b32 s{S_W}, 1
    s_cselect_b32 s3, -1, 1
    s_cselect_b32 s27, 2048, 0
    v_mul_i32_i24 v{RSD+1}, s3, v{RSD+1}
    v_add_u32 v{RSD+1}, s27, v{RSD+1}
    v_lshrrev_b32 v{RSD}, 11, v{RSD+1}
    v_lshlrev_b32 v{RSD}, 10, v{RSD}
    v_sub_u32 v{RSD+1}, v{RSD+1}, v{RSD}
    v_lshlrev_b32 v{RSD+1}, 2, v{RSD+1}
    v_add_u32 v{RSD+1}, {WS_RSTD}, v{RSD+1}
    s_lshl_b32 s3, s{S_T}, 1
    s_and_b32 s27, s{S_W}, 1
    s_add_u32 s3, s3, s27
    s_lshl_b32 s{S_FT}, s3, 14
    s_lshr_b32 s27, s{S_GH}, 1
    s_lshl_b32 s3, s27, 13
    s_add_u32 s{S_FT}, s{S_FT}, s3
    s_add_u32 s{S_FT}, s{S_FT}, {WS_VV}
    s_cmp_eq_u32 s{S_GH}, 0
    s_cselect_b32 s{S_MW}, {WS_VV + 64*16384}, s{S_FT}
    s_lshl_b32 s3, s{S_GH}, 12
    s_add_u32 s27, s3, {YS}
    v_add_u32 v28, s27, v{VL}
    s_lshl_b32 s3, s{S_GH}, 6
    s_add_u32 s3, s3, {YS + 20480}
    v_lshl_add_u32 v30, v14, 2, s3
    """)
    A(f"""
    s_and_b32 s3, s{S_GH}, 2
    s_add_u32 s3, s3, s{S_JX}
    s_lshl_b32 s3, s3, 2
    s_lshr_b32 s27, s{S_T}, 3
    s_add_u32 s3, s3, s27
    s_lshl_b32 s3, s3, 7
    s_add_u32 s{S_G2}, s3, {WS_VFLAG}
    v_and_b32 v{VPOLL+1}, 1, v1
    v_lshlrev_b32 v{VPOLL+1}, 2, v{VPOLL+1}
    """)
    A(f"buffer_load_dword v{VPOLL}, v{VPOLL+1}, s[{sWS}:{sWS+3}], s{S_G2} offen sc1")
    A(f"s_cmp_lg_u32 s{S_W}, 7\ns_cbranch_scc1 L_nopoll")
    A(f"s_add_u32 s3, s{S_HF}, 16")
    A.poll(VID + 3, sWS, "s3", "eq", 64, S_TAG, vtmp=19)
    A("L_nopoll:")
    A.wait(vm=0)
    A("s_barrier")
    if not P2: A.stamp(1)
    if opt.get("nov"):
        A("s_branch L_vdone")
    if opt.get("m2n", -1) >= 0:
        A("s_barrier")
    A.poll(VPOLL + 1, sWS, f"s{S_G2}", "eq", 64, S_TAG, vtmp=VPOLL, sleep=opt.get("vps", 8))
    A.stamp(9)
    A.reset()
    A.vmem(f"buffer_load_dword v{RSD}, v{RSD+1}, s[{sWS}:{sWS+3}], 0 offen {HLD}", "rstd")
    for u in range(8):
        if u % 4 == 0:
            A(f"s_add_u32 s27, s{S_FT}, {u*1024}")
        A.vmem(f"buffer_load_dwordx4 {v(VF+4*u,4)}, v{VL}, s[{sWS}:{sWS+3}], s27 offen offset:{(u%4)*1024} {HLD}", ("v", u))

    A(f"s_cmp_eq_u32 s{S_T}, 0\ns_cbranch_scc1 L_vspecial")

    def vpart(special):
        if special:
            for u in range(8):
                if u % 4 == 0:
                    A(f"s_add_u32 s27, s{S_MW}, {u*1024}")
                A.vmem(f"buffer_load_dwordx4 {v(V2+4*u,4)}, v{VL}, s[{sWS}:{sWS+3}], s27 offen offset:{(u%4)*1024} {HLD}", ("v2", u))
        for u in range(8):
            A.wait(vm=("v", u))
            for eb in range(4):
                A.mfma(YA + eb * 4, WF + 16 * u + 4 * eb, VF + 4 * u, "0" if u == 0 else None)
        if special:
            for u in range(8):
                A.wait(vm=("v2", u))
                for eb in range(4):
                    A.mfma(YB + eb * 4, WF + 16 * u + 4 * eb, V2 + 4 * u, "0" if u == 0 else None)
        A(f"ds_write_b32 v30, v{RSD}")
        A(f"s_nop {opt.get('yn', 6)}")
        for eb in range(4):
            A(f"ds_write_b128 v28, {v(YA+4*eb,4)} offset:{eb*1024}")
        if special:
            L = A.label("L_nopm")
            A(f"s_cmp_lg_u32 s{S_W}, 4\ns_cbranch_scc1 {L}")
            A("s_mov_b32 s26, 0x00010001\ns_mov_b32 s27, 0x00010001")
            for r in range(16):
                A(f"v_cndmask_b32 v{YB+r}, v{YA+r}, v{YB+r}, s[26:27]")
            for eb in range(4):
                A(f"ds_write_b128 v28, {v(YB+4*eb,4)} offset:{16384 + eb*1024}")
            A(f"{L}:")
    sv = (list(A.vm), A.vm_done, list(A.lg), A.lg_done)
    vpart(False)
    A("s_branch L_vdone")
    A("L_vspecial:")
    A.vm, A.vm_done, A.lg, A.lg_done = sv
    vpart(True)
    A("L_vdone:")
    A("s_waitcnt lgkmcnt(0)")
    A.stamp(10)
    A("s_barrier")
    A.dump_stamps(11)
    A("s_endpgm")

    A.reset()
    A("L_dft:")
    S_Q, S_VAR, S_M, S_N, S_P = 63, 96, 97, 98, 99
    A(f"""
    s_sub_u32 s3, s{S_J}, 28
    s_lshl_b32 s{S_Q}, s{S_XCD}, 2
    s_add_u32 s{S_Q}, s{S_Q}, s3
    s_lshr_b32 s{S_VAR}, s{S_XCD}, 1
    s_mov_b32 s{S_M}, s3
    s_and_b32 s{S_N}, s{S_XCD}, 1
    s_and_b32 s{S_P}, s{S_VAR}, 1
    """)
    def wtouch(ptr):
        A.srd(sW1, ptr, 448 * 3584)
        A(f"v_lshlrev_b32 v210, 7, v1\ns_lshl_b32 s3, s{S_Q}, 13\ns_lshl_b32 s27, s{S_W}, 18\ns_add_u32 s3, s3, s27\nv_add_u32 v210, s3, v210")
        A.vmem(f"buffer_load_dword v211, v210, s[{sW1}:{sW1+3}], 0 offen")

    RAW, EO, TF, TM, ST = 32, 64, 128, 136, 144
    A(f"""
    s_lshl_b32 s3, s{S_Q}, 4
    s_lshl_b32 s27, s{S_W}, 1
    s_add_u32 s3, s3, s27
    v_lshrrev_b32 v2, 5, v1
    v_add_u32 v4, s3, v2
    v_and_b32 v3, 31, v1
    v_sub_u32 v5, 2048, v4
    v_sub_u32 v6, 1024, v4
    v_add_u32 v7, 1024, v4
    v_cmp_eq_u32 s[100:101], 0, v4
    v_mov_b32 v8, 512
    v_mov_b32 v9, 1536
    v_mov_b32 v12, {OOB}
    v_cndmask_b32 v5, v5, v8, s[100:101]
    v_cndmask_b32 v7, v7, v9, s[100:101]
    v_cmp_gt_u32 vcc, 28, v3
    v_lshlrev_b32 v8, 4, v3
    v_sub_u32 v9, 880, v8
    v_cndmask_b32 v8, v12, v8, vcc
    v_cndmask_b32 v9, v12, v9, vcc
    s_waitcnt lgkmcnt(0)
    """)
    A.srd(sX, 4, 2048 * 896)
    for rho in range(4):
        A(f"v_mul_u32_u24 v13, 896, v{4+rho}\nv_add_u32 v14, v13, v8\nv_add_u32 v15, v13, v9")
        for fm in range(2):
            A.vmem(f"buffer_load_dwordx4 {v(RAW + rho*8 + 4*fm, 4)}, v{14+fm}, s[{sX}:{sX+3}], 0 offen", ("x", rho))
    A.srd(sWS, 24, WS_SIZE + (0x40000 if stamps else 0))
    if opt.get("t1", 0):
        wtouch(16)
    A(f"v_mov_b32 v190, {WS_EPOCH}")
    A.vmem(f"buffer_load_dword v191, v190, s[{sWS}:{sWS+3}], 0 offen sc1", "ep")
    A(f"s_cmp_lg_u32 s{S_W}, 7\ns_cbranch_scc1 L_dnotouch")
    if opt.get("xt", 0):
        start_touch(A, opt, "x", 200)
    code_touch(A, 208)
    A("L_dnotouch:")

    S_R = 14
    GA, GT = 160, 168
    A(f"""
    s_lshl_b32 s3, s{S_M}, 7
    s_lshl_b32 s27, s{S_W}, 4
    s_add_u32 s3, s3, s27
    s_lshl_b32 s3, s3, 1
    s_add_u32 s3, s3, s{S_P}
    v_and_b32 v13, 15, v1
    v_lshl_add_u32 v13, v13, 1, s3
    v_cvt_f32_u32 v13, v13
    v_mul_f32 v13, 0x3a000000, v13
    v_lshrrev_b32 v14, 4, v1
    v_lshlrev_b32 v14, 3, v14
    v_cvt_f32_u32 v14, v14
    s_cmp_ge_u32 s{S_VAR}, 2
    s_cselect_b32 s3, 0x3e800000, 0
    v_fma_f32 v{GA}, v13, v14, s3
    v_mul_f32 v14, 0x42000000, v13
    v_lshlrev_b32 v16, 4, v1
    s_lshl_b32 s3, s{S_W}, 10
    v_add_u32 v16, s3, v16
    v_add_u32 v17, 0x10000, v16
    """)
    for i in range(1, 8):
        A(f"v_add_f32 v{GA+i}, v13, v{GA+i-1}")
    for i in range(8):
        A(f"v_add_f32 v{GT+i}, v14, v{GA+i}")
    A("v_cos_f32 v14, v14")
    for i in range(16):
        A(f"v_cos_f32 v{GA+i}, v{GA+i}")
    A("v_add_f32 v14, v14, v14")
    A("v_mov_b32 v184, v14\nv_mov_b32 v186, v16\nv_mov_b32 v187, v17")
    cg = [0]

    def cgen(n):
        for sb in range(cg[0], min(16, cg[0] + n)):
            cur, oth = (GA, GT) if sb % 2 == 0 else (GT, GA)
            if sb >= 2:
                for i in range(4):
                    A(f"v_pk_fma_f32 {v(cur+2*i,2)}, {v(oth+2*i,2)}, v[184:185], {v(cur+2*i,2)} op_sel_hi:[1,0,1] neg_lo:[0,0,1] neg_hi:[0,0,1]")
            d = GT + 8 + 4 * (sb & 1)
            for i in range(4):
                A(f"v_cvt_pk_bf16_f32 v{d+i}, v{cur+2*i}, v{cur+2*i+1}")
            A.lds(f"ds_write_b128 v{186 + sb//8}, {v(d,4)} offset:{(sb%8)*8192}")
        cg[0] = min(16, cg[0] + n)
    cgen(opt.get("c0", 6))
    A.stamp(1)
    A(f"""
    v_cmp_eq_u32 s[26:27], 0, v3
    v_cndmask_b32 v21, 0, 2.0, vcc
    v_cmp_eq_u32 vcc, 28, v3
    v_mov_b32 v24, 0
    v_cndmask_b32 v20, v21, 1.0, s[26:27]
    v_mov_b32 v25, 0
    v_cndmask_b32 v20, v20, 1.0, vcc
    v_mov_b32 v26, 0
    v_mov_b32 v27, 0
    """)
    E = lambda rho: EO + rho * 16
    O = lambda rho: EO + rho * 16 + 8
    for rho in range(4):
        A.wait(vm=("x", rho))
        if rho == opt.get("t2", 9):
            wtouch(18)
        F = RAW + rho * 8
        M = F + 4
        A(f"v_mov_b32_dpp v{24+rho}, v{M} row_bcast:15 row_mask:0xa bank_mask:0xf")
        for i in range(4):
            A(f"v_lshlrev_b32 v{TF+2*i}, 16, v{F+i}\nv_and_b32 v{TF+2*i+1}, 0xffff0000, v{F+i}")
        A(f"v_mov_b32_dpp v{24+rho}, v{M} row_shr:1 row_mask:0xf bank_mask:0xf")
        for j in range(1, 8):
            k = 8 - j
            if k & 1:
                A(f"v_and_b32 v{TM+j}, 0xffff0000, v{M + k//2}")
            else:
                A(f"v_lshlrev_b32 v{TM+j}, 16, v{M + k//2}")
        A(f"v_lshlrev_b32 v{TM}, 16, v{24+rho}")
        for i in range(4):
            A(f"v_pk_add_f32 {v(E(rho)+2*i,2)}, {v(TF+2*i,2)}, {v(TM+2*i,2)}")
            A(f"v_pk_add_f32 {v(O(rho)+2*i,2)}, {v(TF+2*i,2)}, {v(TM+2*i,2)} neg_lo:[0,1] neg_hi:[0,1]")
        sm, sq = ST + 4 * rho, ST + 4 * rho + 2
        for i in range(4):
            if i == 0:
                A(f"v_pk_add_f32 {v(sm,2)}, {v(E(rho),2)}, {v(E(rho)+2,2)}")
                A(f"v_pk_mul_f32 {v(sq,2)}, {v(E(rho),2)}, {v(E(rho),2)}")
            else:
                if i > 1:
                    A(f"v_pk_add_f32 {v(sm,2)}, {v(sm,2)}, {v(E(rho)+2*i,2)}")
                A(f"v_pk_fma_f32 {v(sq,2)}, {v(E(rho)+2*i,2)}, {v(E(rho)+2*i,2)}, {v(sq,2)}")
            A(f"v_pk_fma_f32 {v(sq,2)}, {v(O(rho)+2*i,2)}, {v(O(rho)+2*i,2)}, {v(sq,2)}")
    A.stamp(2)
    for rho in range(4):
        A(f"v_add_f32 v{ST+4*rho}, v{ST+4*rho}, v{ST+4*rho+1}\nv_add_f32 v{ST+4*rho+2}, v{ST+4*rho+2}, v{ST+4*rho+3}")
    for i in range(4):
        A(f"v_permlane16_swap_b32 v{ST+2*i}, v{ST+8+2*i}")
    for i in range(4):
        A(f"v_add_f32 v{ST+2*i}, v{ST+2*i}, v{ST+8+2*i}")
    for sh in (8, 4, 2, 1):
        for i in range(4):
            r = ST + 2 * i
            A(f"v_add_f32_dpp v{r}, v{r}, v{r} row_ror:{sh} row_mask:0xf bank_mask:0xf")
    R_, C_ = 24, 28
    A(f"s_mov_b32 s3, {0x3b124925}\ns_mov_b32 s26, {0x3a924925}\ns_mov_b32 s27, {0x3727c5ac}")
    seq_ = [
        lambda b: f"v_mul_f32 v{b}, s3, v{b}\nv_mul_f32 v{b+2}, s26, v{b+2}",
        lambda b: f"v_fma_f32 v{b+2}, -v{b}, v{b}, v{b+2}",
        lambda b: f"v_max_f32 v{b+2}, 0, v{b+2}",
        lambda b: f"v_cvt_pk_bf16_f32 v{b+1}, v{b}, v{b+2}",
        lambda b: f"v_lshlrev_b32 v{b}, 16, v{b+1}\nv_and_b32 v{b+2}, 0xffff0000, v{b+1}",
        lambda b: f"v_add_f32 v{b+2}, s27, v{b+2}",
        lambda b: f"v_cvt_pk_bf16_f32 v{b+2}, v{b+2}, v{b+2}",
        lambda b: f"v_and_b32 v{b+2}, 0xffff0000, v{b+2}",
        lambda b: f"v_sqrt_f32 v{b+2}, v{b+2}",
        lambda b: f"s_nop 0\nv_cvt_pk_bf16_f32 v{b+2}, v{b+2}, v{b+2}",
        lambda b: f"v_and_b32 v{b+2}, 0xffff0000, v{b+2}",
    ]
    for f in seq_:
        for rho in range(2):
            A(f(ST + 4 * rho))
    for rho in range(2):
        A(f"v_rcp_f32 v{R_+rho}, v{ST+4*rho+2}")
    A("s_nop 0")
    for rho in range(2):
        A(f"v_mul_f32 v{C_+rho}, v{ST+4*rho}, v{R_+rho}")
    for r in (R_, R_ + 1, C_, C_ + 1):
        A(f"v_mov_b32 v{r+2}, v{r}")
    A("s_nop 0")
    for r in (R_, R_ + 1, C_, C_ + 1):
        A(f"v_permlane16_swap_b32 v{r}, v{r+2}")
    A(f"""
    v_cmp_eq_u32 vcc, 1, v3
    v_cmp_eq_u32 s[26:27], 2, v3
    v_mov_b32 v8, v4
    v_mov_b32 v9, v{R_}
    v_cndmask_b32 v8, v8, v5, vcc
    v_cndmask_b32 v9, v9, v{R_+1}, vcc
    v_cmp_eq_u32 vcc, 3, v3
    v_cndmask_b32 v8, v8, v6, s[26:27]
    v_cndmask_b32 v9, v9, v{R_+2}, s[26:27]
    v_cndmask_b32 v8, v8, v7, vcc
    v_cndmask_b32 v9, v9, v{R_+3}, vcc
    v_cmp_gt_u32 vcc, 4, v3
    v_lshlrev_b32 v8, 2, v8
    v_add_u32 v8, {WS_RSTD}, v8
    v_cndmask_b32 v8, v12, v8, vcc
    """)
    A.vmem(f"buffer_store_dword v9, v8, s[{sWS}:{sWS+3}], 0 offen sc1")
    A(f"s_or_b32 s3, s{S_Q}, s{S_W}\ns_cmp_lg_u32 s3, 0\ns_cbranch_scc1 L_no512")
    A(f"v_add_f32 v10, v{C_+1}, v{C_+3}")
    for j in range(8):
        A(f"v_mul_f32 v{TF+j}, v10, v{20+(1 if j else 0)}")
        A(f"v_fma_f32 v{TF+j}, v{E(1)+j}, v{R_+1}, -v{TF+j}")
        A(f"v_fma_f32 v{TF+j}, v{E(3)+j}, v{R_+3}, v{TF+j}")
        A(f"v_mul_f32 v{TM+j}, v{O(1)+j}, v{R_+1}")
        A(f"v_fma_f32 v{TM+j}, -v{O(3)+j}, v{R_+3}, v{TM+j}")
    for i in range(4):
        A(f"v_cvt_pk_bf16_f32 v{RAW+i}, v{TF+2*i}, v{TF+2*i+1}")
        A(f"v_cvt_pk_bf16_f32 v{RAW+4+i}, v{TM+2*i}, v{TM+2*i+1}")
    A(f"v_lshlrev_b32 v10, 4, v3\nv_add_u32 v10, {WS_X512}, v10\nv_cndmask_b32 v10, v12, v10, s[100:101]")
    A(f"buffer_store_dwordx4 {v(RAW,4)}, v10, s[{sWS}:{sWS+3}], 0 offen sc1")
    A(f"buffer_store_dwordx4 {v(RAW+4,4)}, v10, s[{sWS}:{sWS+3}], 0 offen offset:{3*512} sc1")
    A("s_nop 1")
    A("L_no512:")
    for r in (R_ + 1, R_ + 3, C_ + 1, C_ + 3):
        A(f"v_cndmask_b32 v{r}, v{r}, 0, s[100:101]")
    A(f"v_add_f32 v{C_}, v{C_}, v{C_+1}\nv_add_f32 v{C_+2}, v{C_+2}, v{C_+3}")
    OUT = lambda var: RAW + var * 8
    bl = "op_sel_hi:[1,0,1]"
    bh = "op_sel:[0,1,0] op_sel_hi:[1,1,1]"
    A(f"v_pk_mul_f32 v[8:9], v[20:21], {v(C_,2)} op_sel_hi:[1,0] neg_lo:[1,0] neg_hi:[1,0]")
    A(f"v_pk_mul_f32 v[10:11], v[20:21], {v(C_+2,2)} op_sel_hi:[1,0] neg_lo:[1,0] neg_hi:[1,0]")
    for i in range(4):
        s3lo, s3hi = (0, 1) if i == 0 else (1, 1)
        a_, b_ = TF, TF + 2
        A(f"v_pk_fma_f32 {v(a_,2)}, {v(E(0)+2*i,2)}, {v(R_,2)}, v[8:9] op_sel:[0,0,{s3lo}] op_sel_hi:[1,0,{s3hi}]")
        A(f"v_pk_fma_f32 {v(b_,2)}, {v(E(2)+2*i,2)}, {v(R_+2,2)}, v[10:11] op_sel:[0,0,{s3lo}] op_sel_hi:[1,0,{s3hi}]")
        A(f"v_pk_mul_f32 {v(TM,2)}, {v(O(0)+2*i,2)}, {v(R_,2)} op_sel_hi:[1,0]")
        A(f"v_pk_mul_f32 {v(TM+2,2)}, {v(O(3)+2*i,2)}, {v(R_+2,2)} op_sel:[0,1] op_sel_hi:[1,1]")
        A(f"v_pk_fma_f32 {v(a_,2)}, {v(E(1)+2*i,2)}, {v(R_,2)}, {v(a_,2)} {bh}")
        A(f"v_pk_fma_f32 {v(b_,2)}, {v(E(3)+2*i,2)}, {v(R_+2,2)}, {v(b_,2)} {bh}")
        A(f"v_pk_fma_f32 {v(TM,2)}, {v(O(1)+2*i,2)}, {v(R_,2)}, {v(TM,2)} {bh} neg_lo:[1,0,0] neg_hi:[1,0,0]")
        A(f"v_pk_fma_f32 {v(TM+2,2)}, {v(O(2)+2*i,2)}, {v(R_+2,2)}, {v(TM+2,2)} {bl} neg_lo:[1,0,0] neg_hi:[1,0,0]")
        A(f"v_pk_add_f32 {v(OUT(0)+2*i,2)}, {v(a_,2)}, {v(b_,2)}")
        A(f"v_pk_add_f32 {v(OUT(1)+2*i,2)}, {v(a_,2)}, {v(b_,2)} neg_lo:[0,1] neg_hi:[0,1]")
        A(f"v_pk_add_f32 {v(OUT(2)+2*i,2)}, {v(TM,2)}, {v(TM+2,2)}")
        A(f"v_pk_add_f32 {v(OUT(3)+2*i,2)}, {v(TM,2)}, {v(TM+2,2)} neg_lo:[0,1] neg_hi:[0,1]")
    PKD = EO
    FS = 131072
    A(f"""
    v_lshlrev_b32 v8, 13, v2
    v_lshrrev_b32 v9, 1, v3
    v_lshl_add_u32 v8, v9, 9, v8
    v_and_b32 v10, 7, v9
    v_lshl_add_u32 v8, v10, 4, v8
    v_and_b32 v10, 1, v3
    v_lshl_add_u32 v8, v10, 7, v8
    v_and_b32 v9, 8, v9
    v_or_b32 v8, v8, v9
    s_lshr_b32 s3, s{S_W}, 2
    s_lshl_b32 s3, s3, 8
    s_and_b32 s27, s{S_W}, 3
    s_lshl_b32 s27, s27, 2
    s_add_u32 s3, s3, s27
    s_add_u32 s3, s3, {FS}
    v_xor_b32 v8, s3, v8
    """)
    for j in range(1, 8):
        A(f"v_xor_b32 v{8+j}, {j<<4}, v8")
    for pr in range(2):
        for j in range(8):
            A(f"v_permlane32_swap_b32 v{OUT(2*pr)+j}, v{OUT(2*pr+1)+j}")
        for j in range(8):
            A(f"v_cvt_pk_bf16_f32 v{PKD+8*pr+j}, v{OUT(2*pr)+j}, v{OUT(2*pr+1)+j}")
        for j in range(8):
            A.lds(f"ds_write_b32 v{8+j}, v{PKD+8*pr+j} offset:{pr*16384}")
    A(f"""
    v_xor_b32 v28, v3, v2
    v_lshlrev_b32 v28, 4, v28
    v_lshl_add_u32 v28, v2, 9, v28
    s_lshl_b32 s3, s{S_W}, 12
    s_and_b32 s27, s{S_W}, 1
    s_lshl_b32 s27, s27, 3
    s_add_u32 s3, s3, s27
    s_add_u32 s3, s3, {FS}
    v_add_u32 v28, s3, v28
    v_lshlrev_b32 v27, 4, v3
    v_lshl_add_u32 v27, v2, 14, v27
    s_lshr_b32 s3, s{S_Q}, 1
    s_lshl_b32 s3, s3, 10
    s_and_b32 s27, s{S_Q}, 1
    s_lshl_b32 s27, s27, 9
    s_add_u32 s3, s3, s27
    s_lshl_b32 s27, s{S_W}, 17
    s_add_u32 s3, s3, s27
    s_add_u32 s3, s3, {WS_XF}
    """)
    for k in range(1, 8):
        A(f"v_xor_b32 v{RAW+16+k}, {(k>>1)*32 + (k&1)*8}, v28")
    A.wait(lg=0)
    A("s_barrier")
    for i in range(4):
        for hh in range(2):
            k = 2 * i + hh
            A.lds(f"ds_read_b64 {v(RAW+4*i+2*hh,2)}, v{RAW+16+k if k else 28} offset:{i*1024}", ("rb", i))
    for i in range(4):
        A.wait(lg=("rb", i))
        A.vmem(f"buffer_store_dwordx4 {v(RAW+4*i,4)}, v27, s[{sWS}:{sWS+3}], s3 offen sc1", "xst")
        A(f"s_add_u32 s3, s3, 32768")
    A.stamp(3)
    cgen(opt.get("c1", 4))
    cg_left = cg[0]
    A(f"s_cmp_ge_u32 s{S_W}, 4\ns_cbranch_scc1 L_dft_helper")
    dstate = (list(A.vm), A.vm_done)
    SACC, SEX, CF, XF = 32, 96, [104, 136], 168
    KALT, B512, X5 = 4, 8, [12, 16]
    CA = 22
    S_XA = 15
    A(f"""
    v_lshlrev_b32 v{CA}, 4, v1
    v_and_b32 v26, 1, v1
    s_cmp_ge_u32 s{S_VAR}, 2
    s_cselect_b32 s100, 1, 0
    s_cselect_b32 s101, 0x80008000, 0
    v_xor_b32 v26, s100, v26
    v_lshlrev_b32 v26, 15, v26
    v_or_b32 v{B512}, 0x3f80, v26
    s_lshl_b32 s26, s{S_N}, 3
    s_lshl_b32 s27, s{S_W}, 1
    s_add_u32 s26, s26, s27
    s_lshl_b32 s3, s{S_VAR}, 4
    s_add_u32 s3, s3, s26
    s_lshl_b32 s{S_XA}, s3, 14
    s_add_u32 s{S_XA}, s{S_XA}, {WS_XF}
    s_lshl_b32 s3, s{S_M}, 15
    v_add_u32 v{CA}, s3, v{CA}
    s_add_u32 s3, s3, 32768
    s_and_b32 s3, s3, 0x1ffff
    v_lshl_add_u32 v{CA+1}, v1, 4, s3
    v_xor_b32 v{CA+2}, 0x10000, v{CA}
    v_xor_b32 v{CA+3}, 0x10000, v{CA+1}
    s_mov_b32 s{S_R}, s{S_M}
    s_lshl_b32 s26, s26, 5
    s_lshl_b32 s27, s{S_VAR}, 9
    s_add_u32 s26, s26, s27
    s_add_u32 s26, s26, {WS_X512}
    v_lshl_add_u32 v27, v1, 1, s26
    s_add_u32 s3, s{S_VAR}, 1
    s_and_b32 s3, s3, 2
    s_cmp_eq_u32 s3, 0
    s_cselect_b32 s3, 16, 0
    v_cmp_gt_u32 vcc, s3, v1
    v_mov_b32 v26, {OOB}
    v_lshlrev_b32 v28, 4, v1
    v_cndmask_b32 v27, v26, v27, vcc
    v_add_u32 v29, 16384, v28
    s_or_b32 s3, s{S_M}, s{S_VAR}
    s_cmp_eq_u32 s3, 0
    s_cselect_b32 vcc_lo, 1, 0
    s_mov_b32 vcc_hi, 0
    """)
    for i in range(4):
        A(f"v_mov_b32 v{KALT+i}, 0xbf803f80")
    for i in range(8):
        A(f"v_mov_b32 v{SEX+i}, 0")
    A.wait(vm="xst")
    A("s_barrier")
    A.stamp(4)
    cgen(16)
    A.wait(lg=0)
    for i in range(1, 4):
        A(f"v_mov_b32 v{B512+i}, 0\nv_mov_b32 v{X5[0]+i}, 0\nv_mov_b32 v{X5[1]+i}, 0")

    def c_reads(sb):
        return [lambda tb=tb: A.lds(f"ds_read_b128 {v(CF[sb&1]+4*tb,4)}, v{CA + sb//4} offset:{(sb%4)*8192 + tb*1024}", ("cf", sb))
                for tb in range(8)]

    def x_th(sb):
        r = []
        for a_ in range(2):
            def f(a_=a_):
                if sb % 4 == 0 and a_ == 0:
                    A(f"s_add_u32 s94, s{S_R}, {sb // 4}\ns_and_b32 s94, s94, 3\ns_lshl_b32 s94, s94, 12\ns_add_u32 s94, s94, s{S_XA}")
                A.vmem(f"buffer_load_dwordx4 {v(XF + (sb % 11)*8 + 4*a_, 4)}, v{28+a_}, s[{sWS}:{sWS+3}], s94 offen offset:{(sb%4)*1024} {HLD}", ("xf", sb))
            r.append(f)
        return r

    def extra(xa0, xa1):
        L = A.label("L_nx")
        A(f"s_cbranch_vccz {L}")
        A.mfma(SEX, xa0, KALT)
        A.mfma(SEX + 4, xa1, KALT)
        A(f"{L}:")
    A("s_barrier")
    A.stamp(5)
    XD = opt.get("xd", 4)
    for sb in range(XD):
        for f in x_th(sb):
            f()
    for f in c_reads(0):
        f()
    xnext = XD
    for sb in range(16):
        fl = list(enumerate(c_reads(sb + 1))) if sb + 1 < 16 else []
        nx = [k for k in (xnext, xnext + 1) if k <= min(15, sb + 10)]
        xnext += len(nx)
        k0 = 0
        for k in nx:
            for f in x_th(k):
                fl.append((8 + 2 * k0, f)); k0 += 1
        if sb == 8:
            fl.append((13, lambda: A.vmem(f"buffer_load_ushort v{X5[0]}, v27, s[{sWS}:{sWS+3}], 0 offen {HLD}", "x5")))
            fl.append((15, lambda: A.vmem(f"buffer_load_ushort v{X5[1]}, v27, s[{sWS}:{sWS+3}], 0 offen offset:32 {HLD}", "x5")))
        A.wait(vm=("xf", sb), lg=("cf", sb))
        z = "0" if sb == 0 else None
        xa = XF + (sb % 11) * 8
        A.weave([lambda a_=a_, tb=tb: A.mfma(SACC + (a_ * 8 + tb) * 4, xa + 4 * a_, CF[sb & 1] + 4 * tb, z)
                 for a_ in range(2) for tb in range(8)], fl)
        extra(xa, xa + 4)
    A.wait(vm="x5")
    extra(X5[0], X5[1])
    for tb in range(8):
        for a_ in range(2):
            A.mfma(SACC + (a_ * 8 + tb) * 4, X5[a_], B512)
    A.stamp(6)
    A(f"""
    s_lshl_b32 s3, s{S_M}, 3
    s_add_u32 s3, s3, s{S_P}
    s_lshl_b32 s3, s3, 5
    s_lshl_b32 s27, s100, 3
    s_lshl_b32 s26, s{S_N}, 2
    s_add_u32 s27, s27, s26
    s_add_u32 s27, s27, s{S_W}
    s_add_u32 s3, s3, s27
    s_lshl_b32 s3, s3, 10
    s_add_u32 s3, s3, {WS_VV}
    s_lshl_b32 s27, s27, 10
    s_add_u32 s{S_XA}, s27, {WS_VV + 64*16384}
    """)
    D0 = CF[0]
    for tb in range(8):
        d = D0 + 4 * tb
        for a_ in range(2):
            s0 = SACC + (a_ * 8 + tb) * 4
            A(f"v_cvt_pk_bf16_f32 v{d+2*a_}, v{s0}, v{s0+1}\nv_cvt_pk_bf16_f32 v{d+2*a_+1}, v{s0+2}, v{s0+3}")
        for i in range(4):
            A(f"v_xor_b32 v{d+i}, s101, v{d+i}")
        A(f"s_add_u32 s27, s3, {((tb >> 1) * 4 + (tb & 1)) * 16384}")
        A.vmem(f"buffer_store_dwordx4 {v(d,4)}, v28, s[{sWS}:{sWS+3}], s27 offen sc1")
    A("s_cbranch_vccz L_nospecial")
    A("s_mov_b32 s26, 0x00010001\ns_mov_b32 s27, 0x00010001")
    for i in range(4):
        A(f"v_cvt_pk_bf16_f32 v{XF+i}, v{SEX+2*i}, v{SEX+2*i+1}")
    for i in range(4):
        A(f"v_cndmask_b32 v{XF+i}, v{D0+i}, v{XF+i}, s[26:27]")
    A(f"buffer_store_dwordx4 {v(XF,4)}, v28, s[{sWS}:{sWS+3}], s{S_XA} offen sc1")
    A("L_nospecial:")
    A.wait(vm=0)
    A("s_barrier")
    A.stamp(7)
    A.dump_stamps(8)
    A("s_endpgm")

    A.reset()
    A("L_dft_helper:")
    A.vm, A.vm_done = dstate
    S_DT = 94
    A.wait(vm="xst")
    A(f"""
    v_readfirstlane_b32 s{S_DT}, v191
    v_lshlrev_b32 v4, 7, v1
    v_lshlrev_b32 v6, 2, v1
    s_lshl_b32 s3, s{S_Q}, 2
    s_add_u32 s3, s3, {WS_XFLAG}
    s_mul_i32 s{S_DT}, s{S_DT}, {TAGMUL}
    s_add_u32 s{S_DT}, s{S_DT}, {TAGADD}
    v_mov_b32 v5, s{S_DT}
    s_barrier
    s_cmp_eq_u32 s{S_W}, 4
    s_cbranch_scc0 L_nox
    s_setprio 3
    s_mov_b64 exec, 0xff
    buffer_store_dword v5, v4, s[{sWS}:{sWS+3}], s3 offen sc1
    s_mov_b64 exec, -1
    L_nox:
    """)
    A.stamp(4)
    cg[0] = cg_left
    cgen(16)
    A(f"""
    s_waitcnt lgkmcnt(0)
    s_cmp_eq_u32 s{S_W}, 4
    s_cbranch_scc0 L_end
    s_lshl_b32 s3, s{S_XCD}, 7
    s_add_u32 s3, s3, {WS_XFLAG}
    """)
    A.poll(6, sWS, "s3", "eq", 32, S_DT, sleep=opt.get("xps", 1))
    A.stamp(5)
    A("s_barrier")
    A("v_mov_b32 v8, 0")
    A(f"""
    s_lshl_b32 s3, s{S_VAR}, 2
    s_add_u32 s3, s3, s{S_M}
    s_lshl_b32 s3, s3, 5
    s_add_u32 s3, s3, s{S_N}
    s_lshl_b32 s3, s3, 2
    s_add_u32 s3, s3, {WS_VFLAG}
    s_barrier
    s_mov_b64 exec, 1
    buffer_store_dword v5, v8, s[{sWS}:{sWS+3}], s3 offen sc1
    """)
    A(f"s_cmp_lg_u32 s{S_Q}, 0\ns_cbranch_scc1 L_noepw")
    A(f"s_mov_b64 exec, -1\nv_and_b32 v9, 7, v1\nv_min_u32 v9, 6, v9\nv_lshlrev_b32 v9, 2, v9\nv_lshrrev_b32 v10, 3, v1\nv_lshl_add_u32 v9, v10, 7, v9")
    for i in range(4):
        A(f"s_mov_b32 s3, {WS_HFLAG + 16 + i*1024}")
        A.poll(9, sWS, "s3", "eq", 64, S_DT)
    A(f"s_mov_b32 s3, {WS_EPOCH}\ns_mov_b64 exec, 1\nbuffer_store_dword v5, v8, s[{sWS}:{sWS+3}], s3 offen sc1")
    A("L_noepw:")
    A.stamp(6)
    A.dump_stamps(8)
    A("L_end:")
    A("s_endpgm")
    A("L_code_end:")

    hdr = open("parallel_sum__spectral_fnet__dense_activation_relu__prompt.s.ref").read().split("; Override")[0]
    return (hdr + "; @launch grid=(256,1,1) block=(512,1,1) lds=163840\n"
            + ".amdgcn_target \"amdgcn-amd-amdhsa--gfx950\"\n" + kernel_header(NAME) + A.text() + kernel_desc(NAME, 256, 256))


if __name__ == "__main__":
    out = sys.argv[1]
    stamps = len(sys.argv) > 2 and sys.argv[2] == "stamps"
    opt = {}
    for kv in sys.argv[3:]:
        k, x = kv.split("=")
        opt[k] = int(x) if x.lstrip("-").isdigit() else x
    open(out, "w").write(gen(stamps, opt))
```

```python
import sys
from kbase import *

TAGMUL, TAGADD = 0x9E3779B1, 0x7F4A7C15


def wblk(i):
    if i < 24:
        return 65536 + 4096 * i
    if i < 28:
        return 32768 + 4096 * (i - 24)
    return 65536 + 4096 * (i - 28)


def mod7(A, s, tmp, maxv):
    m = 7
    while m * 2 < maxv:
        m *= 2
    while m >= 7:
        A(f"s_cmp_ge_u32 s{s}, {m}\ns_cselect_b32 s{tmp}, {m}, 0\ns_sub_u32 s{s}, s{s}, s{tmp}")
        m //= 2


def code_touch(A, vb=118):
    L = A.label("L_pc")
    A(f"""
    s_getpc_b64 s[48:49]
    {L}:
    s_sub_u32 s48, s48, {L}-{NAME}
    s_subb_u32 s49, s49, 0
    s_mov_b32 s50, L_code_end-{NAME}
    s_mov_b32 s51, 0x20000
    v_lshlrev_b32 v{vb}, 12, v1
    s_lshl_b32 s3, s{S_J}, 7
    v_add_u32 v{vb}, s3, v{vb}
    s_mov_b64 exec, 0x3ff
    buffer_load_dword v{vb+1}, v{vb}, s[48:51], 0 offen
    s_mov_b64 exec, -1
    """)


def start_touch(A, opt, what, vb=10):
    fl = opt.get("tfl", "")
    if what == "x":
        A(f"""
        s_lshl_b32 s3, s{S_XCD}, 2
        s_lshr_b32 s27, s{S_J}, 3
        s_add_u32 s3, s3, s27
        s_lshl_b32 s3, s3, 4
        s_and_b32 s27, s{S_J}, 1
        s_lshl_b32 s27, s27, 3
        s_add_u32 s3, s3, s27
        v_lshrrev_b32 v{vb+1}, 3, v1
        v_add_u32 v{vb+1}, s3, v{vb+1}
        s_bfe_u32 s3, s{S_J}, 0x20001
        s_add_u32 s27, s3, 1
        s_and_b32 s27, s27, 2
        s_sub_u32 s27, 1, s27
        v_mul_i32_i24 v{vb+1}, s27, v{vb+1}
        s_cmp_eq_u32 s3, 0
        s_cselect_b32 s27, 0, 1024
        s_cmp_eq_u32 s3, 1
        s_cselect_b32 s27, 2048, s27
        v_add_u32 v{vb+1}, s27, v{vb+1}
        v_mul_u32_u24 v{vb+1}, 896, v{vb+1}
        v_and_b32 v{vb+2}, 7, v1
        v_min_u32 v{vb+2}, 6, v{vb+2}
        v_lshl_add_u32 v{vb+1}, v{vb+2}, 7, v{vb+1}
        buffer_load_dword v{vb+3}, v{vb+1}, s[{sX}:{sX+3}], 0 offen {fl}
        """)
    else:
        A(f"""
        s_cmp_ge_u32 s{S_XCD}, 4
        s_cselect_b32 s{sOUT}, s8, s6
        s_cselect_b32 s{sOUT+1}, s9, s7
        s_and_b32 s{sOUT+1}, s{sOUT+1}, 0xffff
        s_mov_b32 s{sOUT+2}, {2048*4096}
        s_mov_b32 s{sOUT+3}, 0x20000
        s_and_b32 s3, s{S_XCD}, 1
        s_lshl_b32 s3, s3, 5
        s_add_u32 s3, s3, s{S_J}
        s_lshl_b32 s3, s3, 4
        s_bfe_u32 s27, s{S_XCD}, 0x10001
        s_add_u32 s3, s3, s27
        s_lshl_b32 s3, s3, 12
        v_lshrrev_b32 v{vb}, 3, v1
        v_lshlrev_b32 v{vb}, 13, v{vb}
        v_and_b32 v{vb+1}, 7, v1
        v_lshl_add_u32 v{vb}, v{vb+1}, 7, v{vb}
        buffer_load_dword v{vb+2}, v{vb}, s[{sOUT}:{sOUT+3}], s3 offen {fl}
        """)


def gen(stamps=False, opt=None):
    opt = opt or {}
    HST = opt.get("hst", "sc1")
    HLD = opt.get("hld", "")
    TOUCH_AT = opt.get("touch_at", 2)
    HD = opt.get("hd", 12)
    VAT = opt.get("vat", 22)
    A = K(stamps)
    P2 = opt.get('p2', 0)
    P1 = opt.get('p1', 0)
    st1 = lambda i: None if (P2 or P1) else A.stamp(i)
    _stamp = A.stamp
    if opt.get('p3'):
        st1 = lambda i: None
        A.stamp = lambda i: _stamp(i) if i in (0, 1, 8, 9, 10) else None
    if opt.get('light'):
        P1 = 0
        A.stamp = lambda i: _stamp(i) if i == 0 else None
    if P1:
        A.stamp = lambda i: _stamp(i) if i == 0 else None
    st2 = lambda i: A.stamp(i) if P2 else None
    A.stamp(0)
    if opt.get("dbg"):
        A("s_memrealtime s[92:93]\ns_memtime s[90:91]")
    A("""
    s_load_dwordx16 s[4:19], s[0:1], 0
    s_load_dwordx4 s[20:23], s[0:1], 64
    s_load_dwordx2 s[24:25], s[0:1], 80
    s_cmp_ge_u32 s2, 256
    s_cbranch_scc1 L_end
    v_lshrrev_b32 v2, 6, v0
    v_and_b32 v1, 63, v0
    """)
    A(f"s_and_b32 s{S_XCD}, s2, 7\ns_lshr_b32 s{S_J}, s2, 3")
    A(f"v_readfirstlane_b32 s{S_W}, v2")
    A(f"s_cmp_ge_u32 s{S_J}, 28\ns_cbranch_scc1 L_dft")

    S_RB, S_FT, S_KX, S_KW, S_MX, S_MW, S_T, S_CT = 63, 96, 97, 98, 99, 100, 101, 26
    S_FTL, S_JX, S_TAG, S_PF = 14, 86, 58, 59
    S_M2, S_K2, S_G2, S_HF, S_PT = 56, 57, 95, 94, 58
    A(f"""
    s_mul_i32 s27, s{S_J}, 37
    s_lshr_b32 s27, s27, 8
    s_mul_i32 s3, s27, 7
    s_sub_u32 s{S_CT}, s{S_J}, s3
    s_and_b32 s{S_RB}, s{S_XCD}, 6
    s_lshl_b32 s{S_RB}, s{S_RB}, 1
    s_add_u32 s{S_RB}, s{S_RB}, s27
    s_lshl_b32 s27, s27, 1
    s_add_u32 s{S_G2}, s{S_CT}, s27
    """)
    mod7(A, S_G2, 3, 14)
    VD, XA, WA, ONES = 2, 8, 16, 20
    VW2, VEP = 6, 18
    FX = [24, 48]; FW = [40, 64]
    ACC, RS, CS = 72, 104, 108
    S_MD = 52
    sL = sW1
    A(f"""
    s_and_b32 s{S_JX}, s{S_XCD}, 1
    s_mul_i32 s3, s{S_JX}, 7
    s_add_u32 s{S_FT}, s{S_G2}, s3
    v_lshrrev_b32 v31, 4, v1
    s_movk_i32 s3, 0xe2
    s_bitcmp1_b32 s3, s{S_W}
    s_cbranch_scc1 L_ldw
    s_max_u32 s{S_KX}, s{S_W}, 1
    s_lshl_b32 s{S_KX}, s{S_KX}, 2
    s_mul_i32 s3, s{S_CT}, 37
    s_lshr_b32 s3, s3, 4
    s_add_u32 s{S_KX}, s{S_KX}, s3
    s_add_u32 s{S_KX}, s{S_KX}, 12
    v_lshrrev_b32 v30, 3, v1
    v_lshlrev_b32 v30, 1, v30
    v_and_b32 v32, 7, v1
    v_xor_b32 v32, v32, v31
    s_lshl_b32 s{S_KW}, s{S_RB}, 6
    """)
    for i in range(4):
        A(f"""
        s_add_u32 s{S_MD+i}, s{S_KX}, {i}
        s_and_b32 s{S_MD+i}, s{S_MD+i}, 15
        s_lshr_b32 s3, s{S_MD+i}, 3
        s_add_u32 s3, s3, s{S_KW}
        s_and_b32 s27, s{S_MD+i}, 3
        s_lshl_b32 s27, s27, 4
        s_add_u32 s3, s3, s27
        v_add_u32 v33, s3, v30
        v_sub_u32 v34, 2048, v33
        v_lshrrev_b32 v35, 11, v34
        v_lshlrev_b32 v35, 10, v35
        v_sub_u32 v34, v34, v35
        s_bitcmp1_b32 s{S_MD+i}, 2
        s_cselect_b64 vcc, -1, 0
        s_and_b32 s27, s{S_MD+i}, 1
        s_lshl_b32 s27, s27, 2
        v_cndmask_b32 v33, v33, v34, vcc
        v_xor_b32 v34, s27, v32
        v_mul_u32_u24 v33, 896, v33
        s_lshl_b32 s{S_MD+i}, s{S_MD+i}, 10
        v_lshl_add_u32 v{VD+i}, v34, 4, v33
        """)
    A(f"s_movk_i32 s{S_MX}, 128\ns_waitcnt lgkmcnt(0)")
    A.srd(sL, 4, 2048 * 896)
    A("s_branch L_ldok")
    A("L_ldw:")
    A(f"""
    s_max_u32 s{S_KX}, s{S_W}, 4
    s_add_u32 s{S_KX}, s{S_KX}, s{S_RB}
    s_lshl_b32 s{S_KX}, s{S_KX}, 2
    v_lshlrev_b32 v33, 1, v31
    v_and_b32 v34, 15, v1
    v_xor_b32 v33, v33, v34
    v_mul_u32_u24 v34, 3584, v31
    v_lshl_add_u32 v32, v33, 4, v34
    v_xor_b32 v33, 128, v32
    s_and_b32 s{S_MD}, s{S_KX}, 15
    s_mul_i32 s27, s{S_MD}, {4*3584}
    s_lshl_b32 s3, s{S_FT}, 8
    s_add_u32 s27, s27, s3
    v_add_u32 v{VD}, s27, v32
    v_add_u32 v{VD+2}, s27, v33
    v_add_u32 v{VD+1}, {4*3584}, v{VD}
    v_add_u32 v{VD+2}, {8*3584}, v{VD+2}
    v_add_u32 v{VD+3}, {4*3584}, v{VD+2}
    s_lshl_b32 s{S_MD}, s{S_MD}, 10
    s_add_u32 s{S_MD}, s{S_MD}, 16384
    s_add_u32 s{S_MD+1}, s{S_MD}, 1024
    s_add_u32 s{S_MD+2}, s{S_MD}, 2048
    s_add_u32 s{S_MD+3}, s{S_MD}, 3072
    s_mov_b32 s{S_MX}, {64*3584}
    s_waitcnt lgkmcnt(0)
    """)
    A.srd(sL, 16, 448 * 3584)
    A("L_ldok:")
    A.srd(sX, 4, 2048 * 896)

    def p1_dmas(st):
        slot = st % 5
        return [A.dma2(VD + i, sL, f"s{S_KX}", f"s_add_u32 m0, s{S_MD+i}, {slot*32768}", ("p1", st),
                       pre=None if i else f"s_mul_i32 s{S_KX}, s{S_MX}, {st}", flags=p1fl[0]) for i in range(4)]
    p1fl = [""]

    def burst(dmas):
        for a_, b_ in dmas:
            a_(); A("s_nop 0"); b_()

    def p1_setup():
        A.srd(sWS, 24, WS_SIZE + (0x40000 if stamps else 0))
        A(f"""
        s_mov_b32 s{S_FTL}, s{S_G2}
        s_lshl_b32 s{S_HF}, s{S_XCD}, 2
        s_and_b32 s3, s{S_RB}, 3
        s_add_u32 s{S_HF}, s{S_HF}, s3
        s_lshl_b32 s{S_HF}, s{S_HF}, 7
        s_add_u32 s{S_HF}, s{S_HF}, {WS_HFLAG}
        v_mov_b32 v35, {WS_EPOCH}
        """)
        A.vmem(f"buffer_load_dword v{VEP}, v35, s[{sWS}:{sWS+3}], 0 offen sc1", "ep")
        if opt.get("lf", 1):
            A("v_mov_b32 v35, 4096")
            A.vmem(f"buffer_load_dword v{VEP+1}, v35, s[{sWS}:{sWS+3}], s{S_HF} offen sc1", "ep")
        A(f"""
        v_and_b32 v32, 15, v1
        v_lshrrev_b32 v33, 1, v32
        v_xor_b32 v33, v33, v31
        v_lshlrev_b32 v33, 4, v33
        v_lshl_add_u32 v33, v32, 7, v33
        s_lshl_b32 s3, s{S_W}, 11
        v_add_u32 v{XA}, s3, v33
        """)
        for rb in range(1, 4):
            A(f"v_xor_b32 v{XA+rb}, {rb*2048}, v{XA}")
        for rb in range(4):
            A(f"v_xor_b32 v{XA+4+rb}, 64, v{XA+rb}")
        A(f"""
        v_bfe_u32 v30, v1, 2, 2
        v_lshl_add_u32 v32, v31, 3, v30
        v_lshlrev_b32 v32, 8, v32
        v_and_b32 v33, 3, v1
        v_lshl_add_u32 v32, v33, 3, v32
        v_add_u32 v32, 16384, v32
        v_and_b32 v33, 1, v31
        v_lshl_or_b32 v33, v33, 2, v30
        s_and_b32 s3, s{S_W}, 3
        s_lshl_b32 s3, s3, 1
        s_lshr_b32 s27, s{S_W}, 2
        s_or_b32 s3, s3, s27
        v_xor_b32 v33, s3, v33
        v_lshl_add_u32 v{WA}, v33, 5, v32
        v_xor_b32 v{WA+1}, 32, v{WA}
        """)
        for i in range(4):
            A(f"v_mov_b32 v{ONES+i}, 0x3f803f80")
        A.srd(sW2, 18, 1792 * 896)
        A(f"""
        s_lshl_b32 s{S_T}, s{S_RB}, 1
        s_add_u32 s{S_T}, s{S_T}, s{S_JX}
        v_lshrrev_b32 v30, 3, v1
        v_mul_u32_u24 v32, 896, v30
        v_and_b32 v30, 6, v30
        v_and_b32 v33, 7, v1
        v_xor_b32 v30, v30, v33
        v_lshl_add_u32 v32, v30, 4, v32
        s_lshl_b32 s3, s{S_CT}, 7
        s_mul_i32 s27, s{S_W}, {8*896}
        s_add_u32 s3, s3, s27
        v_add_u32 v{VW2}, s3, v32
        s_lshl_b32 s{S_M2}, s{S_W}, 10
        s_and_b32 s3, s{S_W}, 2
        s_add_u32 s3, s3, s{S_JX}
        s_lshl_b32 s3, s3, 2
        s_lshr_b32 s27, s{S_T}, 3
        s_add_u32 s3, s3, s27
        s_lshl_b32 s3, s3, 7
        s_add_u32 s59, s3, {WS_VFLAG}
        v_mov_b32 v35, 0
        """)
        A.vmem(f"buffer_load_dword v{VEP+1}, v35, s[{sWS}:{sWS+3}], s59 offen sc1", "ep")

    def wpair_addr(p):
        if p < 12:
            return 65536 + 8192 * p
        if p < 14:
            return 16384 + 8192 * (p - 12)
        return [32768, 40960, 0, 65536, 49152, 57344, 8192, 73728][p - 14]

    def w_dma(p):
        if p < 14:
            srd = sW2
            if p % 2 == 0:
                pre = (f"s_mul_i32 s{S_K2}, s{S_JX}, 7\ns_add_u32 s{S_K2}, s{S_K2}, s{S_G2}\ns_mul_i32 s{S_K2}, s{S_K2}, {128*896}\n"
                       f"s_add_u32 s{S_G2}, s{S_G2}, 1\ns_cmp_eq_u32 s{S_G2}, 7\ns_cselect_b32 s{S_G2}, 0, s{S_G2}")
            else:
                pre = f"s_add_u32 s{S_K2}, s{S_K2}, {64*896}"
        else:
            srd = sWD if p < 18 else sW1
            pre = f"s_mov_b32 s{S_K2}, {((p - 14) % 4)*64*896}"
        return A.dma2(VW2, srd, f"s{S_K2}", f"s_add_u32 m0, s{S_M2}, {wpair_addr(p)}", ("w", p), pre=pre)

    def place(dmas, g0, g1):
        r = []
        for k, (a_, b_) in enumerate(dmas):
            g = g0 + 1 + k * (g1 - g0) // len(dmas)
            r += [(g - 1, a_), (g, b_)]
        return r

    def p1_reads(st, q, buf):
        so = ((st % 5) & 1) * 32768
        r = []
        for rb in range(4):
            r.append(lambda rb=rb: A.lds(f"ds_read_b128 {v(FX[buf]+4*rb,4)}, v{XA + 4*q + rb} offset:{so}", ("f", st, q)))
        for cb in range(2):
            for h in range(2):
                r.append(lambda cb=cb, h=h: A.lds(f"ds_read_b64_tr_b16 {v(FW[buf]+4*cb+2*h,2)}, v{WA+cb} offset:{so + q*8192 + h*1024}", ("f", st, q)))
        return r

    def p1_mfma(buf, first):
        z = "0" if first else None
        r = [lambda: A.mfma(RS, ONES, FX[buf], z), lambda: A.mfma(CS, FW[buf], ONES, z)]
        for cb in range(2):
            for rb in range(4):
                r.append(lambda cb=cb, rb=rb: A.mfma(ACC + (cb * 4 + rb) * 4, FW[buf] + 4 * cb, FX[buf] + 4 * rb, z))
        return r

    def p1_addr_step(st):
        d = {2: 65536, 4: 65536, 5: -131072}.get(st)
        if not d:
            return []
        return [(8 + k // 5, lambda r=r: A(f"v_add_u32 v{r}, {d & 0xffffffff}, v{r}"))
                for k, r in enumerate(list(range(XA, XA + 8)) + [WA, WA + 1])]

    def lines(txt, g0, g1):
        ex = [x for x in txt.strip().split("\n") if x.strip()]
        return [(g0 + k * (g1 - g0) // len(ex), lambda x=x: A(x)) for k, x in enumerate(ex)]

    VID = 120
    WA2, WB, WC, VH, VO, VL, VZ = 8, 12, 112, 2, 4, 16, 7
    FW2 = [24, 40]
    AC2, HF, VF = 56, 128, 192
    p2_setup = f"""
    v_lshlrev_b32 v{VL}, 4, v1
    v_mov_b32 v{VZ}, 0
    v_lshrrev_b32 v124, 4, v1
    v_bfe_u32 v125, v1, 2, 2
    v_lshl_add_u32 v126, v124, 2, v125
    v_lshrrev_b32 v127, 1, v126
    v_and_b32 v127, 3, v127
    v_lshlrev_b32 v126, 7, v126
    v_and_b32 v125, 3, v1
    v_lshl_add_u32 v126, v125, 3, v126
    """ + "".join(f"""
    v_xor_b32 v125, {eb}, v127
    v_lshl_add_u32 v{WA2+eb}, v125, 5, v126
    v_add_u32 v{WB+eb}, 0x10000, v{WA2+eb}
    v_add_u32 v{WC+eb}, 0x20000, v{WA2+eb}""" for eb in range(4)) + f"""
    s_lshl_b32 s{S_K2+32}, s{S_T}, 2
    s_and_b32 s{S_K2+33}, s{S_W}, 3
    s_add_u32 s{S_K2+32}, s{S_K2+32}, s{S_K2+33}
    s_mul_i32 s{S_K2+34}, s{S_K2+32}, {H_STRIDE}
    v_add_u32 v{VH}, s{S_K2+34}, v{VL}
    s_xor_b32 s{S_K2+34}, s{S_K2+32}, 4
    s_mul_i32 s{S_K2+34}, s{S_K2+34}, {H_STRIDE}
    v_add_u32 v{VH+1}, s{S_K2+34}, v{VL}
    s_and_b32 s{S_K2+32}, s{S_K2+32}, 7
    s_lshl_b32 s{S_K2+32}, s{S_K2+32}, 12
    s_add_u32 s{S_K2+32}, s{S_K2+32}, 32768
    v_add_u32 v238, s{S_K2+32}, v{VL}
    v_xor_b32 v239, 16384, v238
    s_lshl_b32 s{S_K2+32}, s{S_RB}, 6
    s_add_u32 s{S_K2+32}, s{S_K2+32}, s{S_JX}
    s_and_b32 s{S_K2+33}, s{S_W}, 1
    s_lshl_b32 s{S_K2+33}, s{S_K2+33}, 5
    s_add_u32 s{S_K2+33}, s{S_K2+33}, s{S_K2+32}
    v_lshrrev_b32 v124, 3, v1
    v_lshl_add_u32 v125, v124, 1, s{S_K2+33}
    s_bfe_u32 s{S_K2+32}, s{S_W}, 0x10001
    s_lshl_b32 s{S_K2+33}, s{S_K2+32}, 11
    s_lshl_b32 s{S_K2+32}, s{S_K2+32}, 1
    s_sub_u32 s{S_K2+32}, 1, s{S_K2+32}
    v_mul_i32_i24 v125, s{S_K2+32}, v125
    v_add_u32 v125, s{S_K2+33}, v125
    s_mul_i32 s{S_K2+32}, s{S_K2+32}, {16*896}
    s_lshl_b32 s{S_K2+33}, s{S_CT}, 7
    v_mul_u32_u24 v126, 896, v125
    v_add_u32 v126, s{S_K2+32}, v126
    v_lshrrev_b32 v127, 11, v125
    v_lshlrev_b32 v127, 10, v127
    v_sub_u32 v125, v125, v127
    v_mul_u32_u24 v125, 896, v125
    v_and_b32 v127, 7, v1
    v_xor_b32 v127, v127, v124
    v_lshlrev_b32 v127, 4, v127
    v_add_u32 v127, s{S_K2+33}, v127
    v_add_u32 v{VO}, v125, v127
    v_add_u32 v{VO+1}, v126, v127
    """
    for k in range(3):
        p2_setup = p2_setup.replace(f"s{S_K2+32+k}", f"s{48+k}")
    WPRE = opt.get("wpre", 12)

    def phase1(cls):
        K0 = opt.get("k0", 2) if cls == 0 else opt.get("k1", 2)
        p1fl[0] = opt.get("shfl", "") if cls == 0 else ""
        if cls == 0:
            if opt.get("xt", 0) == 2:
                A(f"s_cmp_lg_u32 s{S_W}, 1\ns_cbranch_scc1 L_notouch0")
                start_touch(A, opt, "x", 124)
                A("L_notouch0:")
            for s_ in range(K0):
                burst(p1_dmas(s_))
            A(f"s_cmp_lg_u32 s{S_W}, 0\ns_cbranch_scc1 L_notouch")
            if opt.get("xt", 0) == 1:
                start_touch(A, opt, "x", 124)
            code_touch(A)
            A("L_notouch:")
            p1_setup()
        else:
            p1_setup()
            for s_ in range(K0):
                burst(p1_dmas(s_))
        A.wait(vm=("p1", 0))
        A("s_barrier")
        st1(2)
        if P1: _stamp(1)
        for f in p1_reads(0, 0, 0):
            f()
        queue = []
        for s_ in range(K0, 7):
            for i in range(4):
                first = max(0, 2 * (s_ - 5) + 1)
                if cls == 1:
                    first = max(first, 2 * s_ - opt.get("la1", 5) + i // 2)
                queue.append((first, lambda s_=s_, i=i: p1_dmas(s_)[i]))
        wn = WPRE
        for p in range(WPRE):
            queue.append((max(2 * (2 + p // 4) + 1 if p < 12 else 13, min(13, opt.get("w0", 8) + p // 2)), lambda p=p: w_dma(p)))
        rate = (opt.get("r0", 4), 4)
        for st in range(7):
            for q in range(2):
                fl = []
                if q == 0:
                    A.wait(lg=("f", st, 0))
                    fl += list(enumerate(p1_reads(st, 1, 1))) + p1_addr_step(st + 1)
                else:
                    if st < 6:
                        if P1 == 2: _stamp(st + 2)
                        A.wait(vm=("p1", st + 1), lg=0)
                        if P1 == 3: _stamp(st + 2)
                        A("s_barrier")
                        if P1 == 1: _stamp(st + 2)
                        fl += list(enumerate(p1_reads(st + 1, 0, 0)))
                    else:
                        A.wait(lg=0)
                dm = []
                blk = 2 * st + q
                while queue and len(dm) < rate[cls] and queue[0][0] <= blk:
                    dm.append(queue.pop(0)[1]())
                if dm:
                    fl += place(dm, 1, 9)
                if (st, q) == (0, 1):
                    fl += lines(f"""
                    v_readfirstlane_b32 s{S_TAG}, v{VEP}
                    s_lshl_b32 s27, s{S_CT}, 2
                    v_mov_b32 v{VID+1}, s27
                    s_mul_i32 s{S_TAG}, s{S_TAG}, {TAGMUL}
                    s_add_u32 s{S_TAG}, s{S_TAG}, {TAGADD}
                    v_min_u32 v{VID+3}, 6, v1
                    v_lshlrev_b32 v{VID+3}, 2, v{VID+3}
                    """, 0, 8)
                    A.wait(vm="ep")
                if cls == 0 and opt.get("dum", 0) and 2 * st + q == opt.get("dumb", 0):
                    def dummy():
                        for s_ in range(5, 7):
                            A(f"s_mul_i32 s3, s{S_MX}, {s_}")
                            for i in range(4):
                                A.vmem(f"buffer_load_dwordx4 v[252:255], v{VD+i}, s[{sL}:{sL+3}], s3 offen")
                    fl.append((9, dummy))
                if cls == 0 and 2 * st + q == opt.get("wtb", 5):
                    def wt():
                        A(f"s_cmp_lg_u32 s{S_W}, 1\ns_cbranch_scc1 L_notouch3")
                        A(f"""
                        v_lshlrev_b32 v124, 7, v1
                        s_mul_i32 s3, s2, {56*128}
                        s_mov_b32 exec_hi, 0xffffff
                        buffer_load_dword v125, v124, s[{sW2}:{sW2+3}], s3 offen
                        s_mov_b64 exec, -1
                        """)
                        A("L_notouch3:")
                    fl.append((9, wt))
                if (st, q) == (6, 1):
                    fl += lines(f"""
                    v_and_b32 v30, 15, v1
                    v_lshlrev_b32 v30, 2, v30
                    s_lshl_b32 s3, s{S_W}, 6
                    v_add_u32 v30, s3, v30
                    v_lshrrev_b32 v31, 4, v1
                    v_lshlrev_b32 v31, 4, v31
                    s_and_b32 s27, s{S_W}, 3
                    s_lshl_b32 s27, s27, 7
                    s_lshr_b32 s3, s{S_W}, 2
                    s_lshl_b32 s3, s3, 6
                    s_add_u32 s27, s27, s3
                    v_add_u32 v31, s27, v31
                    v_xor_b32 v32, 64, v30
                    v_xor_b32 v33, 128, v30
                    v_xor_b32 v34, 192, v30
                    v_xor_b32 v35, 64, v31
                    """, 0, 8)
                    fl += lines(p2_setup, 0, 9)
                    fl.append((9, lambda: A.lds(f"ds_write_b32 v30, v{RS}")))
                    fl.append((9, lambda: A.lds(f"ds_write_b128 v31, {v(CS,4)} offset:512")))
                A.weave(p1_mfma(q, st == 0 and q == 0), fl)
        assert not queue, len(queue)
        if opt.get("tre", 0):
            A.wait(vm=("w", 2 * opt.get("tre", 0) - 1))
        return wn
    A(f"s_cmp_ge_u32 s{S_W}, 2\ns_cbranch_scc1 L_p1b")
    WN = phase1(0)
    A("s_branch L_p1done")
    A("L_p1b:")
    A.reset()
    phase1(1)
    A("L_p1done:")
    A.reset()
    st1(3)
    if P1: _stamp(8)
    A.wait(lg=0)
    A("s_barrier")
    if P1: _stamp(9)
    S_HS = S_MD

    def epilogue(wr):
        A.reset()
        MB = 24; CS1 = 28
        A.lds(f"ds_read_b32 v{MB+1}, v32")
        A.lds(f"ds_read_b32 v{MB+2}, v33")
        A.lds(f"ds_read_b32 v{MB+3}, v34")
        A.lds(f"ds_read_b128 {v(CS1,4)}, v35 offset:512")
        A(f"""
        s_lshl_b32 s{S_KX}, s{S_RB}, 3
        s_mul_i32 s{S_KX}, s{S_KX}, 56
        s_lshl_b32 s{S_KW}, s{S_FT}, 2
        s_add_u32 s{S_KX}, s{S_KX}, s{S_KW}
        s_and_b32 s27, s{S_W}, 3
        s_add_u32 s{S_KX}, s{S_KX}, s27
        s_lshl_b32 s{S_KX}, s{S_KX}, 10
        s_lshl_b32 s27, s27, 10
        s_add_u32 s27, s27, 32768
        v_add_u32 v34, s27, v{VL}
        s_mov_b32 s3, {0x3b124925}
        v_mul_f32 v{MB}, s3, v{RS}
        """)
        A.wait(lg=0)
        for i in range(1, 4):
            A(f"v_mul_f32 v{MB+i}, s3, v{MB+i}")
        A(f"v_cvt_pk_bf16_f32 v32, v{MB}, v{MB+1}\nv_cvt_pk_bf16_f32 v33, v{MB+2}, v{MB+3}")
        A(f"v_lshlrev_b32 v{MB}, 16, v32\nv_and_b32 v{MB+1}, 0xffff0000, v32\nv_lshlrev_b32 v{MB+2}, 16, v33\nv_and_b32 v{MB+3}, 0xffff0000, v33")
        PK = 36
        for rb in range(4):
            sel = "op_sel:[0,1,0] op_sel_hi:[1,1,1]" if rb & 1 else "op_sel_hi:[1,0,1]"
            d = PK + 4 * rb
            for cb in range(2):
                a0 = ACC + (cb * 4 + rb) * 4
                for hh in range(2):
                    A(f"v_pk_fma_f32 {v(a0+2*hh,2)}, {v((CS, CS1)[cb]+2*hh,2)}, {v(MB+(rb&2),2)}, {v(a0+2*hh,2)} {sel} neg_lo:[1,0,0] neg_hi:[1,0,0]")
            for cb in range(2):
                a0 = ACC + (cb * 4 + rb) * 4
                for hh in range(2):
                    A(f"v_cvt_pk_bf16_f32 v{d+2*(cb^wr)+hh}, v{a0+2*hh}, v{a0+2*hh+1}")
            for i in range(4):
                A(f"v_pk_max_i16 v{d+i}, v{d+i}, 0")
            A(f"s_xor_b32 s27, s{S_W}, {rb}\ns_mul_i32 s{S_MD+rb}, s27, {H_STRIDE}\ns_add_u32 s{S_MD+rb}, s{S_MD+rb}, s{S_KX}")
            A.vmem(f"buffer_store_dwordx4 {v(PK+4*rb,4)}, v{VL}, s[{sWS}:{sWS+3}], s{S_MD+rb} offen sc1", ("hst", rb))
            A(f"s_lshl_b32 s27, s27, 12\nv_add_u32 v35, s27, v34")
            A.lds(f"ds_write_b128 v35, {v(PK+4*rb,4)}")
        st1(4)
        if P1: _stamp(10)
        A.stamp(5)

    def readback(vb):
        if opt.get("rb", 0):
            A(f"""
            v_lshrrev_b32 v{vb}, 3, v1
            v_xor_b32 v{vb}, s{S_W}, v{vb}
            v_mul_u32_u24 v{vb}, {H_STRIDE}, v{vb}
            v_and_b32 v{vb+1}, 7, v1
            v_lshl_add_u32 v{vb}, v{vb+1}, 7, v{vb}
            s_mov_b32 exec_hi, 0
            """)
            A.vmem(f"buffer_load_dword v{vb+1}, v{vb}, s[{sWS}:{sWS+3}], s{S_HB} offen")
            A("s_mov_b32 exec_hi, -1")
    S_HB = 59
    S_H, S_GH = S_KX, S_KW
    TRB = opt.get("trb", 0)
    assert TRB <= 2 * WN and TRB % 4 == 0
    NAL = opt.get("nal", 24)
    B0 = 4 + NAL

    def w_reads(key, i, both=True):
        r = []
        if i < TRB:
            a_ = wpair_addr(i >> 1) + (i & 1) * 4096
            return [lambda eb=eb: A.lds(f"ds_read_b128 {v(FW2[key&1]+4*eb,4)}, v{240+(a_>>16)} offset:{(a_ & 0xffff) + eb*1024}", ("wf", key, eb >> 1))
                    for eb in range(4)]
        for eb in range(4):
            for h in range(2):
                if i < 28:
                    a_ = wpair_addr(i >> 1) + (i & 1) * 4096
                    reg, off = (WA2, WB, WC)[a_ >> 16] + eb, (a_ & 0xffff) + h * 2048
                else:
                    u = i - 28
                    reg, off = ((WA2, u * 4096) if u < 4 else ((WB, WC)[(u - 4) >> 1], (u & 1) * 4096))
                    reg, off = reg + eb, off + h * 2048
                r.append(lambda reg=reg, off=off, eb=eb, h=h: A.lds(f"ds_read_b64_tr_b16 {v(FW2[key&1]+4*eb+2*h,2)}, v{reg} offset:{off}", ("wf", key, eb >> 1)))
        return r

    YS, ZS = 32768, 0
    XS = TS = 4096

    A(f"s_cmp_ge_u32 s{S_W}, 4\ns_cbranch_scc1 L_aux")
    epilogue(0)
    seq = [(i, (0, 1)) for i in range(4)] + [(i, (1,)) for i in range(4, B0)] + [(i, (0, 1)) for i in range(B0, 28)] + [(i, (0,)) for i in range(4, B0)]
    hl = [(n, tt) for n, (i, tts) in enumerate(seq) for tt in tts]
    NSL = opt.get("nsl", 16)
    slot = {k: HF + (idx % NSL) * 4 for idx, k in enumerate(hl)}
    state_h = dict(next=8, grp=None)

    def h_next():
        idx = state_h["next"]
        if idx >= len(hl):
            return
        state_h["next"] += 1
        n, tt = hl[idx]
        i = seq[n][0]
        if state_h["grp"] != i // 4 and not (opt.get("hfix") and state_h["grp"]):
            state_h["grp"] = i // 4
            A(f"s_add_u32 s{S_H}, s{S_FTL}, {i // 4}\ns_cmp_ge_u32 s{S_H}, 7\ns_cselect_b32 s3, 7, 0\ns_sub_u32 s{S_H}, s{S_H}, s3")
            A(f"s_add_u32 s{S_H}, s{S_H}, s{S_GH}\ns_lshl_b32 s{S_H}, s{S_H}, 12")
        if opt.get("noh"):
            A.vm.append(("h", n, tt)); A.vm_done = len(A.vm)
            return
        A.vmem(f"buffer_load_dwordx4 {v(slot[(n, tt)], 4)}, v{VH+tt}, s[{sWS}:{sWS+3}], s{S_H} offen offset:{(i%4)*1024} {HLD}", ("h", n, tt))

    def step(n, extra=()):
        i, tts = seq[n]
        nm = 4 * len(tts)
        fl = list(extra)
        if n + 1 < len(seq):
            rd = w_reads(n + 1, seq[n + 1][0])
            fl += [(k * nm // len(rd), f) for k, f in enumerate(rd)]
        if n >= 1:
            fl += [(1 + 4 * k, h_next) for k in range(len(seq[n - 1][1]))]
        mf = []
        for eb in range(4):
            for tt in tts:
                def f(eb=eb, tt=tt):
                    if eb % 2 == 0 and tt == tts[0]:
                        A.wait(vm=("h", n, tts[-1]) if eb == 0 and n >= 4 else None, lg=("wf", n, eb >> 1))
                    A.mfma(AC2 + (tt * 4 + eb) * 4, FW2[n & 1] + 4 * eb, slot[(n, tt)], "0" if n == 0 else None)
                mf.append(f)
        A.weave(mf, fl)

    PR, XU = 192, 208
    fin = f"""
    v_and_b32 v20, 15, v1
    v_lshrrev_b32 v21, 4, v1
    v_lshrrev_b32 v22, 1, v21
    v_and_b32 v23, 7, v20
    v_xor_b32 v22, v22, v23
    v_lshlrev_b32 v22, 4, v22
    v_lshl_add_u32 v22, v20, 7, v22
    v_and_b32 v21, 1, v21
    v_lshl_add_u32 v22, v21, 3, v22
    s_lshl_b32 s27, s{S_W}, 11
    s_add_u32 s27, s27, {TS}
    v_add_u32 v232, s27, v22
    v_add_u32 v23, s27, v{VL}
    v_xor_b32 v233, 32, v232
    v_xor_b32 v234, 64, v232
    v_xor_b32 v235, 96, v232
    ds_read_b64 v[224:225], v232
    ds_read_b64 v[226:227], v233
    ds_read_b64 v[228:229], v234
    ds_read_b64 v[230:231], v235
    s_lshl_b32 s27, s{S_W}, 6
    s_add_u32 s27, s27, {YS + 20480}
    v_lshl_add_u32 v20, v20, 2, s27
    s_and_b32 s27, s{S_W}, 1
    s_lshl_b32 s27, s27, 12
    s_add_u32 s27, s27, {YS}
    v_add_u32 v19, s27, v{VL}
    s_xor_b32 s{S_MW}, s{S_W}, 2
    s_or_b32 s{S_MW}, s{S_MW}, s{S_T}
    s_sub_u32 s{S_MW}, s{S_MW}, 1
    s_lshr_b32 s{S_MW}, s{S_MW}, 31
    s_lshl_b32 s{S_MW}, s{S_MW}, 14
    v_add_u32 v18, s{S_MW}, v19
    s_lshl_b32 s27, s{S_W}, 30
    s_and_b32 s27, s27, 0x80000000
    s_or_b32 s27, s27, 1.0
    v_mov_b32 v237, s27
    s_xor_b32 s{S_FT}, s{S_MX}, 16384
    s_and_b32 s{S_G2}, s{S_PT}, {1 if opt.get('pb', 1) else 0xff}
    """.strip().split("\n")
    fin = [x.strip() for x in fin]
    unp = [f"v_lshlrev_b32 v{XU+2*k}, 16, v{224+k}" if b_ == 0 else f"v_and_b32 v{XU+2*k+1}, 0xffff0000, v{224+k}" for k in range(8) for b_ in range(2)]

    PB = opt.get("pb", 1)

    def p_loads(track):
        for eb in range(2 if PB else 4):
            t_ = f"buffer_load_dwordx4 {v(PR+4*eb,4)}, v{VL}, s[{sWS}:{sWS+3}], s{S_FT} offen offset:{eb*1024} sc1"
            A.vmem(t_, "part") if track else A(t_)
    TRE = min(opt.get("tre", 0), TRB // 4)

    def transpose(b0, b1):
        def tr_in(b):
            a_ = wpair_addr(2 * b)
            for eb in range(4):
                for h in range(2):
                    A.lds(f"ds_read_b64_tr_b16 {v(160+16*(b&1)+4*eb+2*h,2)}, v{240+4*(a_>>16)+eb} offset:{(a_ & 0xffff) + h*2048}", ("tr", b))
        if b0 < b1:
            tr_in(b0)
        for b in range(b0, b1):
            if b + 1 < b1:
                tr_in(b + 1)
            A.wait(lg=("tr", b))
            a_ = wpair_addr(2 * b)
            for eb in range(4):
                A.lds(f"ds_write_b128 v{252+(a_>>16)}, {v(160+16*(b&1)+4*eb,4)} offset:{(a_ & 0xffff) + eb*1024}")
    A(f"s_lshl_b32 s3, s2, 14\ns_lshl_b32 s27, s{S_W}, 12\ns_add_u32 s3, s3, s27\ns_add_u32 s{S_MX}, s3, {WS_PART}")
    A.srd(sOUT, 20, 2048 * 896)
    A(f"s_lshl_b32 s{S_H}, s{S_W}, 11")
    for ps in range(2):
        A.dma(VO + ps, sX, "0", f"s_add_u32 m0, s{S_H}, {XS + ps*1024}", "xr")
    if TRB:
        A(f"s_lshl_b32 s3, s{S_W}, 12")
        for k, base in enumerate((WA2, WB, WC)):
            for eb in range(4):
                A(f"v_add_u32 v{240+4*k+eb}, s3, v{base+eb}")
            A(f"v_add_u32 v{252+k}, s3, v{VL}" + (f"\nv_add_u32 v{252+k}, {k << 16}, v{252+k}" if k else ""))
    transpose(0, TRE)
    for x in fin:
        if not x.startswith("ds_"):
            A(x.replace(f"s{S_G2}", "s48").replace("s48", f"s{S_HB}") if False else x) if f"s{S_G2}" not in x else None
    A.wait(vm=0, lg=0)
    for x in fin:
        if x.startswith("ds_"):
            A.lds(x)
    burst([w_dma(p) for p in range(WN, 14)])
    A("s_barrier")
    A(f"s_cmp_lg_u32 s{S_W}, 3\ns_cbranch_scc1 L_nopub")
    A(f"v_mov_b32 v236, s{S_TAG}\ns_mov_b64 exec, 1")
    if opt.get("lf", 1):
        A(f"s_add_u32 s3, s{S_HF}, 4096")
        A(f"buffer_store_dword v236, v{VID+1}, s[{sWS}:{sWS+3}], s3 offen offset:16")
    A(f"buffer_store_dword v236, v{VID+1}, s[{sWS}:{sWS+3}], s{S_HF} offen offset:16 sc1")
    A("s_mov_b64 exec, -1")
    A("L_nopub:")
    A.stamp(7)
    for x in fin:
        if f"s{S_G2}" in x:
            A(x)
    for n in range(4):
        for tt in range(2):
            A.lds(f"ds_read_b128 {v(slot[(n, tt)],4)}, v{238+tt} offset:{n*1024}")
    A.wait(lg=0)
    for x in unp:
        A(x)
    A(f"s_mul_i32 s{S_GH}, s{S_JX}, 7")
    transpose(TRE, TRB // 4)
    if TRB:
        A(f"v_add_u32 v241, 0x10000, v{VL}\nv_add_u32 v242, 0x20000, v{VL}\nv_mov_b32 v240, v{VL}")
    A(f"s_cmp_lg_u32 s{S_W}, 3\ns_cbranch_scc1 L_nopoll")
    if opt.get("lf", 1):
        A(f"""
        s_mov_b32 s27, 0x40000
        L_hpoll:
        s_and_b32 s3, s27, 3
        s_cselect_b32 s3, {4096 + 16}, 16
        s_add_u32 s3, s3, s{S_HF}
        buffer_load_dword v236, v{VID+3}, s[{sWS}:{sWS+3}], s3 offen sc1
        s_waitcnt vmcnt(0)
        v_cmp_eq_u32 vcc, s{S_TAG}, v236
        s_nop 1
        s_cmp_eq_u64 vcc, exec
        s_cbranch_scc1 L_nopoll
        s_sub_u32 s27, s27, 1
        s_cbranch_scc0 L_hpoll
        """.replace("0x40000", "0x3ffff"))
    else:
        A(f"s_add_u32 s3, s{S_HF}, 16")
        A.poll(VID + 3, sWS, "s3", "eq", 64, S_TAG, vtmp=236)
    A("L_nopoll:")
    A.wait(vm=0, lg=0)
    A("s_barrier")
    if not P2: A.stamp(1)
    for k in range(NSL - 8):
        h_next()
    for f in w_reads(0, 0):
        f()
    if opt.get("prio", 1):
        A(f"s_setprio {opt.get('prio', 1)}")
    for n in range(len(seq)):
        ex = []
        if opt.get("p3") and n in (0, 4, 12, 20, 36, 44):
            _stamp({0: 2, 4: 3, 12: 4, 20: 5, 36: 6, 44: 7}[n])
        if n == opt.get("m2n", -1):
            A("s_barrier")
        if n == 28:
            A.stamp(8)
            A(f"""
            v_mov_b32 v236, s{S_G2}
            s_movk_i32 s27, {1 if PB else 0xff}
            s_nop 5
            """)
            for k in range(2 if PB else 0):
                for r in range(4):
                    A(f"v_cvt_pk_bf16_f32 v{AC2+16+4*k+r}, v{AC2+16+8*k+2*r}, v{AC2+17+8*k+2*r}")
                for r in range(4):
                    A(f"v_bfi_b32 v{AC2+16+4*k+r}, s27, v236, v{AC2+16+4*k+r}")
                A.vmem(f"buffer_store_dwordx4 {v(AC2+16+4*k,4)}, v{VL}, s[{sWS}:{sWS+3}], s{S_MX} offen offset:{k*1024} sc1", "pst")
            for eb in range(0 if PB else 4):
                for r in range(4):
                    A(f"v_bfi_b32 v{AC2+16+4*eb+r}, s27, v236, v{AC2+16+4*eb+r}")
                A.vmem(f"buffer_store_dwordx4 {v(AC2+16+4*eb,4)}, v{VL}, s[{sWS}:{sWS+3}], s{S_MX} offen offset:{eb*1024} sc1", "pst")
        if n == len(seq) - opt.get("pat", 4):
            ex.append((3, lambda: p_loads(True)))
        step(n, ex)
    A.stamp(9)
    A(f"s_mov_b32 s{S_KX}, 0x40000")
    A("L_pchk:")
    A("s_waitcnt vmcnt(0)")
    NP = 8 if PB else 16
    for r in range(NP):
        A(f"v_xor_b32 v{PR+r}, s{S_G2}, v{PR+r}")
    A(f"v_or3_b32 v24, v{PR}, v{PR+1}, v{PR+2}")
    for k in range(NP // 2 - 2):
        A(f"v_or3_b32 v24, v24, v{PR+3+2*k}, v{PR+4+2*k}")
    A(f"v_or_b32 v24, v24, v{PR+NP-1}\nv_and_b32 v24, {1 if PB else 0xff}, v24\nv_cmp_eq_u32 vcc, 0, v24\ns_nop 1\ns_cmp_eq_u64 vcc, exec\ns_cbranch_scc1 L_pok")
    p_loads(False)
    A(f"s_sub_u32 s{S_KX}, s{S_KX}, 1\ns_cbranch_scc0 L_pchk")
    A("L_pok:")
    if PB:
        for r in range(8):
            A(f"v_and_b32 v{PR+8+r}, 0xffff0000, v{PR+r}\nv_lshlrev_b32 v{PR+r}, 16, v{PR+r}")
    for r in range(16):
        A(f"v_add_f32 v{AC2+r}, v{AC2+r}, v{PR + ((r >> 1) + 8 * (r & 1) if PB else r)}")
    if P2: A.stamp(2)
    A("s_barrier")
    A.stamp(10)
    YP = HF
    A(f"ds_read_b32 v236, v20")
    for eb in range(4):
        A(f"ds_read_b128 {v(YP+4*eb,4)}, v18 offset:{eb*1024}")
    for eb in range(4):
        A(f"ds_read_b128 {v(YP+16+4*eb,4)}, v19 offset:{8192 + eb*1024}")
    A("s_waitcnt lgkmcnt(8)")
    for eb in range(4):
        for hh in range(2):
            A(f"v_pk_fma_f32 {v(XU+4*eb+2*hh,2)}, {v(AC2+4*eb+2*hh,2)}, v[236:237], {v(XU+4*eb+2*hh,2)} op_sel_hi:[1,0,1]")
    A("s_waitcnt lgkmcnt(4)")
    for eb in range(4):
        for hh in range(2):
            A(f"v_pk_add_f32 {v(XU+4*eb+2*hh,2)}, {v(XU+4*eb+2*hh,2)}, {v(YP+4*eb+2*hh,2)}")
    A("s_waitcnt lgkmcnt(0)")
    for eb in range(4):
        for hh in range(2):
            A(f"v_pk_fma_f32 {v(XU+4*eb+2*hh,2)}, {v(YP+16+4*eb+2*hh,2)}, v[236:237], {v(XU+4*eb+2*hh,2)} op_sel:[0,1,0] op_sel_hi:[1,1,1]")
        A(f"v_cvt_pk_bf16_f32 v{28+2*eb}, v{XU+4*eb}, v{XU+4*eb+1}\nv_cvt_pk_bf16_f32 v{29+2*eb}, v{XU+4*eb+2}, v{XU+4*eb+3}")
        A(f"ds_write_b64 v{232+eb}, {v(28+2*eb,2)}")
    A("s_waitcnt lgkmcnt(0)")
    A("ds_read_b128 v[36:39], v23\nds_read_b128 v[40:43], v23 offset:1024")
    A("s_waitcnt lgkmcnt(1)")
    A(f"buffer_store_dwordx4 v[36:39], v{VO}, s[{sOUT}:{sOUT+3}], 0 offen {opt.get('ofl', '')}")
    A("s_waitcnt lgkmcnt(0)")
    A(f"buffer_store_dwordx4 v[40:43], v{VO+1}, s[{sOUT}:{sOUT+3}], 0 offen {opt.get('ofl', '')}")
    if opt.get("dbg"):
        A.srd(sDBG, 22, 256)
        A("""
        s_waitcnt vmcnt(0)
        s_memrealtime s[88:89]
        s_memtime s[84:85]
        s_waitcnt lgkmcnt(0)
        s_sub_u32 s84, s84, s90
        s_sub_u32 s88, s88, s92
        s_lshl_b32 s88, s88, 16
        s_and_b32 s92, s92, 0xffff
        s_or_b32 s88, s88, s92
        v_mov_b32 v2, s88
        v_mov_b32 v3, s84
        s_lshl_b32 s3, s2, 3
        s_lshl_b32 s27, s60, 8
        s_add_u32 s3, s3, s27
        v_mov_b32 v5, s3
        s_mov_b64 exec, 1
        """)
        A(f"buffer_store_dwordx2 v[2:3], v5, s[{sDBG}:{sDBG+3}], 0 offen")
    A.dump_stamps(11)
    A("s_endpgm")

    A("L_aux:")
    epilogue(1)
    RSD, VPOLL, VT, YB, YA, V2, VF, WF = 20, 22, 19, 32, 48, 64, 96, 128
    PR, XU = VF, V2
    DF, EF, TA = 24, 8, opt.get('ta', 32)
    S_PA = S_MX
    A(f"""
    s_and_b32 s{S_GH}, s{S_W}, 3
    v_and_b32 v14, 15, v1
    s_lshl_b32 s3, s{S_CT}, 6
    v_add_u32 v{EF}, s3, v14
    v_cvt_f32_u32 v{EF}, v{EF}
    v_lshrrev_b32 v15, 4, v1
    v_lshlrev_b32 v{DF}, 2, v15
    v_cvt_f32_u32 v{DF}, v{DF}
    s_mov_b32 s3, 0x41800000
    v_add_f32 v{EF+1}, s3, v{EF}
    v_add_f32 v{EF+2}, s3, v{EF+1}
    v_add_f32 v{EF+3}, s3, v{EF+2}
    v_add_f32 v{DF+1}, 1.0, v{DF}
    v_add_f32 v{DF+2}, 2.0, v{DF}
    v_add_f32 v{DF+3}, 2.0, v{DF+1}
    v_add_f32 v{DF+4}, s3, v{DF}
    v_add_f32 v{DF+5}, s3, v{DF+1}
    v_add_f32 v{DF+6}, s3, v{DF+2}
    v_add_f32 v{DF+7}, s3, v{DF+3}
    s_mov_b32 s3, {0x3b124925}
    v_mul_f32 v{EF}, s3, v{EF}
    v_mul_f32 v{EF+1}, s3, v{EF+1}
    v_mul_f32 v{EF+2}, s3, v{EF+2}
    v_mul_f32 v{EF+3}, s3, v{EF+3}
    s_bitcmp1_b32 s{S_W}, 1
    s_cselect_b32 s3, 0x3e800000, 0
    v_mov_b32 v{EF+4}, s3
    v_mov_b32 v{EF+5}, 0x42000000
    """)
    gen_ops = []
    CA_, CB_, KK = 64, 72, 80
    for eb in range(4):
        sel = "op_sel:[0,1,0] op_sel_hi:[1,1,0]" if eb & 1 else "op_sel_hi:[1,0,0]"
        gen_ops.append(f"v_mul_f32 v{KK}, v{EF+5}, v{EF+eb}")
        gen_ops += [f"v_pk_fma_f32 {v(CA_+2*i,2)}, {v(DF+2*i,2)}, {v(EF+(eb&2),2)}, {v(EF+4,2)} {sel}" for i in range(4)]
        gen_ops += [f"v_pk_add_f32 {v(CB_+2*i,2)}, {v(CA_+2*i,2)}, {v(KK,2)} op_sel_hi:[1,0]" for i in range(4)]
        gen_ops.append(f"v_cos_f32 v{KK}, v{KK}")
        gen_ops += [f"v_cos_f32 v{CA_+i}, v{CA_+i}" for i in range(16)]
        gen_ops.append(f"v_add_f32 v{KK}, v{KK}, v{KK}")
        for u in range(8):
            cur = (CA_, CB_)[u & 1]
            if u >= 2:
                gen_ops += [f"v_pk_fma_f32 {v(cur+2*i,2)}, {v((CB_, CA_)[u & 1]+2*i,2)}, {v(KK,2)}, {v(cur+2*i,2)} op_sel_hi:[1,0,1] neg_lo:[0,0,1] neg_hi:[0,0,1]" for i in range(4)]
            gen_ops += [f"v_cvt_pk_bf16_f32 v{WF+16*u+4*eb+i}, v{cur+2*i}, v{cur+2*i+1}" for i in range(4)]

    def wgen(n):
        for x in gen_ops[:16 * n]:
            A(x)
        del gen_ops[:16 * n]
    S_VF = 59
    A(f"""
    s_lshl_b32 s3, s{S_RB}, 6
    s_add_u32 s3, s3, s{S_JX}
    s_and_b32 s27, s{S_W}, 1
    s_lshl_b32 s27, s27, 5
    s_add_u32 s27, s27, s3
    v_lshl_add_u32 v{RSD+1}, v14, 1, s27
    s_bitcmp1_b32 s{S_W}, 1
    s_cselect_b32 s3, -1, 1
    s_cselect_b32 s27, 2048, 0
    v_mul_i32_i24 v{RSD+1}, s3, v{RSD+1}
    v_add_u32 v{RSD+1}, s27, v{RSD+1}
    v_lshrrev_b32 v{RSD}, 11, v{RSD+1}
    v_lshlrev_b32 v{RSD}, 10, v{RSD}
    v_sub_u32 v{RSD+1}, v{RSD+1}, v{RSD}
    v_lshlrev_b32 v{RSD+1}, 2, v{RSD+1}
    v_add_u32 v{RSD+1}, {WS_RSTD}, v{RSD+1}
    s_lshl_b32 s3, s{S_T}, 1
    s_and_b32 s27, s{S_W}, 1
    s_add_u32 s3, s3, s27
    s_lshl_b32 s{S_FT}, s3, 14
    s_lshr_b32 s27, s{S_GH}, 1
    s_lshl_b32 s3, s27, 13
    s_add_u32 s{S_FT}, s{S_FT}, s3
    s_add_u32 s{S_FT}, s{S_FT}, {WS_VV}
    s_cmp_eq_u32 s{S_GH}, 0
    s_cselect_b32 s{S_MW}, {WS_VV + 64*16384}, s{S_FT}
    s_lshl_b32 s3, s{S_GH}, 12
    s_add_u32 s27, s3, {YS}
    v_add_u32 v17, s27, v{VL}
    s_lshl_b32 s3, s{S_GH}, 6
    s_add_u32 s3, s3, {YS + 20480}
    v_lshl_add_u32 v18, v14, 2, s3
    """)
    A(f"""
    v_and_b32 v{VPOLL+1}, 1, v1
    v_lshlrev_b32 v{VPOLL+1}, 2, v{VPOLL+1}
    """)
    wgen(opt.get("g1", 10))
    A.wait(vm=0, lg=0)
    burst([w_dma(p) for p in range(WN, 14)])
    A("s_barrier")
    A.stamp(7)
    wgen(32)
    A.wait(vm=0)
    A("s_barrier")
    if not P2: A.stamp(1)
    if opt.get("nov"):
        A("s_branch L_vdone")
    if opt.get("m2n", -1) >= 0:
        A("s_barrier")
    A.poll(VPOLL + 1, sWS, f"s{S_VF}", "eq", 64, S_TAG, vtmp=VPOLL, sleep=opt.get("vps", 8))
    A.stamp(9)
    A.reset()
    A.vmem(f"buffer_load_dword v{RSD}, v{RSD+1}, s[{sWS}:{sWS+3}], 0 offen {HLD}", "rstd")
    for u in range(8):
        if u % 4 == 0:
            A(f"s_add_u32 s27, s{S_FT}, {u*1024}")
        A.vmem(f"buffer_load_dwordx4 {v(VF+4*u,4)}, v{VL}, s[{sWS}:{sWS+3}], s27 offen offset:{(u%4)*1024} {HLD}", ("v", u))

    A(f"s_cmp_eq_u32 s{S_T}, 0\ns_cbranch_scc1 L_vspecial")

    def vpart(special):
        if special:
            for u in range(8):
                if u % 4 == 0:
                    A(f"s_add_u32 s27, s{S_MW}, {u*1024}")
                A.vmem(f"buffer_load_dwordx4 {v(V2+4*u,4)}, v{VL}, s[{sWS}:{sWS+3}], s27 offen offset:{(u%4)*1024} {HLD}", ("v2", u))
        for u in range(8):
            A.wait(vm=("v", u))
            for eb in range(4):
                A.mfma(YA + eb * 4, WF + 16 * u + 4 * eb, VF + 4 * u, "0" if u == 0 else None)
        if special:
            for u in range(8):
                A.wait(vm=("v2", u))
                for eb in range(4):
                    A.mfma(YB + eb * 4, WF + 16 * u + 4 * eb, V2 + 4 * u, "0" if u == 0 else None)
        A(f"ds_write_b32 v18, v{RSD}")
        A(f"s_nop {opt.get('yn', 6)}")
        for eb in range(4):
            A(f"ds_write_b128 v17, {v(YA+4*eb,4)} offset:{eb*1024}")
        if special:
            L = A.label("L_nopm")
            A(f"s_cmp_lg_u32 s{S_W}, 4\ns_cbranch_scc1 {L}")
            A("s_mov_b32 s26, 0x00010001\ns_mov_b32 s27, 0x00010001")
            for r in range(16):
                A(f"v_cndmask_b32 v{YB+r}, v{YA+r}, v{YB+r}, s[26:27]")
            for eb in range(4):
                A(f"ds_write_b128 v17, {v(YB+4*eb,4)} offset:{16384 + eb*1024}")
            A(f"{L}:")
    sv = (list(A.vm), A.vm_done, list(A.lg), A.lg_done)
    vpart(False)
    A("s_branch L_vdone")
    A("L_vspecial:")
    A.vm, A.vm_done, A.lg, A.lg_done = sv
    vpart(True)
    A("L_vdone:")
    A("s_waitcnt lgkmcnt(0)")
    A.stamp(10)
    A("s_barrier")
    A.dump_stamps(11)
    A("s_endpgm")

    A.reset()
    A("L_dft:")
    S_Q, S_VAR, S_M, S_N, S_P = 63, 96, 97, 98, 99
    A(f"""
    s_sub_u32 s3, s{S_J}, 28
    s_lshl_b32 s{S_Q}, s{S_XCD}, 2
    s_add_u32 s{S_Q}, s{S_Q}, s3
    s_lshr_b32 s{S_VAR}, s{S_XCD}, 1
    s_mov_b32 s{S_M}, s3
    s_and_b32 s{S_N}, s{S_XCD}, 1
    s_and_b32 s{S_P}, s{S_VAR}, 1
    """)
    def wtouch(ptr):
        A.srd(sW1, ptr, 448 * 3584)
        A(f"v_lshlrev_b32 v210, 7, v1\ns_lshl_b32 s3, s{S_Q}, 13\ns_add_u32 s27, s{S_W}, {opt.get('t1s', 3)}\ns_lshl_b32 s27, s27, 18\ns_add_u32 s3, s3, s27\nv_add_u32 v210, s3, v210")
        A.vmem(f"buffer_load_dword v211, v210, s[{sW1}:{sW1+3}], 0 offen")

    RAW, EO, TF, TM, ST = 32, 64, 128, 136, 144
    A(f"""
    s_lshl_b32 s3, s{S_Q}, 4
    s_lshl_b32 s27, s{S_W}, 1
    s_add_u32 s3, s3, s27
    v_lshrrev_b32 v2, 5, v1
    v_add_u32 v4, s3, v2
    v_and_b32 v3, 31, v1
    v_sub_u32 v5, 2048, v4
    v_sub_u32 v6, 1024, v4
    v_add_u32 v7, 1024, v4
    v_cmp_eq_u32 s[100:101], 0, v4
    v_mov_b32 v8, 512
    v_mov_b32 v9, 1536
    v_mov_b32 v12, {OOB}
    v_cndmask_b32 v5, v5, v8, s[100:101]
    v_cndmask_b32 v7, v7, v9, s[100:101]
    v_cmp_gt_u32 vcc, 28, v3
    v_lshlrev_b32 v8, 4, v3
    v_sub_u32 v9, 880, v8
    v_cndmask_b32 v8, v12, v8, vcc
    v_cndmask_b32 v9, v12, v9, vcc
    s_waitcnt lgkmcnt(0)
    """)
    A.srd(sX, 4, 2048 * 896)
    if opt.get("t1", 0) == 2:
        wtouch(16)
    for rho in range(4):
        A(f"v_mul_u32_u24 v13, 896, v{4+rho}\nv_add_u32 v14, v13, v8\nv_add_u32 v15, v13, v9")
        for fm in range(2):
            A.vmem(f"buffer_load_dwordx4 {v(RAW + rho*8 + 4*fm, 4)}, v{14+fm}, s[{sX}:{sX+3}], 0 offen", ("x", rho))
    A.srd(sWS, 24, WS_SIZE + (0x40000 if stamps else 0))
    if opt.get("t1", 0) == 1:
        wtouch(16)
    A(f"v_mov_b32 v190, {WS_EPOCH}")
    A.vmem(f"buffer_load_dword v191, v190, s[{sWS}:{sWS+3}], 0 offen sc1", "ep")
    A(f"s_cmp_lg_u32 s{S_W}, 7\ns_cbranch_scc1 L_dnotouch")
    if opt.get("xt", 0):
        start_touch(A, opt, "x", 200)
    code_touch(A, 208)
    A("L_dnotouch:")

    S_R = 14
    GA, GT = 160, 168
    A(f"""
    s_lshl_b32 s3, s{S_M}, 7
    s_lshl_b32 s27, s{S_W}, 4
    s_add_u32 s3, s3, s27
    s_lshl_b32 s3, s3, 1
    s_add_u32 s3, s3, s{S_P}
    v_and_b32 v13, 15, v1
    v_lshl_add_u32 v13, v13, 1, s3
    v_cvt_f32_u32 v13, v13
    v_mul_f32 v13, 0x3a000000, v13
    v_lshrrev_b32 v14, 4, v1
    v_lshlrev_b32 v14, 3, v14
    v_cvt_f32_u32 v14, v14
    s_cmp_ge_u32 s{S_VAR}, 2
    s_cselect_b32 s3, 0x3e800000, 0
    v_fma_f32 v{GA}, v13, v14, s3
    v_mul_f32 v14, 0x42000000, v13
    v_lshlrev_b32 v16, 4, v1
    s_lshl_b32 s3, s{S_W}, 10
    v_add_u32 v16, s3, v16
    v_add_u32 v17, 0x10000, v16
    """)
    for i in range(1, 8):
        A(f"v_add_f32 v{GA+i}, v13, v{GA+i-1}")
    for i in range(8):
        A(f"v_add_f32 v{GT+i}, v14, v{GA+i}")
    A("v_cos_f32 v14, v14")
    for i in range(16):
        A(f"v_cos_f32 v{GA+i}, v{GA+i}")
    A("v_add_f32 v14, v14, v14")
    A("v_mov_b32 v184, v14\nv_mov_b32 v186, v16\nv_mov_b32 v187, v17")
    cg = [0]

    def cgen(n):
        for sb in range(cg[0], min(16, cg[0] + n)):
            cur, oth = (GA, GT) if sb % 2 == 0 else (GT, GA)
            if sb >= 2:
                for i in range(4):
                    A(f"v_pk_fma_f32 {v(cur+2*i,2)}, {v(oth+2*i,2)}, v[184:185], {v(cur+2*i,2)} op_sel_hi:[1,0,1] neg_lo:[0,0,1] neg_hi:[0,0,1]")
            d = GT + 8 + 4 * (sb & 1)
            for i in range(4):
                A(f"v_cvt_pk_bf16_f32 v{d+i}, v{cur+2*i}, v{cur+2*i+1}")
            A.lds(f"ds_write_b128 v{186 + sb//8}, {v(d,4)} offset:{(sb%8)*8192}")
        cg[0] = min(16, cg[0] + n)
    cgen(opt.get("c0", 4))
    A.stamp(1)
    A(f"""
    v_cmp_eq_u32 s[26:27], 0, v3
    v_cndmask_b32 v21, 0, 2.0, vcc
    v_cmp_eq_u32 vcc, 28, v3
    v_mov_b32 v24, 0
    v_cndmask_b32 v20, v21, 1.0, s[26:27]
    v_mov_b32 v25, 0
    v_cndmask_b32 v20, v20, 1.0, vcc
    v_mov_b32 v26, 0
    v_mov_b32 v27, 0
    """)
    E = lambda rho: EO + rho * 16
    O = lambda rho: EO + rho * 16 + 8
    for rho in range(4):
        A.wait(vm=("x", rho))
        if rho == opt.get("t2", 9):
            wtouch(18)
        F = RAW + rho * 8
        M = F + 4
        A(f"v_mov_b32_dpp v{24+rho}, v{M} row_bcast:15 row_mask:0xa bank_mask:0xf")
        for i in range(4):
            A(f"v_lshlrev_b32 v{TF+2*i}, 16, v{F+i}\nv_and_b32 v{TF+2*i+1}, 0xffff0000, v{F+i}")
        A(f"v_mov_b32_dpp v{24+rho}, v{M} row_shr:1 row_mask:0xf bank_mask:0xf")
        for j in range(1, 8):
            k = 8 - j
            if k & 1:
                A(f"v_and_b32 v{TM+j}, 0xffff0000, v{M + k//2}")
            else:
                A(f"v_lshlrev_b32 v{TM+j}, 16, v{M + k//2}")
        A(f"v_lshlrev_b32 v{TM}, 16, v{24+rho}")
        for i in range(4):
            A(f"v_pk_add_f32 {v(E(rho)+2*i,2)}, {v(TF+2*i,2)}, {v(TM+2*i,2)}")
            A(f"v_pk_add_f32 {v(O(rho)+2*i,2)}, {v(TF+2*i,2)}, {v(TM+2*i,2)} neg_lo:[0,1] neg_hi:[0,1]")
        sm, sq = ST + 4 * rho, ST + 4 * rho + 2
        for i in range(4):
            if i == 0:
                A(f"v_pk_add_f32 {v(sm,2)}, {v(E(rho),2)}, {v(E(rho)+2,2)}")
                A(f"v_pk_mul_f32 {v(sq,2)}, {v(E(rho),2)}, {v(E(rho),2)}")
            else:
                if i > 1:
                    A(f"v_pk_add_f32 {v(sm,2)}, {v(sm,2)}, {v(E(rho)+2*i,2)}")
                A(f"v_pk_fma_f32 {v(sq,2)}, {v(E(rho)+2*i,2)}, {v(E(rho)+2*i,2)}, {v(sq,2)}")
            A(f"v_pk_fma_f32 {v(sq,2)}, {v(O(rho)+2*i,2)}, {v(O(rho)+2*i,2)}, {v(sq,2)}")
    A.stamp(2)
    for rho in range(4):
        A(f"v_add_f32 v{ST+4*rho}, v{ST+4*rho}, v{ST+4*rho+1}\nv_add_f32 v{ST+4*rho+2}, v{ST+4*rho+2}, v{ST+4*rho+3}")
    for i in range(4):
        A(f"v_permlane16_swap_b32 v{ST+2*i}, v{ST+8+2*i}")
    for i in range(4):
        A(f"v_add_f32 v{ST+2*i}, v{ST+2*i}, v{ST+8+2*i}")
    for sh in (8, 4, 2, 1):
        for i in range(4):
            r = ST + 2 * i
            A(f"v_add_f32_dpp v{r}, v{r}, v{r} row_ror:{sh} row_mask:0xf bank_mask:0xf")
    R_, C_ = 24, 28
    A(f"s_mov_b32 s3, {0x3b124925}\ns_mov_b32 s26, {0x3a924925}\ns_mov_b32 s27, {0x3727c5ac}")
    seq_ = [
        lambda b: f"v_mul_f32 v{b}, s3, v{b}\nv_mul_f32 v{b+2}, s26, v{b+2}",
        lambda b: f"v_fma_f32 v{b+2}, -v{b}, v{b}, v{b+2}",
        lambda b: f"v_max_f32 v{b+2}, 0, v{b+2}",
        lambda b: f"v_cvt_pk_bf16_f32 v{b+1}, v{b}, v{b+2}",
        lambda b: f"v_lshlrev_b32 v{b}, 16, v{b+1}\nv_and_b32 v{b+2}, 0xffff0000, v{b+1}",
        lambda b: f"v_add_f32 v{b+2}, s27, v{b+2}",
        lambda b: f"v_cvt_pk_bf16_f32 v{b+2}, v{b+2}, v{b+2}",
        lambda b: f"v_and_b32 v{b+2}, 0xffff0000, v{b+2}",
        lambda b: f"v_sqrt_f32 v{b+2}, v{b+2}",
        lambda b: f"s_nop 0\nv_cvt_pk_bf16_f32 v{b+2}, v{b+2}, v{b+2}",
        lambda b: f"v_and_b32 v{b+2}, 0xffff0000, v{b+2}",
    ]
    for f in seq_:
        for rho in range(2):
            A(f(ST + 4 * rho))
    for rho in range(2):
        A(f"v_rcp_f32 v{R_+rho}, v{ST+4*rho+2}")
    A("s_nop 0")
    for rho in range(2):
        A(f"v_mul_f32 v{C_+rho}, v{ST+4*rho}, v{R_+rho}")
    for r in (R_, R_ + 1, C_, C_ + 1):
        A(f"v_mov_b32 v{r+2}, v{r}")
    A("s_nop 0")
    for r in (R_, R_ + 1, C_, C_ + 1):
        A(f"v_permlane16_swap_b32 v{r}, v{r+2}")
    A(f"""
    v_cmp_eq_u32 vcc, 1, v3
    v_cmp_eq_u32 s[26:27], 2, v3
    v_mov_b32 v8, v4
    v_mov_b32 v9, v{R_}
    v_cndmask_b32 v8, v8, v5, vcc
    v_cndmask_b32 v9, v9, v{R_+1}, vcc
    v_cmp_eq_u32 vcc, 3, v3
    v_cndmask_b32 v8, v8, v6, s[26:27]
    v_cndmask_b32 v9, v9, v{R_+2}, s[26:27]
    v_cndmask_b32 v8, v8, v7, vcc
    v_cndmask_b32 v9, v9, v{R_+3}, vcc
    v_cmp_gt_u32 vcc, 4, v3
    v_lshlrev_b32 v8, 2, v8
    v_add_u32 v8, {WS_RSTD}, v8
    v_cndmask_b32 v8, v12, v8, vcc
    """)
    A("v_mov_b32 v188, v8\nv_mov_b32 v189, v9")
    A(f"s_or_b32 s3, s{S_Q}, s{S_W}\ns_cmp_lg_u32 s3, 0\ns_cbranch_scc1 L_no512")
    A(f"v_add_f32 v10, v{C_+1}, v{C_+3}")
    for j in range(8):
        A(f"v_mul_f32 v{TF+j}, v10, v{20+(1 if j else 0)}")
        A(f"v_fma_f32 v{TF+j}, v{E(1)+j}, v{R_+1}, -v{TF+j}")
        A(f"v_fma_f32 v{TF+j}, v{E(3)+j}, v{R_+3}, v{TF+j}")
        A(f"v_mul_f32 v{TM+j}, v{O(1)+j}, v{R_+1}")
        A(f"v_fma_f32 v{TM+j}, -v{O(3)+j}, v{R_+3}, v{TM+j}")
    for i in range(4):
        A(f"v_cvt_pk_bf16_f32 v{RAW+i}, v{TF+2*i}, v{TF+2*i+1}")
        A(f"v_cvt_pk_bf16_f32 v{RAW+4+i}, v{TM+2*i}, v{TM+2*i+1}")
    A(f"v_lshlrev_b32 v10, 4, v3\nv_add_u32 v10, {WS_X512}, v10\nv_cndmask_b32 v10, v12, v10, s[100:101]")
    A(f"buffer_store_dwordx4 {v(RAW,4)}, v10, s[{sWS}:{sWS+3}], 0 offen sc1")
    A(f"buffer_store_dwordx4 {v(RAW+4,4)}, v10, s[{sWS}:{sWS+3}], 0 offen offset:{3*512} sc1")
    A("s_nop 1")
    A("L_no512:")
    for r in (R_ + 1, R_ + 3, C_ + 1, C_ + 3):
        A(f"v_cndmask_b32 v{r}, v{r}, 0, s[100:101]")
    A(f"v_add_f32 v{C_}, v{C_}, v{C_+1}\nv_add_f32 v{C_+2}, v{C_+2}, v{C_+3}")
    OUT = lambda var: RAW + var * 8
    bl = "op_sel_hi:[1,0,1]"
    bh = "op_sel:[0,1,0] op_sel_hi:[1,1,1]"
    A(f"v_pk_mul_f32 v[8:9], v[20:21], {v(C_,2)} op_sel_hi:[1,0] neg_lo:[1,0] neg_hi:[1,0]")
    A(f"v_pk_mul_f32 v[10:11], v[20:21], {v(C_+2,2)} op_sel_hi:[1,0] neg_lo:[1,0] neg_hi:[1,0]")
    for i in range(4):
        s3lo, s3hi = (0, 1) if i == 0 else (1, 1)
        a_, b_ = TF, TF + 2
        A(f"v_pk_fma_f32 {v(a_,2)}, {v(E(0)+2*i,2)}, {v(R_,2)}, v[8:9] op_sel:[0,0,{s3lo}] op_sel_hi:[1,0,{s3hi}]")
        A(f"v_pk_fma_f32 {v(b_,2)}, {v(E(2)+2*i,2)}, {v(R_+2,2)}, v[10:11] op_sel:[0,0,{s3lo}] op_sel_hi:[1,0,{s3hi}]")
        A(f"v_pk_mul_f32 {v(TM,2)}, {v(O(0)+2*i,2)}, {v(R_,2)} op_sel_hi:[1,0]")
        A(f"v_pk_mul_f32 {v(TM+2,2)}, {v(O(3)+2*i,2)}, {v(R_+2,2)} op_sel:[0,1] op_sel_hi:[1,1]")
        A(f"v_pk_fma_f32 {v(a_,2)}, {v(E(1)+2*i,2)}, {v(R_,2)}, {v(a_,2)} {bh}")
        A(f"v_pk_fma_f32 {v(b_,2)}, {v(E(3)+2*i,2)}, {v(R_+2,2)}, {v(b_,2)} {bh}")
        A(f"v_pk_fma_f32 {v(TM,2)}, {v(O(1)+2*i,2)}, {v(R_,2)}, {v(TM,2)} {bh} neg_lo:[1,0,0] neg_hi:[1,0,0]")
        A(f"v_pk_fma_f32 {v(TM+2,2)}, {v(O(2)+2*i,2)}, {v(R_+2,2)}, {v(TM+2,2)} {bl} neg_lo:[1,0,0] neg_hi:[1,0,0]")
        A(f"v_pk_add_f32 {v(OUT(0)+2*i,2)}, {v(a_,2)}, {v(b_,2)}")
        A(f"v_pk_add_f32 {v(OUT(1)+2*i,2)}, {v(a_,2)}, {v(b_,2)} neg_lo:[0,1] neg_hi:[0,1]")
        A(f"v_pk_add_f32 {v(OUT(2)+2*i,2)}, {v(TM,2)}, {v(TM+2,2)}")
        A(f"v_pk_add_f32 {v(OUT(3)+2*i,2)}, {v(TM,2)}, {v(TM+2,2)} neg_lo:[0,1] neg_hi:[0,1]")
    PKD = EO
    FS = 131072
    A(f"""
    v_lshlrev_b32 v8, 13, v2
    v_lshrrev_b32 v9, 1, v3
    v_lshl_add_u32 v8, v9, 9, v8
    v_and_b32 v10, 7, v9
    v_lshl_add_u32 v8, v10, 4, v8
    v_and_b32 v10, 1, v3
    v_lshl_add_u32 v8, v10, 7, v8
    v_and_b32 v9, 8, v9
    v_or_b32 v8, v8, v9
    s_lshr_b32 s3, s{S_W}, 2
    s_lshl_b32 s3, s3, 8
    s_and_b32 s27, s{S_W}, 3
    s_lshl_b32 s27, s27, 2
    s_add_u32 s3, s3, s27
    s_add_u32 s3, s3, {FS}
    v_xor_b32 v8, s3, v8
    """)
    for j in range(1, 8):
        A(f"v_xor_b32 v{8+j}, {j<<4}, v8")
    for pr in range(2):
        for j in range(8):
            A(f"v_permlane32_swap_b32 v{OUT(2*pr)+j}, v{OUT(2*pr+1)+j}")
        for j in range(8):
            A(f"v_cvt_pk_bf16_f32 v{PKD+8*pr+j}, v{OUT(2*pr)+j}, v{OUT(2*pr+1)+j}")
        for j in range(8):
            A.lds(f"ds_write_b32 v{8+j}, v{PKD+8*pr+j} offset:{pr*16384}")
    A(f"""
    v_xor_b32 v28, v3, v2
    v_lshlrev_b32 v28, 4, v28
    v_lshl_add_u32 v28, v2, 9, v28
    s_lshl_b32 s3, s{S_W}, 12
    s_and_b32 s27, s{S_W}, 1
    s_lshl_b32 s27, s27, 3
    s_add_u32 s3, s3, s27
    s_add_u32 s3, s3, {FS}
    v_add_u32 v28, s3, v28
    v_lshlrev_b32 v27, 4, v3
    v_lshl_add_u32 v27, v2, 14, v27
    s_lshr_b32 s3, s{S_Q}, 1
    s_lshl_b32 s3, s3, 10
    s_and_b32 s27, s{S_Q}, 1
    s_lshl_b32 s27, s27, 9
    s_add_u32 s3, s3, s27
    s_lshl_b32 s27, s{S_W}, 17
    s_add_u32 s3, s3, s27
    s_add_u32 s3, s3, {WS_XF}
    """)
    for k in range(1, 8):
        A(f"v_xor_b32 v{RAW+16+k}, {(k>>1)*32 + (k&1)*8}, v28")
    A.wait(lg=0)
    A("s_barrier")
    A.vmem(f"buffer_store_dword v189, v188, s[{sWS}:{sWS+3}], 0 offen sc1")
    for i in range(4):
        for hh in range(2):
            k = 2 * i + hh
            A.lds(f"ds_read_b64 {v(RAW+4*i+2*hh,2)}, v{RAW+16+k if k else 28} offset:{i*1024}", ("rb", i))
    for i in range(4):
        A.wait(lg=("rb", i))
        A.vmem(f"buffer_store_dwordx4 {v(RAW+4*i,4)}, v27, s[{sWS}:{sWS+3}], s3 offen sc1", "xst")
        A(f"s_add_u32 s3, s3, 32768")
    A.stamp(3)
    cgen(opt.get("c1", 4))
    cg_left = cg[0]
    A(f"s_cmp_ge_u32 s{S_W}, 4\ns_cbranch_scc1 L_dft_helper")
    dstate = (list(A.vm), A.vm_done)
    SACC, SEX, CF, XF = 32, 96, [104, 136], 168
    KALT, B512, X5 = 4, 8, [12, 16]
    CA = 22
    S_XA = 15
    A(f"""
    v_lshlrev_b32 v{CA}, 4, v1
    v_and_b32 v26, 1, v1
    s_cmp_ge_u32 s{S_VAR}, 2
    s_cselect_b32 s100, 1, 0
    s_cselect_b32 s101, 0x80008000, 0
    v_xor_b32 v26, s100, v26
    v_lshlrev_b32 v26, 15, v26
    v_or_b32 v{B512}, 0x3f80, v26
    s_lshl_b32 s26, s{S_N}, 3
    s_lshl_b32 s27, s{S_W}, 1
    s_add_u32 s26, s26, s27
    s_lshl_b32 s3, s{S_VAR}, 4
    s_add_u32 s3, s3, s26
    s_lshl_b32 s{S_XA}, s3, 14
    s_add_u32 s{S_XA}, s{S_XA}, {WS_XF}
    s_add_u32 s{S_R}, s{S_M}, 1
    s_and_b32 s{S_R}, s{S_R}, 3
    s_lshl_b32 s3, s{S_R}, 15
    v_add_u32 v{CA}, s3, v{CA}
    s_add_u32 s3, s3, 32768
    s_and_b32 s3, s3, 0x1ffff
    v_lshl_add_u32 v{CA+1}, v1, 4, s3
    v_xor_b32 v{CA+2}, 0x10000, v{CA}
    v_xor_b32 v{CA+3}, 0x10000, v{CA+1}
    s_lshl_b32 s26, s26, 5
    s_lshl_b32 s27, s{S_VAR}, 9
    s_add_u32 s26, s26, s27
    s_add_u32 s26, s26, {WS_X512}
    v_lshl_add_u32 v27, v1, 1, s26
    s_add_u32 s3, s{S_VAR}, 1
    s_and_b32 s3, s3, 2
    s_cmp_eq_u32 s3, 0
    s_cselect_b32 s3, 16, 0
    v_cmp_gt_u32 vcc, s3, v1
    v_mov_b32 v26, {OOB}
    v_lshlrev_b32 v28, 4, v1
    v_cndmask_b32 v27, v26, v27, vcc
    v_add_u32 v29, 16384, v28
    s_or_b32 s3, s{S_M}, s{S_VAR}
    s_cmp_eq_u32 s3, 0
    s_cselect_b32 vcc_lo, 1, 0
    s_mov_b32 vcc_hi, 0
    """)
    for i in range(4):
        A(f"v_mov_b32 v{KALT+i}, 0xbf803f80")
    for i in range(8):
        A(f"v_mov_b32 v{SEX+i}, 0")
    A.wait(vm="xst")
    A("s_barrier")
    A.stamp(4)
    if opt.get("t2p"):
        wtouch(18)
    cgen(16)
    A.wait(lg=0)
    for i in range(1, 4):
        A(f"v_mov_b32 v{B512+i}, 0\nv_mov_b32 v{X5[0]+i}, 0\nv_mov_b32 v{X5[1]+i}, 0")

    def c_reads(sb):
        return [lambda tb=tb: A.lds(f"ds_read_b128 {v(CF[sb&1]+4*tb,4)}, v{CA + sb//4} offset:{(sb%4)*8192 + tb*1024}", ("cf", sb))
                for tb in range(8)]

    def x_th(sb):
        r = []
        for a_ in range(2):
            def f(a_=a_):
                if sb % 4 == 0 and a_ == 0:
                    A(f"s_add_u32 s94, s{S_R}, {sb // 4}\ns_and_b32 s94, s94, 3\ns_lshl_b32 s94, s94, 12\ns_add_u32 s94, s94, s{S_XA}")
                A.vmem(f"buffer_load_dwordx4 {v(XF + (sb % 11)*8 + 4*a_, 4)}, v{28+a_}, s[{sWS}:{sWS+3}], s94 offen offset:{(sb%4)*1024} {HLD}", ("xf", sb))
            r.append(f)
        return r

    outl = []

    def extra(xa0, xa1):
        L = A.label("L_nx")
        A(f"s_cbranch_vccnz {L}_x")
        A(f"{L}:")
        outl.append((L, xa0, xa1))
    A("s_barrier")
    A.stamp(5)
    XD = opt.get("xd", 4)
    for sb in range(XD):
        for f in x_th(sb):
            f()
    for f in c_reads(0):
        f()
    xnext = XD
    for sb in range(16):
        fl = list(enumerate(c_reads(sb + 1))) if sb + 1 < 16 else []
        nx = [k for k in (xnext, xnext + 1) if k <= min(15, sb + opt.get("xla", 6))]
        if len(nx) == 2 and nx[1] % 4 == 0:
            nx = nx[:1]
        if nx and nx[0] % 4 == 0 and opt.get("xq", 1):
            A("s_barrier")
        xnext += len(nx)
        k0 = 0
        for k in nx:
            for f in x_th(k):
                fl.append((8 + 2 * k0, f)); k0 += 1
        if sb == 13:
            fl.append((13, lambda: A.vmem(f"buffer_load_ushort v{X5[0]}, v27, s[{sWS}:{sWS+3}], 0 offen {HLD}", "x5")))
            fl.append((15, lambda: A.vmem(f"buffer_load_ushort v{X5[1]}, v27, s[{sWS}:{sWS+3}], 0 offen offset:32 {HLD}", "x5")))
        A.wait(vm=("xf", sb), lg=("cf", sb))
        z = "0" if sb == 0 else None
        xa = XF + (sb % 11) * 8
        A.weave([lambda a_=a_, tb=tb: A.mfma(SACC + (a_ * 8 + tb) * 4, xa + 4 * a_, CF[sb & 1] + 4 * tb, z)
                 for a_ in range(2) for tb in range(8)], fl)
        extra(xa, xa + 4)
    A.wait(vm="x5")
    extra(X5[0], X5[1])
    A(f"""
    s_lshl_b32 s3, s{S_M}, 3
    s_add_u32 s3, s3, s{S_P}
    s_lshl_b32 s3, s3, 5
    s_lshl_b32 s27, s100, 3
    s_lshl_b32 s26, s{S_N}, 2
    s_add_u32 s27, s27, s26
    s_add_u32 s27, s27, s{S_W}
    s_add_u32 s3, s3, s27
    s_lshl_b32 s3, s3, 10
    s_add_u32 s3, s3, {WS_VV}
    s_lshl_b32 s27, s27, 10
    s_add_u32 s{S_XA}, s27, {WS_VV + 64*16384}
    """)
    D0 = CF[0]

    def vout(tb):
        d = D0 + 4 * tb
        for a_ in range(2):
            s0 = SACC + (a_ * 8 + tb) * 4
            A(f"v_cvt_pk_bf16_f32 v{d+2*a_}, v{s0}, v{s0+1}\nv_cvt_pk_bf16_f32 v{d+2*a_+1}, v{s0+2}, v{s0+3}")
        for i in range(4):
            A(f"v_xor_b32 v{d+i}, s101, v{d+i}")
        A(f"s_add_u32 s27, s3, {((tb >> 1) * 4 + (tb & 1)) * 16384}")
        A.vmem(f"buffer_store_dwordx4 {v(d,4)}, v28, s[{sWS}:{sWS+3}], s27 offen sc1")
    for tb in range(8):
        for a_ in range(2):
            A.mfma(SACC + (a_ * 8 + tb) * 4, X5[a_], B512)
        if tb == 1:
            A("s_nop 5")
        if tb >= 1:
            vout(tb - 1)
    A.stamp(6)
    vout(7)
    A("s_cbranch_vccz L_nospecial")
    A("s_mov_b32 s26, 0x00010001\ns_mov_b32 s27, 0x00010001")
    for i in range(4):
        A(f"v_cvt_pk_bf16_f32 v{XF+i}, v{SEX+2*i}, v{SEX+2*i+1}")
    for i in range(4):
        A(f"v_cndmask_b32 v{XF+i}, v{D0+i}, v{XF+i}, s[26:27]")
    A(f"buffer_store_dwordx4 {v(XF,4)}, v28, s[{sWS}:{sWS+3}], s{S_XA} offen sc1")
    A("L_nospecial:")
    A.wait(vm=0)
    A("s_barrier")
    A.stamp(7)
    A.dump_stamps(8)
    A("s_endpgm")
    for L, xa0, xa1 in outl:
        A(f"{L}_x:")
        A.mfma(SEX, xa0, KALT)
        A.mfma(SEX + 4, xa1, KALT)
        A(f"s_branch {L}")

    A.reset()
    A("L_dft_helper:")
    A.vm, A.vm_done = dstate
    S_DT = 94
    A.wait(vm="xst")
    A(f"""
    v_readfirstlane_b32 s{S_DT}, v191
    v_lshlrev_b32 v4, 7, v1
    v_lshlrev_b32 v6, 2, v1
    s_lshl_b32 s3, s{S_Q}, 2
    s_add_u32 s3, s3, {WS_XFLAG}
    s_mul_i32 s{S_DT}, s{S_DT}, {TAGMUL}
    s_add_u32 s{S_DT}, s{S_DT}, {TAGADD}
    v_mov_b32 v5, s{S_DT}
    s_barrier
    s_cmp_eq_u32 s{S_W}, 4
    s_cbranch_scc0 L_nox
    s_setprio 3
    s_mov_b64 exec, 0xff
    buffer_store_dword v5, v4, s[{sWS}:{sWS+3}], s3 offen sc1
    s_mov_b64 exec, -1
    L_nox:
    """)
    A.stamp(4)
    if opt.get("t2p"):
        wtouch(18)
    cg[0] = cg_left
    cgen(16)
    A(f"""
    s_waitcnt lgkmcnt(0)
    s_cmp_eq_u32 s{S_W}, 4
    s_cbranch_scc0 L_end
    s_lshl_b32 s3, s{S_XCD}, 7
    s_add_u32 s3, s3, {WS_XFLAG}
    """)
    if not opt.get("xq", 1):
        A.poll(6, sWS, "s3", "eq", 32, S_DT, sleep=opt.get("xps", 1))
        A("s_barrier")
    for k in range(4 if opt.get("xq", 1) else 0):
        A(f"s_add_u32 s26, s{S_M}, {k + 1}\ns_and_b32 s26, s26, 3\ns_lshl_b32 s26, s26, 5\ns_add_u32 s26, s26, s3")
        A.poll(6, sWS, "s26", "eq", 8, S_DT, sleep=opt.get("xps", 1))
        if k == 0:
            A.stamp(5)
        A("s_barrier")
    A("v_mov_b32 v8, 0")
    A(f"""
    s_lshl_b32 s3, s{S_VAR}, 2
    s_add_u32 s3, s3, s{S_M}
    s_lshl_b32 s3, s3, 5
    s_add_u32 s3, s3, s{S_N}
    s_lshl_b32 s3, s3, 2
    s_add_u32 s3, s3, {WS_VFLAG}
    s_barrier
    s_mov_b64 exec, 1
    buffer_store_dword v5, v8, s[{sWS}:{sWS+3}], s3 offen sc1
    """)
    A(f"s_cmp_lg_u32 s{S_Q}, 0\ns_cbranch_scc1 L_noepw")
    A(f"s_mov_b64 exec, -1\nv_and_b32 v9, 7, v1\nv_min_u32 v9, 6, v9\nv_lshlrev_b32 v9, 2, v9\nv_lshrrev_b32 v10, 3, v1\nv_lshl_add_u32 v9, v10, 7, v9")
    A(f"s_mov_b32 s27, 0x40000\ns_mov_b32 s3, {WS_HFLAG + 16}")
    A("L_epl:")
    for i in range(4):
        A(f"buffer_load_dword v{12+i}, v9, s[{sWS}:{sWS+3}], s3 offen offset:{i*1024} sc1")
    A("s_waitcnt vmcnt(0)")
    for i in range(4):
        A(f"v_xor_b32 v{12+i}, s{S_DT}, v{12+i}")
    A("v_or3_b32 v12, v12, v13, v14\nv_or_b32 v12, v12, v15\nv_cmp_eq_u32 vcc, 0, v12\ns_nop 1\ns_cmp_eq_u64 vcc, exec\ns_cbranch_scc1 L_epok")
    A("s_sleep 2\ns_sub_u32 s27, s27, 1\ns_cbranch_scc0 L_epl")
    A("L_epok:")
    A(f"s_mov_b32 s3, {WS_EPOCH}\ns_mov_b64 exec, 1\nbuffer_store_dword v5, v8, s[{sWS}:{sWS+3}], s3 offen sc1")
    A("L_noepw:")
    A.stamp(6)
    A.dump_stamps(8)
    A("L_end:")
    A("s_endpgm")
    A("L_code_end:")

    hdr = open("parallel_sum__spectral_fnet__dense_activation_relu__prompt.s.ref").read().split("; Override")[0]
    return (hdr + "; @launch grid=(256,1,1) block=(512,1,1) lds=163840\n"
            + ".amdgcn_target \"amdgcn-amd-amdhsa--gfx950\"\n" + kernel_header(NAME) + A.text() + kernel_desc(NAME, 256, 256))


if __name__ == "__main__":
    out = sys.argv[1]
    stamps = len(sys.argv) > 2 and sys.argv[2] == "stamps"
    opt = {}
    for kv in sys.argv[3:]:
        k, x = kv.split("=")
        opt[k] = int(x) if x.lstrip("-").isdigit() else x
    open(out, "w").write(gen(stamps, opt))
```

```python
import sys
from kbase import *

TAGMUL, TAGADD = 0x9E3779B1, 0x7F4A7C15


def wblk(i):
    if i < 24:
        return 65536 + 4096 * i
    if i < 28:
        return 32768 + 4096 * (i - 24)
    return 65536 + 4096 * (i - 28)


def mod7(A, s, tmp, maxv):
    m = 7
    while m * 2 < maxv:
        m *= 2
    while m >= 7:
        A(f"s_cmp_ge_u32 s{s}, {m}\ns_cselect_b32 s{tmp}, {m}, 0\ns_sub_u32 s{s}, s{s}, s{tmp}")
        m //= 2


CT = [1]


def code_touch(A, vb=118):
    if CT[0] in (0, 3):
        return
    L = A.label("L_pc")
    if CT[0] == 2:
        A(f"""
        s_getpc_b64 s[48:49]
        {L}:
        s_sub_u32 s48, s48, {L}-{NAME}
        s_subb_u32 s49, s49, 0
        s_mov_b32 s50, L_code_end-{NAME}
        s_mov_b32 s51, 0x20000
        v_lshlrev_b32 v{vb}, 7, v1
        """)
        for i in range(5):
            A(f"s_movk_i32 s3, {i*8192 if i < 4 else 0}\nbuffer_load_dword v{vb+1}, v{vb}, s[48:51], s3 offen" + (" offset:0" if i < 4 else ""))
            if i == 3:
                A(f"v_add_u32 v{vb}, 32768, v{vb}")
        return
    A(f"""
    s_getpc_b64 s[48:49]
    {L}:
    s_sub_u32 s48, s48, {L}-{NAME}
    s_subb_u32 s49, s49, 0
    s_mov_b32 s50, L_code_end-{NAME}
    s_mov_b32 s51, 0x20000
    v_lshlrev_b32 v{vb}, 12, v1
    s_lshl_b32 s3, s{S_J}, 7
    v_add_u32 v{vb}, s3, v{vb}
    s_mov_b64 exec, 0x3ff
    buffer_load_dword v{vb+1}, v{vb}, s[48:51], 0 offen
    s_mov_b64 exec, -1
    """)


def start_touch(A, opt, what, vb=10):
    fl = opt.get("tfl", "")
    if what == "x":
        A(f"""
        s_lshl_b32 s3, s{S_XCD}, 2
        s_lshr_b32 s27, s{S_J}, 3
        s_add_u32 s3, s3, s27
        s_lshl_b32 s3, s3, 4
        s_and_b32 s27, s{S_J}, 1
        s_lshl_b32 s27, s27, 3
        s_add_u32 s3, s3, s27
        v_lshrrev_b32 v{vb+1}, 3, v1
        v_add_u32 v{vb+1}, s3, v{vb+1}
        s_bfe_u32 s3, s{S_J}, 0x20001
        s_add_u32 s27, s3, 1
        s_and_b32 s27, s27, 2
        s_sub_u32 s27, 1, s27
        v_mul_i32_i24 v{vb+1}, s27, v{vb+1}
        s_cmp_eq_u32 s3, 0
        s_cselect_b32 s27, 0, 1024
        s_cmp_eq_u32 s3, 1
        s_cselect_b32 s27, 2048, s27
        v_add_u32 v{vb+1}, s27, v{vb+1}
        v_mul_u32_u24 v{vb+1}, 896, v{vb+1}
        v_and_b32 v{vb+2}, 7, v1
        v_min_u32 v{vb+2}, 6, v{vb+2}
        v_lshl_add_u32 v{vb+1}, v{vb+2}, 7, v{vb+1}
        buffer_load_dword v{vb+3}, v{vb+1}, s[{sX}:{sX+3}], 0 offen {fl}
        """)
    else:
        A(f"""
        s_cmp_ge_u32 s{S_XCD}, 4
        s_cselect_b32 s{sOUT}, s8, s6
        s_cselect_b32 s{sOUT+1}, s9, s7
        s_and_b32 s{sOUT+1}, s{sOUT+1}, 0xffff
        s_mov_b32 s{sOUT+2}, {2048*4096}
        s_mov_b32 s{sOUT+3}, 0x20000
        s_and_b32 s3, s{S_XCD}, 1
        s_lshl_b32 s3, s3, 5
        s_add_u32 s3, s3, s{S_J}
        s_lshl_b32 s3, s3, 4
        s_bfe_u32 s27, s{S_XCD}, 0x10001
        s_add_u32 s3, s3, s27
        s_lshl_b32 s3, s3, 12
        v_lshrrev_b32 v{vb}, 3, v1
        v_lshlrev_b32 v{vb}, 13, v{vb}
        v_and_b32 v{vb+1}, 7, v1
        v_lshl_add_u32 v{vb}, v{vb+1}, 7, v{vb}
        buffer_load_dword v{vb+2}, v{vb}, s[{sOUT}:{sOUT+3}], s3 offen {fl}
        """)


def gen(stamps=False, opt=None):
    opt = opt or {}
    HST = opt.get("hst", "sc1")
    HLD = opt.get("hld", "")
    TOUCH_AT = opt.get("touch_at", 2)
    HD = opt.get("hd", 12)
    VAT = opt.get("vat", 22)
    A = K(stamps)
    CT[0] = opt.get('ct', 3)
    P2 = opt.get('p2', 0)
    P1 = opt.get('p1', 0)
    st1 = lambda i: None if (P2 or P1) else A.stamp(i)
    _stamp = A.stamp
    if opt.get('p3'):
        st1 = lambda i: None
        A.stamp = lambda i: _stamp(i) if i in (0, 1, 8, 9, 10) else None
    if opt.get('light'):
        P1 = 0
        A.stamp = lambda i: _stamp(i) if i == 0 else None
    if P1:
        A.stamp = lambda i: _stamp(i) if i == 0 else None
    st2 = lambda i: A.stamp(i) if P2 else None
    A.stamp(0)
    if opt.get("dbg"):
        A("s_memrealtime s[92:93]\ns_memtime s[90:91]")
    A("""
    s_load_dwordx16 s[4:19], s[0:1], 0
    s_load_dwordx4 s[20:23], s[0:1], 64
    s_load_dwordx2 s[24:25], s[0:1], 80
    s_cmp_ge_u32 s2, 256
    s_cbranch_scc1 L_end
    """)
    A(f"s_lshr_b32 s{S_J}, s2, 3")
    if CT[0] == 3:
        A(f"""
        s_getpc_b64 s[48:49]
        L_pc0:
        v_cmp_gt_u32 vcc, 10, v0
        s_sub_u32 s48, s48, L_pc0-{NAME}
        s_subb_u32 s49, s49, 0
        s_mov_b32 s50, L_code_end-{NAME}
        s_mov_b32 s51, 0x20000
        s_lshl_b32 s3, s{S_J}, 7
        v_lshlrev_b32 v254, 12, v0
        s_and_saveexec_b64 s[26:27], vcc
        s_cbranch_execz L_ct0
        buffer_load_dword v255, v254, s[48:51], s3 offen
        L_ct0:
        s_mov_b64 exec, s[26:27]
        """)
    A("v_lshrrev_b32 v2, 6, v0\nv_and_b32 v1, 63, v0")
    A(f"s_and_b32 s{S_XCD}, s2, 7")
    A(f"v_readfirstlane_b32 s{S_W}, v2")
    A(f"s_cmp_lt_u32 s{S_J}, 28\ns_cbranch_scc1 L_ffn")
    A.c("@@HEAD")
    A("L_ffn:")

    S_RB, S_FT, S_KX, S_KW, S_MX, S_MW, S_T, S_CT = 63, 96, 97, 98, 99, 100, 101, 26
    S_FTL, S_JX, S_TAG, S_PF = 14, 86, 58, 59
    S_M2, S_K2, S_G2, S_HF, S_PT = 56, 57, 95, 94, 58
    A(f"""
    s_mul_i32 s27, s{S_J}, 37
    s_lshr_b32 s27, s27, 8
    s_mul_i32 s3, s27, 7
    s_sub_u32 s{S_CT}, s{S_J}, s3
    s_and_b32 s{S_RB}, s{S_XCD}, 6
    s_lshl_b32 s{S_RB}, s{S_RB}, 1
    s_add_u32 s{S_RB}, s{S_RB}, s27
    s_lshl_b32 s27, s27, 1
    s_add_u32 s{S_G2}, s{S_CT}, s27
    """)
    mod7(A, S_G2, 3, 14)
    VD, XA, WA, ONES = 2, 8, 16, 20
    VW2, VEP = 6, 18
    FX = [24, 48]; FW = [40, 64]
    ACC, RS, CS = 72, 104, 108
    S_MD = 52
    sL = sW1
    A(f"""
    s_and_b32 s{S_JX}, s{S_XCD}, 1
    s_mul_i32 s3, s{S_JX}, 7
    s_add_u32 s{S_FT}, s{S_G2}, s3
    v_lshrrev_b32 v31, 4, v1
    v_mov_b32 v35, 896
    s_movk_i32 s3, 0xe2
    s_bitcmp1_b32 s3, s{S_W}
    s_cbranch_scc1 L_ldw
    s_max_u32 s{S_KX}, s{S_W}, 1
    s_add_u32 s{S_KX}, s{S_KX}, s{S_CT}
    s_add_u32 s{S_KX}, s{S_KX}, 3
    s_and_b32 s{S_KX}, s{S_KX}, 3
    s_lshl_b32 s3, s{S_RB}, 6
    s_lshr_b32 s27, s{S_KX}, 1
    s_add_u32 s3, s3, s27
    v_lshrrev_b32 v30, 3, v1
    v_lshl_add_u32 v30, v30, 1, s3
    v_and_b32 v32, 7, v1
    v_xor_b32 v32, v32, v31
    v_lshlrev_b32 v32, 4, v32
    s_lshl_b32 s{S_MD}, s{S_KX}, 12
    s_bitcmp1_b32 s{S_KX}, 0
    s_cselect_b32 s3, -1, 1
    s_cselect_b32 s27, 2048, 0
    v_mul_i32_i24 v30, s3, v30
    v_add_u32 v30, s27, v30
    s_mul_i32 s3, s3, {16*896}
    v_mad_u32_u24 v33, v30, v35, v32
    v_lshrrev_b32 v34, 11, v30
    v_mul_u32_u24 v34, {1024*896}, v34
    v_sub_u32 v{VD}, v33, v34
    v_xor_b32 v32, 64, v32
    v_mad_u32_u24 v32, v30, v35, v32
    v_add_u32 v{VD+1}, s3, v32
    s_lshl_b32 s3, s3, 1
    v_add_u32 v{VD+2}, s3, v33
    v_add_u32 v{VD+3}, s3, v{VD+1}
    s_add_u32 s{S_MD+1}, s{S_MD}, 1024
    s_add_u32 s{S_MD+2}, s{S_MD}, 2048
    s_add_u32 s{S_MD+3}, s{S_MD}, 3072
    """)
    A(f"s_movk_i32 s{S_MX}, 128\ns_waitcnt lgkmcnt(0)")
    A.srd(sL, 4, 2048 * 896)
    A("s_branch L_ldok")
    A("L_ldw:")
    A(f"""
    s_max_u32 s{S_KX}, s{S_W}, 4
    s_add_u32 s{S_KX}, s{S_KX}, s{S_RB}
    s_lshl_b32 s{S_KX}, s{S_KX}, 2
    v_lshlrev_b32 v33, 1, v31
    v_and_b32 v34, 15, v1
    v_xor_b32 v33, v33, v34
    v_mul_u32_u24 v34, 3584, v31
    v_lshl_add_u32 v32, v33, 4, v34
    v_xor_b32 v33, 128, v32
    s_and_b32 s{S_MD}, s{S_KX}, 15
    s_mul_i32 s27, s{S_MD}, {4*3584}
    s_lshl_b32 s3, s{S_FT}, 8
    s_add_u32 s27, s27, s3
    v_add_u32 v{VD}, s27, v32
    v_add_u32 v{VD+2}, s27, v33
    v_add_u32 v{VD+1}, {4*3584}, v{VD}
    v_add_u32 v{VD+2}, {8*3584}, v{VD+2}
    v_add_u32 v{VD+3}, {4*3584}, v{VD+2}
    s_lshl_b32 s{S_MD}, s{S_MD}, 10
    s_add_u32 s{S_MD}, s{S_MD}, 16384
    s_add_u32 s{S_MD+1}, s{S_MD}, 1024
    s_add_u32 s{S_MD+2}, s{S_MD}, 2048
    s_add_u32 s{S_MD+3}, s{S_MD}, 3072
    s_mov_b32 s{S_MX}, {64*3584}
    s_waitcnt lgkmcnt(0)
    """)
    A.srd(sL, 16, 448 * 3584)
    A("L_ldok:")
    A.srd(sX, 4, 2048 * 896)

    def p1_dmas(st):
        slot = st % 5
        return [A.dma2(VD + i, sL, f"s{S_KX}", f"s_add_u32 m0, s{S_MD+i}, {slot*32768}", ("p1", st),
                       pre=None if i else f"s_mul_i32 s{S_KX}, s{S_MX}, {st}", flags=p1fl[0]) for i in range(4)]
    p1fl = [""]

    def burst(dmas):
        for a_, b_ in dmas:
            a_(); A("s_nop 0"); b_()

    def p1_setup():
        A.srd(sWS, 24, WS_SIZE + (0x40000 if stamps else 0))
        A(f"""
        s_mov_b32 s{S_FTL}, s{S_G2}
        s_lshl_b32 s{S_HF}, s{S_XCD}, 2
        s_and_b32 s3, s{S_RB}, 3
        s_add_u32 s{S_HF}, s{S_HF}, s3
        s_lshl_b32 s{S_HF}, s{S_HF}, 7
        s_add_u32 s{S_HF}, s{S_HF}, {WS_HFLAG}
        v_mov_b32 v35, {WS_EPOCH}
        """)
        A.vmem(f"buffer_load_dword v{VEP}, v35, s[{sWS}:{sWS+3}], 0 offen sc1", "ep")
        if opt.get("lf", 1):
            A("v_mov_b32 v35, 4096")
            A.vmem(f"buffer_load_dword v{VEP+1}, v35, s[{sWS}:{sWS+3}], s{S_HF} offen sc1", "ep")
        A(f"""
        v_and_b32 v32, 15, v1
        v_lshrrev_b32 v33, 1, v32
        v_xor_b32 v33, v33, v31
        v_lshlrev_b32 v33, 4, v33
        v_lshl_add_u32 v33, v32, 7, v33
        s_lshl_b32 s3, s{S_W}, 11
        v_add_u32 v{XA}, s3, v33
        """)
        for rb in range(1, 4):
            A(f"v_xor_b32 v{XA+rb}, {rb*2048}, v{XA}")
        for rb in range(4):
            A(f"v_xor_b32 v{XA+4+rb}, 64, v{XA+rb}")
        A(f"""
        v_bfe_u32 v30, v1, 2, 2
        v_lshl_add_u32 v32, v31, 3, v30
        v_lshlrev_b32 v32, 8, v32
        v_and_b32 v33, 3, v1
        v_lshl_add_u32 v32, v33, 3, v32
        v_add_u32 v32, 16384, v32
        v_and_b32 v33, 1, v31
        v_lshl_or_b32 v33, v33, 2, v30
        s_and_b32 s3, s{S_W}, 3
        s_lshl_b32 s3, s3, 1
        s_lshr_b32 s27, s{S_W}, 2
        s_or_b32 s3, s3, s27
        v_xor_b32 v33, s3, v33
        v_lshl_add_u32 v{WA}, v33, 5, v32
        v_xor_b32 v{WA+1}, 32, v{WA}
        """)
        for i in range(4):
            A(f"v_mov_b32 v{ONES+i}, 0x3f803f80")
        A.srd(sW2, 18, 1792 * 896)
        A(f"""
        s_lshl_b32 s{S_T}, s{S_RB}, 1
        s_add_u32 s{S_T}, s{S_T}, s{S_JX}
        v_lshrrev_b32 v30, 3, v1
        v_mul_u32_u24 v32, 896, v30
        v_and_b32 v30, 6, v30
        v_and_b32 v33, 7, v1
        v_xor_b32 v30, v30, v33
        v_lshl_add_u32 v32, v30, 4, v32
        s_lshl_b32 s3, s{S_CT}, 7
        s_mul_i32 s27, s{S_W}, {8*896}
        s_add_u32 s3, s3, s27
        v_add_u32 v{VW2}, s3, v32
        s_lshl_b32 s{S_M2}, s{S_W}, 10
        s_and_b32 s3, s{S_W}, 2
        s_add_u32 s3, s3, s{S_JX}
        s_lshl_b32 s3, s3, 2
        s_lshr_b32 s27, s{S_T}, 3
        s_add_u32 s3, s3, s27
        s_lshl_b32 s3, s3, 7
        s_add_u32 s59, s3, {WS_VFLAG}
        v_mov_b32 v35, 0
        """)
        A.vmem(f"buffer_load_dword v{VEP+1}, v35, s[{sWS}:{sWS+3}], s59 offen sc1", "ep")

    def wpair_addr(p):
        if p < 12:
            return 65536 + 8192 * p
        if p < 14:
            return 16384 + 8192 * (p - 12)
        return [32768, 40960, 0, 65536, 49152, 57344, 8192, 73728][p - 14]

    def w_dma(p):
        if p < 14:
            srd = sW2
            if p % 2 == 0:
                pre = (f"s_mul_i32 s{S_K2}, s{S_JX}, 7\ns_add_u32 s{S_K2}, s{S_K2}, s{S_G2}\ns_mul_i32 s{S_K2}, s{S_K2}, {128*896}\n"
                       f"s_add_u32 s{S_G2}, s{S_G2}, 1\ns_cmp_eq_u32 s{S_G2}, 7\ns_cselect_b32 s{S_G2}, 0, s{S_G2}")
            else:
                pre = f"s_add_u32 s{S_K2}, s{S_K2}, {64*896}"
        else:
            srd = sWD if p < 18 else sW1
            pre = f"s_mov_b32 s{S_K2}, {((p - 14) % 4)*64*896}"
        return A.dma2(VW2, srd, f"s{S_K2}", f"s_add_u32 m0, s{S_M2}, {wpair_addr(p)}", ("w", p), pre=pre)

    def place(dmas, g0, g1):
        r = []
        for k, (a_, b_) in enumerate(dmas):
            g = g0 + 1 + k * (g1 - g0) // len(dmas)
            r += [(g - 1, a_), (g, b_)]
        return r

    def p1_reads(st, q, buf):
        so = ((st % 5) & 1) * 32768
        r = []
        for rb in range(4):
            r.append(lambda rb=rb: A.lds(f"ds_read_b128 {v(FX[buf]+4*rb,4)}, v{XA + 4*q + rb} offset:{so}", ("f", st, q)))
        for cb in range(2):
            for h in range(2):
                r.append(lambda cb=cb, h=h: A.lds(f"ds_read_b64_tr_b16 {v(FW[buf]+4*cb+2*h,2)}, v{WA+cb} offset:{so + q*8192 + h*1024}", ("f", st, q)))
        return r

    def p1_mfma(buf, first):
        z = "0" if first else None
        r = [lambda: A.mfma(RS, ONES, FX[buf], z), lambda: A.mfma(CS, FW[buf], ONES, z)]
        for cb in range(2):
            for rb in range(4):
                r.append(lambda cb=cb, rb=rb: A.mfma(ACC + (cb * 4 + rb) * 4, FW[buf] + 4 * cb, FX[buf] + 4 * rb, z))
        return r

    def p1_addr_step(st):
        d = {2: 65536, 4: 65536, 5: -131072}.get(st)
        if not d:
            return []
        return [(8 + k // 5, lambda r=r: A(f"v_add_u32 v{r}, {d & 0xffffffff}, v{r}"))
                for k, r in enumerate(list(range(XA, XA + 8)) + [WA, WA + 1])]

    def lines(txt, g0, g1):
        ex = [x for x in txt.strip().split("\n") if x.strip()]
        return [(g0 + k * (g1 - g0) // len(ex), lambda x=x: A(x)) for k, x in enumerate(ex)]

    VID = 120
    WA2, WB, WC, VH, VO, VL, VZ = 8, 12, 112, 2, 4, 16, 7
    FW2 = [24, 40]
    AC2, HF, VF = 56, 128, 192
    p2_setup = f"""
    v_lshlrev_b32 v{VL}, 4, v1
    v_mov_b32 v{VZ}, 0
    v_lshrrev_b32 v124, 4, v1
    v_bfe_u32 v125, v1, 2, 2
    v_lshl_add_u32 v126, v124, 2, v125
    v_lshrrev_b32 v127, 1, v126
    v_and_b32 v127, 3, v127
    v_lshlrev_b32 v126, 7, v126
    v_and_b32 v125, 3, v1
    v_lshl_add_u32 v126, v125, 3, v126
    """ + "".join(f"""
    v_xor_b32 v125, {eb}, v127
    v_lshl_add_u32 v{WA2+eb}, v125, 5, v126
    v_add_u32 v{WB+eb}, 0x10000, v{WA2+eb}
    v_add_u32 v{WC+eb}, 0x20000, v{WA2+eb}""" for eb in range(4)) + f"""
    s_lshl_b32 s{S_K2+32}, s{S_T}, 2
    s_and_b32 s{S_K2+33}, s{S_W}, 3
    s_add_u32 s{S_K2+32}, s{S_K2+32}, s{S_K2+33}
    s_mul_i32 s{S_K2+34}, s{S_K2+32}, {H_STRIDE}
    v_add_u32 v{VH}, s{S_K2+34}, v{VL}
    s_xor_b32 s{S_K2+34}, s{S_K2+32}, 4
    s_mul_i32 s{S_K2+34}, s{S_K2+34}, {H_STRIDE}
    v_add_u32 v{VH+1}, s{S_K2+34}, v{VL}
    s_and_b32 s{S_K2+32}, s{S_K2+32}, 7
    s_lshl_b32 s{S_K2+32}, s{S_K2+32}, 12
    s_add_u32 s{S_K2+32}, s{S_K2+32}, 32768
    v_add_u32 v238, s{S_K2+32}, v{VL}
    v_xor_b32 v239, 16384, v238
    s_lshl_b32 s{S_K2+32}, s{S_RB}, 6
    s_add_u32 s{S_K2+32}, s{S_K2+32}, s{S_JX}
    s_and_b32 s{S_K2+33}, s{S_W}, 1
    s_lshl_b32 s{S_K2+33}, s{S_K2+33}, 5
    s_add_u32 s{S_K2+33}, s{S_K2+33}, s{S_K2+32}
    v_lshrrev_b32 v124, 3, v1
    v_lshl_add_u32 v125, v124, 1, s{S_K2+33}
    s_bfe_u32 s{S_K2+32}, s{S_W}, 0x10001
    s_lshl_b32 s{S_K2+33}, s{S_K2+32}, 11
    s_lshl_b32 s{S_K2+32}, s{S_K2+32}, 1
    s_sub_u32 s{S_K2+32}, 1, s{S_K2+32}
    v_mul_i32_i24 v125, s{S_K2+32}, v125
    v_add_u32 v125, s{S_K2+33}, v125
    s_mul_i32 s{S_K2+32}, s{S_K2+32}, {16*896}
    s_lshl_b32 s{S_K2+33}, s{S_CT}, 7
    v_mul_u32_u24 v126, 896, v125
    v_add_u32 v126, s{S_K2+32}, v126
    v_lshrrev_b32 v127, 11, v125
    v_lshlrev_b32 v127, 10, v127
    v_sub_u32 v125, v125, v127
    v_mul_u32_u24 v125, 896, v125
    v_and_b32 v127, 7, v1
    v_xor_b32 v127, v127, v124
    v_lshlrev_b32 v127, 4, v127
    v_add_u32 v127, s{S_K2+33}, v127
    v_add_u32 v{VO}, v125, v127
    v_add_u32 v{VO+1}, v126, v127
    """
    for k in range(3):
        p2_setup = p2_setup.replace(f"s{S_K2+32+k}", f"s{48+k}")
    WPRE = opt.get("wpre", 12)

    def phase1(cls):
        K0 = opt.get("k0", 2) if cls == 0 else opt.get("k1", 2)
        p1fl[0] = opt.get("shfl", "") if cls == 0 else ""
        if cls == 0:
            if opt.get("xt", 0) == 2:
                A(f"s_cmp_lg_u32 s{S_W}, 1\ns_cbranch_scc1 L_notouch0")
                start_touch(A, opt, "x", 124)
                A("L_notouch0:")
            for s_ in range(K0):
                burst(p1_dmas(s_))
            A(f"s_cmp_lg_u32 s{S_W}, 0\ns_cbranch_scc1 L_notouch")
            if opt.get("xt", 0) == 1:
                start_touch(A, opt, "x", 124)
            code_touch(A)
            A("L_notouch:")
            p1_setup()
        else:
            p1_setup()
            for s_ in range(K0):
                burst(p1_dmas(s_))
        A.wait(vm=("p1", 0))
        A("s_barrier")
        st1(2)
        if P1: _stamp(1)
        for f in p1_reads(0, 0, 0):
            f()
        queue = []
        for s_ in range(K0, 7):
            for i in range(4):
                first = max(0, 2 * (s_ - 5) + 1)
                if cls == 1:
                    first = max(first, 2 * s_ - opt.get("la1", 5) + i // 2)
                queue.append((first, lambda s_=s_, i=i: p1_dmas(s_)[i]))
        wn = WPRE
        for p in range(WPRE):
            queue.append((max(2 * (2 + p // 4) + 1 if p < 12 else 13, min(13, opt.get("w0", 8) + p // 2)), lambda p=p: w_dma(p)))
        rate = (opt.get("r0", 4), 4)
        for st in range(7):
            for q in range(2):
                fl = []
                if q == 0:
                    A.wait(lg=("f", st, 0))
                    fl += list(enumerate(p1_reads(st, 1, 1))) + p1_addr_step(st + 1)
                else:
                    if st < 6:
                        if P1 == 2: _stamp(st + 2)
                        A.wait(vm=("p1", st + 1), lg=0)
                        if P1 == 3: _stamp(st + 2)
                        A("s_barrier")
                        if P1 == 1: _stamp(st + 2)
                        fl += list(enumerate(p1_reads(st + 1, 0, 0)))
                    else:
                        A.wait(lg=0)
                dm = []
                blk = 2 * st + q
                while queue and len(dm) < rate[cls] and queue[0][0] <= blk:
                    dm.append(queue.pop(0)[1]())
                if dm:
                    fl += place(dm, 1, 9)
                if (st, q) == (0, 1):
                    fl += lines(f"""
                    v_readfirstlane_b32 s{S_TAG}, v{VEP}
                    s_lshl_b32 s27, s{S_CT}, 2
                    v_mov_b32 v{VID+1}, s27
                    s_mul_i32 s{S_TAG}, s{S_TAG}, {TAGMUL}
                    s_add_u32 s{S_TAG}, s{S_TAG}, {TAGADD}
                    v_min_u32 v{VID+3}, 6, v1
                    v_lshlrev_b32 v{VID+3}, 2, v{VID+3}
                    """, 0, 8)
                    A.wait(vm="ep")
                if cls == 0 and opt.get("dum", 0) and 2 * st + q == opt.get("dumb", 0):
                    def dummy():
                        for s_ in range(5, 7):
                            A(f"s_mul_i32 s3, s{S_MX}, {s_}")
                            for i in range(4):
                                A.vmem(f"buffer_load_dwordx4 v[252:255], v{VD+i}, s[{sL}:{sL+3}], s3 offen")
                    fl.append((9, dummy))
                if cls == 0 and 2 * st + q == opt.get("wtb", 5):
                    def wt():
                        A(f"s_cmp_lg_u32 s{S_W}, 1\ns_cbranch_scc1 L_notouch3")
                        A(f"""
                        v_lshlrev_b32 v124, 7, v1
                        s_mul_i32 s3, s2, {56*128}
                        s_mov_b32 exec_hi, 0xffffff
                        buffer_load_dword v125, v124, s[{sW2}:{sW2+3}], s3 offen
                        s_mov_b64 exec, -1
                        """)
                        A("L_notouch3:")
                    fl.append((9, wt))
                if (st, q) == (6, 1):
                    fl += lines(f"""
                    v_and_b32 v30, 15, v1
                    v_lshlrev_b32 v30, 2, v30
                    s_lshl_b32 s3, s{S_W}, 6
                    v_add_u32 v30, s3, v30
                    v_lshrrev_b32 v31, 4, v1
                    v_lshlrev_b32 v31, 4, v31
                    s_and_b32 s27, s{S_W}, 3
                    s_lshl_b32 s27, s27, 7
                    s_lshr_b32 s3, s{S_W}, 2
                    s_lshl_b32 s3, s3, 6
                    s_add_u32 s27, s27, s3
                    v_add_u32 v31, s27, v31
                    v_xor_b32 v32, 64, v30
                    v_xor_b32 v33, 128, v30
                    v_xor_b32 v34, 192, v30
                    v_xor_b32 v35, 64, v31
                    """, 0, 8)
                    fl += lines(p2_setup, 0, 9)
                    fl.append((9, lambda: A.lds(f"ds_write_b32 v30, v{RS}")))
                    fl.append((9, lambda: A.lds(f"ds_write_b128 v31, {v(CS,4)} offset:512")))
                A.weave(p1_mfma(q, st == 0 and q == 0), fl)
        assert not queue, len(queue)
        if opt.get("tre", 0):
            A.wait(vm=("w", 2 * opt.get("tre", 0) - 1))
        return wn
    A(f"s_cmp_ge_u32 s{S_W}, 2\ns_cbranch_scc1 L_p1b")
    WN = phase1(0)
    A("s_branch L_p1done")
    A("L_p1b:")
    A.reset()
    phase1(1)
    A("L_p1done:")
    A.reset()
    st1(3)
    if P1: _stamp(8)
    A.wait(lg=0)
    A("s_barrier")
    if P1: _stamp(9)
    S_HS = S_MD

    def epilogue(wr):
        A.reset()
        MB = 24; CS1 = 28
        A.lds(f"ds_read_b32 v{MB+1}, v32")
        A.lds(f"ds_read_b32 v{MB+2}, v33")
        A.lds(f"ds_read_b32 v{MB+3}, v34")
        A.lds(f"ds_read_b128 {v(CS1,4)}, v35 offset:512")
        A(f"""
        s_lshl_b32 s{S_KX}, s{S_RB}, 3
        s_mul_i32 s{S_KX}, s{S_KX}, 56
        s_lshl_b32 s{S_KW}, s{S_FT}, 2
        s_add_u32 s{S_KX}, s{S_KX}, s{S_KW}
        s_and_b32 s27, s{S_W}, 3
        s_add_u32 s{S_KX}, s{S_KX}, s27
        s_lshl_b32 s{S_KX}, s{S_KX}, 10
        s_lshl_b32 s27, s27, 10
        s_add_u32 s27, s27, 32768
        v_add_u32 v34, s27, v{VL}
        s_mov_b32 s3, {0x3b124925}
        v_mul_f32 v{MB}, s3, v{RS}
        """)
        A.wait(lg=0)
        for i in range(1, 4):
            A(f"v_mul_f32 v{MB+i}, s3, v{MB+i}")
        A(f"v_cvt_pk_bf16_f32 v32, v{MB}, v{MB+1}\nv_cvt_pk_bf16_f32 v33, v{MB+2}, v{MB+3}")
        A(f"v_lshlrev_b32 v{MB}, 16, v32\nv_and_b32 v{MB+1}, 0xffff0000, v32\nv_lshlrev_b32 v{MB+2}, 16, v33\nv_and_b32 v{MB+3}, 0xffff0000, v33")
        PK = 36
        for rb in range(4):
            sel = "op_sel:[0,1,0] op_sel_hi:[1,1,1]" if rb & 1 else "op_sel_hi:[1,0,1]"
            d = PK + 4 * rb
            for cb in range(2):
                a0 = ACC + (cb * 4 + rb) * 4
                for hh in range(2):
                    A(f"v_pk_fma_f32 {v(a0+2*hh,2)}, {v((CS, CS1)[cb]+2*hh,2)}, {v(MB+(rb&2),2)}, {v(a0+2*hh,2)} {sel} neg_lo:[1,0,0] neg_hi:[1,0,0]")
            for cb in range(2):
                a0 = ACC + (cb * 4 + rb) * 4
                for hh in range(2):
                    A(f"v_cvt_pk_bf16_f32 v{d+2*(cb^wr)+hh}, v{a0+2*hh}, v{a0+2*hh+1}")
            for i in range(4):
                A(f"v_pk_max_i16 v{d+i}, v{d+i}, 0")
            A(f"s_xor_b32 s27, s{S_W}, {rb}\ns_mul_i32 s{S_MD+rb}, s27, {H_STRIDE}\ns_add_u32 s{S_MD+rb}, s{S_MD+rb}, s{S_KX}")
            A.vmem(f"buffer_store_dwordx4 {v(PK+4*rb,4)}, v{VL}, s[{sWS}:{sWS+3}], s{S_MD+rb} offen sc1", ("hst", rb))
            A(f"s_lshl_b32 s27, s27, 12\nv_add_u32 v35, s27, v34")
            A.lds(f"ds_write_b128 v35, {v(PK+4*rb,4)}")
        st1(4)
        if P1: _stamp(10)
        A.stamp(5)

    def readback(vb):
        if opt.get("rb", 0):
            A(f"""
            v_lshrrev_b32 v{vb}, 3, v1
            v_xor_b32 v{vb}, s{S_W}, v{vb}
            v_mul_u32_u24 v{vb}, {H_STRIDE}, v{vb}
            v_and_b32 v{vb+1}, 7, v1
            v_lshl_add_u32 v{vb}, v{vb+1}, 7, v{vb}
            s_mov_b32 exec_hi, 0
            """)
            A.vmem(f"buffer_load_dword v{vb+1}, v{vb}, s[{sWS}:{sWS+3}], s{S_HB} offen")
            A("s_mov_b32 exec_hi, -1")
    S_HB = 59
    S_H, S_GH = S_KX, S_KW
    TRB = opt.get("trb", 0)
    assert TRB <= 2 * WN and TRB % 4 == 0
    NAL = opt.get("nal", 24)
    B0 = 4 + NAL

    def w_reads(key, i, both=True):
        r = []
        if i < TRB:
            a_ = wpair_addr(i >> 1) + (i & 1) * 4096
            return [lambda eb=eb: A.lds(f"ds_read_b128 {v(FW2[key&1]+4*eb,4)}, v{240+(a_>>16)} offset:{(a_ & 0xffff) + eb*1024}", ("wf", key, eb >> 1))
                    for eb in range(4)]
        for eb in range(4):
            for h in range(2):
                if i < 28:
                    a_ = wpair_addr(i >> 1) + (i & 1) * 4096
                    reg, off = (WA2, WB, WC)[a_ >> 16] + eb, (a_ & 0xffff) + h * 2048
                else:
                    u = i - 28
                    reg, off = ((WA2, u * 4096) if u < 4 else ((WB, WC)[(u - 4) >> 1], (u & 1) * 4096))
                    reg, off = reg + eb, off + h * 2048
                r.append(lambda reg=reg, off=off, eb=eb, h=h: A.lds(f"ds_read_b64_tr_b16 {v(FW2[key&1]+4*eb+2*h,2)}, v{reg} offset:{off}", ("wf", key, eb >> 1)))
        return r

    YS, ZS = 32768, 0
    XS = TS = 4096

    A(f"s_cmp_ge_u32 s{S_W}, 4\ns_cbranch_scc1 L_aux")
    epilogue(0)
    seq = [(i, (0, 1)) for i in range(4)] + [(i, (1,)) for i in range(4, B0)] + [(i, (0, 1)) for i in range(B0, 28)] + [(i, (0,)) for i in range(4, B0)]
    hl = [(n, tt) for n, (i, tts) in enumerate(seq) for tt in tts]
    NSL = opt.get("nsl", 16)
    slot = {k: HF + (idx % NSL) * 4 for idx, k in enumerate(hl)}
    state_h = dict(next=8, grp=None)

    def h_next():
        idx = state_h["next"]
        if idx >= len(hl):
            return
        state_h["next"] += 1
        n, tt = hl[idx]
        i = seq[n][0]
        if state_h["grp"] != i // 4 and not (opt.get("hfix") and state_h["grp"]):
            state_h["grp"] = i // 4
            A(f"s_add_u32 s{S_H}, s{S_FTL}, {i // 4}\ns_cmp_ge_u32 s{S_H}, 7\ns_cselect_b32 s3, 7, 0\ns_sub_u32 s{S_H}, s{S_H}, s3")
            A(f"s_add_u32 s{S_H}, s{S_H}, s{S_GH}\ns_lshl_b32 s{S_H}, s{S_H}, 12")
        if opt.get("noh"):
            A.vm.append(("h", n, tt)); A.vm_done = len(A.vm)
            return
        A.vmem(f"buffer_load_dwordx4 {v(slot[(n, tt)], 4)}, v{VH+tt}, s[{sWS}:{sWS+3}], s{S_H} offen offset:{(i%4)*1024} {HLD}", ("h", n, tt))

    def step(n, extra=()):
        i, tts = seq[n]
        nm = 4 * len(tts)
        fl = list(extra)
        if n + 1 < len(seq):
            rd = w_reads(n + 1, seq[n + 1][0])
            fl += [(k * nm // len(rd), f) for k, f in enumerate(rd)]
        if n >= 1:
            fl += [(1 + 4 * k, h_next) for k in range(len(seq[n - 1][1]))]
        mf = []
        for eb in range(4):
            for tt in tts:
                def f(eb=eb, tt=tt):
                    if eb % 2 == 0 and tt == tts[0]:
                        A.wait(vm=("h", n, tts[-1]) if eb == 0 and n >= 4 else None, lg=("wf", n, eb >> 1))
                    A.mfma(AC2 + (tt * 4 + eb) * 4, FW2[n & 1] + 4 * eb, slot[(n, tt)], "0" if n == 0 else None)
                mf.append(f)
        A.weave(mf, fl)

    PR, XU = 192, 208
    fin = f"""
    v_and_b32 v20, 15, v1
    v_lshrrev_b32 v21, 4, v1
    v_lshrrev_b32 v22, 1, v21
    v_and_b32 v23, 7, v20
    v_xor_b32 v22, v22, v23
    v_lshlrev_b32 v22, 4, v22
    v_lshl_add_u32 v22, v20, 7, v22
    v_and_b32 v21, 1, v21
    v_lshl_add_u32 v22, v21, 3, v22
    s_lshl_b32 s27, s{S_W}, 11
    s_add_u32 s27, s27, {TS}
    v_add_u32 v232, s27, v22
    v_add_u32 v23, s27, v{VL}
    v_xor_b32 v233, 32, v232
    v_xor_b32 v234, 64, v232
    v_xor_b32 v235, 96, v232
    ds_read_b64 v[224:225], v232
    ds_read_b64 v[226:227], v233
    ds_read_b64 v[228:229], v234
    ds_read_b64 v[230:231], v235
    s_lshl_b32 s27, s{S_W}, 6
    s_add_u32 s27, s27, {YS + 20480}
    v_lshl_add_u32 v20, v20, 2, s27
    s_and_b32 s27, s{S_W}, 1
    s_lshl_b32 s27, s27, 12
    s_add_u32 s27, s27, {YS}
    v_add_u32 v19, s27, v{VL}
    s_xor_b32 s{S_MW}, s{S_W}, 2
    s_or_b32 s{S_MW}, s{S_MW}, s{S_T}
    s_sub_u32 s{S_MW}, s{S_MW}, 1
    s_lshr_b32 s{S_MW}, s{S_MW}, 31
    s_lshl_b32 s{S_MW}, s{S_MW}, 14
    v_add_u32 v18, s{S_MW}, v19
    s_lshl_b32 s27, s{S_W}, 30
    s_and_b32 s27, s27, 0x80000000
    s_or_b32 s27, s27, 1.0
    v_mov_b32 v237, s27
    s_xor_b32 s{S_FT}, s{S_MX}, 16384
    s_and_b32 s{S_G2}, s{S_PT}, {1 if opt.get('pb', 1) else 0xff}
    """.strip().split("\n")
    fin = [x.strip() for x in fin]
    unp = [f"v_lshlrev_b32 v{XU+2*k}, 16, v{224+k}" if b_ == 0 else f"v_and_b32 v{XU+2*k+1}, 0xffff0000, v{224+k}" for k in range(8) for b_ in range(2)]

    PB = opt.get("pb", 1)

    def p_loads(track):
        for eb in range(2 if PB else 4):
            t_ = f"buffer_load_dwordx4 {v(PR+4*eb,4)}, v{VL}, s[{sWS}:{sWS+3}], s{S_FT} offen offset:{eb*1024} sc1"
            A.vmem(t_, "part") if track else A(t_)
    TRE = min(opt.get("tre", 0), TRB // 4)

    def transpose(b0, b1):
        def tr_in(b):
            a_ = wpair_addr(2 * b)
            for eb in range(4):
                for h in range(2):
                    A.lds(f"ds_read_b64_tr_b16 {v(160+16*(b&1)+4*eb+2*h,2)}, v{240+4*(a_>>16)+eb} offset:{(a_ & 0xffff) + h*2048}", ("tr", b))
        if b0 < b1:
            tr_in(b0)
        for b in range(b0, b1):
            if b + 1 < b1:
                tr_in(b + 1)
            A.wait(lg=("tr", b))
            a_ = wpair_addr(2 * b)
            for eb in range(4):
                A.lds(f"ds_write_b128 v{252+(a_>>16)}, {v(160+16*(b&1)+4*eb,4)} offset:{(a_ & 0xffff) + eb*1024}")
    A(f"s_lshl_b32 s3, s2, 14\ns_lshl_b32 s27, s{S_W}, 12\ns_add_u32 s3, s3, s27\ns_add_u32 s{S_MX}, s3, {WS_PART}")
    A.srd(sOUT, 20, 2048 * 896)
    A(f"s_lshl_b32 s{S_H}, s{S_W}, 11")
    for ps in range(2):
        A.dma(VO + ps, sX, "0", f"s_add_u32 m0, s{S_H}, {XS + ps*1024}", "xr")
    if TRB:
        A(f"s_lshl_b32 s3, s{S_W}, 12")
        for k, base in enumerate((WA2, WB, WC)):
            for eb in range(4):
                A(f"v_add_u32 v{240+4*k+eb}, s3, v{base+eb}")
            A(f"v_add_u32 v{252+k}, s3, v{VL}" + (f"\nv_add_u32 v{252+k}, {k << 16}, v{252+k}" if k else ""))
    transpose(0, TRE)
    for x in fin:
        if not x.startswith("ds_"):
            A(x.replace(f"s{S_G2}", "s48").replace("s48", f"s{S_HB}") if False else x) if f"s{S_G2}" not in x else None
    A.wait(vm=0, lg=0)
    for x in fin:
        if x.startswith("ds_"):
            A.lds(x)
    burst([w_dma(p) for p in range(WN, 14)])
    A("s_barrier")
    A(f"s_cmp_lg_u32 s{S_W}, 3\ns_cbranch_scc1 L_nopub")
    A(f"v_mov_b32 v236, s{S_TAG}\ns_mov_b64 exec, 1")
    if opt.get("lf", 1):
        A(f"s_add_u32 s3, s{S_HF}, 4096")
        A(f"buffer_store_dword v236, v{VID+1}, s[{sWS}:{sWS+3}], s3 offen offset:16")
    A(f"buffer_store_dword v236, v{VID+1}, s[{sWS}:{sWS+3}], s{S_HF} offen offset:16 sc1")
    A("s_mov_b64 exec, -1")
    A("L_nopub:")
    A.stamp(7)
    for x in fin:
        if f"s{S_G2}" in x:
            A(x)
    for n in range(4):
        for tt in range(2):
            A.lds(f"ds_read_b128 {v(slot[(n, tt)],4)}, v{238+tt} offset:{n*1024}")
    A.wait(lg=0)
    for x in unp:
        A(x)
    A(f"s_mul_i32 s{S_GH}, s{S_JX}, 7")
    transpose(TRE, TRB // 4)
    if TRB:
        A(f"v_add_u32 v241, 0x10000, v{VL}\nv_add_u32 v242, 0x20000, v{VL}\nv_mov_b32 v240, v{VL}")
    A(f"s_cmp_lg_u32 s{S_W}, 3\ns_cbranch_scc1 L_nopoll")
    if opt.get("lf", 1):
        A(f"""
        s_mov_b32 s27, 0x40000
        L_hpoll:
        s_and_b32 s3, s27, 3
        s_cselect_b32 s3, {4096 + 16}, 16
        s_add_u32 s3, s3, s{S_HF}
        buffer_load_dword v236, v{VID+3}, s[{sWS}:{sWS+3}], s3 offen sc1
        s_waitcnt vmcnt(0)
        v_cmp_eq_u32 vcc, s{S_TAG}, v236
        s_nop 1
        s_cmp_eq_u64 vcc, exec
        s_cbranch_scc1 L_nopoll
        s_sub_u32 s27, s27, 1
        s_cbranch_scc0 L_hpoll
        """.replace("0x40000", "0x3ffff"))
    else:
        A(f"s_add_u32 s3, s{S_HF}, 16")
        A.poll(VID + 3, sWS, "s3", "eq", 64, S_TAG, vtmp=236)
    A("L_nopoll:")
    A.wait(vm=0, lg=0)
    A("s_barrier")
    if not P2: A.stamp(1)
    for k in range(NSL - 8):
        h_next()
    for f in w_reads(0, 0):
        f()
    if opt.get("prio", 1):
        A(f"s_setprio {opt.get('prio', 1)}")
    for n in range(len(seq)):
        ex = []
        if opt.get("p3") and n in (0, 4, 12, 20, 36, 44):
            _stamp({0: 2, 4: 3, 12: 4, 20: 5, 36: 6, 44: 7}[n])
        if n == opt.get("m2n", -1):
            A("s_barrier")
        if n == 28:
            A.stamp(8)
            A(f"""
            v_mov_b32 v236, s{S_G2}
            s_movk_i32 s27, {1 if PB else 0xff}
            s_nop 5
            """)
            for k in range(2 if PB else 0):
                for r in range(4):
                    A(f"v_cvt_pk_bf16_f32 v{AC2+16+4*k+r}, v{AC2+16+8*k+2*r}, v{AC2+17+8*k+2*r}")
                for r in range(4):
                    A(f"v_bfi_b32 v{AC2+16+4*k+r}, s27, v236, v{AC2+16+4*k+r}")
                A.vmem(f"buffer_store_dwordx4 {v(AC2+16+4*k,4)}, v{VL}, s[{sWS}:{sWS+3}], s{S_MX} offen offset:{k*1024} sc1", "pst")
            for eb in range(0 if PB else 4):
                for r in range(4):
                    A(f"v_bfi_b32 v{AC2+16+4*eb+r}, s27, v236, v{AC2+16+4*eb+r}")
                A.vmem(f"buffer_store_dwordx4 {v(AC2+16+4*eb,4)}, v{VL}, s[{sWS}:{sWS+3}], s{S_MX} offen offset:{eb*1024} sc1", "pst")
        if n == len(seq) - opt.get("pat", 6):
            ex.append((3, lambda: p_loads(True)))
        step(n, ex)
    A.stamp(9)
    A(f"s_mov_b32 s{S_KX}, 0x40000")
    A("L_pchk:")
    A("s_waitcnt vmcnt(0)")
    NP = 8 if PB else 16
    for r in range(NP):
        A(f"v_xor_b32 v{PR+r}, s{S_G2}, v{PR+r}")
    A(f"v_or3_b32 v24, v{PR}, v{PR+1}, v{PR+2}")
    for k in range(NP // 2 - 2):
        A(f"v_or3_b32 v24, v24, v{PR+3+2*k}, v{PR+4+2*k}")
    A(f"v_or_b32 v24, v24, v{PR+NP-1}\nv_and_b32 v24, {1 if PB else 0xff}, v24\nv_cmp_eq_u32 vcc, 0, v24\ns_nop 1\ns_cmp_eq_u64 vcc, exec\ns_cbranch_scc1 L_pok")
    p_loads(False)
    A(f"s_sub_u32 s{S_KX}, s{S_KX}, 1\ns_cbranch_scc0 L_pchk")
    A("L_pok:")
    if PB:
        for r in range(8):
            A(f"v_and_b32 v{PR+8+r}, 0xffff0000, v{PR+r}\nv_lshlrev_b32 v{PR+r}, 16, v{PR+r}")
    for r in range(16):
        A(f"v_add_f32 v{AC2+r}, v{AC2+r}, v{PR + ((r >> 1) + 8 * (r & 1) if PB else r)}")
    if P2: A.stamp(2)
    A("s_barrier")
    A.stamp(10)
    YP = HF
    A(f"ds_read_b32 v236, v20")
    for eb in range(4):
        A(f"ds_read_b128 {v(YP+4*eb,4)}, v18 offset:{eb*1024}")
    for eb in range(4):
        A(f"ds_read_b128 {v(YP+16+4*eb,4)}, v19 offset:{8192 + eb*1024}")
    A("s_waitcnt lgkmcnt(8)")
    for eb in range(4):
        for hh in range(2):
            A(f"v_pk_fma_f32 {v(XU+4*eb+2*hh,2)}, {v(AC2+4*eb+2*hh,2)}, v[236:237], {v(XU+4*eb+2*hh,2)} op_sel_hi:[1,0,1]")
    A("s_waitcnt lgkmcnt(4)")
    for eb in range(4):
        for hh in range(2):
            A(f"v_pk_add_f32 {v(XU+4*eb+2*hh,2)}, {v(XU+4*eb+2*hh,2)}, {v(YP+4*eb+2*hh,2)}")
    A("s_waitcnt lgkmcnt(0)")
    for eb in range(4):
        for hh in range(2):
            A(f"v_pk_fma_f32 {v(XU+4*eb+2*hh,2)}, {v(YP+16+4*eb+2*hh,2)}, v[236:237], {v(XU+4*eb+2*hh,2)} op_sel:[0,1,0] op_sel_hi:[1,1,1]")
        A(f"v_cvt_pk_bf16_f32 v{28+2*eb}, v{XU+4*eb}, v{XU+4*eb+1}\nv_cvt_pk_bf16_f32 v{29+2*eb}, v{XU+4*eb+2}, v{XU+4*eb+3}")
        A(f"ds_write_b64 v{232+eb}, {v(28+2*eb,2)}")
    A("s_waitcnt lgkmcnt(0)")
    A("ds_read_b128 v[36:39], v23\nds_read_b128 v[40:43], v23 offset:1024")
    A("s_waitcnt lgkmcnt(1)")
    A(f"buffer_store_dwordx4 v[36:39], v{VO}, s[{sOUT}:{sOUT+3}], 0 offen {opt.get('ofl', '')}")
    A("s_waitcnt lgkmcnt(0)")
    A(f"buffer_store_dwordx4 v[40:43], v{VO+1}, s[{sOUT}:{sOUT+3}], 0 offen {opt.get('ofl', '')}")
    if opt.get("dbg"):
        A.srd(sDBG, 22, 256)
        A("""
        s_waitcnt vmcnt(0)
        s_memrealtime s[88:89]
        s_memtime s[84:85]
        s_waitcnt lgkmcnt(0)
        s_sub_u32 s84, s84, s90
        s_sub_u32 s88, s88, s92
        s_lshl_b32 s88, s88, 16
        s_and_b32 s92, s92, 0xffff
        s_or_b32 s88, s88, s92
        v_mov_b32 v2, s88
        v_mov_b32 v3, s84
        s_lshl_b32 s3, s2, 3
        s_lshl_b32 s27, s60, 8
        s_add_u32 s3, s3, s27
        v_mov_b32 v5, s3
        s_mov_b64 exec, 1
        """)
        A(f"buffer_store_dwordx2 v[2:3], v5, s[{sDBG}:{sDBG+3}], 0 offen")
    A.dump_stamps(11)
    A("s_endpgm")

    A("L_aux:")
    epilogue(1)
    RSD, VPOLL, VT, YB, YA, V2, VF, WF = 20, 22, 19, 32, 48, 64, 96, 128
    PR, XU = VF, V2
    DF, EF, TA = 24, 8, opt.get('ta', 32)
    S_PA = S_MX
    A(f"""
    s_and_b32 s{S_GH}, s{S_W}, 3
    v_and_b32 v14, 15, v1
    s_lshl_b32 s3, s{S_CT}, 6
    v_add_u32 v{EF}, s3, v14
    v_cvt_f32_u32 v{EF}, v{EF}
    v_lshrrev_b32 v15, 4, v1
    v_lshlrev_b32 v{DF}, 2, v15
    v_cvt_f32_u32 v{DF}, v{DF}
    s_mov_b32 s3, 0x41800000
    v_add_f32 v{EF+1}, s3, v{EF}
    v_add_f32 v{EF+2}, s3, v{EF+1}
    v_add_f32 v{EF+3}, s3, v{EF+2}
    v_add_f32 v{DF+1}, 1.0, v{DF}
    v_add_f32 v{DF+2}, 2.0, v{DF}
    v_add_f32 v{DF+3}, 2.0, v{DF+1}
    v_add_f32 v{DF+4}, s3, v{DF}
    v_add_f32 v{DF+5}, s3, v{DF+1}
    v_add_f32 v{DF+6}, s3, v{DF+2}
    v_add_f32 v{DF+7}, s3, v{DF+3}
    s_mov_b32 s3, {0x3b124925}
    v_mul_f32 v{EF}, s3, v{EF}
    v_mul_f32 v{EF+1}, s3, v{EF+1}
    v_mul_f32 v{EF+2}, s3, v{EF+2}
    v_mul_f32 v{EF+3}, s3, v{EF+3}
    s_bitcmp1_b32 s{S_W}, 1
    s_cselect_b32 s3, 0x3e800000, 0
    v_mov_b32 v{EF+4}, s3
    v_mov_b32 v{EF+5}, 0x42000000
    """)
    gen_ops = []
    CA_, CB_, KK = 64, 72, 80
    for eb in range(4):
        sel = "op_sel:[0,1,0] op_sel_hi:[1,1,0]" if eb & 1 else "op_sel_hi:[1,0,0]"
        gen_ops.append(f"v_mul_f32 v{KK}, v{EF+5}, v{EF+eb}")
        gen_ops += [f"v_pk_fma_f32 {v(CA_+2*i,2)}, {v(DF+2*i,2)}, {v(EF+(eb&2),2)}, {v(EF+4,2)} {sel}" for i in range(4)]
        gen_ops += [f"v_pk_add_f32 {v(CB_+2*i,2)}, {v(CA_+2*i,2)}, {v(KK,2)} op_sel_hi:[1,0]" for i in range(4)]
        gen_ops.append(f"v_cos_f32 v{KK}, v{KK}")
        gen_ops += [f"v_cos_f32 v{CA_+i}, v{CA_+i}" for i in range(16)]
        gen_ops.append(f"v_add_f32 v{KK}, v{KK}, v{KK}")
        for u in range(8):
            cur = (CA_, CB_)[u & 1]
            if u >= 2:
                gen_ops += [f"v_pk_fma_f32 {v(cur+2*i,2)}, {v((CB_, CA_)[u & 1]+2*i,2)}, {v(KK,2)}, {v(cur+2*i,2)} op_sel_hi:[1,0,1] neg_lo:[0,0,1] neg_hi:[0,0,1]" for i in range(4)]
            gen_ops += [f"v_cvt_pk_bf16_f32 v{WF+16*u+4*eb+i}, v{cur+2*i}, v{cur+2*i+1}" for i in range(4)]

    def wgen(n):
        for x in gen_ops[:16 * n]:
            A(x)
        del gen_ops[:16 * n]
    S_VF = 59
    A(f"""
    s_lshl_b32 s3, s{S_RB}, 6
    s_add_u32 s3, s3, s{S_JX}
    s_and_b32 s27, s{S_W}, 1
    s_lshl_b32 s27, s27, 5
    s_add_u32 s27, s27, s3
    v_lshl_add_u32 v{RSD+1}, v14, 1, s27
    s_bitcmp1_b32 s{S_W}, 1
    s_cselect_b32 s3, -1, 1
    s_cselect_b32 s27, 2048, 0
    v_mul_i32_i24 v{RSD+1}, s3, v{RSD+1}
    v_add_u32 v{RSD+1}, s27, v{RSD+1}
    v_lshrrev_b32 v{RSD}, 11, v{RSD+1}
    v_lshlrev_b32 v{RSD}, 10, v{RSD}
    v_sub_u32 v{RSD+1}, v{RSD+1}, v{RSD}
    v_lshlrev_b32 v{RSD+1}, 2, v{RSD+1}
    v_add_u32 v{RSD+1}, {WS_RSTD}, v{RSD+1}
    s_lshl_b32 s3, s{S_T}, 1
    s_and_b32 s27, s{S_W}, 1
    s_add_u32 s3, s3, s27
    s_lshl_b32 s{S_FT}, s3, 14
    s_lshr_b32 s27, s{S_GH}, 1
    s_lshl_b32 s3, s27, 13
    s_add_u32 s{S_FT}, s{S_FT}, s3
    s_add_u32 s{S_FT}, s{S_FT}, {WS_VV}
    s_cmp_eq_u32 s{S_GH}, 0
    s_cselect_b32 s{S_MW}, {WS_VV + 64*16384}, s{S_FT}
    s_lshl_b32 s3, s{S_GH}, 12
    s_add_u32 s27, s3, {YS}
    v_add_u32 v17, s27, v{VL}
    s_lshl_b32 s3, s{S_GH}, 6
    s_add_u32 s3, s3, {YS + 20480}
    v_lshl_add_u32 v18, v14, 2, s3
    """)
    A(f"""
    v_and_b32 v{VPOLL+1}, 1, v1
    v_lshlrev_b32 v{VPOLL+1}, 2, v{VPOLL+1}
    """)
    wgen(opt.get("g1", 10))
    A.wait(vm=0, lg=0)
    burst([w_dma(p) for p in range(WN, 14)])
    A("s_barrier")
    A.stamp(7)
    wgen(32)
    A.wait(vm=0)
    A("s_barrier")
    if not P2: A.stamp(1)
    if opt.get("nov"):
        A("s_branch L_vdone")
    if opt.get("m2n", -1) >= 0:
        A("s_barrier")
    A.poll(VPOLL + 1, sWS, f"s{S_VF}", "eq", 64, S_TAG, vtmp=VPOLL, sleep=opt.get("vps", 8))
    A.stamp(9)
    A.reset()
    A.vmem(f"buffer_load_dword v{RSD}, v{RSD+1}, s[{sWS}:{sWS+3}], 0 offen {HLD}", "rstd")
    for u in range(8):
        if u % 4 == 0:
            A(f"s_add_u32 s27, s{S_FT}, {u*1024}")
        A.vmem(f"buffer_load_dwordx4 {v(VF+4*u,4)}, v{VL}, s[{sWS}:{sWS+3}], s27 offen offset:{(u%4)*1024} {HLD}", ("v", u))

    A(f"s_cmp_eq_u32 s{S_T}, 0\ns_cbranch_scc1 L_vspecial")

    def vpart(special):
        if special:
            for u in range(8):
                if u % 4 == 0:
                    A(f"s_add_u32 s27, s{S_MW}, {u*1024}")
                A.vmem(f"buffer_load_dwordx4 {v(V2+4*u,4)}, v{VL}, s[{sWS}:{sWS+3}], s27 offen offset:{(u%4)*1024} {HLD}", ("v2", u))
        for u in range(8):
            A.wait(vm=("v", u))
            for eb in range(4):
                A.mfma(YA + eb * 4, WF + 16 * u + 4 * eb, VF + 4 * u, "0" if u == 0 else None)
        if special:
            for u in range(8):
                A.wait(vm=("v2", u))
                for eb in range(4):
                    A.mfma(YB + eb * 4, WF + 16 * u + 4 * eb, V2 + 4 * u, "0" if u == 0 else None)
        A(f"ds_write_b32 v18, v{RSD}")
        A(f"s_nop {opt.get('yn', 6)}")
        for eb in range(4):
            A(f"ds_write_b128 v17, {v(YA+4*eb,4)} offset:{eb*1024}")
        if special:
            L = A.label("L_nopm")
            A(f"s_cmp_lg_u32 s{S_W}, 4\ns_cbranch_scc1 {L}")
            A("s_mov_b32 s26, 0x00010001\ns_mov_b32 s27, 0x00010001")
            for r in range(16):
                A(f"v_cndmask_b32 v{YB+r}, v{YA+r}, v{YB+r}, s[26:27]")
            for eb in range(4):
                A(f"ds_write_b128 v17, {v(YB+4*eb,4)} offset:{16384 + eb*1024}")
            A(f"{L}:")
    sv = (list(A.vm), A.vm_done, list(A.lg), A.lg_done)
    vpart(False)
    A("s_branch L_vdone")
    A("L_vspecial:")
    A.vm, A.vm_done, A.lg, A.lg_done = sv
    vpart(True)
    A("L_vdone:")
    A("s_waitcnt lgkmcnt(0)")
    A.stamp(10)
    A("s_barrier")
    A.dump_stamps(11)
    A("s_endpgm")

    A.reset()
    A.c("@@CUT0")
    S_Q, S_VAR, S_M, S_N, S_P = 63, 96, 97, 98, 99
    A(f"""
    s_sub_u32 s3, s{S_J}, 28
    s_lshl_b32 s{S_Q}, s{S_XCD}, 2
    s_add_u32 s{S_Q}, s{S_Q}, s3
    s_lshr_b32 s{S_VAR}, s{S_XCD}, 1
    s_mov_b32 s{S_M}, s3
    s_and_b32 s{S_N}, s{S_XCD}, 1
    s_and_b32 s{S_P}, s{S_VAR}, 1
    """)
    def wtouch(ptr):
        A.srd(sW1, ptr, 448 * 3584)
        A(f"v_lshlrev_b32 v210, 7, v1\ns_lshl_b32 s3, s{S_Q}, 13\ns_add_u32 s27, s{S_W}, {opt.get('t1s', 2)}\ns_lshl_b32 s27, s27, 18\ns_add_u32 s3, s3, s27\nv_add_u32 v210, s3, v210")
        A.vmem(f"buffer_load_dword v211, v210, s[{sW1}:{sW1+3}], 0 offen")

    RAW, EO, TF, TM, ST = 32, 64, 128, 136, 144
    A(f"""
    s_lshl_b32 s3, s{S_Q}, 4
    s_lshl_b32 s27, s{S_W}, 1
    s_add_u32 s3, s3, s27
    v_lshrrev_b32 v2, 5, v1
    v_add_u32 v4, s3, v2
    v_and_b32 v3, 31, v1
    v_sub_u32 v5, 2048, v4
    v_sub_u32 v6, 1024, v4
    v_add_u32 v7, 1024, v4
    v_cmp_eq_u32 s[100:101], 0, v4
    v_mov_b32 v8, 512
    v_mov_b32 v9, 1536
    v_mov_b32 v12, {OOB}
    v_cndmask_b32 v5, v5, v8, s[100:101]
    v_cndmask_b32 v7, v7, v9, s[100:101]
    v_cmp_gt_u32 vcc, 28, v3
    v_lshlrev_b32 v8, 4, v3
    v_sub_u32 v9, 880, v8
    v_cndmask_b32 v8, v12, v8, vcc
    v_cndmask_b32 v9, v12, v9, vcc
    s_waitcnt lgkmcnt(0)
    """)
    A.srd(sX, 4, 2048 * 896)
    if opt.get("t1", 1) == 2:
        wtouch(16)
    for rho in range(4):
        A(f"v_mul_u32_u24 v13, 896, v{4+rho}\nv_add_u32 v14, v13, v8\nv_add_u32 v15, v13, v9")
        for fm in range(2):
            A.vmem(f"buffer_load_dwordx4 {v(RAW + rho*8 + 4*fm, 4)}, v{14+fm}, s[{sX}:{sX+3}], 0 offen", ("x", rho))
    A("s_branch L_dft")
    A.c("@@CUT1")
    A("L_dft:")
    A.srd(sWS, 24, WS_SIZE + (0x40000 if stamps else 0))
    if opt.get("t1", 1) == 1:
        wtouch(16)
    A(f"v_mov_b32 v190, {WS_EPOCH}")
    A.vmem(f"buffer_load_dword v191, v190, s[{sWS}:{sWS+3}], 0 offen sc1", "ep")
    A(f"s_cmp_lg_u32 s{S_W}, 7\ns_cbranch_scc1 L_dnotouch")
    if opt.get("xt", 0):
        start_touch(A, opt, "x", 200)
    code_touch(A, 208)
    A("L_dnotouch:")

    S_R = 14
    GA, GT = 160, 168
    A(f"""
    s_lshl_b32 s3, s{S_M}, 7
    s_lshl_b32 s27, s{S_W}, 4
    s_add_u32 s3, s3, s27
    s_lshl_b32 s3, s3, 1
    s_add_u32 s3, s3, s{S_P}
    v_and_b32 v13, 15, v1
    v_lshl_add_u32 v13, v13, 1, s3
    v_cvt_f32_u32 v13, v13
    v_mul_f32 v13, 0x3a000000, v13
    v_lshrrev_b32 v14, 4, v1
    v_lshlrev_b32 v14, 3, v14
    v_cvt_f32_u32 v14, v14
    s_cmp_ge_u32 s{S_VAR}, 2
    s_cselect_b32 s3, 0x3e800000, 0
    v_fma_f32 v{GA}, v13, v14, s3
    v_mul_f32 v14, 0x42000000, v13
    v_lshlrev_b32 v16, 4, v1
    s_lshl_b32 s3, s{S_W}, 10
    v_add_u32 v16, s3, v16
    v_add_u32 v17, 0x10000, v16
    """)
    for i in range(1, 8):
        A(f"v_add_f32 v{GA+i}, v13, v{GA+i-1}")
    for i in range(8):
        A(f"v_add_f32 v{GT+i}, v14, v{GA+i}")
    A("v_cos_f32 v14, v14")
    for i in range(16):
        A(f"v_cos_f32 v{GA+i}, v{GA+i}")
    A("v_add_f32 v14, v14, v14")
    A("v_mov_b32 v184, v14\nv_mov_b32 v186, v16\nv_mov_b32 v187, v17")
    cg = [0]

    def cgen(n):
        for sb in range(cg[0], min(16, cg[0] + n)):
            cur, oth = (GA, GT) if sb % 2 == 0 else (GT, GA)
            if sb >= 2:
                for i in range(4):
                    A(f"v_pk_fma_f32 {v(cur+2*i,2)}, {v(oth+2*i,2)}, v[184:185], {v(cur+2*i,2)} op_sel_hi:[1,0,1] neg_lo:[0,0,1] neg_hi:[0,0,1]")
            d = GT + 8 + 4 * (sb & 1)
            for i in range(4):
                A(f"v_cvt_pk_bf16_f32 v{d+i}, v{cur+2*i}, v{cur+2*i+1}")
            A.lds(f"ds_write_b128 v{186 + sb//8}, {v(d,4)} offset:{(sb%8)*8192}")
        cg[0] = min(16, cg[0] + n)
    cgen(opt.get("c0", 2))
    A.stamp(1)
    A(f"""
    v_cmp_eq_u32 s[26:27], 0, v3
    v_cndmask_b32 v21, 0, 2.0, vcc
    v_cmp_eq_u32 vcc, 28, v3
    v_mov_b32 v24, 0
    v_cndmask_b32 v20, v21, 1.0, s[26:27]
    v_mov_b32 v25, 0
    v_cndmask_b32 v20, v20, 1.0, vcc
    v_mov_b32 v26, 0
    v_mov_b32 v27, 0
    """)
    E = lambda rho: EO + rho * 16
    O = lambda rho: EO + rho * 16 + 8
    for rho in range(4):
        A.wait(vm=("x", rho))
        if rho == opt.get("t2", 9):
            wtouch(18)
        F = RAW + rho * 8
        M = F + 4
        A(f"v_mov_b32_dpp v{24+rho}, v{M} row_bcast:15 row_mask:0xa bank_mask:0xf")
        for i in range(4):
            A(f"v_lshlrev_b32 v{TF+2*i}, 16, v{F+i}\nv_and_b32 v{TF+2*i+1}, 0xffff0000, v{F+i}")
        A(f"v_mov_b32_dpp v{24+rho}, v{M} row_shr:1 row_mask:0xf bank_mask:0xf")
        for j in range(1, 8):
            k = 8 - j
            if k & 1:
                A(f"v_and_b32 v{TM+j}, 0xffff0000, v{M + k//2}")
            else:
                A(f"v_lshlrev_b32 v{TM+j}, 16, v{M + k//2}")
        A(f"v_lshlrev_b32 v{TM}, 16, v{24+rho}")
        for i in range(4):
            A(f"v_pk_add_f32 {v(E(rho)+2*i,2)}, {v(TF+2*i,2)}, {v(TM+2*i,2)}")
            A(f"v_pk_add_f32 {v(O(rho)+2*i,2)}, {v(TF+2*i,2)}, {v(TM+2*i,2)} neg_lo:[0,1] neg_hi:[0,1]")
        sm, sq = ST + 4 * rho, ST + 4 * rho + 2
        for i in range(4):
            if i == 0:
                A(f"v_pk_add_f32 {v(sm,2)}, {v(E(rho),2)}, {v(E(rho)+2,2)}")
                A(f"v_pk_mul_f32 {v(sq,2)}, {v(E(rho),2)}, {v(E(rho),2)}")
            else:
                if i > 1:
                    A(f"v_pk_add_f32 {v(sm,2)}, {v(sm,2)}, {v(E(rho)+2*i,2)}")
                A(f"v_pk_fma_f32 {v(sq,2)}, {v(E(rho)+2*i,2)}, {v(E(rho)+2*i,2)}, {v(sq,2)}")
            A(f"v_pk_fma_f32 {v(sq,2)}, {v(O(rho)+2*i,2)}, {v(O(rho)+2*i,2)}, {v(sq,2)}")
    A.stamp(2)
    for rho in range(4):
        A(f"v_add_f32 v{ST+4*rho}, v{ST+4*rho}, v{ST+4*rho+1}\nv_add_f32 v{ST+4*rho+2}, v{ST+4*rho+2}, v{ST+4*rho+3}")
    for i in range(4):
        A(f"v_permlane16_swap_b32 v{ST+2*i}, v{ST+8+2*i}")
    for i in range(4):
        A(f"v_add_f32 v{ST+2*i}, v{ST+2*i}, v{ST+8+2*i}")
    for sh in (8, 4, 2, 1):
        for i in range(4):
            r = ST + 2 * i
            A(f"v_add_f32_dpp v{r}, v{r}, v{r} row_ror:{sh} row_mask:0xf bank_mask:0xf")
    R_, C_ = 24, 28
    A(f"s_mov_b32 s3, {0x3b124925}\ns_mov_b32 s26, {0x3a924925}\ns_mov_b32 s27, {0x3727c5ac}")
    seq_ = [
        lambda b: f"v_mul_f32 v{b}, s3, v{b}\nv_mul_f32 v{b+2}, s26, v{b+2}",
        lambda b: f"v_fma_f32 v{b+2}, -v{b}, v{b}, v{b+2}",
        lambda b: f"v_max_f32 v{b+2}, 0, v{b+2}",
        lambda b: f"v_cvt_pk_bf16_f32 v{b+1}, v{b}, v{b+2}",
        lambda b: f"v_lshlrev_b32 v{b}, 16, v{b+1}\nv_and_b32 v{b+2}, 0xffff0000, v{b+1}",
        lambda b: f"v_add_f32 v{b+2}, s27, v{b+2}",
        lambda b: f"v_cvt_pk_bf16_f32 v{b+2}, v{b+2}, v{b+2}",
        lambda b: f"v_and_b32 v{b+2}, 0xffff0000, v{b+2}",
        lambda b: f"v_sqrt_f32 v{b+2}, v{b+2}",
        lambda b: f"s_nop 0\nv_cvt_pk_bf16_f32 v{b+2}, v{b+2}, v{b+2}",
        lambda b: f"v_and_b32 v{b+2}, 0xffff0000, v{b+2}",
    ]
    for f in seq_:
        for rho in range(2):
            A(f(ST + 4 * rho))
    for rho in range(2):
        A(f"v_rcp_f32 v{R_+rho}, v{ST+4*rho+2}")
    A("s_nop 0")
    for rho in range(2):
        A(f"v_mul_f32 v{C_+rho}, v{ST+4*rho}, v{R_+rho}")
    for r in (R_, R_ + 1, C_, C_ + 1):
        A(f"v_mov_b32 v{r+2}, v{r}")
    A("s_nop 0")
    for r in (R_, R_ + 1, C_, C_ + 1):
        A(f"v_permlane16_swap_b32 v{r}, v{r+2}")
    A(f"""
    v_cmp_eq_u32 vcc, 1, v3
    v_cmp_eq_u32 s[26:27], 2, v3
    v_mov_b32 v8, v4
    v_mov_b32 v9, v{R_}
    v_cndmask_b32 v8, v8, v5, vcc
    v_cndmask_b32 v9, v9, v{R_+1}, vcc
    v_cmp_eq_u32 vcc, 3, v3
    v_cndmask_b32 v8, v8, v6, s[26:27]
    v_cndmask_b32 v9, v9, v{R_+2}, s[26:27]
    v_cndmask_b32 v8, v8, v7, vcc
    v_cndmask_b32 v9, v9, v{R_+3}, vcc
    v_cmp_gt_u32 vcc, 4, v3
    v_lshlrev_b32 v8, 2, v8
    v_add_u32 v8, {WS_RSTD}, v8
    v_cndmask_b32 v8, v12, v8, vcc
    """)
    if opt.get("rs", 0):
        A("v_mov_b32 v188, v8\nv_mov_b32 v189, v9")
    else:
        A.vmem(f"buffer_store_dword v9, v8, s[{sWS}:{sWS+3}], 0 offen sc1")
    A(f"s_or_b32 s3, s{S_Q}, s{S_W}\ns_cmp_lg_u32 s3, 0\ns_cbranch_scc1 L_no512")
    A(f"v_add_f32 v10, v{C_+1}, v{C_+3}")
    for j in range(8):
        A(f"v_mul_f32 v{TF+j}, v10, v{20+(1 if j else 0)}")
        A(f"v_fma_f32 v{TF+j}, v{E(1)+j}, v{R_+1}, -v{TF+j}")
        A(f"v_fma_f32 v{TF+j}, v{E(3)+j}, v{R_+3}, v{TF+j}")
        A(f"v_mul_f32 v{TM+j}, v{O(1)+j}, v{R_+1}")
        A(f"v_fma_f32 v{TM+j}, -v{O(3)+j}, v{R_+3}, v{TM+j}")
    for i in range(4):
        A(f"v_cvt_pk_bf16_f32 v{RAW+i}, v{TF+2*i}, v{TF+2*i+1}")
        A(f"v_cvt_pk_bf16_f32 v{RAW+4+i}, v{TM+2*i}, v{TM+2*i+1}")
    A(f"v_lshlrev_b32 v10, 4, v3\nv_add_u32 v10, {WS_X512}, v10\nv_cndmask_b32 v10, v12, v10, s[100:101]")
    A(f"buffer_store_dwordx4 {v(RAW,4)}, v10, s[{sWS}:{sWS+3}], 0 offen sc1")
    A(f"buffer_store_dwordx4 {v(RAW+4,4)}, v10, s[{sWS}:{sWS+3}], 0 offen offset:{3*512} sc1")
    A("s_nop 1")
    A("L_no512:")
    for r in (R_ + 1, R_ + 3, C_ + 1, C_ + 3):
        A(f"v_cndmask_b32 v{r}, v{r}, 0, s[100:101]")
    A(f"v_add_f32 v{C_}, v{C_}, v{C_+1}\nv_add_f32 v{C_+2}, v{C_+2}, v{C_+3}")
    OUT = lambda var: RAW + var * 8
    bl = "op_sel_hi:[1,0,1]"
    bh = "op_sel:[0,1,0] op_sel_hi:[1,1,1]"
    A(f"v_pk_mul_f32 v[8:9], v[20:21], {v(C_,2)} op_sel_hi:[1,0] neg_lo:[1,0] neg_hi:[1,0]")
    A(f"v_pk_mul_f32 v[10:11], v[20:21], {v(C_+2,2)} op_sel_hi:[1,0] neg_lo:[1,0] neg_hi:[1,0]")
    for i in range(4):
        s3lo, s3hi = (0, 1) if i == 0 else (1, 1)
        a_, b_ = TF, TF + 2
        A(f"v_pk_fma_f32 {v(a_,2)}, {v(E(0)+2*i,2)}, {v(R_,2)}, v[8:9] op_sel:[0,0,{s3lo}] op_sel_hi:[1,0,{s3hi}]")
        A(f"v_pk_fma_f32 {v(b_,2)}, {v(E(2)+2*i,2)}, {v(R_+2,2)}, v[10:11] op_sel:[0,0,{s3lo}] op_sel_hi:[1,0,{s3hi}]")
        A(f"v_pk_mul_f32 {v(TM,2)}, {v(O(0)+2*i,2)}, {v(R_,2)} op_sel_hi:[1,0]")
        A(f"v_pk_mul_f32 {v(TM+2,2)}, {v(O(3)+2*i,2)}, {v(R_+2,2)} op_sel:[0,1] op_sel_hi:[1,1]")
        A(f"v_pk_fma_f32 {v(a_,2)}, {v(E(1)+2*i,2)}, {v(R_,2)}, {v(a_,2)} {bh}")
        A(f"v_pk_fma_f32 {v(b_,2)}, {v(E(3)+2*i,2)}, {v(R_+2,2)}, {v(b_,2)} {bh}")
        A(f"v_pk_fma_f32 {v(TM,2)}, {v(O(1)+2*i,2)}, {v(R_,2)}, {v(TM,2)} {bh} neg_lo:[1,0,0] neg_hi:[1,0,0]")
        A(f"v_pk_fma_f32 {v(TM+2,2)}, {v(O(2)+2*i,2)}, {v(R_+2,2)}, {v(TM+2,2)} {bl} neg_lo:[1,0,0] neg_hi:[1,0,0]")
        A(f"v_pk_add_f32 {v(OUT(0)+2*i,2)}, {v(a_,2)}, {v(b_,2)}")
        A(f"v_pk_add_f32 {v(OUT(1)+2*i,2)}, {v(a_,2)}, {v(b_,2)} neg_lo:[0,1] neg_hi:[0,1]")
        A(f"v_pk_add_f32 {v(OUT(2)+2*i,2)}, {v(TM,2)}, {v(TM+2,2)}")
        A(f"v_pk_add_f32 {v(OUT(3)+2*i,2)}, {v(TM,2)}, {v(TM+2,2)} neg_lo:[0,1] neg_hi:[0,1]")
    PKD = EO
    FS = 131072
    A(f"""
    v_lshlrev_b32 v8, 13, v2
    v_lshrrev_b32 v9, 1, v3
    v_lshl_add_u32 v8, v9, 9, v8
    v_and_b32 v10, 7, v9
    v_lshl_add_u32 v8, v10, 4, v8
    v_and_b32 v10, 1, v3
    v_lshl_add_u32 v8, v10, 7, v8
    v_and_b32 v9, 8, v9
    v_or_b32 v8, v8, v9
    s_lshr_b32 s3, s{S_W}, 2
    s_lshl_b32 s3, s3, 8
    s_and_b32 s27, s{S_W}, 3
    s_lshl_b32 s27, s27, 2
    s_add_u32 s3, s3, s27
    s_add_u32 s3, s3, {FS}
    v_xor_b32 v8, s3, v8
    """)
    for j in range(1, 8):
        A(f"v_xor_b32 v{8+j}, {j<<4}, v8")
    for pr in range(2):
        for j in range(8):
            A(f"v_permlane32_swap_b32 v{OUT(2*pr)+j}, v{OUT(2*pr+1)+j}")
        for j in range(8):
            A(f"v_cvt_pk_bf16_f32 v{PKD+8*pr+j}, v{OUT(2*pr)+j}, v{OUT(2*pr+1)+j}")
        for j in range(8):
            A.lds(f"ds_write_b32 v{8+j}, v{PKD+8*pr+j} offset:{pr*16384}")
    A(f"""
    v_xor_b32 v28, v3, v2
    v_lshlrev_b32 v28, 4, v28
    v_lshl_add_u32 v28, v2, 9, v28
    s_lshl_b32 s3, s{S_W}, 12
    s_and_b32 s27, s{S_W}, 1
    s_lshl_b32 s27, s27, 3
    s_add_u32 s3, s3, s27
    s_add_u32 s3, s3, {FS}
    v_add_u32 v28, s3, v28
    v_lshlrev_b32 v27, 4, v3
    v_lshl_add_u32 v27, v2, 14, v27
    s_lshr_b32 s3, s{S_Q}, 1
    s_lshl_b32 s3, s3, 10
    s_and_b32 s27, s{S_Q}, 1
    s_lshl_b32 s27, s27, 9
    s_add_u32 s3, s3, s27
    s_lshl_b32 s27, s{S_W}, 17
    s_add_u32 s3, s3, s27
    s_add_u32 s3, s3, {WS_XF}
    """)
    for k in range(1, 8):
        A(f"v_xor_b32 v{RAW+16+k}, {(k>>1)*32 + (k&1)*8}, v28")
    A.wait(lg=0)
    A("s_barrier")
    if opt.get("rs", 0):
        A.vmem(f"buffer_store_dword v189, v188, s[{sWS}:{sWS+3}], 0 offen sc1")
    for i in range(4):
        for hh in range(2):
            k = 2 * i + hh
            A.lds(f"ds_read_b64 {v(RAW+4*i+2*hh,2)}, v{RAW+16+k if k else 28} offset:{i*1024}", ("rb", i))
    for i in range(4):
        A.wait(lg=("rb", i))
        A.vmem(f"buffer_store_dwordx4 {v(RAW+4*i,4)}, v27, s[{sWS}:{sWS+3}], s3 offen sc1", "xst")
        A(f"s_add_u32 s3, s3, 32768")
    A.stamp(3)
    cgen(opt.get("c1", 4))
    cg_left = cg[0]
    A(f"s_cmp_ge_u32 s{S_W}, 4\ns_cbranch_scc1 L_dft_helper")
    dstate = (list(A.vm), A.vm_done)
    SACC, SEX, CF, XF = 32, 96, [104, 136], 168
    KALT, B512, X5 = 4, 8, [12, 16]
    CA = 22
    S_XA = 15
    A(f"""
    v_lshlrev_b32 v{CA}, 4, v1
    v_and_b32 v26, 1, v1
    s_cmp_ge_u32 s{S_VAR}, 2
    s_cselect_b32 s100, 1, 0
    s_cselect_b32 s101, 0x80008000, 0
    v_xor_b32 v26, s100, v26
    v_lshlrev_b32 v26, 15, v26
    v_or_b32 v{B512}, 0x3f80, v26
    s_lshl_b32 s26, s{S_N}, 3
    s_lshl_b32 s27, s{S_W}, 1
    s_add_u32 s26, s26, s27
    s_lshl_b32 s3, s{S_VAR}, 4
    s_add_u32 s3, s3, s26
    s_lshl_b32 s{S_XA}, s3, 14
    s_add_u32 s{S_XA}, s{S_XA}, {WS_XF}
    s_add_u32 s{S_R}, s{S_M}, 1
    s_and_b32 s{S_R}, s{S_R}, 3
    s_lshl_b32 s3, s{S_R}, 15
    v_add_u32 v{CA}, s3, v{CA}
    s_add_u32 s3, s3, 32768
    s_and_b32 s3, s3, 0x1ffff
    v_lshl_add_u32 v{CA+1}, v1, 4, s3
    v_xor_b32 v{CA+2}, 0x10000, v{CA}
    v_xor_b32 v{CA+3}, 0x10000, v{CA+1}
    s_lshl_b32 s26, s26, 5
    s_lshl_b32 s27, s{S_VAR}, 9
    s_add_u32 s26, s26, s27
    s_add_u32 s26, s26, {WS_X512}
    v_lshl_add_u32 v27, v1, 1, s26
    s_add_u32 s3, s{S_VAR}, 1
    s_and_b32 s3, s3, 2
    s_cmp_eq_u32 s3, 0
    s_cselect_b32 s3, 16, 0
    v_cmp_gt_u32 vcc, s3, v1
    v_mov_b32 v26, {OOB}
    v_lshlrev_b32 v28, 4, v1
    v_cndmask_b32 v27, v26, v27, vcc
    v_add_u32 v29, 16384, v28
    s_or_b32 s3, s{S_M}, s{S_VAR}
    s_cmp_eq_u32 s3, 0
    s_cselect_b32 vcc_lo, 1, 0
    s_mov_b32 vcc_hi, 0
    """)
    for i in range(4):
        A(f"v_mov_b32 v{KALT+i}, 0xbf803f80")
    for i in range(8):
        A(f"v_mov_b32 v{SEX+i}, 0")
    A.wait(vm="xst")
    A("s_barrier")
    A.stamp(4)
    if opt.get("t2p"):
        wtouch(18)
    cgen(16)
    A.wait(lg=0)
    for i in range(1, 4):
        A(f"v_mov_b32 v{B512+i}, 0\nv_mov_b32 v{X5[0]+i}, 0\nv_mov_b32 v{X5[1]+i}, 0")

    def c_reads(sb):
        return [lambda tb=tb: A.lds(f"ds_read_b128 {v(CF[sb&1]+4*tb,4)}, v{CA + sb//4} offset:{(sb%4)*8192 + tb*1024}", ("cf", sb))
                for tb in range(8)]

    def x_th(sb):
        r = []
        for a_ in range(2):
            def f(a_=a_):
                if sb % 4 == 0 and a_ == 0:
                    A(f"s_add_u32 s94, s{S_R}, {sb // 4}\ns_and_b32 s94, s94, 3\ns_lshl_b32 s94, s94, 12\ns_add_u32 s94, s94, s{S_XA}")
                A.vmem(f"buffer_load_dwordx4 {v(XF + (sb % 11)*8 + 4*a_, 4)}, v{28+a_}, s[{sWS}:{sWS+3}], s94 offen offset:{(sb%4)*1024} {HLD}", ("xf", sb))
            r.append(f)
        return r

    outl = []

    def extra(xa0, xa1):
        L = A.label("L_nx")
        A(f"s_cbranch_vccnz {L}_x")
        A(f"{L}:")
        outl.append((L, xa0, xa1))
    A("s_barrier")
    A.stamp(5)
    XD = opt.get("xd", 4)
    for sb in range(XD):
        for f in x_th(sb):
            f()
    for f in c_reads(0):
        f()
    xnext = XD
    for sb in range(16):
        fl = list(enumerate(c_reads(sb + 1))) if sb + 1 < 16 else []
        nx = [k for k in (xnext, xnext + 1) if k <= min(15, sb + opt.get("xla", 6))]
        if len(nx) == 2 and nx[1] % 4 == 0:
            nx = nx[:1]
        if nx and nx[0] % 4 == 0 and opt.get("xq", 1):
            A("s_barrier")
        xnext += len(nx)
        k0 = 0
        for k in nx:
            for f in x_th(k):
                fl.append((8 + 2 * k0, f)); k0 += 1
        if sb == 13:
            fl.append((13, lambda: A.vmem(f"buffer_load_ushort v{X5[0]}, v27, s[{sWS}:{sWS+3}], 0 offen {HLD}", "x5")))
            fl.append((15, lambda: A.vmem(f"buffer_load_ushort v{X5[1]}, v27, s[{sWS}:{sWS+3}], 0 offen offset:32 {HLD}", "x5")))
        A.wait(vm=("xf", sb), lg=("cf", sb))
        z = "0" if sb == 0 else None
        xa = XF + (sb % 11) * 8
        A.weave([lambda a_=a_, tb=tb: A.mfma(SACC + (a_ * 8 + tb) * 4, xa + 4 * a_, CF[sb & 1] + 4 * tb, z)
                 for a_ in range(2) for tb in range(8)], fl)
        extra(xa, xa + 4)
    A.wait(vm="x5")
    extra(X5[0], X5[1])
    A(f"""
    s_lshl_b32 s3, s{S_M}, 3
    s_add_u32 s3, s3, s{S_P}
    s_lshl_b32 s3, s3, 5
    s_lshl_b32 s27, s100, 3
    s_lshl_b32 s26, s{S_N}, 2
    s_add_u32 s27, s27, s26
    s_add_u32 s27, s27, s{S_W}
    s_add_u32 s3, s3, s27
    s_lshl_b32 s3, s3, 10
    s_add_u32 s3, s3, {WS_VV}
    s_lshl_b32 s27, s27, 10
    s_add_u32 s{S_XA}, s27, {WS_VV + 64*16384}
    """)
    D0 = CF[0]

    def vout(tb):
        d = D0 + 4 * tb
        for a_ in range(2):
            s0 = SACC + (a_ * 8 + tb) * 4
            A(f"v_cvt_pk_bf16_f32 v{d+2*a_}, v{s0}, v{s0+1}\nv_cvt_pk_bf16_f32 v{d+2*a_+1}, v{s0+2}, v{s0+3}")
        for i in range(4):
            A(f"v_xor_b32 v{d+i}, s101, v{d+i}")
        A(f"s_add_u32 s27, s3, {((tb >> 1) * 4 + (tb & 1)) * 16384}")
        A.vmem(f"buffer_store_dwordx4 {v(d,4)}, v28, s[{sWS}:{sWS+3}], s27 offen sc1")
    for tb in range(8):
        for a_ in range(2):
            A.mfma(SACC + (a_ * 8 + tb) * 4, X5[a_], B512)
        if tb == 1:
            A("s_nop 5")
        if tb >= 1:
            vout(tb - 1)
    A.stamp(6)
    vout(7)
    A("s_cbranch_vccz L_nospecial")
    A("s_mov_b32 s26, 0x00010001\ns_mov_b32 s27, 0x00010001")
    for i in range(4):
        A(f"v_cvt_pk_bf16_f32 v{XF+i}, v{SEX+2*i}, v{SEX+2*i+1}")
    for i in range(4):
        A(f"v_cndmask_b32 v{XF+i}, v{D0+i}, v{XF+i}, s[26:27]")
    A(f"buffer_store_dwordx4 {v(XF,4)}, v28, s[{sWS}:{sWS+3}], s{S_XA} offen sc1")
    A("L_nospecial:")
    A.wait(vm=0)
    A("s_barrier")
    A.stamp(7)
    A.dump_stamps(8)
    A("s_endpgm")
    for L, xa0, xa1 in outl:
        A(f"{L}_x:")
        A.mfma(SEX, xa0, KALT)
        A.mfma(SEX + 4, xa1, KALT)
        A(f"s_branch {L}")

    A.reset()
    A("L_dft_helper:")
    A.vm, A.vm_done = dstate
    S_DT = 94
    A.wait(vm="xst")
    A(f"""
    v_readfirstlane_b32 s{S_DT}, v191
    v_lshlrev_b32 v4, 7, v1
    v_lshlrev_b32 v6, 2, v1
    s_lshl_b32 s3, s{S_Q}, 2
    s_add_u32 s3, s3, {WS_XFLAG}
    s_mul_i32 s{S_DT}, s{S_DT}, {TAGMUL}
    s_add_u32 s{S_DT}, s{S_DT}, {TAGADD}
    v_mov_b32 v5, s{S_DT}
    s_barrier
    s_cmp_eq_u32 s{S_W}, 4
    s_cbranch_scc0 L_nox
    s_setprio 3
    s_mov_b64 exec, 0xff
    buffer_store_dword v5, v4, s[{sWS}:{sWS+3}], s3 offen sc1
    s_mov_b64 exec, -1
    L_nox:
    """)
    A.stamp(4)
    if opt.get("t2p"):
        wtouch(18)
    cg[0] = cg_left
    cgen(16)
    A(f"""
    s_waitcnt lgkmcnt(0)
    s_cmp_eq_u32 s{S_W}, 4
    s_cbranch_scc0 L_end
    s_lshl_b32 s3, s{S_XCD}, 7
    s_add_u32 s3, s3, {WS_XFLAG}
    """)
    if not opt.get("xq", 1):
        A.poll(6, sWS, "s3", "eq", 32, S_DT, sleep=opt.get("xps", 1))
        A("s_barrier")
    for k in range(4 if opt.get("xq", 1) else 0):
        A(f"s_add_u32 s26, s{S_M}, {k + 1}\ns_and_b32 s26, s26, 3\ns_lshl_b32 s26, s26, 5\ns_add_u32 s26, s26, s3")
        A.poll(6, sWS, "s26", "eq", 8, S_DT, sleep=opt.get("xps", 1))
        if k == 0:
            A.stamp(5)
        A("s_barrier")
    A("v_mov_b32 v8, 0")
    A(f"""
    s_lshl_b32 s3, s{S_VAR}, 2
    s_add_u32 s3, s3, s{S_M}
    s_lshl_b32 s3, s3, 5
    s_add_u32 s3, s3, s{S_N}
    s_lshl_b32 s3, s3, 2
    s_add_u32 s3, s3, {WS_VFLAG}
    s_barrier
    s_mov_b64 exec, 1
    buffer_store_dword v5, v8, s[{sWS}:{sWS+3}], s3 offen sc1
    """)
    A(f"s_cmp_lg_u32 s{S_Q}, 0\ns_cbranch_scc1 L_noepw")
    A(f"s_mov_b64 exec, -1\nv_and_b32 v9, 7, v1\nv_min_u32 v9, 6, v9\nv_lshlrev_b32 v9, 2, v9\nv_lshrrev_b32 v10, 3, v1\nv_lshl_add_u32 v9, v10, 7, v9")
    A(f"s_mov_b32 s27, 0x40000\ns_mov_b32 s3, {WS_HFLAG + 16}")
    A("L_epl:")
    for i in range(4):
        A(f"buffer_load_dword v{12+i}, v9, s[{sWS}:{sWS+3}], s3 offen offset:{i*1024} sc1")
    A("s_waitcnt vmcnt(0)")
    for i in range(4):
        A(f"v_xor_b32 v{12+i}, s{S_DT}, v{12+i}")
    A("v_or3_b32 v12, v12, v13, v14\nv_or_b32 v12, v12, v15\nv_cmp_eq_u32 vcc, 0, v12\ns_nop 1\ns_cmp_eq_u64 vcc, exec\ns_cbranch_scc1 L_epok")
    A("s_sleep 2\ns_sub_u32 s27, s27, 1\ns_cbranch_scc0 L_epl")
    A("L_epok:")
    A(f"s_mov_b32 s3, {WS_EPOCH}\ns_mov_b64 exec, 1\nbuffer_store_dword v5, v8, s[{sWS}:{sWS+3}], s3 offen sc1")
    A("L_noepw:")
    A.stamp(6)
    A.dump_stamps(8)
    A("L_end:")
    A("s_endpgm")
    A("L_code_end:")

    ix = lambda m: next(i for i, l in enumerate(A.lines) if m in l)
    c0, c1 = ix("@@CUT0"), ix("@@CUT1")
    head = A.lines[c0 + 1:c1]
    del A.lines[c0:c1 + 1]
    h = ix("@@HEAD")
    A.lines[h:h + 1] = head
    hdr = open("parallel_sum__spectral_fnet__dense_activation_relu__prompt.s.ref").read().split("; Override")[0]
    return (hdr + "; @launch grid=(256,1,1) block=(512,1,1) lds=163840\n"
            + ".amdgcn_target \"amdgcn-amd-amdhsa--gfx950\"\n" + kernel_header(NAME) + A.text() + kernel_desc(NAME, 256, 256))


if __name__ == "__main__":
    out = sys.argv[1]
    stamps = len(sys.argv) > 2 and sys.argv[2] == "stamps"
    opt = {}
    for kv in sys.argv[3:]:
        k, x = kv.split("=")
        opt[k] = int(x) if x.lstrip("-").isdigit() else x
    open(out, "w").write(gen(stamps, opt))
```

```python
import sys
from kbase import *

TAGMUL, TAGADD = 0x9E3779B1, 0x7F4A7C15


def wblk(i):
    if i < 24:
        return 65536 + 4096 * i
    if i < 28:
        return 32768 + 4096 * (i - 24)
    return 65536 + 4096 * (i - 28)


def mod7(A, s, tmp, maxv):
    m = 7
    while m * 2 < maxv:
        m *= 2
    while m >= 7:
        A(f"s_cmp_ge_u32 s{s}, {m}\ns_cselect_b32 s{tmp}, {m}, 0\ns_sub_u32 s{s}, s{s}, s{tmp}")
        m //= 2


CT = [1]


def code_touch(A, vb=118):
    if CT[0] in (0, 3):
        return
    L = A.label("L_pc")
    if CT[0] == 2:
        A(f"""
        s_getpc_b64 s[48:49]
        {L}:
        s_sub_u32 s48, s48, {L}-{NAME}
        s_subb_u32 s49, s49, 0
        s_mov_b32 s50, L_code_end-{NAME}
        s_mov_b32 s51, 0x20000
        v_lshlrev_b32 v{vb}, 7, v1
        """)
        for i in range(5):
            A(f"s_movk_i32 s3, {i*8192 if i < 4 else 0}\nbuffer_load_dword v{vb+1}, v{vb}, s[48:51], s3 offen" + (" offset:0" if i < 4 else ""))
            if i == 3:
                A(f"v_add_u32 v{vb}, 32768, v{vb}")
        return
    A(f"""
    s_getpc_b64 s[48:49]
    {L}:
    s_sub_u32 s48, s48, {L}-{NAME}
    s_subb_u32 s49, s49, 0
    s_mov_b32 s50, L_code_end-{NAME}
    s_mov_b32 s51, 0x20000
    v_lshlrev_b32 v{vb}, 12, v1
    s_lshl_b32 s3, s{S_J}, 7
    v_add_u32 v{vb}, s3, v{vb}
    s_mov_b64 exec, 0x3ff
    buffer_load_dword v{vb+1}, v{vb}, s[48:51], 0 offen
    s_mov_b64 exec, -1
    """)


def start_touch(A, opt, what, vb=10):
    fl = opt.get("tfl", "")
    if what == "x":
        A(f"""
        s_lshl_b32 s3, s{S_XCD}, 2
        s_lshr_b32 s27, s{S_J}, 3
        s_add_u32 s3, s3, s27
        s_lshl_b32 s3, s3, 4
        s_and_b32 s27, s{S_J}, 1
        s_lshl_b32 s27, s27, 3
        s_add_u32 s3, s3, s27
        v_lshrrev_b32 v{vb+1}, 3, v1
        v_add_u32 v{vb+1}, s3, v{vb+1}
        s_bfe_u32 s3, s{S_J}, 0x20001
        s_add_u32 s27, s3, 1
        s_and_b32 s27, s27, 2
        s_sub_u32 s27, 1, s27
        v_mul_i32_i24 v{vb+1}, s27, v{vb+1}
        s_cmp_eq_u32 s3, 0
        s_cselect_b32 s27, 0, 1024
        s_cmp_eq_u32 s3, 1
        s_cselect_b32 s27, 2048, s27
        v_add_u32 v{vb+1}, s27, v{vb+1}
        v_mul_u32_u24 v{vb+1}, 896, v{vb+1}
        v_and_b32 v{vb+2}, 7, v1
        v_min_u32 v{vb+2}, 6, v{vb+2}
        v_lshl_add_u32 v{vb+1}, v{vb+2}, 7, v{vb+1}
        buffer_load_dword v{vb+3}, v{vb+1}, s[{sX}:{sX+3}], 0 offen {fl}
        """)
    else:
        A(f"""
        s_cmp_ge_u32 s{S_XCD}, 4
        s_cselect_b32 s{sOUT}, s8, s6
        s_cselect_b32 s{sOUT+1}, s9, s7
        s_and_b32 s{sOUT+1}, s{sOUT+1}, 0xffff
        s_mov_b32 s{sOUT+2}, {2048*4096}
        s_mov_b32 s{sOUT+3}, 0x20000
        s_and_b32 s3, s{S_XCD}, 1
        s_lshl_b32 s3, s3, 5
        s_add_u32 s3, s3, s{S_J}
        s_lshl_b32 s3, s3, 4
        s_bfe_u32 s27, s{S_XCD}, 0x10001
        s_add_u32 s3, s3, s27
        s_lshl_b32 s3, s3, 12
        v_lshrrev_b32 v{vb}, 3, v1
        v_lshlrev_b32 v{vb}, 13, v{vb}
        v_and_b32 v{vb+1}, 7, v1
        v_lshl_add_u32 v{vb}, v{vb+1}, 7, v{vb}
        buffer_load_dword v{vb+2}, v{vb}, s[{sOUT}:{sOUT+3}], s3 offen {fl}
        """)


def gen(stamps=False, opt=None):
    opt = opt or {}
    HST = opt.get("hst", "sc1")
    HLD = opt.get("hld", "")
    TOUCH_AT = opt.get("touch_at", 2)
    HD = opt.get("hd", 12)
    VAT = opt.get("vat", 22)
    A = K(stamps)
    CT[0] = opt.get('ct', 3)
    P2 = opt.get('p2', 0)
    P1 = opt.get('p1', 0)
    st1 = lambda i: None if (P2 or P1) else A.stamp(i)
    _stamp = A.stamp
    if opt.get('p3'):
        st1 = lambda i: None
        A.stamp = lambda i: _stamp(i) if i in (0, 1, 8, 9, 10) else None
    if opt.get('light'):
        P1 = 0
        A.stamp = lambda i: _stamp(i) if i == 0 else None
    if P1:
        A.stamp = lambda i: _stamp(i) if i == 0 else None
    st2 = lambda i: A.stamp(i) if P2 else None
    A.stamp(0)
    if opt.get("dbg"):
        A("s_memrealtime s[92:93]\ns_memtime s[90:91]")
    A("""
    s_load_dwordx16 s[4:19], s[0:1], 0
    s_load_dwordx4 s[20:23], s[0:1], 64
    s_load_dwordx2 s[24:25], s[0:1], 80
    s_cmp_ge_u32 s2, 256
    s_cbranch_scc1 L_end
    """)
    A(f"s_lshr_b32 s{S_J}, s2, 3")
    if CT[0] == 3:
        A(f"""
        s_getpc_b64 s[48:49]
        L_pc0:
        v_cmp_gt_u32 vcc, 10, v0
        s_sub_u32 s48, s48, L_pc0-{NAME}
        s_subb_u32 s49, s49, 0
        s_mov_b32 s50, L_code_end-{NAME}
        s_mov_b32 s51, 0x20000
        s_lshl_b32 s3, s{S_J}, 7
        v_lshlrev_b32 v254, 12, v0
        s_and_saveexec_b64 s[26:27], vcc
        s_cbranch_execz L_ct0
        buffer_load_dword v255, v254, s[48:51], s3 offen
        L_ct0:
        s_mov_b64 exec, s[26:27]
        """)
    if opt.get("et", 0):
        A(f"""
        v_subrev_u32 v253, 64, v0
        v_cmp_gt_u32 vcc, 64, v253
        v_lshrrev_b32 v252, 4, v253
        v_lshl_add_u32 v252, s{S_J}, 2, v252
        v_mul_u32_u24 v252, 3584, v252
        v_and_b32 v253, 15, v253
        v_lshl_add_u32 v252, v253, 7, v252
        s_and_b32 s3, s2, 1
        s_mul_i32 s3, s3, 1792
        s_and_saveexec_b64 s[26:27], vcc
        s_cbranch_execz L_et0
        s_waitcnt lgkmcnt(0)
        s_mov_b32 s48, s16
        s_and_b32 s49, s17, 0xffff
        s_mov_b32 s50, {448*3584}
        s_mov_b32 s51, 0x20000
        buffer_load_dword v253, v252, s[48:51], s3 offen
        """)
        if opt["et"] == 2:
            A(f"s_add_u32 s3, s3, {128*3584}\nbuffer_load_dword v253, v252, s[48:51], s3 offen")
        A("L_et0:\ns_mov_b64 exec, s[26:27]")
    A("v_lshrrev_b32 v2, 6, v0\nv_and_b32 v1, 63, v0")
    A(f"s_and_b32 s{S_XCD}, s2, 7")
    A(f"v_readfirstlane_b32 s{S_W}, v2")
    A(f"s_cmp_lt_u32 s{S_J}, 28\ns_cbranch_scc1 L_ffn")
    A.c("@@HEAD")
    A("L_ffn:")

    S_RB, S_FT, S_KX, S_KW, S_MX, S_MW, S_T, S_CT = 63, 96, 97, 98, 99, 100, 101, 26
    S_FTL, S_JX, S_TAG, S_PF = 14, 86, 58, 59
    S_M2, S_K2, S_G2, S_HF, S_PT = 56, 57, 95, 94, 58
    A(f"""
    s_mul_i32 s27, s{S_J}, 37
    s_lshr_b32 s27, s27, 8
    s_mul_i32 s3, s27, 7
    s_sub_u32 s{S_CT}, s{S_J}, s3
    s_and_b32 s{S_RB}, s{S_XCD}, 6
    s_lshl_b32 s{S_RB}, s{S_RB}, 1
    s_add_u32 s{S_RB}, s{S_RB}, s27
    s_lshl_b32 s27, s27, 1
    s_add_u32 s{S_G2}, s{S_CT}, s27
    """)
    mod7(A, S_G2, 3, 14)
    VD, XA, WA, ONES = 2, 8, 16, 20
    VW2, VEP = 6, 18
    FX = [24, 48]; FW = [40, 64]
    ACC, RS, CS = 72, 104, 108
    S_MD = 52
    sL = sW1
    A(f"""
    s_and_b32 s{S_JX}, s{S_XCD}, 1
    s_mul_i32 s3, s{S_JX}, 7
    s_add_u32 s{S_FT}, s{S_G2}, s3
    v_lshrrev_b32 v31, 4, v1
    v_mov_b32 v35, 896
    s_movk_i32 s3, 0xe2
    s_bitcmp1_b32 s3, s{S_W}
    s_cbranch_scc1 L_ldw
    s_max_u32 s{S_KX}, s{S_W}, 1
    s_add_u32 s{S_KX}, s{S_KX}, s{S_CT}
    s_add_u32 s{S_KX}, s{S_KX}, 3
    s_and_b32 s{S_KX}, s{S_KX}, 3
    s_lshl_b32 s3, s{S_RB}, 6
    s_lshr_b32 s27, s{S_KX}, 1
    s_add_u32 s3, s3, s27
    v_lshrrev_b32 v30, 3, v1
    v_lshl_add_u32 v30, v30, 1, s3
    v_and_b32 v32, 7, v1
    v_xor_b32 v32, v32, v31
    v_lshlrev_b32 v32, 4, v32
    s_lshl_b32 s{S_MD}, s{S_KX}, 12
    s_bitcmp1_b32 s{S_KX}, 0
    s_cselect_b32 s3, -1, 1
    s_cselect_b32 s27, 2048, 0
    v_mul_i32_i24 v30, s3, v30
    v_add_u32 v30, s27, v30
    s_mul_i32 s3, s3, {16*896}
    v_mad_u32_u24 v33, v30, v35, v32
    v_lshrrev_b32 v34, 11, v30
    v_mul_u32_u24 v34, {1024*896}, v34
    v_sub_u32 v{VD}, v33, v34
    v_xor_b32 v32, 64, v32
    v_mad_u32_u24 v32, v30, v35, v32
    v_add_u32 v{VD+1}, s3, v32
    s_lshl_b32 s3, s3, 1
    v_add_u32 v{VD+2}, s3, v33
    v_add_u32 v{VD+3}, s3, v{VD+1}
    s_add_u32 s{S_MD+1}, s{S_MD}, 1024
    s_add_u32 s{S_MD+2}, s{S_MD}, 2048
    s_add_u32 s{S_MD+3}, s{S_MD}, 3072
    """)
    A(f"s_movk_i32 s{S_MX}, 128\ns_waitcnt lgkmcnt(0)")
    A.srd(sL, 4, 2048 * 896)
    A("s_branch L_ldok")
    A("L_ldw:")
    A(f"""
    s_max_u32 s{S_KX}, s{S_W}, 4
    s_add_u32 s{S_KX}, s{S_KX}, s{S_RB}
    s_lshl_b32 s{S_KX}, s{S_KX}, 2
    v_lshlrev_b32 v33, 1, v31
    v_and_b32 v34, 15, v1
    v_xor_b32 v33, v33, v34
    v_mul_u32_u24 v34, 3584, v31
    v_lshl_add_u32 v32, v33, 4, v34
    v_xor_b32 v33, 128, v32
    s_and_b32 s{S_MD}, s{S_KX}, 15
    s_mul_i32 s27, s{S_MD}, {4*3584}
    s_lshl_b32 s3, s{S_FT}, 8
    s_add_u32 s27, s27, s3
    v_add_u32 v{VD}, s27, v32
    v_add_u32 v{VD+2}, s27, v33
    v_add_u32 v{VD+1}, {4*3584}, v{VD}
    v_add_u32 v{VD+2}, {8*3584}, v{VD+2}
    v_add_u32 v{VD+3}, {4*3584}, v{VD+2}
    s_lshl_b32 s{S_MD}, s{S_MD}, 10
    s_add_u32 s{S_MD}, s{S_MD}, 16384
    s_add_u32 s{S_MD+1}, s{S_MD}, 1024
    s_add_u32 s{S_MD+2}, s{S_MD}, 2048
    s_add_u32 s{S_MD+3}, s{S_MD}, 3072
    s_mov_b32 s{S_MX}, {64*3584}
    s_waitcnt lgkmcnt(0)
    """)
    A.srd(sL, 16, 448 * 3584)
    A("L_ldok:")
    A.srd(sX, 4, 2048 * 896)

    def p1_dmas(st):
        slot = st % 5
        return [A.dma2(VD + i, sL, f"s{S_KX}", f"s_add_u32 m0, s{S_MD+i}, {slot*32768}", ("p1", st),
                       pre=None if i else f"s_mul_i32 s{S_KX}, s{S_MX}, {st}", flags=p1fl[0]) for i in range(4)]
    p1fl = [""]

    def burst(dmas):
        for a_, b_ in dmas:
            a_(); A("s_nop 0"); b_()

    def p1_setup():
        A.srd(sWS, 24, WS_SIZE + (0x40000 if stamps else 0))
        A(f"""
        s_mov_b32 s{S_FTL}, s{S_G2}
        s_lshl_b32 s{S_HF}, s{S_XCD}, 2
        s_and_b32 s3, s{S_RB}, 3
        s_add_u32 s{S_HF}, s{S_HF}, s3
        s_lshl_b32 s{S_HF}, s{S_HF}, 7
        s_add_u32 s{S_HF}, s{S_HF}, {WS_HFLAG}
        v_mov_b32 v35, {WS_EPOCH}
        """)
        A.vmem(f"buffer_load_dword v{VEP}, v35, s[{sWS}:{sWS+3}], 0 offen sc1", "ep")
        if opt.get("lf", 1):
            A("v_mov_b32 v35, 4096")
            A.vmem(f"buffer_load_dword v{VEP+1}, v35, s[{sWS}:{sWS+3}], s{S_HF} offen sc1", "ep")
        A(f"""
        v_and_b32 v32, 15, v1
        v_lshrrev_b32 v33, 1, v32
        v_xor_b32 v33, v33, v31
        v_lshlrev_b32 v33, 4, v33
        v_lshl_add_u32 v33, v32, 7, v33
        s_lshl_b32 s3, s{S_W}, 11
        v_add_u32 v{XA}, s3, v33
        """)
        for rb in range(1, 4):
            A(f"v_xor_b32 v{XA+rb}, {rb*2048}, v{XA}")
        for rb in range(4):
            A(f"v_xor_b32 v{XA+4+rb}, 64, v{XA+rb}")
        A(f"""
        v_bfe_u32 v30, v1, 2, 2
        v_lshl_add_u32 v32, v31, 3, v30
        v_lshlrev_b32 v32, 8, v32
        v_and_b32 v33, 3, v1
        v_lshl_add_u32 v32, v33, 3, v32
        v_add_u32 v32, 16384, v32
        v_and_b32 v33, 1, v31
        v_lshl_or_b32 v33, v33, 2, v30
        s_and_b32 s3, s{S_W}, 3
        s_lshl_b32 s3, s3, 1
        s_lshr_b32 s27, s{S_W}, 2
        s_or_b32 s3, s3, s27
        v_xor_b32 v33, s3, v33
        v_lshl_add_u32 v{WA}, v33, 5, v32
        v_xor_b32 v{WA+1}, 32, v{WA}
        """)
        for i in range(4):
            A(f"v_mov_b32 v{ONES+i}, 0x3f803f80")
        A.srd(sW2, 18, 1792 * 896)
        A(f"""
        s_lshl_b32 s{S_T}, s{S_RB}, 1
        s_add_u32 s{S_T}, s{S_T}, s{S_JX}
        v_lshrrev_b32 v30, 3, v1
        v_mul_u32_u24 v32, 896, v30
        v_and_b32 v30, 6, v30
        v_and_b32 v33, 7, v1
        v_xor_b32 v30, v30, v33
        v_lshl_add_u32 v32, v30, 4, v32
        s_lshl_b32 s3, s{S_CT}, 7
        s_mul_i32 s27, s{S_W}, {8*896}
        s_add_u32 s3, s3, s27
        v_add_u32 v{VW2}, s3, v32
        s_lshl_b32 s{S_M2}, s{S_W}, 10
        s_and_b32 s3, s{S_W}, 2
        s_add_u32 s3, s3, s{S_JX}
        s_lshl_b32 s3, s3, 2
        s_lshr_b32 s27, s{S_T}, 3
        s_add_u32 s3, s3, s27
        s_lshl_b32 s3, s3, 7
        s_add_u32 s59, s3, {WS_VFLAG}
        v_mov_b32 v35, 0
        """)
        A.vmem(f"buffer_load_dword v{VEP+1}, v35, s[{sWS}:{sWS+3}], s59 offen sc1", "ep")

    def wpair_addr(p):
        if p < 12:
            return 65536 + 8192 * p
        if p < 14:
            return 16384 + 8192 * (p - 12)
        return [32768, 40960, 0, 65536, 49152, 57344, 8192, 73728][p - 14]

    def w_dma(p):
        if p < 14:
            srd = sW2
            if p % 2 == 0:
                pre = (f"s_mul_i32 s{S_K2}, s{S_JX}, 7\ns_add_u32 s{S_K2}, s{S_K2}, s{S_G2}\ns_mul_i32 s{S_K2}, s{S_K2}, {128*896}\n"
                       f"s_add_u32 s{S_G2}, s{S_G2}, 1\ns_cmp_eq_u32 s{S_G2}, 7\ns_cselect_b32 s{S_G2}, 0, s{S_G2}")
            else:
                pre = f"s_add_u32 s{S_K2}, s{S_K2}, {64*896}"
        else:
            srd = sWD if p < 18 else sW1
            pre = f"s_mov_b32 s{S_K2}, {((p - 14) % 4)*64*896}"
        return A.dma2(VW2, srd, f"s{S_K2}", f"s_add_u32 m0, s{S_M2}, {wpair_addr(p)}", ("w", p), pre=pre)

    def place(dmas, g0, g1):
        r = []
        for k, (a_, b_) in enumerate(dmas):
            g = g0 + 1 + k * (g1 - g0) // len(dmas)
            r += [(g - 1, a_), (g, b_)]
        return r

    def p1_reads(st, q, buf):
        so = ((st % 5) & 1) * 32768
        r = []
        for rb in range(4):
            r.append(lambda rb=rb: A.lds(f"ds_read_b128 {v(FX[buf]+4*rb,4)}, v{XA + 4*q + rb} offset:{so}", ("f", st, q)))
        for cb in range(2):
            for h in range(2):
                r.append(lambda cb=cb, h=h: A.lds(f"ds_read_b64_tr_b16 {v(FW[buf]+4*cb+2*h,2)}, v{WA+cb} offset:{so + q*8192 + h*1024}", ("f", st, q)))
        return r

    def p1_mfma(buf, first):
        z = "0" if first else None
        r = [lambda: A.mfma(RS, ONES, FX[buf], z), lambda: A.mfma(CS, FW[buf], ONES, z)]
        for cb in range(2):
            for rb in range(4):
                r.append(lambda cb=cb, rb=rb: A.mfma(ACC + (cb * 4 + rb) * 4, FW[buf] + 4 * cb, FX[buf] + 4 * rb, z))
        return r

    def p1_addr_step(st):
        d = {2: 65536, 4: 65536, 5: -131072}.get(st)
        if not d:
            return []
        return [(8 + k // 5, lambda r=r: A(f"v_add_u32 v{r}, {d & 0xffffffff}, v{r}"))
                for k, r in enumerate(list(range(XA, XA + 8)) + [WA, WA + 1])]

    def lines(txt, g0, g1):
        ex = [x for x in txt.strip().split("\n") if x.strip()]
        return [(g0 + k * (g1 - g0) // len(ex), lambda x=x: A(x)) for k, x in enumerate(ex)]

    VID = 120
    WA2, WB, WC, VH, VO, VL, VZ = 8, 12, 112, 2, 4, 16, 7
    FW2 = [24, 40]
    AC2, HF, VF = 56, 128, 192
    p2_setup = f"""
    v_lshlrev_b32 v{VL}, 4, v1
    v_mov_b32 v{VZ}, 0
    v_lshrrev_b32 v124, 4, v1
    v_bfe_u32 v125, v1, 2, 2
    v_lshl_add_u32 v126, v124, 2, v125
    v_lshrrev_b32 v127, 1, v126
    v_and_b32 v127, 3, v127
    v_lshlrev_b32 v126, 7, v126
    v_and_b32 v125, 3, v1
    v_lshl_add_u32 v126, v125, 3, v126
    """ + "".join(f"""
    v_xor_b32 v125, {eb}, v127
    v_lshl_add_u32 v{WA2+eb}, v125, 5, v126
    v_add_u32 v{WB+eb}, 0x10000, v{WA2+eb}
    v_add_u32 v{WC+eb}, 0x20000, v{WA2+eb}""" for eb in range(4)) + f"""
    s_lshl_b32 s{S_K2+32}, s{S_T}, 2
    s_and_b32 s{S_K2+33}, s{S_W}, 3
    s_add_u32 s{S_K2+32}, s{S_K2+32}, s{S_K2+33}
    s_mul_i32 s{S_K2+34}, s{S_K2+32}, {H_STRIDE}
    v_add_u32 v{VH}, s{S_K2+34}, v{VL}
    s_xor_b32 s{S_K2+34}, s{S_K2+32}, 4
    s_mul_i32 s{S_K2+34}, s{S_K2+34}, {H_STRIDE}
    v_add_u32 v{VH+1}, s{S_K2+34}, v{VL}
    s_and_b32 s{S_K2+32}, s{S_K2+32}, 7
    s_lshl_b32 s{S_K2+32}, s{S_K2+32}, 12
    s_add_u32 s{S_K2+32}, s{S_K2+32}, 32768
    v_add_u32 v238, s{S_K2+32}, v{VL}
    v_xor_b32 v239, 16384, v238
    s_lshl_b32 s{S_K2+32}, s{S_RB}, 6
    s_add_u32 s{S_K2+32}, s{S_K2+32}, s{S_JX}
    s_and_b32 s{S_K2+33}, s{S_W}, 1
    s_lshl_b32 s{S_K2+33}, s{S_K2+33}, 5
    s_add_u32 s{S_K2+33}, s{S_K2+33}, s{S_K2+32}
    v_lshrrev_b32 v124, 3, v1
    v_lshl_add_u32 v125, v124, 1, s{S_K2+33}
    s_bfe_u32 s{S_K2+32}, s{S_W}, 0x10001
    s_lshl_b32 s{S_K2+33}, s{S_K2+32}, 11
    s_lshl_b32 s{S_K2+32}, s{S_K2+32}, 1
    s_sub_u32 s{S_K2+32}, 1, s{S_K2+32}
    v_mul_i32_i24 v125, s{S_K2+32}, v125
    v_add_u32 v125, s{S_K2+33}, v125
    s_mul_i32 s{S_K2+32}, s{S_K2+32}, {16*896}
    s_lshl_b32 s{S_K2+33}, s{S_CT}, 7
    v_mul_u32_u24 v126, 896, v125
    v_add_u32 v126, s{S_K2+32}, v126
    v_lshrrev_b32 v127, 11, v125
    v_lshlrev_b32 v127, 10, v127
    v_sub_u32 v125, v125, v127
    v_mul_u32_u24 v125, 896, v125
    v_and_b32 v127, 7, v1
    v_xor_b32 v127, v127, v124
    v_lshlrev_b32 v127, 4, v127
    v_add_u32 v127, s{S_K2+33}, v127
    v_add_u32 v{VO}, v125, v127
    v_add_u32 v{VO+1}, v126, v127
    """
    for k in range(3):
        p2_setup = p2_setup.replace(f"s{S_K2+32+k}", f"s{48+k}")
    WPRE = opt.get("wpre", 12)

    def phase1(cls):
        K0 = opt.get("k0", 2) if cls == 0 else opt.get("k1", 2)
        p1fl[0] = opt.get("shfl", "") if cls == 0 else ""
        if cls == 0:
            if opt.get("xt", 0) == 2:
                A(f"s_cmp_lg_u32 s{S_W}, 1\ns_cbranch_scc1 L_notouch0")
                start_touch(A, opt, "x", 124)
                A("L_notouch0:")
            for s_ in range(K0):
                burst(p1_dmas(s_))
            A(f"s_cmp_lg_u32 s{S_W}, 0\ns_cbranch_scc1 L_notouch")
            if opt.get("xt", 0) == 1:
                start_touch(A, opt, "x", 124)
            code_touch(A)
            A("L_notouch:")
            p1_setup()
        else:
            p1_setup()
            for s_ in range(K0):
                burst(p1_dmas(s_))
        A.wait(vm=("p1", 0))
        A("s_barrier")
        st1(2)
        if P1: _stamp(1)
        for f in p1_reads(0, 0, 0):
            f()
        queue = []
        for s_ in range(K0, 7):
            for i in range(4):
                first = max(0, 2 * (s_ - 5) + 1)
                if cls == 1:
                    first = max(first, 2 * s_ - opt.get("la1", 5) + i // 2)
                queue.append((first, lambda s_=s_, i=i: p1_dmas(s_)[i]))
        wn = WPRE
        for p in range(WPRE):
            queue.append((max(2 * (2 + p // 4) + 1 if p < 12 else 13, min(13, opt.get("w0", 8) + p // 2)), lambda p=p: w_dma(p)))
        rate = (opt.get("r0", 4), 4)
        for st in range(7):
            for q in range(2):
                fl = []
                if q == 0:
                    A.wait(lg=("f", st, 0))
                    fl += list(enumerate(p1_reads(st, 1, 1))) + p1_addr_step(st + 1)
                else:
                    if st < 6:
                        if P1 == 2: _stamp(st + 2)
                        A.wait(vm=("p1", st + 1), lg=0)
                        if P1 == 3: _stamp(st + 2)
                        A("s_barrier")
                        if P1 == 1: _stamp(st + 2)
                        fl += list(enumerate(p1_reads(st + 1, 0, 0)))
                    else:
                        A.wait(lg=0)
                dm = []
                blk = 2 * st + q
                while queue and len(dm) < rate[cls] and queue[0][0] <= blk:
                    dm.append(queue.pop(0)[1]())
                if dm:
                    fl += place(dm, 1, 9)
                if (st, q) == (0, 1):
                    fl += lines(f"""
                    v_readfirstlane_b32 s{S_TAG}, v{VEP}
                    s_lshl_b32 s27, s{S_CT}, 2
                    v_mov_b32 v{VID+1}, s27
                    s_mul_i32 s{S_TAG}, s{S_TAG}, {TAGMUL}
                    s_add_u32 s{S_TAG}, s{S_TAG}, {TAGADD}
                    v_min_u32 v{VID+3}, 6, v1
                    v_lshlrev_b32 v{VID+3}, 2, v{VID+3}
                    """, 0, 8)
                    A.wait(vm="ep")
                if cls == 0 and opt.get("dum", 0) and 2 * st + q == opt.get("dumb", 0):
                    def dummy():
                        for s_ in range(5, 7):
                            A(f"s_mul_i32 s3, s{S_MX}, {s_}")
                            for i in range(4):
                                A.vmem(f"buffer_load_dwordx4 v[252:255], v{VD+i}, s[{sL}:{sL+3}], s3 offen")
                    fl.append((9, dummy))
                if cls == 0 and 2 * st + q == opt.get("wtb", 5):
                    def wt():
                        A(f"s_cmp_lg_u32 s{S_W}, 1\ns_cbranch_scc1 L_notouch3")
                        A(f"""
                        v_lshlrev_b32 v124, 7, v1
                        s_mul_i32 s3, s2, {56*128}
                        s_mov_b32 exec_hi, 0xffffff
                        buffer_load_dword v125, v124, s[{sW2}:{sW2+3}], s3 offen
                        s_mov_b64 exec, -1
                        """)
                        A("L_notouch3:")
                    fl.append((9, wt))
                if (st, q) == (6, 1):
                    fl += lines(f"""
                    v_and_b32 v30, 15, v1
                    v_lshlrev_b32 v30, 2, v30
                    s_lshl_b32 s3, s{S_W}, 6
                    v_add_u32 v30, s3, v30
                    v_lshrrev_b32 v31, 4, v1
                    v_lshlrev_b32 v31, 4, v31
                    s_and_b32 s27, s{S_W}, 3
                    s_lshl_b32 s27, s27, 7
                    s_lshr_b32 s3, s{S_W}, 2
                    s_lshl_b32 s3, s3, 6
                    s_add_u32 s27, s27, s3
                    v_add_u32 v31, s27, v31
                    v_xor_b32 v32, 64, v30
                    v_xor_b32 v33, 128, v30
                    v_xor_b32 v34, 192, v30
                    v_xor_b32 v35, 64, v31
                    """, 0, 8)
                    fl += lines(p2_setup, 0, 9)
                    fl.append((9, lambda: A.lds(f"ds_write_b32 v30, v{RS}")))
                    fl.append((9, lambda: A.lds(f"ds_write_b128 v31, {v(CS,4)} offset:512")))
                A.weave(p1_mfma(q, st == 0 and q == 0), fl)
        assert not queue, len(queue)
        if opt.get("tre", 0):
            A.wait(vm=("w", 2 * opt.get("tre", 0) - 1))
        return wn
    A(f"s_cmp_ge_u32 s{S_W}, 2\ns_cbranch_scc1 L_p1b")
    WN = phase1(0)
    A("s_branch L_p1done")
    A("L_p1b:")
    A.reset()
    phase1(1)
    A("L_p1done:")
    A.reset()
    st1(3)
    if P1: _stamp(8)
    A.wait(lg=0)
    A("s_barrier")
    if P1: _stamp(9)
    S_HS = S_MD

    def epilogue(wr):
        A.reset()
        MB = 24; CS1 = 28
        A.lds(f"ds_read_b32 v{MB+1}, v32")
        A.lds(f"ds_read_b32 v{MB+2}, v33")
        A.lds(f"ds_read_b32 v{MB+3}, v34")
        A.lds(f"ds_read_b128 {v(CS1,4)}, v35 offset:512")
        A(f"""
        s_lshl_b32 s{S_KX}, s{S_RB}, 3
        s_mul_i32 s{S_KX}, s{S_KX}, 56
        s_lshl_b32 s{S_KW}, s{S_FT}, 2
        s_add_u32 s{S_KX}, s{S_KX}, s{S_KW}
        s_and_b32 s27, s{S_W}, 3
        s_add_u32 s{S_KX}, s{S_KX}, s27
        s_lshl_b32 s{S_KX}, s{S_KX}, 10
        s_lshl_b32 s27, s27, 10
        s_add_u32 s27, s27, 32768
        v_add_u32 v34, s27, v{VL}
        s_mov_b32 s3, {0x3b124925}
        v_mul_f32 v{MB}, s3, v{RS}
        """)
        A.wait(lg=0)
        for i in range(1, 4):
            A(f"v_mul_f32 v{MB+i}, s3, v{MB+i}")
        A(f"v_cvt_pk_bf16_f32 v32, v{MB}, v{MB+1}\nv_cvt_pk_bf16_f32 v33, v{MB+2}, v{MB+3}")
        A(f"v_lshlrev_b32 v{MB}, 16, v32\nv_and_b32 v{MB+1}, 0xffff0000, v32\nv_lshlrev_b32 v{MB+2}, 16, v33\nv_and_b32 v{MB+3}, 0xffff0000, v33")
        PK = 36
        for rb in range(4):
            sel = "op_sel:[0,1,0] op_sel_hi:[1,1,1]" if rb & 1 else "op_sel_hi:[1,0,1]"
            d = PK + 4 * rb
            for cb in range(2):
                a0 = ACC + (cb * 4 + rb) * 4
                for hh in range(2):
                    A(f"v_pk_fma_f32 {v(a0+2*hh,2)}, {v((CS, CS1)[cb]+2*hh,2)}, {v(MB+(rb&2),2)}, {v(a0+2*hh,2)} {sel} neg_lo:[1,0,0] neg_hi:[1,0,0]")
            for cb in range(2):
                a0 = ACC + (cb * 4 + rb) * 4
                for hh in range(2):
                    A(f"v_cvt_pk_bf16_f32 v{d+2*(cb^wr)+hh}, v{a0+2*hh}, v{a0+2*hh+1}")
            for i in range(4):
                A(f"v_pk_max_i16 v{d+i}, v{d+i}, 0")
            A(f"s_xor_b32 s27, s{S_W}, {rb}\ns_mul_i32 s{S_MD+rb}, s27, {H_STRIDE}\ns_add_u32 s{S_MD+rb}, s{S_MD+rb}, s{S_KX}")
            A.vmem(f"buffer_store_dwordx4 {v(PK+4*rb,4)}, v{VL}, s[{sWS}:{sWS+3}], s{S_MD+rb} offen sc1", ("hst", rb))
            A(f"s_lshl_b32 s27, s27, 12\nv_add_u32 v35, s27, v34")
            A.lds(f"ds_write_b128 v35, {v(PK+4*rb,4)}")
        st1(4)
        if P1: _stamp(10)
        A.stamp(5)

    def readback(vb):
        if opt.get("rb", 0):
            A(f"""
            v_lshrrev_b32 v{vb}, 3, v1
            v_xor_b32 v{vb}, s{S_W}, v{vb}
            v_mul_u32_u24 v{vb}, {H_STRIDE}, v{vb}
            v_and_b32 v{vb+1}, 7, v1
            v_lshl_add_u32 v{vb}, v{vb+1}, 7, v{vb}
            s_mov_b32 exec_hi, 0
            """)
            A.vmem(f"buffer_load_dword v{vb+1}, v{vb}, s[{sWS}:{sWS+3}], s{S_HB} offen")
            A("s_mov_b32 exec_hi, -1")
    S_HB = 59
    S_H, S_GH = S_KX, S_KW
    TRB = opt.get("trb", 0)
    assert TRB <= 2 * WN and TRB % 4 == 0
    NAL = opt.get("nal", 24)
    B0 = 4 + NAL

    def w_reads(key, i, both=True):
        r = []
        if i < TRB:
            a_ = wpair_addr(i >> 1) + (i & 1) * 4096
            return [lambda eb=eb: A.lds(f"ds_read_b128 {v(FW2[key&1]+4*eb,4)}, v{240+(a_>>16)} offset:{(a_ & 0xffff) + eb*1024}", ("wf", key, eb >> 1))
                    for eb in range(4)]
        for eb in range(4):
            for h in range(2):
                if i < 28:
                    a_ = wpair_addr(i >> 1) + (i & 1) * 4096
                    reg, off = (WA2, WB, WC)[a_ >> 16] + eb, (a_ & 0xffff) + h * 2048
                else:
                    u = i - 28
                    reg, off = ((WA2, u * 4096) if u < 4 else ((WB, WC)[(u - 4) >> 1], (u & 1) * 4096))
                    reg, off = reg + eb, off + h * 2048
                r.append(lambda reg=reg, off=off, eb=eb, h=h: A.lds(f"ds_read_b64_tr_b16 {v(FW2[key&1]+4*eb+2*h,2)}, v{reg} offset:{off}", ("wf", key, eb >> 1)))
        return r

    YS, ZS = 32768, 0
    XS = TS = 4096

    A(f"s_cmp_ge_u32 s{S_W}, 4\ns_cbranch_scc1 L_aux")
    epilogue(0)
    seq = [(i, (0, 1)) for i in range(4)] + [(i, (1,)) for i in range(4, B0)] + [(i, (0, 1)) for i in range(B0, 28)] + [(i, (0,)) for i in range(4, B0)]
    hl = [(n, tt) for n, (i, tts) in enumerate(seq) for tt in tts]
    NSL = opt.get("nsl", 16)
    slot = {k: HF + (idx % NSL) * 4 for idx, k in enumerate(hl)}
    state_h = dict(next=8, grp=None)

    def h_next():
        idx = state_h["next"]
        if idx >= len(hl):
            return
        state_h["next"] += 1
        n, tt = hl[idx]
        i = seq[n][0]
        if state_h["grp"] != i // 4 and not (opt.get("hfix") and state_h["grp"]):
            state_h["grp"] = i // 4
            A(f"s_add_u32 s{S_H}, s{S_FTL}, {i // 4}\ns_cmp_ge_u32 s{S_H}, 7\ns_cselect_b32 s3, 7, 0\ns_sub_u32 s{S_H}, s{S_H}, s3")
            A(f"s_add_u32 s{S_H}, s{S_H}, s{S_GH}\ns_lshl_b32 s{S_H}, s{S_H}, 12")
        if opt.get("noh"):
            A.vm.append(("h", n, tt)); A.vm_done = len(A.vm)
            return
        A.vmem(f"buffer_load_dwordx4 {v(slot[(n, tt)], 4)}, v{VH+tt}, s[{sWS}:{sWS+3}], s{S_H} offen offset:{(i%4)*1024} {HLD}", ("h", n, tt))

    def step(n, extra=()):
        i, tts = seq[n]
        nm = 4 * len(tts)
        fl = list(extra)
        if n + 1 < len(seq):
            rd = w_reads(n + 1, seq[n + 1][0])
            fl += [(k * nm // len(rd), f) for k, f in enumerate(rd)]
        if n >= 1:
            fl += [(1 + 4 * k, h_next) for k in range(len(seq[n - 1][1]))]
        mf = []
        for eb in range(4):
            for tt in tts:
                def f(eb=eb, tt=tt):
                    if eb % 2 == 0 and tt == tts[0]:
                        A.wait(vm=("h", n, tts[-1]) if eb == 0 and n >= 4 else None, lg=("wf", n, eb >> 1))
                    A.mfma(AC2 + (tt * 4 + eb) * 4, FW2[n & 1] + 4 * eb, slot[(n, tt)], "0" if n == 0 else None)
                mf.append(f)
        A.weave(mf, fl)

    PR, XU = 192, 208
    fin = f"""
    v_and_b32 v20, 15, v1
    v_lshrrev_b32 v21, 4, v1
    v_lshrrev_b32 v22, 1, v21
    v_and_b32 v23, 7, v20
    v_xor_b32 v22, v22, v23
    v_lshlrev_b32 v22, 4, v22
    v_lshl_add_u32 v22, v20, 7, v22
    v_and_b32 v21, 1, v21
    v_lshl_add_u32 v22, v21, 3, v22
    s_lshl_b32 s27, s{S_W}, 11
    s_add_u32 s27, s27, {TS}
    v_add_u32 v232, s27, v22
    v_add_u32 v23, s27, v{VL}
    v_xor_b32 v233, 32, v232
    v_xor_b32 v234, 64, v232
    v_xor_b32 v235, 96, v232
    ds_read_b64 v[224:225], v232
    ds_read_b64 v[226:227], v233
    ds_read_b64 v[228:229], v234
    ds_read_b64 v[230:231], v235
    s_lshl_b32 s27, s{S_W}, 6
    s_add_u32 s27, s27, {YS + 20480}
    v_lshl_add_u32 v20, v20, 2, s27
    s_and_b32 s27, s{S_W}, 1
    s_lshl_b32 s27, s27, 12
    s_add_u32 s27, s27, {YS}
    v_add_u32 v19, s27, v{VL}
    s_xor_b32 s{S_MW}, s{S_W}, 2
    s_or_b32 s{S_MW}, s{S_MW}, s{S_T}
    s_sub_u32 s{S_MW}, s{S_MW}, 1
    s_lshr_b32 s{S_MW}, s{S_MW}, 31
    s_lshl_b32 s{S_MW}, s{S_MW}, 14
    v_add_u32 v18, s{S_MW}, v19
    s_lshl_b32 s27, s{S_W}, 30
    s_and_b32 s27, s27, 0x80000000
    s_or_b32 s27, s27, 1.0
    v_mov_b32 v237, s27
    s_xor_b32 s{S_FT}, s{S_MX}, 16384
    s_and_b32 s{S_G2}, s{S_PT}, {1 if opt.get('pb', 1) else 0xff}
    """.strip().split("\n")
    fin = [x.strip() for x in fin]
    unp = [f"v_lshlrev_b32 v{XU+2*k}, 16, v{224+k}" if b_ == 0 else f"v_and_b32 v{XU+2*k+1}, 0xffff0000, v{224+k}" for k in range(8) for b_ in range(2)]

    PB = opt.get("pb", 1)

    def p_loads(track):
        for eb in range(2 if PB else 4):
            t_ = f"buffer_load_dwordx4 {v(PR+4*eb,4)}, v{VL}, s[{sWS}:{sWS+3}], s{S_FT} offen offset:{eb*1024} sc1"
            A.vmem(t_, "part") if track else A(t_)
    TRE = min(opt.get("tre", 0), TRB // 4)

    def transpose(b0, b1):
        def tr_in(b):
            a_ = wpair_addr(2 * b)
            for eb in range(4):
                for h in range(2):
                    A.lds(f"ds_read_b64_tr_b16 {v(160+16*(b&1)+4*eb+2*h,2)}, v{240+4*(a_>>16)+eb} offset:{(a_ & 0xffff) + h*2048}", ("tr", b))
        if b0 < b1:
            tr_in(b0)
        for b in range(b0, b1):
            if b + 1 < b1:
                tr_in(b + 1)
            A.wait(lg=("tr", b))
            a_ = wpair_addr(2 * b)
            for eb in range(4):
                A.lds(f"ds_write_b128 v{252+(a_>>16)}, {v(160+16*(b&1)+4*eb,4)} offset:{(a_ & 0xffff) + eb*1024}")
    A(f"s_lshl_b32 s3, s2, 14\ns_lshl_b32 s27, s{S_W}, 12\ns_add_u32 s3, s3, s27\ns_add_u32 s{S_MX}, s3, {WS_PART}")
    A.srd(sOUT, 20, 2048 * 896)
    A(f"s_lshl_b32 s{S_H}, s{S_W}, 11")
    for ps in range(2):
        A.dma(VO + ps, sX, "0", f"s_add_u32 m0, s{S_H}, {XS + ps*1024}", "xr")
    if TRB:
        A(f"s_lshl_b32 s3, s{S_W}, 12")
        for k, base in enumerate((WA2, WB, WC)):
            for eb in range(4):
                A(f"v_add_u32 v{240+4*k+eb}, s3, v{base+eb}")
            A(f"v_add_u32 v{252+k}, s3, v{VL}" + (f"\nv_add_u32 v{252+k}, {k << 16}, v{252+k}" if k else ""))
    transpose(0, TRE)
    for x in fin:
        if not x.startswith("ds_"):
            A(x.replace(f"s{S_G2}", "s48").replace("s48", f"s{S_HB}") if False else x) if f"s{S_G2}" not in x else None
    A.wait(vm=0, lg=0)
    for x in fin:
        if x.startswith("ds_"):
            A.lds(x)
    burst([w_dma(p) for p in range(WN, 14)])
    A("s_barrier")
    A(f"s_cmp_lg_u32 s{S_W}, 3\ns_cbranch_scc1 L_nopub")
    A(f"v_mov_b32 v236, s{S_TAG}\ns_mov_b64 exec, 1")
    if opt.get("lf", 1):
        A(f"s_add_u32 s3, s{S_HF}, 4096")
        A(f"buffer_store_dword v236, v{VID+1}, s[{sWS}:{sWS+3}], s3 offen offset:16")
    A(f"buffer_store_dword v236, v{VID+1}, s[{sWS}:{sWS+3}], s{S_HF} offen offset:16 sc1")
    A("s_mov_b64 exec, -1")
    A("L_nopub:")
    A.stamp(7)
    for x in fin:
        if f"s{S_G2}" in x:
            A(x)
    for n in range(4):
        for tt in range(2):
            A.lds(f"ds_read_b128 {v(slot[(n, tt)],4)}, v{238+tt} offset:{n*1024}")
    A.wait(lg=0)
    for x in unp:
        A(x)
    A(f"s_mul_i32 s{S_GH}, s{S_JX}, 7")
    transpose(TRE, TRB // 4)
    if TRB:
        A(f"v_add_u32 v241, 0x10000, v{VL}\nv_add_u32 v242, 0x20000, v{VL}\nv_mov_b32 v240, v{VL}")
    A(f"s_cmp_lg_u32 s{S_W}, 3\ns_cbranch_scc1 L_nopoll")
    if opt.get("lf", 1):
        A(f"""
        s_mov_b32 s27, 0x40000
        L_hpoll:
        s_and_b32 s3, s27, 3
        s_cselect_b32 s3, {4096 + 16}, 16
        s_add_u32 s3, s3, s{S_HF}
        buffer_load_dword v236, v{VID+3}, s[{sWS}:{sWS+3}], s3 offen sc1
        s_waitcnt vmcnt(0)
        v_cmp_eq_u32 vcc, s{S_TAG}, v236
        s_nop 1
        s_cmp_eq_u64 vcc, exec
        s_cbranch_scc1 L_nopoll
        s_sub_u32 s27, s27, 1
        s_cbranch_scc0 L_hpoll
        """.replace("0x40000", "0x3ffff"))
    else:
        A(f"s_add_u32 s3, s{S_HF}, 16")
        A.poll(VID + 3, sWS, "s3", "eq", 64, S_TAG, vtmp=236)
    A("L_nopoll:")
    A.wait(vm=0, lg=0)
    A("s_barrier")
    if not P2: A.stamp(1)
    for k in range(NSL - 8):
        h_next()
    for f in w_reads(0, 0):
        f()
    if opt.get("prio", 1):
        A(f"s_setprio {opt.get('prio', 1)}")
    for n in range(len(seq)):
        ex = []
        if opt.get("p3") and n in (0, 4, 12, 20, 36, 44):
            _stamp({0: 2, 4: 3, 12: 4, 20: 5, 36: 6, 44: 7}[n])
        if n == opt.get("m2n", -1):
            A("s_barrier")
        if n == 28:
            A.stamp(8)
            A(f"""
            v_mov_b32 v236, s{S_G2}
            s_movk_i32 s27, {1 if PB else 0xff}
            s_nop 5
            """)
            for k in range(2 if PB else 0):
                for r in range(4):
                    A(f"v_cvt_pk_bf16_f32 v{AC2+16+4*k+r}, v{AC2+16+8*k+2*r}, v{AC2+17+8*k+2*r}")
                for r in range(4):
                    A(f"v_bfi_b32 v{AC2+16+4*k+r}, s27, v236, v{AC2+16+4*k+r}")
                A.vmem(f"buffer_store_dwordx4 {v(AC2+16+4*k,4)}, v{VL}, s[{sWS}:{sWS+3}], s{S_MX} offen offset:{k*1024} sc1", "pst")
            for eb in range(0 if PB else 4):
                for r in range(4):
                    A(f"v_bfi_b32 v{AC2+16+4*eb+r}, s27, v236, v{AC2+16+4*eb+r}")
                A.vmem(f"buffer_store_dwordx4 {v(AC2+16+4*eb,4)}, v{VL}, s[{sWS}:{sWS+3}], s{S_MX} offen offset:{eb*1024} sc1", "pst")
        if n == len(seq) - opt.get("pat", 6):
            ex.append((3, lambda: p_loads(True)))
        step(n, ex)
    A.stamp(9)
    A(f"s_mov_b32 s{S_KX}, 0x40000")
    A("L_pchk:")
    A("s_waitcnt vmcnt(0)")
    NP = 8 if PB else 16
    for r in range(NP):
        A(f"v_xor_b32 v{PR+r}, s{S_G2}, v{PR+r}")
    A(f"v_or3_b32 v24, v{PR}, v{PR+1}, v{PR+2}")
    for k in range(NP // 2 - 2):
        A(f"v_or3_b32 v24, v24, v{PR+3+2*k}, v{PR+4+2*k}")
    A(f"v_or_b32 v24, v24, v{PR+NP-1}\nv_and_b32 v24, {1 if PB else 0xff}, v24\nv_cmp_eq_u32 vcc, 0, v24\ns_nop 1\ns_cmp_eq_u64 vcc, exec\ns_cbranch_scc1 L_pok")
    p_loads(False)
    A(f"s_sub_u32 s{S_KX}, s{S_KX}, 1\ns_cbranch_scc0 L_pchk")
    A("L_pok:")
    if PB:
        for r in range(8):
            A(f"v_and_b32 v{PR+8+r}, 0xffff0000, v{PR+r}\nv_lshlrev_b32 v{PR+r}, 16, v{PR+r}")
    for r in range(16):
        A(f"v_add_f32 v{AC2+r}, v{AC2+r}, v{PR + ((r >> 1) + 8 * (r & 1) if PB else r)}")
    if P2: A.stamp(2)
    A("s_barrier")
    A.stamp(10)
    YP = HF
    A(f"ds_read_b32 v236, v20")
    for eb in range(4):
        A(f"ds_read_b128 {v(YP+4*eb,4)}, v18 offset:{eb*1024}")
    for eb in range(4):
        A(f"ds_read_b128 {v(YP+16+4*eb,4)}, v19 offset:{8192 + eb*1024}")
    A("s_waitcnt lgkmcnt(8)")
    for eb in range(4):
        for hh in range(2):
            A(f"v_pk_fma_f32 {v(XU+4*eb+2*hh,2)}, {v(AC2+4*eb+2*hh,2)}, v[236:237], {v(XU+4*eb+2*hh,2)} op_sel_hi:[1,0,1]")
    A("s_waitcnt lgkmcnt(4)")
    for eb in range(4):
        for hh in range(2):
            A(f"v_pk_add_f32 {v(XU+4*eb+2*hh,2)}, {v(XU+4*eb+2*hh,2)}, {v(YP+4*eb+2*hh,2)}")
    A("s_waitcnt lgkmcnt(0)")
    for eb in range(4):
        for hh in range(2):
            A(f"v_pk_fma_f32 {v(XU+4*eb+2*hh,2)}, {v(YP+16+4*eb+2*hh,2)}, v[236:237], {v(XU+4*eb+2*hh,2)} op_sel:[0,1,0] op_sel_hi:[1,1,1]")
        A(f"v_cvt_pk_bf16_f32 v{28+2*eb}, v{XU+4*eb}, v{XU+4*eb+1}\nv_cvt_pk_bf16_f32 v{29+2*eb}, v{XU+4*eb+2}, v{XU+4*eb+3}")
        A(f"ds_write_b64 v{232+eb}, {v(28+2*eb,2)}")
    A("s_waitcnt lgkmcnt(0)")
    A("ds_read_b128 v[36:39], v23\nds_read_b128 v[40:43], v23 offset:1024")
    A("s_waitcnt lgkmcnt(1)")
    A(f"buffer_store_dwordx4 v[36:39], v{VO}, s[{sOUT}:{sOUT+3}], 0 offen {opt.get('ofl', '')}")
    A("s_waitcnt lgkmcnt(0)")
    A(f"buffer_store_dwordx4 v[40:43], v{VO+1}, s[{sOUT}:{sOUT+3}], 0 offen {opt.get('ofl', '')}")
    if opt.get("dbg"):
        A.srd(sDBG, 22, 256)
        A("""
        s_waitcnt vmcnt(0)
        s_memrealtime s[88:89]
        s_memtime s[84:85]
        s_waitcnt lgkmcnt(0)
        s_sub_u32 s84, s84, s90
        s_sub_u32 s88, s88, s92
        s_lshl_b32 s88, s88, 16
        s_and_b32 s92, s92, 0xffff
        s_or_b32 s88, s88, s92
        v_mov_b32 v2, s88
        v_mov_b32 v3, s84
        s_lshl_b32 s3, s2, 3
        s_lshl_b32 s27, s60, 8
        s_add_u32 s3, s3, s27
        v_mov_b32 v5, s3
        s_mov_b64 exec, 1
        """)
        A(f"buffer_store_dwordx2 v[2:3], v5, s[{sDBG}:{sDBG+3}], 0 offen")
    A.dump_stamps(11)
    A("s_endpgm")

    A("L_aux:")
    epilogue(1)
    RSD, VPOLL, VT, YB, YA, V2, VF, WF = 20, 22, 19, 32, 48, 64, 96, 128
    PR, XU = VF, V2
    DF, EF, TA = 24, 8, opt.get('ta', 32)
    S_PA = S_MX
    A(f"""
    s_and_b32 s{S_GH}, s{S_W}, 3
    v_and_b32 v14, 15, v1
    s_lshl_b32 s3, s{S_CT}, 6
    v_add_u32 v{EF}, s3, v14
    v_cvt_f32_u32 v{EF}, v{EF}
    v_lshrrev_b32 v15, 4, v1
    v_lshlrev_b32 v{DF}, 2, v15
    v_cvt_f32_u32 v{DF}, v{DF}
    s_mov_b32 s3, 0x41800000
    v_add_f32 v{EF+1}, s3, v{EF}
    v_add_f32 v{EF+2}, s3, v{EF+1}
    v_add_f32 v{EF+3}, s3, v{EF+2}
    v_add_f32 v{DF+1}, 1.0, v{DF}
    v_add_f32 v{DF+2}, 2.0, v{DF}
    v_add_f32 v{DF+3}, 2.0, v{DF+1}
    v_add_f32 v{DF+4}, s3, v{DF}
    v_add_f32 v{DF+5}, s3, v{DF+1}
    v_add_f32 v{DF+6}, s3, v{DF+2}
    v_add_f32 v{DF+7}, s3, v{DF+3}
    s_mov_b32 s3, {0x3b124925}
    v_mul_f32 v{EF}, s3, v{EF}
    v_mul_f32 v{EF+1}, s3, v{EF+1}
    v_mul_f32 v{EF+2}, s3, v{EF+2}
    v_mul_f32 v{EF+3}, s3, v{EF+3}
    s_bitcmp1_b32 s{S_W}, 1
    s_cselect_b32 s3, 0x3e800000, 0
    v_mov_b32 v{EF+4}, s3
    v_mov_b32 v{EF+5}, 0x42000000
    """)
    gen_ops = []
    CA_, CB_, KK = 64, 72, 80
    for eb in range(4):
        sel = "op_sel:[0,1,0] op_sel_hi:[1,1,0]" if eb & 1 else "op_sel_hi:[1,0,0]"
        gen_ops.append(f"v_mul_f32 v{KK}, v{EF+5}, v{EF+eb}")
        gen_ops += [f"v_pk_fma_f32 {v(CA_+2*i,2)}, {v(DF+2*i,2)}, {v(EF+(eb&2),2)}, {v(EF+4,2)} {sel}" for i in range(4)]
        gen_ops += [f"v_pk_add_f32 {v(CB_+2*i,2)}, {v(CA_+2*i,2)}, {v(KK,2)} op_sel_hi:[1,0]" for i in range(4)]
        gen_ops.append(f"v_cos_f32 v{KK}, v{KK}")
        gen_ops += [f"v_cos_f32 v{CA_+i}, v{CA_+i}" for i in range(16)]
        gen_ops.append(f"v_add_f32 v{KK}, v{KK}, v{KK}")
        for u in range(8):
            cur = (CA_, CB_)[u & 1]
            if u >= 2:
                gen_ops += [f"v_pk_fma_f32 {v(cur+2*i,2)}, {v((CB_, CA_)[u & 1]+2*i,2)}, {v(KK,2)}, {v(cur+2*i,2)} op_sel_hi:[1,0,1] neg_lo:[0,0,1] neg_hi:[0,0,1]" for i in range(4)]
            gen_ops += [f"v_cvt_pk_bf16_f32 v{WF+16*u+4*eb+i}, v{cur+2*i}, v{cur+2*i+1}" for i in range(4)]

    def wgen(n):
        for x in gen_ops[:16 * n]:
            A(x)
        del gen_ops[:16 * n]
    S_VF = 59
    A(f"""
    s_lshl_b32 s3, s{S_RB}, 6
    s_add_u32 s3, s3, s{S_JX}
    s_and_b32 s27, s{S_W}, 1
    s_lshl_b32 s27, s27, 5
    s_add_u32 s27, s27, s3
    v_lshl_add_u32 v{RSD+1}, v14, 1, s27
    s_bitcmp1_b32 s{S_W}, 1
    s_cselect_b32 s3, -1, 1
    s_cselect_b32 s27, 2048, 0
    v_mul_i32_i24 v{RSD+1}, s3, v{RSD+1}
    v_add_u32 v{RSD+1}, s27, v{RSD+1}
    v_lshrrev_b32 v{RSD}, 11, v{RSD+1}
    v_lshlrev_b32 v{RSD}, 10, v{RSD}
    v_sub_u32 v{RSD+1}, v{RSD+1}, v{RSD}
    v_lshlrev_b32 v{RSD+1}, 2, v{RSD+1}
    v_add_u32 v{RSD+1}, {WS_RSTD}, v{RSD+1}
    s_lshl_b32 s3, s{S_T}, 1
    s_and_b32 s27, s{S_W}, 1
    s_add_u32 s3, s3, s27
    s_lshl_b32 s{S_FT}, s3, 14
    s_lshr_b32 s27, s{S_GH}, 1
    s_lshl_b32 s3, s27, 13
    s_add_u32 s{S_FT}, s{S_FT}, s3
    s_add_u32 s{S_FT}, s{S_FT}, {WS_VV}
    s_cmp_eq_u32 s{S_GH}, 0
    s_cselect_b32 s{S_MW}, {WS_VV + 64*16384}, s{S_FT}
    s_lshl_b32 s3, s{S_GH}, 12
    s_add_u32 s27, s3, {YS}
    v_add_u32 v17, s27, v{VL}
    s_lshl_b32 s3, s{S_GH}, 6
    s_add_u32 s3, s3, {YS + 20480}
    v_lshl_add_u32 v18, v14, 2, s3
    """)
    A(f"""
    v_and_b32 v{VPOLL+1}, 1, v1
    v_lshlrev_b32 v{VPOLL+1}, 2, v{VPOLL+1}
    """)
    wgen(opt.get("g1", 10))
    A.wait(vm=0, lg=0)
    burst([w_dma(p) for p in range(WN, 14)])
    A("s_barrier")
    A.stamp(7)
    wgen(32)
    A.wait(vm=0)
    A("s_barrier")
    if not P2: A.stamp(1)
    if opt.get("nov"):
        A("s_branch L_vdone")
    if opt.get("m2n", -1) >= 0:
        A("s_barrier")
    A.poll(VPOLL + 1, sWS, f"s{S_VF}", "eq", 64, S_TAG, vtmp=VPOLL, sleep=opt.get("vps", 8))
    A.stamp(9)
    A.reset()
    A.vmem(f"buffer_load_dword v{RSD}, v{RSD+1}, s[{sWS}:{sWS+3}], 0 offen {HLD}", "rstd")
    for u in range(8):
        if u % 4 == 0:
            A(f"s_add_u32 s27, s{S_FT}, {u*1024}")
        A.vmem(f"buffer_load_dwordx4 {v(VF+4*u,4)}, v{VL}, s[{sWS}:{sWS+3}], s27 offen offset:{(u%4)*1024} {HLD}", ("v", u))

    A(f"s_cmp_eq_u32 s{S_T}, 0\ns_cbranch_scc1 L_vspecial")

    def vpart(special):
        if special:
            for u in range(8):
                if u % 4 == 0:
                    A(f"s_add_u32 s27, s{S_MW}, {u*1024}")
                A.vmem(f"buffer_load_dwordx4 {v(V2+4*u,4)}, v{VL}, s[{sWS}:{sWS+3}], s27 offen offset:{(u%4)*1024} {HLD}", ("v2", u))
        for u in range(8):
            A.wait(vm=("v", u))
            for eb in range(4):
                A.mfma(YA + eb * 4, WF + 16 * u + 4 * eb, VF + 4 * u, "0" if u == 0 else None)
        if special:
            for u in range(8):
                A.wait(vm=("v2", u))
                for eb in range(4):
                    A.mfma(YB + eb * 4, WF + 16 * u + 4 * eb, V2 + 4 * u, "0" if u == 0 else None)
        A(f"ds_write_b32 v18, v{RSD}")
        A(f"s_nop {opt.get('yn', 6)}")
        for eb in range(4):
            A(f"ds_write_b128 v17, {v(YA+4*eb,4)} offset:{eb*1024}")
        if special:
            L = A.label("L_nopm")
            A(f"s_cmp_lg_u32 s{S_W}, 4\ns_cbranch_scc1 {L}")
            A("s_mov_b32 s26, 0x00010001\ns_mov_b32 s27, 0x00010001")
            for r in range(16):
                A(f"v_cndmask_b32 v{YB+r}, v{YA+r}, v{YB+r}, s[26:27]")
            for eb in range(4):
                A(f"ds_write_b128 v17, {v(YB+4*eb,4)} offset:{16384 + eb*1024}")
            A(f"{L}:")
    sv = (list(A.vm), A.vm_done, list(A.lg), A.lg_done)
    vpart(False)
    A("s_branch L_vdone")
    A("L_vspecial:")
    A.vm, A.vm_done, A.lg, A.lg_done = sv
    vpart(True)
    A("L_vdone:")
    A("s_waitcnt lgkmcnt(0)")
    A.stamp(10)
    A("s_barrier")
    A.dump_stamps(11)
    A("s_endpgm")

    A.reset()
    A.c("@@CUT0")
    S_Q, S_VAR, S_M, S_N, S_P = 63, 96, 97, 98, 99
    A(f"""
    s_sub_u32 s3, s{S_J}, 28
    s_lshl_b32 s{S_Q}, s{S_XCD}, 2
    s_add_u32 s{S_Q}, s{S_Q}, s3
    s_lshr_b32 s{S_VAR}, s{S_XCD}, 1
    s_mov_b32 s{S_M}, s3
    s_and_b32 s{S_N}, s{S_XCD}, 1
    s_and_b32 s{S_P}, s{S_VAR}, 1
    """)
    def wtouch(ptr):
        A.srd(sW1, ptr, 448 * 3584)
        A(f"v_lshlrev_b32 v210, 7, v1\ns_lshl_b32 s3, s{S_Q}, 13\ns_add_u32 s27, s{S_W}, {opt.get('t1s', 2)}\ns_lshl_b32 s27, s27, 18\ns_add_u32 s3, s3, s27\nv_add_u32 v210, s3, v210")
        A.vmem(f"buffer_load_dword v211, v210, s[{sW1}:{sW1+3}], 0 offen")

    RAW, EO, TF, TM, ST = 32, 64, 128, 136, 144
    A(f"""
    s_lshl_b32 s3, s{S_Q}, 4
    s_lshl_b32 s27, s{S_W}, 1
    s_add_u32 s3, s3, s27
    v_lshrrev_b32 v2, 5, v1
    v_add_u32 v4, s3, v2
    v_and_b32 v3, 31, v1
    v_sub_u32 v5, 2048, v4
    v_sub_u32 v6, 1024, v4
    v_add_u32 v7, 1024, v4
    v_cmp_eq_u32 s[100:101], 0, v4
    v_mov_b32 v8, 512
    v_mov_b32 v9, 1536
    v_mov_b32 v12, {OOB}
    v_cndmask_b32 v5, v5, v8, s[100:101]
    v_cndmask_b32 v7, v7, v9, s[100:101]
    v_cmp_gt_u32 vcc, 28, v3
    v_lshlrev_b32 v8, 4, v3
    v_sub_u32 v9, 880, v8
    v_cndmask_b32 v8, v12, v8, vcc
    v_cndmask_b32 v9, v12, v9, vcc
    s_waitcnt lgkmcnt(0)
    """)
    A.srd(sX, 4, 2048 * 896)
    if opt.get("t1", 1) == 2:
        wtouch(16)
    for rho in range(4):
        A(f"v_mul_u32_u24 v13, 896, v{4+rho}\nv_add_u32 v14, v13, v8\nv_add_u32 v15, v13, v9")
        for fm in range(2):
            A.vmem(f"buffer_load_dwordx4 {v(RAW + rho*8 + 4*fm, 4)}, v{14+fm}, s[{sX}:{sX+3}], 0 offen", ("x", rho))
    A("s_branch L_dft")
    A.c("@@CUT1")
    A("L_dft:")
    A.srd(sWS, 24, WS_SIZE + (0x40000 if stamps else 0))
    if opt.get("t1", 1) == 1:
        wtouch(16)
    A(f"v_mov_b32 v190, {WS_EPOCH}")
    A.vmem(f"buffer_load_dword v191, v190, s[{sWS}:{sWS+3}], 0 offen sc1", "ep")
    A(f"s_cmp_lg_u32 s{S_W}, 7\ns_cbranch_scc1 L_dnotouch")
    if opt.get("xt", 0):
        start_touch(A, opt, "x", 200)
    code_touch(A, 208)
    A("L_dnotouch:")

    S_R = 14
    GA, GT = 160, 168
    A(f"""
    s_lshl_b32 s3, s{S_M}, 7
    s_lshl_b32 s27, s{S_W}, 4
    s_add_u32 s3, s3, s27
    s_lshl_b32 s3, s3, 1
    s_add_u32 s3, s3, s{S_P}
    v_and_b32 v13, 15, v1
    v_lshl_add_u32 v13, v13, 1, s3
    v_cvt_f32_u32 v13, v13
    v_mul_f32 v13, 0x3a000000, v13
    v_lshrrev_b32 v14, 4, v1
    v_lshlrev_b32 v14, 3, v14
    v_cvt_f32_u32 v14, v14
    s_cmp_ge_u32 s{S_VAR}, 2
    s_cselect_b32 s3, 0x3e800000, 0
    v_fma_f32 v{GA}, v13, v14, s3
    v_mul_f32 v14, 0x42000000, v13
    v_lshlrev_b32 v16, 4, v1
    s_lshl_b32 s3, s{S_W}, 10
    v_add_u32 v16, s3, v16
    v_add_u32 v17, 0x10000, v16
    """)
    for i in range(1, 8):
        A(f"v_add_f32 v{GA+i}, v13, v{GA+i-1}")
    for i in range(8):
        A(f"v_add_f32 v{GT+i}, v14, v{GA+i}")
    A("v_cos_f32 v14, v14")
    for i in range(16):
        A(f"v_cos_f32 v{GA+i}, v{GA+i}")
    A("v_add_f32 v14, v14, v14")
    A("v_mov_b32 v184, v14\nv_mov_b32 v186, v16\nv_mov_b32 v187, v17")
    cg = [0]

    def cgen(n):
        for sb in range(cg[0], min(16, cg[0] + n)):
            cur, oth = (GA, GT) if sb % 2 == 0 else (GT, GA)
            if sb >= 2:
                for i in range(4):
                    A(f"v_pk_fma_f32 {v(cur+2*i,2)}, {v(oth+2*i,2)}, v[184:185], {v(cur+2*i,2)} op_sel_hi:[1,0,1] neg_lo:[0,0,1] neg_hi:[0,0,1]")
            d = GT + 8 + 4 * (sb & 1)
            for i in range(4):
                A(f"v_cvt_pk_bf16_f32 v{d+i}, v{cur+2*i}, v{cur+2*i+1}")
            A.lds(f"ds_write_b128 v{186 + sb//8}, {v(d,4)} offset:{(sb%8)*8192}")
        cg[0] = min(16, cg[0] + n)
    cgen(opt.get("c0", 2))
    A.stamp(1)
    A(f"""
    v_cmp_eq_u32 s[26:27], 0, v3
    v_cndmask_b32 v21, 0, 2.0, vcc
    v_cmp_eq_u32 vcc, 28, v3
    v_mov_b32 v24, 0
    v_cndmask_b32 v20, v21, 1.0, s[26:27]
    v_mov_b32 v25, 0
    v_cndmask_b32 v20, v20, 1.0, vcc
    v_mov_b32 v26, 0
    v_mov_b32 v27, 0
    """)
    E = lambda rho: EO + rho * 16
    O = lambda rho: EO + rho * 16 + 8
    for rho in range(4):
        A.wait(vm=("x", rho))
        if rho == opt.get("t2", 9):
            wtouch(18)
        F = RAW + rho * 8
        M = F + 4
        A(f"v_mov_b32_dpp v{24+rho}, v{M} row_bcast:15 row_mask:0xa bank_mask:0xf")
        for i in range(4):
            A(f"v_lshlrev_b32 v{TF+2*i}, 16, v{F+i}\nv_and_b32 v{TF+2*i+1}, 0xffff0000, v{F+i}")
        A(f"v_mov_b32_dpp v{24+rho}, v{M} row_shr:1 row_mask:0xf bank_mask:0xf")
        for j in range(1, 8):
            k = 8 - j
            if k & 1:
                A(f"v_and_b32 v{TM+j}, 0xffff0000, v{M + k//2}")
            else:
                A(f"v_lshlrev_b32 v{TM+j}, 16, v{M + k//2}")
        A(f"v_lshlrev_b32 v{TM}, 16, v{24+rho}")
        for i in range(4):
            A(f"v_pk_add_f32 {v(E(rho)+2*i,2)}, {v(TF+2*i,2)}, {v(TM+2*i,2)}")
            A(f"v_pk_add_f32 {v(O(rho)+2*i,2)}, {v(TF+2*i,2)}, {v(TM+2*i,2)} neg_lo:[0,1] neg_hi:[0,1]")
        sm, sq = ST + 4 * rho, ST + 4 * rho + 2
        for i in range(4):
            if i == 0:
                A(f"v_pk_add_f32 {v(sm,2)}, {v(E(rho),2)}, {v(E(rho)+2,2)}")
                A(f"v_pk_mul_f32 {v(sq,2)}, {v(E(rho),2)}, {v(E(rho),2)}")
            else:
                if i > 1:
                    A(f"v_pk_add_f32 {v(sm,2)}, {v(sm,2)}, {v(E(rho)+2*i,2)}")
                A(f"v_pk_fma_f32 {v(sq,2)}, {v(E(rho)+2*i,2)}, {v(E(rho)+2*i,2)}, {v(sq,2)}")
            A(f"v_pk_fma_f32 {v(sq,2)}, {v(O(rho)+2*i,2)}, {v(O(rho)+2*i,2)}, {v(sq,2)}")
    A.stamp(2)
    for rho in range(4):
        A(f"v_add_f32 v{ST+4*rho}, v{ST+4*rho}, v{ST+4*rho+1}\nv_add_f32 v{ST+4*rho+2}, v{ST+4*rho+2}, v{ST+4*rho+3}")
    for i in range(4):
        A(f"v_permlane16_swap_b32 v{ST+2*i}, v{ST+8+2*i}")
    for i in range(4):
        A(f"v_add_f32 v{ST+2*i}, v{ST+2*i}, v{ST+8+2*i}")
    for sh in (8, 4, 2, 1):
        for i in range(4):
            r = ST + 2 * i
            A(f"v_add_f32_dpp v{r}, v{r}, v{r} row_ror:{sh} row_mask:0xf bank_mask:0xf")
    R_, C_ = 24, 28
    A(f"s_mov_b32 s3, {0x3b124925}\ns_mov_b32 s26, {0x3a924925}\ns_mov_b32 s27, {0x3727c5ac}")
    seq_ = [
        lambda b: f"v_mul_f32 v{b}, s3, v{b}\nv_mul_f32 v{b+2}, s26, v{b+2}",
        lambda b: f"v_fma_f32 v{b+2}, -v{b}, v{b}, v{b+2}",
        lambda b: f"v_max_f32 v{b+2}, 0, v{b+2}",
        lambda b: f"v_cvt_pk_bf16_f32 v{b+1}, v{b}, v{b+2}",
        lambda b: f"v_lshlrev_b32 v{b}, 16, v{b+1}\nv_and_b32 v{b+2}, 0xffff0000, v{b+1}",
        lambda b: f"v_add_f32 v{b+2}, s27, v{b+2}",
        lambda b: f"v_cvt_pk_bf16_f32 v{b+2}, v{b+2}, v{b+2}",
        lambda b: f"v_and_b32 v{b+2}, 0xffff0000, v{b+2}",
        lambda b: f"v_sqrt_f32 v{b+2}, v{b+2}",
        lambda b: f"s_nop 0\nv_cvt_pk_bf16_f32 v{b+2}, v{b+2}, v{b+2}",
        lambda b: f"v_and_b32 v{b+2}, 0xffff0000, v{b+2}",
    ]
    for f in seq_:
        for rho in range(2):
            A(f(ST + 4 * rho))
    for rho in range(2):
        A(f"v_rcp_f32 v{R_+rho}, v{ST+4*rho+2}")
    A("s_nop 0")
    for rho in range(2):
        A(f"v_mul_f32 v{C_+rho}, v{ST+4*rho}, v{R_+rho}")
    for r in (R_, R_ + 1, C_, C_ + 1):
        A(f"v_mov_b32 v{r+2}, v{r}")
    A("s_nop 0")
    for r in (R_, R_ + 1, C_, C_ + 1):
        A(f"v_permlane16_swap_b32 v{r}, v{r+2}")
    A(f"""
    v_cmp_eq_u32 vcc, 1, v3
    v_cmp_eq_u32 s[26:27], 2, v3
    v_mov_b32 v8, v4
    v_mov_b32 v9, v{R_}
    v_cndmask_b32 v8, v8, v5, vcc
    v_cndmask_b32 v9, v9, v{R_+1}, vcc
    v_cmp_eq_u32 vcc, 3, v3
    v_cndmask_b32 v8, v8, v6, s[26:27]
    v_cndmask_b32 v9, v9, v{R_+2}, s[26:27]
    v_cndmask_b32 v8, v8, v7, vcc
    v_cndmask_b32 v9, v9, v{R_+3}, vcc
    v_cmp_gt_u32 vcc, 4, v3
    v_lshlrev_b32 v8, 2, v8
    v_add_u32 v8, {WS_RSTD}, v8
    v_cndmask_b32 v8, v12, v8, vcc
    """)
    if opt.get("rs", 0):
        A("v_mov_b32 v188, v8\nv_mov_b32 v189, v9")
    else:
        A.vmem(f"buffer_store_dword v9, v8, s[{sWS}:{sWS+3}], 0 offen sc1")
    A(f"s_or_b32 s3, s{S_Q}, s{S_W}\ns_cmp_lg_u32 s3, 0\ns_cbranch_scc1 L_no512")
    A(f"v_add_f32 v10, v{C_+1}, v{C_+3}")
    for j in range(8):
        A(f"v_mul_f32 v{TF+j}, v10, v{20+(1 if j else 0)}")
        A(f"v_fma_f32 v{TF+j}, v{E(1)+j}, v{R_+1}, -v{TF+j}")
        A(f"v_fma_f32 v{TF+j}, v{E(3)+j}, v{R_+3}, v{TF+j}")
        A(f"v_mul_f32 v{TM+j}, v{O(1)+j}, v{R_+1}")
        A(f"v_fma_f32 v{TM+j}, -v{O(3)+j}, v{R_+3}, v{TM+j}")
    for i in range(4):
        A(f"v_cvt_pk_bf16_f32 v{RAW+i}, v{TF+2*i}, v{TF+2*i+1}")
        A(f"v_cvt_pk_bf16_f32 v{RAW+4+i}, v{TM+2*i}, v{TM+2*i+1}")
    A(f"v_lshlrev_b32 v10, 4, v3\nv_add_u32 v10, {WS_X512}, v10\nv_cndmask_b32 v10, v12, v10, s[100:101]")
    A(f"buffer_store_dwordx4 {v(RAW,4)}, v10, s[{sWS}:{sWS+3}], 0 offen sc1")
    A(f"buffer_store_dwordx4 {v(RAW+4,4)}, v10, s[{sWS}:{sWS+3}], 0 offen offset:{3*512} sc1")
    A("s_nop 1")
    A("L_no512:")
    for r in (R_ + 1, R_ + 3, C_ + 1, C_ + 3):
        A(f"v_cndmask_b32 v{r}, v{r}, 0, s[100:101]")
    A(f"v_add_f32 v{C_}, v{C_}, v{C_+1}\nv_add_f32 v{C_+2}, v{C_+2}, v{C_+3}")
    OUT = lambda var: RAW + var * 8
    bl = "op_sel_hi:[1,0,1]"
    bh = "op_sel:[0,1,0] op_sel_hi:[1,1,1]"
    A(f"v_pk_mul_f32 v[8:9], v[20:21], {v(C_,2)} op_sel_hi:[1,0] neg_lo:[1,0] neg_hi:[1,0]")
    A(f"v_pk_mul_f32 v[10:11], v[20:21], {v(C_+2,2)} op_sel_hi:[1,0] neg_lo:[1,0] neg_hi:[1,0]")
    for i in range(4):
        s3lo, s3hi = (0, 1) if i == 0 else (1, 1)
        a_, b_ = TF, TF + 2
        A(f"v_pk_fma_f32 {v(a_,2)}, {v(E(0)+2*i,2)}, {v(R_,2)}, v[8:9] op_sel:[0,0,{s3lo}] op_sel_hi:[1,0,{s3hi}]")
        A(f"v_pk_fma_f32 {v(b_,2)}, {v(E(2)+2*i,2)}, {v(R_+2,2)}, v[10:11] op_sel:[0,0,{s3lo}] op_sel_hi:[1,0,{s3hi}]")
        A(f"v_pk_mul_f32 {v(TM,2)}, {v(O(0)+2*i,2)}, {v(R_,2)} op_sel_hi:[1,0]")
        A(f"v_pk_mul_f32 {v(TM+2,2)}, {v(O(3)+2*i,2)}, {v(R_+2,2)} op_sel:[0,1] op_sel_hi:[1,1]")
        A(f"v_pk_fma_f32 {v(a_,2)}, {v(E(1)+2*i,2)}, {v(R_,2)}, {v(a_,2)} {bh}")
        A(f"v_pk_fma_f32 {v(b_,2)}, {v(E(3)+2*i,2)}, {v(R_+2,2)}, {v(b_,2)} {bh}")
        A(f"v_pk_fma_f32 {v(TM,2)}, {v(O(1)+2*i,2)}, {v(R_,2)}, {v(TM,2)} {bh} neg_lo:[1,0,0] neg_hi:[1,0,0]")
        A(f"v_pk_fma_f32 {v(TM+2,2)}, {v(O(2)+2*i,2)}, {v(R_+2,2)}, {v(TM+2,2)} {bl} neg_lo:[1,0,0] neg_hi:[1,0,0]")
        A(f"v_pk_add_f32 {v(OUT(0)+2*i,2)}, {v(a_,2)}, {v(b_,2)}")
        A(f"v_pk_add_f32 {v(OUT(1)+2*i,2)}, {v(a_,2)}, {v(b_,2)} neg_lo:[0,1] neg_hi:[0,1]")
        A(f"v_pk_add_f32 {v(OUT(2)+2*i,2)}, {v(TM,2)}, {v(TM+2,2)}")
        A(f"v_pk_add_f32 {v(OUT(3)+2*i,2)}, {v(TM,2)}, {v(TM+2,2)} neg_lo:[0,1] neg_hi:[0,1]")
    PKD = EO
    FS = 131072
    A(f"""
    v_lshlrev_b32 v8, 13, v2
    v_lshrrev_b32 v9, 1, v3
    v_lshl_add_u32 v8, v9, 9, v8
    v_and_b32 v10, 7, v9
    v_lshl_add_u32 v8, v10, 4, v8
    v_and_b32 v10, 1, v3
    v_lshl_add_u32 v8, v10, 7, v8
    v_and_b32 v9, 8, v9
    v_or_b32 v8, v8, v9
    s_lshr_b32 s3, s{S_W}, 2
    s_lshl_b32 s3, s3, 8
    s_and_b32 s27, s{S_W}, 3
    s_lshl_b32 s27, s27, 2
    s_add_u32 s3, s3, s27
    s_add_u32 s3, s3, {FS}
    v_xor_b32 v8, s3, v8
    """)
    for j in range(1, 8):
        A(f"v_xor_b32 v{8+j}, {j<<4}, v8")
    for pr in range(2):
        for j in range(8):
            A(f"v_permlane32_swap_b32 v{OUT(2*pr)+j}, v{OUT(2*pr+1)+j}")
        for j in range(8):
            A(f"v_cvt_pk_bf16_f32 v{PKD+8*pr+j}, v{OUT(2*pr)+j}, v{OUT(2*pr+1)+j}")
        for j in range(8):
            A.lds(f"ds_write_b32 v{8+j}, v{PKD+8*pr+j} offset:{pr*16384}")
    A(f"""
    v_xor_b32 v28, v3, v2
    v_lshlrev_b32 v28, 4, v28
    v_lshl_add_u32 v28, v2, 9, v28
    s_lshl_b32 s3, s{S_W}, 12
    s_and_b32 s27, s{S_W}, 1
    s_lshl_b32 s27, s27, 3
    s_add_u32 s3, s3, s27
    s_add_u32 s3, s3, {FS}
    v_add_u32 v28, s3, v28
    v_lshlrev_b32 v27, 4, v3
    v_lshl_add_u32 v27, v2, 14, v27
    s_lshr_b32 s3, s{S_Q}, 1
    s_lshl_b32 s3, s3, 10
    s_and_b32 s27, s{S_Q}, 1
    s_lshl_b32 s27, s27, 9
    s_add_u32 s3, s3, s27
    s_lshl_b32 s27, s{S_W}, 17
    s_add_u32 s3, s3, s27
    s_add_u32 s3, s3, {WS_XF}
    """)
    for k in range(1, 8):
        A(f"v_xor_b32 v{RAW+16+k}, {(k>>1)*32 + (k&1)*8}, v28")
    A.wait(lg=0)
    A("s_barrier")
    if opt.get("rs", 0):
        A.vmem(f"buffer_store_dword v189, v188, s[{sWS}:{sWS+3}], 0 offen sc1")
    for i in range(4):
        for hh in range(2):
            k = 2 * i + hh
            A.lds(f"ds_read_b64 {v(RAW+4*i+2*hh,2)}, v{RAW+16+k if k else 28} offset:{i*1024}", ("rb", i))
    for i in range(4):
        A.wait(lg=("rb", i))
        A.vmem(f"buffer_store_dwordx4 {v(RAW+4*i,4)}, v27, s[{sWS}:{sWS+3}], s3 offen sc1", "xst")
        A(f"s_add_u32 s3, s3, 32768")
    A.stamp(3)
    cgen(opt.get("c1", 4))
    cg_left = cg[0]
    A(f"s_cmp_ge_u32 s{S_W}, 4\ns_cbranch_scc1 L_dft_helper")
    dstate = (list(A.vm), A.vm_done)
    SACC, SEX, CF, XF = 32, 96, [104, 136], 168
    KALT, B512, X5 = 4, 8, [12, 16]
    CA = 22
    S_XA = 15
    A(f"""
    v_lshlrev_b32 v{CA}, 4, v1
    v_and_b32 v26, 1, v1
    s_cmp_ge_u32 s{S_VAR}, 2
    s_cselect_b32 s100, 1, 0
    s_cselect_b32 s101, 0x80008000, 0
    v_xor_b32 v26, s100, v26
    v_lshlrev_b32 v26, 15, v26
    v_or_b32 v{B512}, 0x3f80, v26
    s_lshl_b32 s26, s{S_N}, 3
    s_lshl_b32 s27, s{S_W}, 1
    s_add_u32 s26, s26, s27
    s_lshl_b32 s3, s{S_VAR}, 4
    s_add_u32 s3, s3, s26
    s_lshl_b32 s{S_XA}, s3, 14
    s_add_u32 s{S_XA}, s{S_XA}, {WS_XF}
    s_add_u32 s{S_R}, s{S_M}, 1
    s_and_b32 s{S_R}, s{S_R}, 3
    s_lshl_b32 s3, s{S_R}, 15
    v_add_u32 v{CA}, s3, v{CA}
    s_add_u32 s3, s3, 32768
    s_and_b32 s3, s3, 0x1ffff
    v_lshl_add_u32 v{CA+1}, v1, 4, s3
    v_xor_b32 v{CA+2}, 0x10000, v{CA}
    v_xor_b32 v{CA+3}, 0x10000, v{CA+1}
    s_lshl_b32 s26, s26, 5
    s_lshl_b32 s27, s{S_VAR}, 9
    s_add_u32 s26, s26, s27
    s_add_u32 s26, s26, {WS_X512}
    v_lshl_add_u32 v27, v1, 1, s26
    s_add_u32 s3, s{S_VAR}, 1
    s_and_b32 s3, s3, 2
    s_cmp_eq_u32 s3, 0
    s_cselect_b32 s3, 16, 0
    v_cmp_gt_u32 vcc, s3, v1
    v_mov_b32 v26, {OOB}
    v_lshlrev_b32 v28, 4, v1
    v_cndmask_b32 v27, v26, v27, vcc
    v_add_u32 v29, 16384, v28
    s_or_b32 s3, s{S_M}, s{S_VAR}
    s_cmp_eq_u32 s3, 0
    s_cselect_b32 vcc_lo, 1, 0
    s_mov_b32 vcc_hi, 0
    """)
    for i in range(4):
        A(f"v_mov_b32 v{KALT+i}, 0xbf803f80")
    for i in range(8):
        A(f"v_mov_b32 v{SEX+i}, 0")
    A.wait(vm="xst")
    A("s_barrier")
    A.stamp(4)
    if opt.get("t2p"):
        wtouch(18)
    cgen(16)
    A.wait(lg=0)
    for i in range(1, 4):
        A(f"v_mov_b32 v{B512+i}, 0\nv_mov_b32 v{X5[0]+i}, 0\nv_mov_b32 v{X5[1]+i}, 0")

    def c_reads(sb):
        return [lambda tb=tb: A.lds(f"ds_read_b128 {v(CF[sb&1]+4*tb,4)}, v{CA + sb//4} offset:{(sb%4)*8192 + tb*1024}", ("cf", sb))
                for tb in range(8)]

    def x_th(sb):
        r = []
        for a_ in range(2):
            def f(a_=a_):
                if sb % 4 == 0 and a_ == 0:
                    A(f"s_add_u32 s94, s{S_R}, {sb // 4}\ns_and_b32 s94, s94, 3\ns_lshl_b32 s94, s94, 12\ns_add_u32 s94, s94, s{S_XA}")
                A.vmem(f"buffer_load_dwordx4 {v(XF + (sb % 11)*8 + 4*a_, 4)}, v{28+a_}, s[{sWS}:{sWS+3}], s94 offen offset:{(sb%4)*1024} {HLD}", ("xf", sb))
            r.append(f)
        return r

    outl = []

    def extra(xa0, xa1):
        L = A.label("L_nx")
        A(f"s_cbranch_vccnz {L}_x")
        A(f"{L}:")
        outl.append((L, xa0, xa1))
    A("s_barrier")
    A.stamp(5)
    XD = opt.get("xd", 4)
    for sb in range(XD):
        for f in x_th(sb):
            f()
    for f in c_reads(0):
        f()
    xnext = XD
    for sb in range(16):
        fl = list(enumerate(c_reads(sb + 1))) if sb + 1 < 16 else []
        nx = [k for k in (xnext, xnext + 1) if k <= min(15, sb + opt.get("xla", 6))]
        if len(nx) == 2 and nx[1] % 4 == 0:
            nx = nx[:1]
        if nx and nx[0] % 4 == 0 and opt.get("xq", 1):
            A("s_barrier")
        xnext += len(nx)
        k0 = 0
        for k in nx:
            for f in x_th(k):
                fl.append((8 + 2 * k0, f)); k0 += 1
        if sb == 13:
            fl.append((13, lambda: A.vmem(f"buffer_load_ushort v{X5[0]}, v27, s[{sWS}:{sWS+3}], 0 offen {HLD}", "x5")))
            fl.append((15, lambda: A.vmem(f"buffer_load_ushort v{X5[1]}, v27, s[{sWS}:{sWS+3}], 0 offen offset:32 {HLD}", "x5")))
        A.wait(vm=("xf", sb), lg=("cf", sb))
        z = "0" if sb == 0 else None
        xa = XF + (sb % 11) * 8
        A.weave([lambda a_=a_, tb=tb: A.mfma(SACC + (a_ * 8 + tb) * 4, xa + 4 * a_, CF[sb & 1] + 4 * tb, z)
                 for a_ in range(2) for tb in range(8)], fl)
        extra(xa, xa + 4)
    A.wait(vm="x5")
    extra(X5[0], X5[1])
    A(f"""
    s_lshl_b32 s3, s{S_M}, 3
    s_add_u32 s3, s3, s{S_P}
    s_lshl_b32 s3, s3, 5
    s_lshl_b32 s27, s100, 3
    s_lshl_b32 s26, s{S_N}, 2
    s_add_u32 s27, s27, s26
    s_add_u32 s27, s27, s{S_W}
    s_add_u32 s3, s3, s27
    s_lshl_b32 s3, s3, 10
    s_add_u32 s3, s3, {WS_VV}
    s_lshl_b32 s27, s27, 10
    s_add_u32 s{S_XA}, s27, {WS_VV + 64*16384}
    """)
    D0 = CF[0]

    def vout(tb):
        d = D0 + 4 * tb
        for a_ in range(2):
            s0 = SACC + (a_ * 8 + tb) * 4
            A(f"v_cvt_pk_bf16_f32 v{d+2*a_}, v{s0}, v{s0+1}\nv_cvt_pk_bf16_f32 v{d+2*a_+1}, v{s0+2}, v{s0+3}")
        for i in range(4):
            A(f"v_xor_b32 v{d+i}, s101, v{d+i}")
        A(f"s_add_u32 s27, s3, {((tb >> 1) * 4 + (tb & 1)) * 16384}")
        A.vmem(f"buffer_store_dwordx4 {v(d,4)}, v28, s[{sWS}:{sWS+3}], s27 offen sc1")
    for tb in range(8):
        for a_ in range(2):
            A.mfma(SACC + (a_ * 8 + tb) * 4, X5[a_], B512)
        if tb == 1:
            A("s_nop 5")
        if tb >= 1:
            vout(tb - 1)
    A.stamp(6)
    vout(7)
    A("s_cbranch_vccz L_nospecial")
    A("s_mov_b32 s26, 0x00010001\ns_mov_b32 s27, 0x00010001")
    for i in range(4):
        A(f"v_cvt_pk_bf16_f32 v{XF+i}, v{SEX+2*i}, v{SEX+2*i+1}")
    for i in range(4):
        A(f"v_cndmask_b32 v{XF+i}, v{D0+i}, v{XF+i}, s[26:27]")
    A(f"buffer_store_dwordx4 {v(XF,4)}, v28, s[{sWS}:{sWS+3}], s{S_XA} offen sc1")
    A("L_nospecial:")
    A.wait(vm=0)
    A("s_barrier")
    A.stamp(7)
    A.dump_stamps(8)
    A("s_endpgm")
    for L, xa0, xa1 in outl:
        A(f"{L}_x:")
        A.mfma(SEX, xa0, KALT)
        A.mfma(SEX + 4, xa1, KALT)
        A(f"s_branch {L}")

    A.reset()
    A("L_dft_helper:")
    A.vm, A.vm_done = dstate
    S_DT = 94
    A.wait(vm="xst")
    A(f"""
    v_readfirstlane_b32 s{S_DT}, v191
    v_lshlrev_b32 v4, 7, v1
    v_lshlrev_b32 v6, 2, v1
    s_lshl_b32 s3, s{S_Q}, 2
    s_add_u32 s3, s3, {WS_XFLAG}
    s_mul_i32 s{S_DT}, s{S_DT}, {TAGMUL}
    s_add_u32 s{S_DT}, s{S_DT}, {TAGADD}
    v_mov_b32 v5, s{S_DT}
    s_barrier
    s_cmp_eq_u32 s{S_W}, 4
    s_cbranch_scc0 L_nox
    s_setprio 3
    s_mov_b64 exec, 0xff
    buffer_store_dword v5, v4, s[{sWS}:{sWS+3}], s3 offen sc1
    s_mov_b64 exec, -1
    L_nox:
    """)
    A.stamp(4)
    if opt.get("t2p"):
        wtouch(18)
    cg[0] = cg_left
    cgen(16)
    A(f"""
    s_waitcnt lgkmcnt(0)
    s_cmp_eq_u32 s{S_W}, 4
    s_cbranch_scc0 L_end
    s_lshl_b32 s3, s{S_XCD}, 7
    s_add_u32 s3, s3, {WS_XFLAG}
    """)
    if not opt.get("xq", 1):
        A.poll(6, sWS, "s3", "eq", 32, S_DT, sleep=opt.get("xps", 1))
        A("s_barrier")
    for k in range(4 if opt.get("xq", 1) else 0):
        A(f"s_add_u32 s26, s{S_M}, {k + 1}\ns_and_b32 s26, s26, 3\ns_lshl_b32 s26, s26, 5\ns_add_u32 s26, s26, s3")
        A.poll(6, sWS, "s26", "eq", 8, S_DT, sleep=opt.get("xps", 1))
        if k == 0:
            A.stamp(5)
        A("s_barrier")
    A("v_mov_b32 v8, 0")
    A(f"""
    s_lshl_b32 s3, s{S_VAR}, 2
    s_add_u32 s3, s3, s{S_M}
    s_lshl_b32 s3, s3, 5
    s_add_u32 s3, s3, s{S_N}
    s_lshl_b32 s3, s3, 2
    s_add_u32 s3, s3, {WS_VFLAG}
    s_barrier
    s_mov_b64 exec, 1
    buffer_store_dword v5, v8, s[{sWS}:{sWS+3}], s3 offen sc1
    """)
    A(f"s_cmp_lg_u32 s{S_Q}, 0\ns_cbranch_scc1 L_noepw")
    A(f"s_mov_b64 exec, -1\nv_and_b32 v9, 7, v1\nv_min_u32 v9, 6, v9\nv_lshlrev_b32 v9, 2, v9\nv_lshrrev_b32 v10, 3, v1\nv_lshl_add_u32 v9, v10, 7, v9")
    A(f"s_mov_b32 s27, 0x40000\ns_mov_b32 s3, {WS_HFLAG + 16}")
    A("L_epl:")
    for i in range(4):
        A(f"buffer_load_dword v{12+i}, v9, s[{sWS}:{sWS+3}], s3 offen offset:{i*1024} sc1")
    A("s_waitcnt vmcnt(0)")
    for i in range(4):
        A(f"v_xor_b32 v{12+i}, s{S_DT}, v{12+i}")
    A("v_or3_b32 v12, v12, v13, v14\nv_or_b32 v12, v12, v15\nv_cmp_eq_u32 vcc, 0, v12\ns_nop 1\ns_cmp_eq_u64 vcc, exec\ns_cbranch_scc1 L_epok")
    A("s_sleep 2\ns_sub_u32 s27, s27, 1\ns_cbranch_scc0 L_epl")
    A("L_epok:")
    A(f"s_mov_b32 s3, {WS_EPOCH}\ns_mov_b64 exec, 1\nbuffer_store_dword v5, v8, s[{sWS}:{sWS+3}], s3 offen sc1")
    A("L_noepw:")
    A.stamp(6)
    A.dump_stamps(8)
    A("L_end:")
    A("s_endpgm")
    A("L_code_end:")

    ix = lambda m: next(i for i, l in enumerate(A.lines) if m in l)
    c0, c1 = ix("@@CUT0"), ix("@@CUT1")
    head = A.lines[c0 + 1:c1]
    del A.lines[c0:c1 + 1]
    h = ix("@@HEAD")
    A.lines[h:h + 1] = head
    hdr = open("parallel_sum__spectral_fnet__dense_activation_relu__prompt.s.ref").read().split("; Override")[0]
    return (hdr + "; @launch grid=(256,1,1) block=(512,1,1) lds=163840\n"
            + ".amdgcn_target \"amdgcn-amd-amdhsa--gfx950\"\n" + kernel_header(NAME) + A.text() + kernel_desc(NAME, 256, 256))


if __name__ == "__main__":
    out = sys.argv[1]
    stamps = len(sys.argv) > 2 and sys.argv[2] == "stamps"
    opt = {}
    for kv in sys.argv[3:]:
        k, x = kv.split("=")
        opt[k] = int(x) if x.lstrip("-").isdigit() else x
    open(out, "w").write(gen(stamps, opt))
```

```python
import sys
from kbase import *

TAGMUL, TAGADD = 0x9E3779B1, 0x7F4A7C15


DOC = """\
;
;
;   generated in the kernel (v_cos_f32 + three-term recurrence) and their symmetries are used: rows s, S-s, S/2-s, S/2+s and
"""


def wblk(i):
    if i < 24:
        return 65536 + 4096 * i
    if i < 28:
        return 32768 + 4096 * (i - 24)
    return 65536 + 4096 * (i - 28)


def mod7(A, s, tmp, maxv):
    m = 7
    while m * 2 < maxv:
        m *= 2
    while m >= 7:
        A(f"s_cmp_ge_u32 s{s}, {m}\ns_cselect_b32 s{tmp}, {m}, 0\ns_sub_u32 s{s}, s{s}, s{tmp}")
        m //= 2


CT = [1]


def code_touch(A, vb=118):
    if CT[0] in (0, 3):
        return
    L = A.label("L_pc")
    if CT[0] == 2:
        A(f"""
        s_getpc_b64 s[48:49]
        {L}:
        s_sub_u32 s48, s48, {L}-{NAME}
        s_subb_u32 s49, s49, 0
        s_mov_b32 s50, L_code_end-{NAME}
        s_mov_b32 s51, 0x20000
        v_lshlrev_b32 v{vb}, 7, v1
        """)
        for i in range(5):
            A(f"s_movk_i32 s3, {i*8192 if i < 4 else 0}\nbuffer_load_dword v{vb+1}, v{vb}, s[48:51], s3 offen" + (" offset:0" if i < 4 else ""))
            if i == 3:
                A(f"v_add_u32 v{vb}, 32768, v{vb}")
        return
    A(f"""
    s_getpc_b64 s[48:49]
    {L}:
    s_sub_u32 s48, s48, {L}-{NAME}
    s_subb_u32 s49, s49, 0
    s_mov_b32 s50, L_code_end-{NAME}
    s_mov_b32 s51, 0x20000
    v_lshlrev_b32 v{vb}, 12, v1
    s_lshl_b32 s3, s{S_J}, 7
    v_add_u32 v{vb}, s3, v{vb}
    s_mov_b64 exec, 0x3ff
    buffer_load_dword v{vb+1}, v{vb}, s[48:51], 0 offen
    s_mov_b64 exec, -1
    """)


def start_touch(A, opt, what, vb=10):
    fl = opt.get("tfl", "")
    if what == "x":
        A(f"""
        s_lshl_b32 s3, s{S_XCD}, 2
        s_lshr_b32 s27, s{S_J}, 3
        s_add_u32 s3, s3, s27
        s_lshl_b32 s3, s3, 4
        s_and_b32 s27, s{S_J}, 1
        s_lshl_b32 s27, s27, 3
        s_add_u32 s3, s3, s27
        v_lshrrev_b32 v{vb+1}, 3, v1
        v_add_u32 v{vb+1}, s3, v{vb+1}
        s_bfe_u32 s3, s{S_J}, 0x20001
        s_add_u32 s27, s3, 1
        s_and_b32 s27, s27, 2
        s_sub_u32 s27, 1, s27
        v_mul_i32_i24 v{vb+1}, s27, v{vb+1}
        s_cmp_eq_u32 s3, 0
        s_cselect_b32 s27, 0, 1024
        s_cmp_eq_u32 s3, 1
        s_cselect_b32 s27, 2048, s27
        v_add_u32 v{vb+1}, s27, v{vb+1}
        v_mul_u32_u24 v{vb+1}, 896, v{vb+1}
        v_and_b32 v{vb+2}, 7, v1
        v_min_u32 v{vb+2}, 6, v{vb+2}
        v_lshl_add_u32 v{vb+1}, v{vb+2}, 7, v{vb+1}
        buffer_load_dword v{vb+3}, v{vb+1}, s[{sX}:{sX+3}], 0 offen {fl}
        """)
    else:
        A(f"""
        s_cmp_ge_u32 s{S_XCD}, 4
        s_cselect_b32 s{sOUT}, s8, s6
        s_cselect_b32 s{sOUT+1}, s9, s7
        s_and_b32 s{sOUT+1}, s{sOUT+1}, 0xffff
        s_mov_b32 s{sOUT+2}, {2048*4096}
        s_mov_b32 s{sOUT+3}, 0x20000
        s_and_b32 s3, s{S_XCD}, 1
        s_lshl_b32 s3, s3, 5
        s_add_u32 s3, s3, s{S_J}
        s_lshl_b32 s3, s3, 4
        s_bfe_u32 s27, s{S_XCD}, 0x10001
        s_add_u32 s3, s3, s27
        s_lshl_b32 s3, s3, 12
        v_lshrrev_b32 v{vb}, 3, v1
        v_lshlrev_b32 v{vb}, 13, v{vb}
        v_and_b32 v{vb+1}, 7, v1
        v_lshl_add_u32 v{vb}, v{vb+1}, 7, v{vb}
        buffer_load_dword v{vb+2}, v{vb}, s[{sOUT}:{sOUT+3}], s3 offen {fl}
        """)


def gen(stamps=False, opt=None):
    opt = opt or {}
    HST = opt.get("hst", "sc1")
    HLD = opt.get("hld", "sc1")
    TOUCH_AT = opt.get("touch_at", 2)
    HD = opt.get("hd", 12)
    VAT = opt.get("vat", 22)
    A = K(stamps)
    CT[0] = opt.get('ct', 3)
    P2 = opt.get('p2', 0)
    P1 = opt.get('p1', 0)
    st1 = lambda i: None if (P2 or P1) else A.stamp(i)
    _stamp = A.stamp
    if opt.get('p3'):
        st1 = lambda i: None
        A.stamp = lambda i: _stamp(i) if i in (0, 1, 8, 9, 10) else None
    if opt.get('light'):
        P1 = 0
        A.stamp = lambda i: _stamp(i) if i == 0 else None
    if P1:
        A.stamp = lambda i: _stamp(i) if i == 0 else None
    st2 = lambda i: A.stamp(i) if P2 else None
    A.stamp(0)
    if opt.get("dbg"):
        A("s_memrealtime s[92:93]\ns_memtime s[90:91]")
    A("""
    s_load_dwordx16 s[4:19], s[0:1], 0
    s_load_dwordx4 s[20:23], s[0:1], 64
    s_load_dwordx2 s[24:25], s[0:1], 80
    s_cmp_ge_u32 s2, 256
    s_cbranch_scc1 L_end
    """)
    A(f"s_lshr_b32 s{S_J}, s2, 3")
    if CT[0] == 3:
        A(f"""
        s_getpc_b64 s[48:49]
        L_pc0:
        v_cmp_gt_u32 vcc, 10, v0
        s_sub_u32 s48, s48, L_pc0-{NAME}
        s_subb_u32 s49, s49, 0
        s_mov_b32 s50, L_code_end-{NAME}
        s_mov_b32 s51, 0x20000
        s_lshl_b32 s3, s{S_J}, 7
        v_lshlrev_b32 v254, 12, v0
        s_and_saveexec_b64 s[26:27], vcc
        s_cbranch_execz L_ct0
        buffer_load_dword v255, v254, s[48:51], s3 offen
        L_ct0:
        s_mov_b64 exec, s[26:27]
        """)
    if opt.get("et", 0):
        A(f"""
        v_subrev_u32 v253, 64, v0
        v_cmp_gt_u32 vcc, 64, v253
        v_lshrrev_b32 v252, 4, v253
        v_lshl_add_u32 v252, s{S_J}, 2, v252
        v_mul_u32_u24 v252, 3584, v252
        v_and_b32 v253, 15, v253
        v_lshl_add_u32 v252, v253, 7, v252
        s_and_b32 s3, s2, 1
        s_mul_i32 s3, s3, 1792
        s_and_saveexec_b64 s[26:27], vcc
        s_cbranch_execz L_et0
        s_waitcnt lgkmcnt(0)
        s_mov_b32 s48, s16
        s_and_b32 s49, s17, 0xffff
        s_mov_b32 s50, {448*3584}
        s_mov_b32 s51, 0x20000
        buffer_load_dword v253, v252, s[48:51], s3 offen
        """)
        if opt["et"] == 2:
            A(f"s_add_u32 s3, s3, {128*3584}\nbuffer_load_dword v253, v252, s[48:51], s3 offen")
        A("L_et0:\ns_mov_b64 exec, s[26:27]")
    A("v_lshrrev_b32 v2, 6, v0\nv_and_b32 v1, 63, v0")
    A(f"s_and_b32 s{S_XCD}, s2, 7")
    A(f"v_readfirstlane_b32 s{S_W}, v2")
    A(f"s_cmp_lt_u32 s{S_J}, 28\ns_cbranch_scc1 L_ffn")
    A.c("@@HEAD")
    A("L_ffn:")

    S_RB, S_FT, S_KX, S_KW, S_MX, S_MW, S_T, S_CT = 63, 96, 97, 98, 99, 100, 101, 26
    S_FTL, S_JX, S_TAG, S_PF = 14, 86, 58, 59
    S_M2, S_K2, S_G2, S_HF, S_PT = 56, 57, 95, 94, 58
    A(f"""
    s_mul_i32 s27, s{S_J}, 37
    s_lshr_b32 s27, s27, 8
    s_mul_i32 s3, s27, 7
    s_sub_u32 s{S_CT}, s{S_J}, s3
    s_and_b32 s{S_RB}, s{S_XCD}, 6
    s_lshl_b32 s{S_RB}, s{S_RB}, 1
    s_add_u32 s{S_RB}, s{S_RB}, s27
    s_lshl_b32 s27, s27, 1
    s_add_u32 s{S_G2}, s{S_CT}, s27
    """)
    mod7(A, S_G2, 3, 14)
    VD, XA, WA, ONES = 2, 8, 16, 20
    VW2, VEP = 6, 18
    FX = [24, 48]; FW = [40, 64]
    ACC, RS, CS = 72, 104, 108
    S_MD = 52
    sL = sW1
    A(f"""
    s_and_b32 s{S_JX}, s{S_XCD}, 1
    s_mul_i32 s3, s{S_JX}, 7
    s_add_u32 s{S_FT}, s{S_G2}, s3
    v_lshrrev_b32 v31, 4, v1
    v_mov_b32 v35, 896
    s_movk_i32 s3, 0xe2
    s_bitcmp1_b32 s3, s{S_W}
    s_cbranch_scc1 L_ldw
    s_max_u32 s{S_KX}, s{S_W}, 1
    s_add_u32 s{S_KX}, s{S_KX}, s{S_CT}
    s_add_u32 s{S_KX}, s{S_KX}, 3
    s_and_b32 s{S_KX}, s{S_KX}, 3
    s_lshl_b32 s3, s{S_RB}, 6
    s_lshr_b32 s27, s{S_KX}, 1
    s_add_u32 s3, s3, s27
    v_lshrrev_b32 v30, 3, v1
    v_lshl_add_u32 v30, v30, 1, s3
    v_and_b32 v32, 7, v1
    v_xor_b32 v32, v32, v31
    v_lshlrev_b32 v32, 4, v32
    s_lshl_b32 s{S_MD}, s{S_KX}, 12
    s_bitcmp1_b32 s{S_KX}, 0
    s_cselect_b32 s3, -1, 1
    s_cselect_b32 s27, 2048, 0
    v_mul_i32_i24 v30, s3, v30
    v_add_u32 v30, s27, v30
    s_mul_i32 s3, s3, {16*896}
    v_mad_u32_u24 v33, v30, v35, v32
    v_lshrrev_b32 v34, 11, v30
    v_mul_u32_u24 v34, {1024*896}, v34
    v_sub_u32 v{VD}, v33, v34
    v_xor_b32 v32, 64, v32
    v_mad_u32_u24 v32, v30, v35, v32
    v_add_u32 v{VD+1}, s3, v32
    s_lshl_b32 s3, s3, 1
    v_add_u32 v{VD+2}, s3, v33
    v_add_u32 v{VD+3}, s3, v{VD+1}
    s_add_u32 s{S_MD+1}, s{S_MD}, 1024
    s_add_u32 s{S_MD+2}, s{S_MD}, 2048
    s_add_u32 s{S_MD+3}, s{S_MD}, 3072
    """)
    A(f"s_movk_i32 s{S_MX}, 128\ns_waitcnt lgkmcnt(0)")
    A.srd(sL, 4, 2048 * 896)
    A("s_branch L_ldok")
    A("L_ldw:")
    A(f"""
    s_max_u32 s{S_KX}, s{S_W}, 4
    s_add_u32 s{S_KX}, s{S_KX}, s{S_RB}
    s_lshl_b32 s{S_KX}, s{S_KX}, 2
    v_lshlrev_b32 v33, 1, v31
    v_and_b32 v34, 15, v1
    v_xor_b32 v33, v33, v34
    v_mul_u32_u24 v34, 3584, v31
    v_lshl_add_u32 v32, v33, 4, v34
    v_xor_b32 v33, 128, v32
    s_and_b32 s{S_MD}, s{S_KX}, 15
    s_mul_i32 s27, s{S_MD}, {4*3584}
    s_lshl_b32 s3, s{S_FT}, 8
    s_add_u32 s27, s27, s3
    v_add_u32 v{VD}, s27, v32
    v_add_u32 v{VD+2}, s27, v33
    v_add_u32 v{VD+1}, {4*3584}, v{VD}
    v_add_u32 v{VD+2}, {8*3584}, v{VD+2}
    v_add_u32 v{VD+3}, {4*3584}, v{VD+2}
    s_lshl_b32 s{S_MD}, s{S_MD}, 10
    s_add_u32 s{S_MD}, s{S_MD}, 16384
    s_add_u32 s{S_MD+1}, s{S_MD}, 1024
    s_add_u32 s{S_MD+2}, s{S_MD}, 2048
    s_add_u32 s{S_MD+3}, s{S_MD}, 3072
    s_mov_b32 s{S_MX}, {64*3584}
    s_waitcnt lgkmcnt(0)
    """)
    A.srd(sL, 16, 448 * 3584)
    A("L_ldok:")
    A.srd(sX, 4, 2048 * 896)

    def p1_dmas(st):
        slot = st % 5
        return [A.dma2(VD + i, sL, f"s{S_KX}", f"s_add_u32 m0, s{S_MD+i}, {slot*32768}", ("p1", st),
                       pre=None if i else f"s_mul_i32 s{S_KX}, s{S_MX}, {st}", flags=p1fl[0]) for i in range(4)]
    p1fl = [""]

    def burst(dmas):
        for a_, b_ in dmas:
            a_(); A("s_nop 0"); b_()

    def p1_setup():
        A.srd(sWS, 24, WS_SIZE + (0x40000 if stamps else 0))
        A(f"""
        s_mov_b32 s{S_FTL}, s{S_G2}
        s_lshl_b32 s{S_HF}, s{S_XCD}, 2
        s_and_b32 s3, s{S_RB}, 3
        s_add_u32 s{S_HF}, s{S_HF}, s3
        s_lshl_b32 s{S_HF}, s{S_HF}, 7
        s_add_u32 s{S_HF}, s{S_HF}, {WS_HFLAG}
        v_mov_b32 v35, {WS_EPOCH}
        """)
        A.vmem(f"buffer_load_dword v{VEP}, v35, s[{sWS}:{sWS+3}], 0 offen sc1", "ep")
        if opt.get("lf", 1):
            A("v_mov_b32 v35, 4096")
            A.vmem(f"buffer_load_dword v{VEP+1}, v35, s[{sWS}:{sWS+3}], s{S_HF} offen sc1", "ep")
        A(f"""
        v_and_b32 v32, 15, v1
        v_lshrrev_b32 v33, 1, v32
        v_xor_b32 v33, v33, v31
        v_lshlrev_b32 v33, 4, v33
        v_lshl_add_u32 v33, v32, 7, v33
        s_lshl_b32 s3, s{S_W}, 11
        v_add_u32 v{XA}, s3, v33
        """)
        for rb in range(1, 4):
            A(f"v_xor_b32 v{XA+rb}, {rb*2048}, v{XA}")
        for rb in range(4):
            A(f"v_xor_b32 v{XA+4+rb}, 64, v{XA+rb}")
        A(f"""
        v_bfe_u32 v30, v1, 2, 2
        v_lshl_add_u32 v32, v31, 3, v30
        v_lshlrev_b32 v32, 8, v32
        v_and_b32 v33, 3, v1
        v_lshl_add_u32 v32, v33, 3, v32
        v_add_u32 v32, 16384, v32
        v_and_b32 v33, 1, v31
        v_lshl_or_b32 v33, v33, 2, v30
        s_and_b32 s3, s{S_W}, 3
        s_lshl_b32 s3, s3, 1
        s_lshr_b32 s27, s{S_W}, 2
        s_or_b32 s3, s3, s27
        v_xor_b32 v33, s3, v33
        v_lshl_add_u32 v{WA}, v33, 5, v32
        v_xor_b32 v{WA+1}, 32, v{WA}
        """)
        for i in range(4):
            A(f"v_mov_b32 v{ONES+i}, 0x3f803f80")
        A.srd(sW2, 18, 1792 * 896)
        A(f"""
        s_lshl_b32 s{S_T}, s{S_RB}, 1
        s_add_u32 s{S_T}, s{S_T}, s{S_JX}
        v_lshrrev_b32 v30, 3, v1
        v_mul_u32_u24 v32, 896, v30
        v_and_b32 v30, 6, v30
        v_and_b32 v33, 7, v1
        v_xor_b32 v30, v30, v33
        v_lshl_add_u32 v32, v30, 4, v32
        s_lshl_b32 s3, s{S_CT}, 7
        s_mul_i32 s27, s{S_W}, {8*896}
        s_add_u32 s3, s3, s27
        v_add_u32 v{VW2}, s3, v32
        s_lshl_b32 s{S_M2}, s{S_W}, 10
        s_and_b32 s3, s{S_W}, 2
        s_add_u32 s3, s3, s{S_JX}
        s_lshl_b32 s3, s3, 2
        s_lshr_b32 s27, s{S_T}, 3
        s_add_u32 s3, s3, s27
        s_lshl_b32 s3, s3, 7
        s_add_u32 s59, s3, {WS_VFLAG}
        v_mov_b32 v35, 0
        """)
        A.vmem(f"buffer_load_dword v{VEP+1}, v35, s[{sWS}:{sWS+3}], s59 offen sc1", "ep")

    def wpair_addr(p):
        if p < 12:
            return 65536 + 8192 * p
        if p < 14:
            return 16384 + 8192 * (p - 12)
        return [32768, 40960, 0, 65536, 49152, 57344, 8192, 73728][p - 14]

    def w_dma(p):
        if p < 14:
            srd = sW2
            if p % 2 == 0:
                pre = (f"s_mul_i32 s{S_K2}, s{S_JX}, 7\ns_add_u32 s{S_K2}, s{S_K2}, s{S_G2}\ns_mul_i32 s{S_K2}, s{S_K2}, {128*896}\n"
                       f"s_add_u32 s{S_G2}, s{S_G2}, 1\ns_cmp_eq_u32 s{S_G2}, 7\ns_cselect_b32 s{S_G2}, 0, s{S_G2}")
            else:
                pre = f"s_add_u32 s{S_K2}, s{S_K2}, {64*896}"
        else:
            srd = sWD if p < 18 else sW1
            pre = f"s_mov_b32 s{S_K2}, {((p - 14) % 4)*64*896}"
        return A.dma2(VW2, srd, f"s{S_K2}", f"s_add_u32 m0, s{S_M2}, {wpair_addr(p)}", ("w", p), pre=pre)

    def place(dmas, g0, g1):
        r = []
        for k, (a_, b_) in enumerate(dmas):
            g = g0 + 1 + k * (g1 - g0) // len(dmas)
            r += [(g - 1, a_), (g, b_)]
        return r

    def p1_reads(st, q, buf):
        so = ((st % 5) & 1) * 32768
        r = []
        for rb in range(4):
            r.append(lambda rb=rb: A.lds(f"ds_read_b128 {v(FX[buf]+4*rb,4)}, v{XA + 4*q + rb} offset:{so}", ("f", st, q)))
        for cb in range(2):
            for h in range(2):
                r.append(lambda cb=cb, h=h: A.lds(f"ds_read_b64_tr_b16 {v(FW[buf]+4*cb+2*h,2)}, v{WA+cb} offset:{so + q*8192 + h*1024}", ("f", st, q)))
        return r

    def p1_mfma(buf, first):
        z = "0" if first else None
        r = [lambda: A.mfma(RS, ONES, FX[buf], z), lambda: A.mfma(CS, FW[buf], ONES, z)]
        for cb in range(2):
            for rb in range(4):
                r.append(lambda cb=cb, rb=rb: A.mfma(ACC + (cb * 4 + rb) * 4, FW[buf] + 4 * cb, FX[buf] + 4 * rb, z))
        return r

    def p1_addr_step(st):
        d = {2: 65536, 4: 65536, 5: -131072}.get(st)
        if not d:
            return []
        return [(8 + k // 5, lambda r=r: A(f"v_add_u32 v{r}, {d & 0xffffffff}, v{r}"))
                for k, r in enumerate(list(range(XA, XA + 8)) + [WA, WA + 1])]

    def lines(txt, g0, g1):
        ex = [x for x in txt.strip().split("\n") if x.strip()]
        return [(g0 + k * (g1 - g0) // len(ex), lambda x=x: A(x)) for k, x in enumerate(ex)]

    VID = 120
    WA2, WB, WC, VH, VO, VL, VZ = 8, 12, 112, 2, 4, 16, 7
    FW2 = [24, 40]
    AC2, HF, VF = 56, 128, 192
    p2_setup = f"""
    v_lshlrev_b32 v{VL}, 4, v1
    v_mov_b32 v{VZ}, 0
    v_lshrrev_b32 v124, 4, v1
    v_bfe_u32 v125, v1, 2, 2
    v_lshl_add_u32 v126, v124, 2, v125
    v_lshrrev_b32 v127, 1, v126
    v_and_b32 v127, 3, v127
    v_lshlrev_b32 v126, 7, v126
    v_and_b32 v125, 3, v1
    v_lshl_add_u32 v126, v125, 3, v126
    """ + "".join(f"""
    v_xor_b32 v125, {eb}, v127
    v_lshl_add_u32 v{WA2+eb}, v125, 5, v126
    v_add_u32 v{WB+eb}, 0x10000, v{WA2+eb}
    v_add_u32 v{WC+eb}, 0x20000, v{WA2+eb}""" for eb in range(4)) + f"""
    s_lshl_b32 s{S_K2+32}, s{S_T}, 2
    s_and_b32 s{S_K2+33}, s{S_W}, 3
    s_add_u32 s{S_K2+32}, s{S_K2+32}, s{S_K2+33}
    s_mul_i32 s{S_K2+34}, s{S_K2+32}, {H_STRIDE}
    v_add_u32 v{VH}, s{S_K2+34}, v{VL}
    s_xor_b32 s{S_K2+34}, s{S_K2+32}, 4
    s_mul_i32 s{S_K2+34}, s{S_K2+34}, {H_STRIDE}
    v_add_u32 v{VH+1}, s{S_K2+34}, v{VL}
    s_and_b32 s{S_K2+32}, s{S_K2+32}, 7
    s_lshl_b32 s{S_K2+32}, s{S_K2+32}, 12
    s_add_u32 s{S_K2+32}, s{S_K2+32}, 32768
    v_add_u32 v238, s{S_K2+32}, v{VL}
    v_xor_b32 v239, 16384, v238
    s_lshl_b32 s{S_K2+32}, s{S_RB}, 6
    s_add_u32 s{S_K2+32}, s{S_K2+32}, s{S_JX}
    s_and_b32 s{S_K2+33}, s{S_W}, 1
    s_lshl_b32 s{S_K2+33}, s{S_K2+33}, 5
    s_add_u32 s{S_K2+33}, s{S_K2+33}, s{S_K2+32}
    v_lshrrev_b32 v124, 3, v1
    v_lshl_add_u32 v125, v124, 1, s{S_K2+33}
    s_bfe_u32 s{S_K2+32}, s{S_W}, 0x10001
    s_lshl_b32 s{S_K2+33}, s{S_K2+32}, 11
    s_lshl_b32 s{S_K2+32}, s{S_K2+32}, 1
    s_sub_u32 s{S_K2+32}, 1, s{S_K2+32}
    v_mul_i32_i24 v125, s{S_K2+32}, v125
    v_add_u32 v125, s{S_K2+33}, v125
    s_mul_i32 s{S_K2+32}, s{S_K2+32}, {16*896}
    s_lshl_b32 s{S_K2+33}, s{S_CT}, 7
    v_mul_u32_u24 v126, 896, v125
    v_add_u32 v126, s{S_K2+32}, v126
    v_lshrrev_b32 v127, 11, v125
    v_lshlrev_b32 v127, 10, v127
    v_sub_u32 v125, v125, v127
    v_mul_u32_u24 v125, 896, v125
    v_and_b32 v127, 7, v1
    v_xor_b32 v127, v127, v124
    v_lshlrev_b32 v127, 4, v127
    v_add_u32 v127, s{S_K2+33}, v127
    v_add_u32 v{VO}, v125, v127
    v_add_u32 v{VO+1}, v126, v127
    """
    for k in range(3):
        p2_setup = p2_setup.replace(f"s{S_K2+32+k}", f"s{48+k}")
    WPRE = opt.get("wpre", 12)

    def phase1(cls):
        K0 = opt.get("k0", 2) if cls == 0 else opt.get("k1", 2)
        p1fl[0] = opt.get("shfl", "") if cls == 0 else ""
        if cls == 0:
            if opt.get("xt", 0) == 2:
                A(f"s_cmp_lg_u32 s{S_W}, 1\ns_cbranch_scc1 L_notouch0")
                start_touch(A, opt, "x", 124)
                A("L_notouch0:")
            for s_ in range(K0):
                burst(p1_dmas(s_))
            A(f"s_cmp_lg_u32 s{S_W}, 0\ns_cbranch_scc1 L_notouch")
            if opt.get("xt", 0) == 1:
                start_touch(A, opt, "x", 124)
            code_touch(A)
            A("L_notouch:")
            p1_setup()
        else:
            p1_setup()
            for s_ in range(K0):
                burst(p1_dmas(s_))
        A.wait(vm=("p1", 0))
        A("s_barrier")
        st1(2)
        if P1: _stamp(1)
        for f in p1_reads(0, 0, 0):
            f()
        queue = []
        for s_ in range(K0, 7):
            for i in range(4):
                first = max(0, 2 * (s_ - 5) + 1)
                if cls == 1:
                    first = max(first, 2 * s_ - opt.get("la1", 5) + i // 2)
                queue.append((first, lambda s_=s_, i=i: p1_dmas(s_)[i]))
        wn = WPRE
        for p in range(WPRE):
            queue.append((max(2 * (2 + p // 4) + 1 if p < 12 else 13, min(13, opt.get("w0", 8) + p // 2)), lambda p=p: w_dma(p)))
        rate = (opt.get("r0", 4), 4)
        for st in range(7):
            for q in range(2):
                fl = []
                if q == 0:
                    A.wait(lg=("f", st, 0))
                    fl += list(enumerate(p1_reads(st, 1, 1))) + p1_addr_step(st + 1)
                else:
                    if st < 6:
                        if P1 == 2: _stamp(st + 2)
                        A.wait(vm=("p1", st + 1), lg=0)
                        if P1 == 3: _stamp(st + 2)
                        A("s_barrier")
                        if P1 == 1: _stamp(st + 2)
                        fl += list(enumerate(p1_reads(st + 1, 0, 0)))
                    else:
                        A.wait(lg=0)
                dm = []
                blk = 2 * st + q
                while queue and len(dm) < rate[cls] and queue[0][0] <= blk:
                    dm.append(queue.pop(0)[1]())
                if dm:
                    fl += place(dm, 1, 9)
                if (st, q) == (0, 1):
                    fl += lines(f"""
                    v_readfirstlane_b32 s{S_TAG}, v{VEP}
                    s_lshl_b32 s27, s{S_CT}, 2
                    v_mov_b32 v{VID+1}, s27
                    s_mul_i32 s{S_TAG}, s{S_TAG}, {TAGMUL}
                    s_add_u32 s{S_TAG}, s{S_TAG}, {TAGADD}
                    v_min_u32 v{VID+3}, 6, v1
                    v_lshlrev_b32 v{VID+3}, 2, v{VID+3}
                    """, 0, 8)
                    A.wait(vm="ep")
                if cls == 0 and opt.get("dum", 0) and 2 * st + q == opt.get("dumb", 0):
                    def dummy():
                        for s_ in range(5, 7):
                            A(f"s_mul_i32 s3, s{S_MX}, {s_}")
                            for i in range(4):
                                A.vmem(f"buffer_load_dwordx4 v[252:255], v{VD+i}, s[{sL}:{sL+3}], s3 offen")
                    fl.append((9, dummy))
                if cls == 0 and 2 * st + q == opt.get("wtb", 5):
                    def wt():
                        A(f"s_cmp_lg_u32 s{S_W}, 1\ns_cbranch_scc1 L_notouch3")
                        A(f"""
                        v_lshlrev_b32 v124, 7, v1
                        s_mul_i32 s3, s2, {56*128}
                        s_mov_b32 exec_hi, 0xffffff
                        buffer_load_dword v125, v124, s[{sW2}:{sW2+3}], s3 offen
                        s_mov_b64 exec, -1
                        """)
                        A("L_notouch3:")
                    fl.append((9, wt))
                if (st, q) == (6, 1):
                    fl += lines(f"""
                    v_and_b32 v30, 15, v1
                    v_lshlrev_b32 v30, 2, v30
                    s_lshl_b32 s3, s{S_W}, 6
                    v_add_u32 v30, s3, v30
                    v_lshrrev_b32 v31, 4, v1
                    v_lshlrev_b32 v31, 4, v31
                    s_and_b32 s27, s{S_W}, 3
                    s_lshl_b32 s27, s27, 7
                    s_lshr_b32 s3, s{S_W}, 2
                    s_lshl_b32 s3, s3, 6
                    s_add_u32 s27, s27, s3
                    v_add_u32 v31, s27, v31
                    v_xor_b32 v32, 64, v30
                    v_xor_b32 v33, 128, v30
                    v_xor_b32 v34, 192, v30
                    v_xor_b32 v35, 64, v31
                    """, 0, 8)
                    fl += lines(p2_setup, 0, 9)
                    fl.append((9, lambda: A.lds(f"ds_write_b32 v30, v{RS}")))
                    fl.append((9, lambda: A.lds(f"ds_write_b128 v31, {v(CS,4)} offset:512")))
                A.weave(p1_mfma(q, st == 0 and q == 0), fl)
        assert not queue, len(queue)
        if opt.get("tre", 0):
            A.wait(vm=("w", 2 * opt.get("tre", 0) - 1))
        return wn
    A(f"s_cmp_ge_u32 s{S_W}, 2\ns_cbranch_scc1 L_p1b")
    WN = phase1(0)
    A("s_branch L_p1done")
    A("L_p1b:")
    A.reset()
    phase1(1)
    A("L_p1done:")
    A.reset()
    st1(3)
    if P1: _stamp(8)
    A.wait(lg=0)
    A("s_barrier")
    if P1: _stamp(9)
    S_HS = S_MD

    def epilogue(wr):
        A.reset()
        MB = 24; CS1 = 28
        A.lds(f"ds_read_b32 v{MB+1}, v32")
        A.lds(f"ds_read_b32 v{MB+2}, v33")
        A.lds(f"ds_read_b32 v{MB+3}, v34")
        A.lds(f"ds_read_b128 {v(CS1,4)}, v35 offset:512")
        A(f"""
        s_lshl_b32 s{S_KX}, s{S_RB}, 3
        s_mul_i32 s{S_KX}, s{S_KX}, 56
        s_lshl_b32 s{S_KW}, s{S_FT}, 2
        s_add_u32 s{S_KX}, s{S_KX}, s{S_KW}
        s_and_b32 s27, s{S_W}, 3
        s_add_u32 s{S_KX}, s{S_KX}, s27
        s_lshl_b32 s{S_KX}, s{S_KX}, 10
        s_lshl_b32 s27, s27, 10
        s_add_u32 s27, s27, 32768
        v_add_u32 v34, s27, v{VL}
        s_mov_b32 s3, {0x3b124925}
        v_mul_f32 v{MB}, s3, v{RS}
        """)
        A.wait(lg=0)
        for i in range(1, 4):
            A(f"v_mul_f32 v{MB+i}, s3, v{MB+i}")
        A(f"v_cvt_pk_bf16_f32 v32, v{MB}, v{MB+1}\nv_cvt_pk_bf16_f32 v33, v{MB+2}, v{MB+3}")
        A(f"v_lshlrev_b32 v{MB}, 16, v32\nv_and_b32 v{MB+1}, 0xffff0000, v32\nv_lshlrev_b32 v{MB+2}, 16, v33\nv_and_b32 v{MB+3}, 0xffff0000, v33")
        PK = 36
        for rb in range(4):
            sel = "op_sel:[0,1,0] op_sel_hi:[1,1,1]" if rb & 1 else "op_sel_hi:[1,0,1]"
            d = PK + 4 * rb
            for cb in range(2):
                a0 = ACC + (cb * 4 + rb) * 4
                for hh in range(2):
                    A(f"v_pk_fma_f32 {v(a0+2*hh,2)}, {v((CS, CS1)[cb]+2*hh,2)}, {v(MB+(rb&2),2)}, {v(a0+2*hh,2)} {sel} neg_lo:[1,0,0] neg_hi:[1,0,0]")
            for cb in range(2):
                a0 = ACC + (cb * 4 + rb) * 4
                for hh in range(2):
                    A(f"v_cvt_pk_bf16_f32 v{d+2*(cb^wr)+hh}, v{a0+2*hh}, v{a0+2*hh+1}")
            for i in range(4):
                A(f"v_pk_max_i16 v{d+i}, v{d+i}, 0")
            A(f"s_xor_b32 s27, s{S_W}, {rb}\ns_mul_i32 s{S_MD+rb}, s27, {H_STRIDE}\ns_add_u32 s{S_MD+rb}, s{S_MD+rb}, s{S_KX}")
            A.vmem(f"buffer_store_dwordx4 {v(PK+4*rb,4)}, v{VL}, s[{sWS}:{sWS+3}], s{S_MD+rb} offen sc1", ("hst", rb))
            A(f"s_lshl_b32 s27, s27, 12\nv_add_u32 v35, s27, v34")
            A.lds(f"ds_write_b128 v35, {v(PK+4*rb,4)}")
        st1(4)
        if P1: _stamp(10)
        A.stamp(5)

    def readback(vb):
        if opt.get("rb", 0):
            A(f"""
            v_lshrrev_b32 v{vb}, 3, v1
            v_xor_b32 v{vb}, s{S_W}, v{vb}
            v_mul_u32_u24 v{vb}, {H_STRIDE}, v{vb}
            v_and_b32 v{vb+1}, 7, v1
            v_lshl_add_u32 v{vb}, v{vb+1}, 7, v{vb}
            s_mov_b32 exec_hi, 0
            """)
            A.vmem(f"buffer_load_dword v{vb+1}, v{vb}, s[{sWS}:{sWS+3}], s{S_HB} offen")
            A("s_mov_b32 exec_hi, -1")
    S_HB = 59
    S_H, S_GH = S_KX, S_KW
    TRB = opt.get("trb", 0)
    assert TRB <= 2 * WN and TRB % 4 == 0
    NAL = opt.get("nal", 24)
    B0 = 4 + NAL

    def w_reads(key, i, both=True):
        r = []
        if i < TRB:
            a_ = wpair_addr(i >> 1) + (i & 1) * 4096
            return [lambda eb=eb: A.lds(f"ds_read_b128 {v(FW2[key&1]+4*eb,4)}, v{240+(a_>>16)} offset:{(a_ & 0xffff) + eb*1024}", ("wf", key, eb >> 1))
                    for eb in range(4)]
        for eb in range(4):
            for h in range(2):
                if i < 28:
                    a_ = wpair_addr(i >> 1) + (i & 1) * 4096
                    reg, off = (WA2, WB, WC)[a_ >> 16] + eb, (a_ & 0xffff) + h * 2048
                else:
                    u = i - 28
                    reg, off = ((WA2, u * 4096) if u < 4 else ((WB, WC)[(u - 4) >> 1], (u & 1) * 4096))
                    reg, off = reg + eb, off + h * 2048
                r.append(lambda reg=reg, off=off, eb=eb, h=h: A.lds(f"ds_read_b64_tr_b16 {v(FW2[key&1]+4*eb+2*h,2)}, v{reg} offset:{off}", ("wf", key, eb >> 1)))
        return r

    YS, ZS = 32768, 0
    XS = TS = 4096

    A(f"s_cmp_ge_u32 s{S_W}, 4\ns_cbranch_scc1 L_aux")
    epilogue(0)
    seq = [(i, (0, 1)) for i in range(4)] + [(i, (1,)) for i in range(4, B0)] + [(i, (0, 1)) for i in range(B0, 28)] + [(i, (0,)) for i in range(4, B0)]
    hl = [(n, tt) for n, (i, tts) in enumerate(seq) for tt in tts]
    NSL = opt.get("nsl", 16)
    slot = {k: HF + (idx % NSL) * 4 for idx, k in enumerate(hl)}
    state_h = dict(next=8, grp=None)

    def h_next():
        idx = state_h["next"]
        if idx >= len(hl):
            return
        state_h["next"] += 1
        n, tt = hl[idx]
        i = seq[n][0]
        if state_h["grp"] != i // 4 and not (opt.get("hfix") and state_h["grp"]):
            state_h["grp"] = i // 4
            A(f"s_add_u32 s{S_H}, s{S_FTL}, {i // 4}\ns_cmp_ge_u32 s{S_H}, 7\ns_cselect_b32 s3, 7, 0\ns_sub_u32 s{S_H}, s{S_H}, s3")
            A(f"s_add_u32 s{S_H}, s{S_H}, s{S_GH}\ns_lshl_b32 s{S_H}, s{S_H}, 12")
        if opt.get("noh"):
            A.vm.append(("h", n, tt)); A.vm_done = len(A.vm)
            return
        A.vmem(f"buffer_load_dwordx4 {v(slot[(n, tt)], 4)}, v{VH+tt}, s[{sWS}:{sWS+3}], s{S_H} offen offset:{(i%4)*1024} {HLD}", ("h", n, tt))

    def step(n, extra=()):
        i, tts = seq[n]
        nm = 4 * len(tts)
        fl = list(extra)
        if n + 1 < len(seq):
            rd = w_reads(n + 1, seq[n + 1][0])
            fl += [(k * nm // len(rd), f) for k, f in enumerate(rd)]
        if n >= 1:
            fl += [(1 + 4 * k, h_next) for k in range(len(seq[n - 1][1]))]
        mf = []
        for eb in range(4):
            for tt in tts:
                def f(eb=eb, tt=tt):
                    if eb % 2 == 0 and tt == tts[0]:
                        A.wait(vm=("h", n, tts[-1]) if eb == 0 and n >= 4 else None, lg=("wf", n, eb >> 1))
                    A.mfma(AC2 + (tt * 4 + eb) * 4, FW2[n & 1] + 4 * eb, slot[(n, tt)], "0" if n == 0 else None)
                mf.append(f)
        A.weave(mf, fl)

    PR, XU = 192, 208
    fin = f"""
    v_and_b32 v20, 15, v1
    v_lshrrev_b32 v21, 4, v1
    v_lshrrev_b32 v22, 1, v21
    v_and_b32 v23, 7, v20
    v_xor_b32 v22, v22, v23
    v_lshlrev_b32 v22, 4, v22
    v_lshl_add_u32 v22, v20, 7, v22
    v_and_b32 v21, 1, v21
    v_lshl_add_u32 v22, v21, 3, v22
    s_lshl_b32 s27, s{S_W}, 11
    s_add_u32 s27, s27, {TS}
    v_add_u32 v232, s27, v22
    v_add_u32 v23, s27, v{VL}
    v_xor_b32 v233, 32, v232
    v_xor_b32 v234, 64, v232
    v_xor_b32 v235, 96, v232
    ds_read_b64 v[224:225], v232
    ds_read_b64 v[226:227], v233
    ds_read_b64 v[228:229], v234
    ds_read_b64 v[230:231], v235
    s_lshl_b32 s27, s{S_W}, 6
    s_add_u32 s27, s27, {YS + 20480}
    v_lshl_add_u32 v20, v20, 2, s27
    s_and_b32 s27, s{S_W}, 1
    s_lshl_b32 s27, s27, 12
    s_add_u32 s27, s27, {YS}
    v_add_u32 v19, s27, v{VL}
    s_xor_b32 s{S_MW}, s{S_W}, 2
    s_or_b32 s{S_MW}, s{S_MW}, s{S_T}
    s_sub_u32 s{S_MW}, s{S_MW}, 1
    s_lshr_b32 s{S_MW}, s{S_MW}, 31
    s_lshl_b32 s{S_MW}, s{S_MW}, 14
    v_add_u32 v18, s{S_MW}, v19
    s_lshl_b32 s27, s{S_W}, 30
    s_and_b32 s27, s27, 0x80000000
    s_or_b32 s27, s27, 1.0
    v_mov_b32 v237, s27
    s_xor_b32 s{S_FT}, s{S_MX}, 16384
    s_and_b32 s{S_G2}, s{S_PT}, {1 if opt.get('pb', 1) else 0xff}
    """.strip().split("\n")
    fin = [x.strip() for x in fin]
    unp = [f"v_lshlrev_b32 v{XU+2*k}, 16, v{224+k}" if b_ == 0 else f"v_and_b32 v{XU+2*k+1}, 0xffff0000, v{224+k}" for k in range(8) for b_ in range(2)]

    PB = opt.get("pb", 1)

    def p_loads(track):
        for eb in range(2 if PB else 4):
            t_ = f"buffer_load_dwordx4 {v(PR+4*eb,4)}, v{VL}, s[{sWS}:{sWS+3}], s{S_FT} offen offset:{eb*1024} sc1"
            A.vmem(t_, "part") if track else A(t_)
    TRE = min(opt.get("tre", 0), TRB // 4)

    def transpose(b0, b1):
        def tr_in(b):
            a_ = wpair_addr(2 * b)
            for eb in range(4):
                for h in range(2):
                    A.lds(f"ds_read_b64_tr_b16 {v(160+16*(b&1)+4*eb+2*h,2)}, v{240+4*(a_>>16)+eb} offset:{(a_ & 0xffff) + h*2048}", ("tr", b))
        if b0 < b1:
            tr_in(b0)
        for b in range(b0, b1):
            if b + 1 < b1:
                tr_in(b + 1)
            A.wait(lg=("tr", b))
            a_ = wpair_addr(2 * b)
            for eb in range(4):
                A.lds(f"ds_write_b128 v{252+(a_>>16)}, {v(160+16*(b&1)+4*eb,4)} offset:{(a_ & 0xffff) + eb*1024}")
    A(f"s_lshl_b32 s3, s2, 14\ns_lshl_b32 s27, s{S_W}, 12\ns_add_u32 s3, s3, s27\ns_add_u32 s{S_MX}, s3, {WS_PART}")
    A.srd(sOUT, 20, 2048 * 896)
    A(f"s_lshl_b32 s{S_H}, s{S_W}, 11")
    for ps in range(2):
        A.dma(VO + ps, sX, "0", f"s_add_u32 m0, s{S_H}, {XS + ps*1024}", "xr")
    if TRB:
        A(f"s_lshl_b32 s3, s{S_W}, 12")
        for k, base in enumerate((WA2, WB, WC)):
            for eb in range(4):
                A(f"v_add_u32 v{240+4*k+eb}, s3, v{base+eb}")
            A(f"v_add_u32 v{252+k}, s3, v{VL}" + (f"\nv_add_u32 v{252+k}, {k << 16}, v{252+k}" if k else ""))
    transpose(0, TRE)
    for x in fin:
        if not x.startswith("ds_"):
            A(x.replace(f"s{S_G2}", "s48").replace("s48", f"s{S_HB}") if False else x) if f"s{S_G2}" not in x else None
    A.wait(vm=0, lg=0)
    for x in fin:
        if x.startswith("ds_"):
            A.lds(x)
    burst([w_dma(p) for p in range(WN, 14)])
    A("s_barrier")
    A(f"s_cmp_lg_u32 s{S_W}, 3\ns_cbranch_scc1 L_nopub")
    A(f"v_mov_b32 v236, s{S_TAG}\ns_mov_b64 exec, 1")
    if opt.get("lf", 1):
        A(f"s_add_u32 s3, s{S_HF}, 4096")
        A(f"buffer_store_dword v236, v{VID+1}, s[{sWS}:{sWS+3}], s3 offen offset:16")
    A(f"buffer_store_dword v236, v{VID+1}, s[{sWS}:{sWS+3}], s{S_HF} offen offset:16 sc1")
    A("s_mov_b64 exec, -1")
    A("L_nopub:")
    A.stamp(7)
    for x in fin:
        if f"s{S_G2}" in x:
            A(x)
    for n in range(4):
        for tt in range(2):
            A.lds(f"ds_read_b128 {v(slot[(n, tt)],4)}, v{238+tt} offset:{n*1024}")
    A.wait(lg=0)
    for x in unp:
        A(x)
    A(f"s_mul_i32 s{S_GH}, s{S_JX}, 7")
    transpose(TRE, TRB // 4)
    if TRB:
        A(f"v_add_u32 v241, 0x10000, v{VL}\nv_add_u32 v242, 0x20000, v{VL}\nv_mov_b32 v240, v{VL}")
    A(f"s_cmp_lg_u32 s{S_W}, 3\ns_cbranch_scc1 L_nopoll")
    if opt.get("lf", 1):
        A(f"""
        s_mov_b32 s27, 0x40000
        L_hpoll:
        s_and_b32 s3, s27, 3
        s_cselect_b32 s3, {4096 + 16}, 16
        s_add_u32 s3, s3, s{S_HF}
        buffer_load_dword v236, v{VID+3}, s[{sWS}:{sWS+3}], s3 offen sc1
        s_waitcnt vmcnt(0)
        v_cmp_eq_u32 vcc, s{S_TAG}, v236
        s_nop 1
        s_cmp_eq_u64 vcc, exec
        s_cbranch_scc1 L_nopoll
        s_sub_u32 s27, s27, 1
        s_cbranch_scc0 L_hpoll
        """.replace("0x40000", "0x3ffff"))
    else:
        A(f"s_add_u32 s3, s{S_HF}, 16")
        A.poll(VID + 3, sWS, "s3", "eq", 64, S_TAG, vtmp=236)
    A("L_nopoll:")
    A.wait(vm=0, lg=0)
    A("s_barrier")
    if not P2: A.stamp(1)
    for k in range(NSL - 8):
        h_next()
    for f in w_reads(0, 0):
        f()
    if opt.get("prio", 1):
        A(f"s_setprio {opt.get('prio', 1)}")
    for n in range(len(seq)):
        ex = []
        if opt.get("p3") and n in (0, 4, 12, 20, 36, 44):
            _stamp({0: 2, 4: 3, 12: 4, 20: 5, 36: 6, 44: 7}[n])
        if n == opt.get("m2n", -1):
            A("s_barrier")
        if n == 28:
            A.stamp(8)
            A(f"""
            v_mov_b32 v236, s{S_G2}
            s_movk_i32 s27, {1 if PB else 0xff}
            s_nop 5
            """)
            for k in range(2 if PB else 0):
                for r in range(4):
                    A(f"v_cvt_pk_bf16_f32 v{AC2+16+4*k+r}, v{AC2+16+8*k+2*r}, v{AC2+17+8*k+2*r}")
                for r in range(4):
                    A(f"v_bfi_b32 v{AC2+16+4*k+r}, s27, v236, v{AC2+16+4*k+r}")
                A.vmem(f"buffer_store_dwordx4 {v(AC2+16+4*k,4)}, v{VL}, s[{sWS}:{sWS+3}], s{S_MX} offen offset:{k*1024} sc1", "pst")
            for eb in range(0 if PB else 4):
                for r in range(4):
                    A(f"v_bfi_b32 v{AC2+16+4*eb+r}, s27, v236, v{AC2+16+4*eb+r}")
                A.vmem(f"buffer_store_dwordx4 {v(AC2+16+4*eb,4)}, v{VL}, s[{sWS}:{sWS+3}], s{S_MX} offen offset:{eb*1024} sc1", "pst")
        if n == len(seq) - opt.get("pat", 6):
            ex.append((3, lambda: p_loads(True)))
        step(n, ex)
    A.stamp(9)
    A(f"s_mov_b32 s{S_KX}, 0x40000")
    A("L_pchk:")
    A("s_waitcnt vmcnt(0)")
    NP = 8 if PB else 16
    for r in range(NP):
        A(f"v_xor_b32 v{PR+r}, s{S_G2}, v{PR+r}")
    A(f"v_or3_b32 v24, v{PR}, v{PR+1}, v{PR+2}")
    for k in range(NP // 2 - 2):
        A(f"v_or3_b32 v24, v24, v{PR+3+2*k}, v{PR+4+2*k}")
    A(f"v_or_b32 v24, v24, v{PR+NP-1}\nv_and_b32 v24, {1 if PB else 0xff}, v24\nv_cmp_eq_u32 vcc, 0, v24\ns_nop 1\ns_cmp_eq_u64 vcc, exec\ns_cbranch_scc1 L_pok")
    p_loads(False)
    A(f"s_sub_u32 s{S_KX}, s{S_KX}, 1\ns_cbranch_scc0 L_pchk")
    A("L_pok:")
    if PB:
        for r in range(8):
            A(f"v_and_b32 v{PR+8+r}, 0xffff0000, v{PR+r}\nv_lshlrev_b32 v{PR+r}, 16, v{PR+r}")
    for r in range(16):
        A(f"v_add_f32 v{AC2+r}, v{AC2+r}, v{PR + ((r >> 1) + 8 * (r & 1) if PB else r)}")
    if P2: A.stamp(2)
    A("s_barrier")
    A.stamp(10)
    YP = HF
    A(f"ds_read_b32 v236, v20")
    for eb in range(4):
        A(f"ds_read_b128 {v(YP+4*eb,4)}, v18 offset:{eb*1024}")
    for eb in range(4):
        A(f"ds_read_b128 {v(YP+16+4*eb,4)}, v19 offset:{8192 + eb*1024}")
    A("s_waitcnt lgkmcnt(8)")
    for eb in range(4):
        for hh in range(2):
            A(f"v_pk_fma_f32 {v(XU+4*eb+2*hh,2)}, {v(AC2+4*eb+2*hh,2)}, v[236:237], {v(XU+4*eb+2*hh,2)} op_sel_hi:[1,0,1]")
    A("s_waitcnt lgkmcnt(4)")
    for eb in range(4):
        for hh in range(2):
            A(f"v_pk_add_f32 {v(XU+4*eb+2*hh,2)}, {v(XU+4*eb+2*hh,2)}, {v(YP+4*eb+2*hh,2)}")
    A("s_waitcnt lgkmcnt(0)")
    for eb in range(4):
        for hh in range(2):
            A(f"v_pk_fma_f32 {v(XU+4*eb+2*hh,2)}, {v(YP+16+4*eb+2*hh,2)}, v[236:237], {v(XU+4*eb+2*hh,2)} op_sel:[0,1,0] op_sel_hi:[1,1,1]")
        A(f"v_cvt_pk_bf16_f32 v{28+2*eb}, v{XU+4*eb}, v{XU+4*eb+1}\nv_cvt_pk_bf16_f32 v{29+2*eb}, v{XU+4*eb+2}, v{XU+4*eb+3}")
        A(f"ds_write_b64 v{232+eb}, {v(28+2*eb,2)}")
    A("s_waitcnt lgkmcnt(0)")
    A("ds_read_b128 v[36:39], v23\nds_read_b128 v[40:43], v23 offset:1024")
    A("s_waitcnt lgkmcnt(1)")
    A(f"buffer_store_dwordx4 v[36:39], v{VO}, s[{sOUT}:{sOUT+3}], 0 offen {opt.get('ofl', '')}")
    A("s_waitcnt lgkmcnt(0)")
    A(f"buffer_store_dwordx4 v[40:43], v{VO+1}, s[{sOUT}:{sOUT+3}], 0 offen {opt.get('ofl', '')}")
    if opt.get("dbg"):
        A.srd(sDBG, 22, 256)
        A("""
        s_waitcnt vmcnt(0)
        s_memrealtime s[88:89]
        s_memtime s[84:85]
        s_waitcnt lgkmcnt(0)
        s_sub_u32 s84, s84, s90
        s_sub_u32 s88, s88, s92
        s_lshl_b32 s88, s88, 16
        s_and_b32 s92, s92, 0xffff
        s_or_b32 s88, s88, s92
        v_mov_b32 v2, s88
        v_mov_b32 v3, s84
        s_lshl_b32 s3, s2, 3
        s_lshl_b32 s27, s60, 8
        s_add_u32 s3, s3, s27
        v_mov_b32 v5, s3
        s_mov_b64 exec, 1
        """)
        A(f"buffer_store_dwordx2 v[2:3], v5, s[{sDBG}:{sDBG+3}], 0 offen")
    A.dump_stamps(11)
    A("s_endpgm")

    A("L_aux:")
    epilogue(1)
    RSD, VPOLL, VT, YB, YA, V2, VF, WF = 20, 22, 19, 32, 48, 64, 96, 128
    PR, XU = VF, V2
    DF, EF, TA = 24, 8, opt.get('ta', 32)
    S_PA = S_MX
    A(f"""
    s_and_b32 s{S_GH}, s{S_W}, 3
    v_and_b32 v14, 15, v1
    s_lshl_b32 s3, s{S_CT}, 6
    v_add_u32 v{EF}, s3, v14
    v_cvt_f32_u32 v{EF}, v{EF}
    v_lshrrev_b32 v15, 4, v1
    v_lshlrev_b32 v{DF}, 2, v15
    v_cvt_f32_u32 v{DF}, v{DF}
    s_mov_b32 s3, 0x41800000
    v_add_f32 v{EF+1}, s3, v{EF}
    v_add_f32 v{EF+2}, s3, v{EF+1}
    v_add_f32 v{EF+3}, s3, v{EF+2}
    v_add_f32 v{DF+1}, 1.0, v{DF}
    v_add_f32 v{DF+2}, 2.0, v{DF}
    v_add_f32 v{DF+3}, 2.0, v{DF+1}
    v_add_f32 v{DF+4}, s3, v{DF}
    v_add_f32 v{DF+5}, s3, v{DF+1}
    v_add_f32 v{DF+6}, s3, v{DF+2}
    v_add_f32 v{DF+7}, s3, v{DF+3}
    s_mov_b32 s3, {0x3b124925}
    v_mul_f32 v{EF}, s3, v{EF}
    v_mul_f32 v{EF+1}, s3, v{EF+1}
    v_mul_f32 v{EF+2}, s3, v{EF+2}
    v_mul_f32 v{EF+3}, s3, v{EF+3}
    s_bitcmp1_b32 s{S_W}, 1
    s_cselect_b32 s3, 0x3e800000, 0
    v_mov_b32 v{EF+4}, s3
    v_mov_b32 v{EF+5}, 0x42000000
    """)
    gen_ops = []
    CA_, CB_, KK = 64, 72, 80
    for eb in range(4):
        sel = "op_sel:[0,1,0] op_sel_hi:[1,1,0]" if eb & 1 else "op_sel_hi:[1,0,0]"
        gen_ops.append(f"v_mul_f32 v{KK}, v{EF+5}, v{EF+eb}")
        gen_ops += [f"v_pk_fma_f32 {v(CA_+2*i,2)}, {v(DF+2*i,2)}, {v(EF+(eb&2),2)}, {v(EF+4,2)} {sel}" for i in range(4)]
        gen_ops += [f"v_pk_add_f32 {v(CB_+2*i,2)}, {v(CA_+2*i,2)}, {v(KK,2)} op_sel_hi:[1,0]" for i in range(4)]
        gen_ops.append(f"v_cos_f32 v{KK}, v{KK}")
        gen_ops += [f"v_cos_f32 v{CA_+i}, v{CA_+i}" for i in range(16)]
        gen_ops.append(f"v_add_f32 v{KK}, v{KK}, v{KK}")
        for u in range(8):
            cur = (CA_, CB_)[u & 1]
            if u >= 2:
                gen_ops += [f"v_pk_fma_f32 {v(cur+2*i,2)}, {v((CB_, CA_)[u & 1]+2*i,2)}, {v(KK,2)}, {v(cur+2*i,2)} op_sel_hi:[1,0,1] neg_lo:[0,0,1] neg_hi:[0,0,1]" for i in range(4)]
            gen_ops += [f"v_cvt_pk_bf16_f32 v{WF+16*u+4*eb+i}, v{cur+2*i}, v{cur+2*i+1}" for i in range(4)]

    def wgen(n):
        for x in gen_ops[:16 * n]:
            A(x)
        del gen_ops[:16 * n]
    S_VF = 59
    A(f"""
    s_lshl_b32 s3, s{S_RB}, 6
    s_add_u32 s3, s3, s{S_JX}
    s_and_b32 s27, s{S_W}, 1
    s_lshl_b32 s27, s27, 5
    s_add_u32 s27, s27, s3
    v_lshl_add_u32 v{RSD+1}, v14, 1, s27
    s_bitcmp1_b32 s{S_W}, 1
    s_cselect_b32 s3, -1, 1
    s_cselect_b32 s27, 2048, 0
    v_mul_i32_i24 v{RSD+1}, s3, v{RSD+1}
    v_add_u32 v{RSD+1}, s27, v{RSD+1}
    v_lshrrev_b32 v{RSD}, 11, v{RSD+1}
    v_lshlrev_b32 v{RSD}, 10, v{RSD}
    v_sub_u32 v{RSD+1}, v{RSD+1}, v{RSD}
    v_lshlrev_b32 v{RSD+1}, 2, v{RSD+1}
    v_add_u32 v{RSD+1}, {WS_RSTD}, v{RSD+1}
    s_lshl_b32 s3, s{S_T}, 1
    s_and_b32 s27, s{S_W}, 1
    s_add_u32 s3, s3, s27
    s_lshl_b32 s{S_FT}, s3, 14
    s_lshr_b32 s27, s{S_GH}, 1
    s_lshl_b32 s3, s27, 13
    s_add_u32 s{S_FT}, s{S_FT}, s3
    s_add_u32 s{S_FT}, s{S_FT}, {WS_VV}
    s_cmp_eq_u32 s{S_GH}, 0
    s_cselect_b32 s{S_MW}, {WS_VV + 64*16384}, s{S_FT}
    s_lshl_b32 s3, s{S_GH}, 12
    s_add_u32 s27, s3, {YS}
    v_add_u32 v17, s27, v{VL}
    s_lshl_b32 s3, s{S_GH}, 6
    s_add_u32 s3, s3, {YS + 20480}
    v_lshl_add_u32 v18, v14, 2, s3
    """)
    A(f"""
    v_and_b32 v{VPOLL+1}, 1, v1
    v_lshlrev_b32 v{VPOLL+1}, 2, v{VPOLL+1}
    """)
    wgen(opt.get("g1", 10))
    A.wait(vm=0, lg=0)
    burst([w_dma(p) for p in range(WN, 14)])
    A("s_barrier")
    A.stamp(7)
    wgen(32)
    A.wait(vm=0)
    A("s_barrier")
    if not P2: A.stamp(1)
    if opt.get("nov"):
        A("s_branch L_vdone")
    if opt.get("m2n", -1) >= 0:
        A("s_barrier")
    A.poll(VPOLL + 1, sWS, f"s{S_VF}", "eq", 64, S_TAG, vtmp=VPOLL, sleep=opt.get("vps", 8))
    A.stamp(9)
    A.reset()
    A.vmem(f"buffer_load_dword v{RSD}, v{RSD+1}, s[{sWS}:{sWS+3}], 0 offen {HLD}", "rstd")
    for u in range(8):
        if u % 4 == 0:
            A(f"s_add_u32 s27, s{S_FT}, {u*1024}")
        A.vmem(f"buffer_load_dwordx4 {v(VF+4*u,4)}, v{VL}, s[{sWS}:{sWS+3}], s27 offen offset:{(u%4)*1024} {HLD}", ("v", u))

    A(f"s_cmp_eq_u32 s{S_T}, 0\ns_cbranch_scc1 L_vspecial")

    def vpart(special):
        if special:
            for u in range(8):
                if u % 4 == 0:
                    A(f"s_add_u32 s27, s{S_MW}, {u*1024}")
                A.vmem(f"buffer_load_dwordx4 {v(V2+4*u,4)}, v{VL}, s[{sWS}:{sWS+3}], s27 offen offset:{(u%4)*1024} {HLD}", ("v2", u))
        for u in range(8):
            A.wait(vm=("v", u))
            for eb in range(4):
                A.mfma(YA + eb * 4, WF + 16 * u + 4 * eb, VF + 4 * u, "0" if u == 0 else None)
        if special:
            for u in range(8):
                A.wait(vm=("v2", u))
                for eb in range(4):
                    A.mfma(YB + eb * 4, WF + 16 * u + 4 * eb, V2 + 4 * u, "0" if u == 0 else None)
        A(f"ds_write_b32 v18, v{RSD}")
        A(f"s_nop {opt.get('yn', 6)}")
        for eb in range(4):
            A(f"ds_write_b128 v17, {v(YA+4*eb,4)} offset:{eb*1024}")
        if special:
            L = A.label("L_nopm")
            A(f"s_cmp_lg_u32 s{S_W}, 4\ns_cbranch_scc1 {L}")
            A("s_mov_b32 s26, 0x00010001\ns_mov_b32 s27, 0x00010001")
            for r in range(16):
                A(f"v_cndmask_b32 v{YB+r}, v{YA+r}, v{YB+r}, s[26:27]")
            for eb in range(4):
                A(f"ds_write_b128 v17, {v(YB+4*eb,4)} offset:{16384 + eb*1024}")
            A(f"{L}:")
    sv = (list(A.vm), A.vm_done, list(A.lg), A.lg_done)
    vpart(False)
    A("s_branch L_vdone")
    A("L_vspecial:")
    A.vm, A.vm_done, A.lg, A.lg_done = sv
    vpart(True)
    A("L_vdone:")
    A("s_waitcnt lgkmcnt(0)")
    A.stamp(10)
    A("s_barrier")
    A.dump_stamps(11)
    A("s_endpgm")

    A.reset()
    A.c("@@CUT0")
    S_Q, S_VAR, S_M, S_N, S_P = 63, 96, 97, 98, 99
    A(f"""
    s_sub_u32 s3, s{S_J}, 28
    s_lshl_b32 s{S_Q}, s{S_XCD}, 2
    s_add_u32 s{S_Q}, s{S_Q}, s3
    s_lshr_b32 s{S_VAR}, s{S_XCD}, 1
    s_mov_b32 s{S_M}, s3
    s_and_b32 s{S_N}, s{S_XCD}, 1
    s_and_b32 s{S_P}, s{S_VAR}, 1
    """)
    def wtouch(ptr):
        A.srd(sW1, ptr, 448 * 3584)
        A(f"v_lshlrev_b32 v210, 7, v1\ns_lshl_b32 s3, s{S_Q}, 13\ns_add_u32 s27, s{S_W}, {opt.get('t1s', 3)}\ns_lshl_b32 s27, s27, 18\ns_add_u32 s3, s3, s27\nv_add_u32 v210, s3, v210")
        A.vmem(f"buffer_load_dword v211, v210, s[{sW1}:{sW1+3}], 0 offen")

    RAW, EO, TF, TM, ST = 32, 64, 128, 136, 144
    A(f"""
    s_lshl_b32 s3, s{S_Q}, 4
    s_lshl_b32 s27, s{S_W}, 1
    s_add_u32 s3, s3, s27
    v_lshrrev_b32 v2, 5, v1
    v_add_u32 v4, s3, v2
    v_and_b32 v3, 31, v1
    v_sub_u32 v5, 2048, v4
    v_sub_u32 v6, 1024, v4
    v_add_u32 v7, 1024, v4
    v_cmp_eq_u32 s[100:101], 0, v4
    v_mov_b32 v8, 512
    v_mov_b32 v9, 1536
    v_mov_b32 v12, {OOB}
    v_cndmask_b32 v5, v5, v8, s[100:101]
    v_cndmask_b32 v7, v7, v9, s[100:101]
    v_cmp_gt_u32 vcc, 28, v3
    v_lshlrev_b32 v8, 4, v3
    v_sub_u32 v9, 880, v8
    v_cndmask_b32 v8, v12, v8, vcc
    v_cndmask_b32 v9, v12, v9, vcc
    s_waitcnt lgkmcnt(0)
    """)
    A.srd(sX, 4, 2048 * 896)
    if opt.get("t1", 1) == 2:
        wtouch(16)
    for rho in range(4):
        A(f"v_mul_u32_u24 v13, 896, v{4+rho}\nv_add_u32 v14, v13, v8\nv_add_u32 v15, v13, v9")
        for fm in range(2):
            A.vmem(f"buffer_load_dwordx4 {v(RAW + rho*8 + 4*fm, 4)}, v{14+fm}, s[{sX}:{sX+3}], 0 offen", ("x", rho))
    A("s_branch L_dft")
    A.c("@@CUT1")
    A("L_dft:")
    A.srd(sWS, 24, WS_SIZE + (0x40000 if stamps else 0))
    if opt.get("t1", 1) == 1:
        wtouch(16)
    A(f"v_mov_b32 v190, {WS_EPOCH}")
    A.vmem(f"buffer_load_dword v191, v190, s[{sWS}:{sWS+3}], 0 offen sc1", "ep")
    A(f"s_cmp_lg_u32 s{S_W}, 7\ns_cbranch_scc1 L_dnotouch")
    if opt.get("xt", 0):
        start_touch(A, opt, "x", 200)
    code_touch(A, 208)
    A("L_dnotouch:")

    S_R = 14
    GA, GT = 160, 168
    A(f"""
    s_lshl_b32 s3, s{S_M}, 7
    s_lshl_b32 s27, s{S_W}, 4
    s_add_u32 s3, s3, s27
    s_lshl_b32 s3, s3, 1
    s_add_u32 s3, s3, s{S_P}
    v_and_b32 v13, 15, v1
    v_lshl_add_u32 v13, v13, 1, s3
    v_cvt_f32_u32 v13, v13
    v_mul_f32 v13, 0x3a000000, v13
    v_lshrrev_b32 v14, 4, v1
    v_lshlrev_b32 v14, 3, v14
    v_cvt_f32_u32 v14, v14
    s_cmp_ge_u32 s{S_VAR}, 2
    s_cselect_b32 s3, 0x3e800000, 0
    v_fma_f32 v{GA}, v13, v14, s3
    v_mul_f32 v14, 0x42000000, v13
    v_lshlrev_b32 v16, 4, v1
    s_lshl_b32 s3, s{S_W}, 10
    v_add_u32 v16, s3, v16
    v_add_u32 v17, 0x10000, v16
    """)
    for i in range(1, 8):
        A(f"v_add_f32 v{GA+i}, v13, v{GA+i-1}")
    for i in range(8):
        A(f"v_add_f32 v{GT+i}, v14, v{GA+i}")
    A("v_cos_f32 v14, v14")
    for i in range(16):
        A(f"v_cos_f32 v{GA+i}, v{GA+i}")
    A("v_add_f32 v14, v14, v14")
    A("v_mov_b32 v184, v14\nv_mov_b32 v186, v16\nv_mov_b32 v187, v17")
    cg = [0]

    def cgen(n):
        for sb in range(cg[0], min(16, cg[0] + n)):
            cur, oth = (GA, GT) if sb % 2 == 0 else (GT, GA)
            if sb >= 2:
                for i in range(4):
                    A(f"v_pk_fma_f32 {v(cur+2*i,2)}, {v(oth+2*i,2)}, v[184:185], {v(cur+2*i,2)} op_sel_hi:[1,0,1] neg_lo:[0,0,1] neg_hi:[0,0,1]")
            d = GT + 8 + 4 * (sb & 1)
            for i in range(4):
                A(f"v_cvt_pk_bf16_f32 v{d+i}, v{cur+2*i}, v{cur+2*i+1}")
            A.lds(f"ds_write_b128 v{186 + sb//8}, {v(d,4)} offset:{(sb%8)*8192}")
        cg[0] = min(16, cg[0] + n)
    cgen(opt.get("c0", 2))
    A.stamp(1)
    A(f"""
    v_cmp_eq_u32 s[26:27], 0, v3
    v_cndmask_b32 v21, 0, 2.0, vcc
    v_cmp_eq_u32 vcc, 28, v3
    v_mov_b32 v24, 0
    v_cndmask_b32 v20, v21, 1.0, s[26:27]
    v_mov_b32 v25, 0
    v_cndmask_b32 v20, v20, 1.0, vcc
    v_mov_b32 v26, 0
    v_mov_b32 v27, 0
    """)
    E = lambda rho: EO + rho * 16
    O = lambda rho: EO + rho * 16 + 8
    for rho in range(4):
        A.wait(vm=("x", rho))
        if rho == opt.get("t2", 9):
            wtouch(18)
        F = RAW + rho * 8
        M = F + 4
        A(f"v_mov_b32_dpp v{24+rho}, v{M} row_bcast:15 row_mask:0xa bank_mask:0xf")
        for i in range(4):
            A(f"v_lshlrev_b32 v{TF+2*i}, 16, v{F+i}\nv_and_b32 v{TF+2*i+1}, 0xffff0000, v{F+i}")
        A(f"v_mov_b32_dpp v{24+rho}, v{M} row_shr:1 row_mask:0xf bank_mask:0xf")
        for j in range(1, 8):
            k = 8 - j
            if k & 1:
                A(f"v_and_b32 v{TM+j}, 0xffff0000, v{M + k//2}")
            else:
                A(f"v_lshlrev_b32 v{TM+j}, 16, v{M + k//2}")
        A(f"v_lshlrev_b32 v{TM}, 16, v{24+rho}")
        for i in range(4):
            A(f"v_pk_add_f32 {v(E(rho)+2*i,2)}, {v(TF+2*i,2)}, {v(TM+2*i,2)}")
            A(f"v_pk_add_f32 {v(O(rho)+2*i,2)}, {v(TF+2*i,2)}, {v(TM+2*i,2)} neg_lo:[0,1] neg_hi:[0,1]")
        sm, sq = ST + 4 * rho, ST + 4 * rho + 2
        for i in range(4):
            if i == 0:
                A(f"v_pk_add_f32 {v(sm,2)}, {v(E(rho),2)}, {v(E(rho)+2,2)}")
                A(f"v_pk_mul_f32 {v(sq,2)}, {v(E(rho),2)}, {v(E(rho),2)}")
            else:
                if i > 1:
                    A(f"v_pk_add_f32 {v(sm,2)}, {v(sm,2)}, {v(E(rho)+2*i,2)}")
                A(f"v_pk_fma_f32 {v(sq,2)}, {v(E(rho)+2*i,2)}, {v(E(rho)+2*i,2)}, {v(sq,2)}")
            A(f"v_pk_fma_f32 {v(sq,2)}, {v(O(rho)+2*i,2)}, {v(O(rho)+2*i,2)}, {v(sq,2)}")
    A.stamp(2)
    for rho in range(4):
        A(f"v_add_f32 v{ST+4*rho}, v{ST+4*rho}, v{ST+4*rho+1}\nv_add_f32 v{ST+4*rho+2}, v{ST+4*rho+2}, v{ST+4*rho+3}")
    for i in range(4):
        A(f"v_permlane16_swap_b32 v{ST+2*i}, v{ST+8+2*i}")
    for i in range(4):
        A(f"v_add_f32 v{ST+2*i}, v{ST+2*i}, v{ST+8+2*i}")
    for sh in (8, 4, 2, 1):
        for i in range(4):
            r = ST + 2 * i
            A(f"v_add_f32_dpp v{r}, v{r}, v{r} row_ror:{sh} row_mask:0xf bank_mask:0xf")
    R_, C_ = 24, 28
    A(f"s_mov_b32 s3, {0x3b124925}\ns_mov_b32 s26, {0x3a924925}\ns_mov_b32 s27, {0x3727c5ac}")
    seq_ = [
        lambda b: f"v_mul_f32 v{b}, s3, v{b}\nv_mul_f32 v{b+2}, s26, v{b+2}",
        lambda b: f"v_fma_f32 v{b+2}, -v{b}, v{b}, v{b+2}",
        lambda b: f"v_max_f32 v{b+2}, 0, v{b+2}",
        lambda b: f"v_cvt_pk_bf16_f32 v{b+1}, v{b}, v{b+2}",
        lambda b: f"v_lshlrev_b32 v{b}, 16, v{b+1}\nv_and_b32 v{b+2}, 0xffff0000, v{b+1}",
        lambda b: f"v_add_f32 v{b+2}, s27, v{b+2}",
        lambda b: f"v_cvt_pk_bf16_f32 v{b+2}, v{b+2}, v{b+2}",
        lambda b: f"v_and_b32 v{b+2}, 0xffff0000, v{b+2}",
        lambda b: f"v_sqrt_f32 v{b+2}, v{b+2}",
        lambda b: f"s_nop 0\nv_cvt_pk_bf16_f32 v{b+2}, v{b+2}, v{b+2}",
        lambda b: f"v_and_b32 v{b+2}, 0xffff0000, v{b+2}",
    ]
    for f in seq_:
        for rho in range(2):
            A(f(ST + 4 * rho))
    for rho in range(2):
        A(f"v_rcp_f32 v{R_+rho}, v{ST+4*rho+2}")
    A("s_nop 0")
    for rho in range(2):
        A(f"v_mul_f32 v{C_+rho}, v{ST+4*rho}, v{R_+rho}")
    for r in (R_, R_ + 1, C_, C_ + 1):
        A(f"v_mov_b32 v{r+2}, v{r}")
    A("s_nop 0")
    for r in (R_, R_ + 1, C_, C_ + 1):
        A(f"v_permlane16_swap_b32 v{r}, v{r+2}")
    A(f"""
    v_cmp_eq_u32 vcc, 1, v3
    v_cmp_eq_u32 s[26:27], 2, v3
    v_mov_b32 v8, v4
    v_mov_b32 v9, v{R_}
    v_cndmask_b32 v8, v8, v5, vcc
    v_cndmask_b32 v9, v9, v{R_+1}, vcc
    v_cmp_eq_u32 vcc, 3, v3
    v_cndmask_b32 v8, v8, v6, s[26:27]
    v_cndmask_b32 v9, v9, v{R_+2}, s[26:27]
    v_cndmask_b32 v8, v8, v7, vcc
    v_cndmask_b32 v9, v9, v{R_+3}, vcc
    v_cmp_gt_u32 vcc, 4, v3
    v_lshlrev_b32 v8, 2, v8
    v_add_u32 v8, {WS_RSTD}, v8
    v_cndmask_b32 v8, v12, v8, vcc
    """)
    if opt.get("rs", 0):
        A("v_mov_b32 v188, v8\nv_mov_b32 v189, v9")
    else:
        A.vmem(f"buffer_store_dword v9, v8, s[{sWS}:{sWS+3}], 0 offen sc1")
    A(f"s_or_b32 s3, s{S_Q}, s{S_W}\ns_cmp_lg_u32 s3, 0\ns_cbranch_scc1 L_no512")
    A(f"v_add_f32 v10, v{C_+1}, v{C_+3}")
    for j in range(8):
        A(f"v_mul_f32 v{TF+j}, v10, v{20+(1 if j else 0)}")
        A(f"v_fma_f32 v{TF+j}, v{E(1)+j}, v{R_+1}, -v{TF+j}")
        A(f"v_fma_f32 v{TF+j}, v{E(3)+j}, v{R_+3}, v{TF+j}")
        A(f"v_mul_f32 v{TM+j}, v{O(1)+j}, v{R_+1}")
        A(f"v_fma_f32 v{TM+j}, -v{O(3)+j}, v{R_+3}, v{TM+j}")
    for i in range(4):
        A(f"v_cvt_pk_bf16_f32 v{RAW+i}, v{TF+2*i}, v{TF+2*i+1}")
        A(f"v_cvt_pk_bf16_f32 v{RAW+4+i}, v{TM+2*i}, v{TM+2*i+1}")
    A(f"v_lshlrev_b32 v10, 4, v3\nv_add_u32 v10, {WS_X512}, v10\nv_cndmask_b32 v10, v12, v10, s[100:101]")
    A(f"buffer_store_dwordx4 {v(RAW,4)}, v10, s[{sWS}:{sWS+3}], 0 offen sc1")
    A(f"buffer_store_dwordx4 {v(RAW+4,4)}, v10, s[{sWS}:{sWS+3}], 0 offen offset:{3*512} sc1")
    A("s_nop 1")
    A("L_no512:")
    for r in (R_ + 1, R_ + 3, C_ + 1, C_ + 3):
        A(f"v_cndmask_b32 v{r}, v{r}, 0, s[100:101]")
    A(f"v_add_f32 v{C_}, v{C_}, v{C_+1}\nv_add_f32 v{C_+2}, v{C_+2}, v{C_+3}")
    OUT = lambda var: RAW + var * 8
    bl = "op_sel_hi:[1,0,1]"
    bh = "op_sel:[0,1,0] op_sel_hi:[1,1,1]"
    A(f"v_pk_mul_f32 v[8:9], v[20:21], {v(C_,2)} op_sel_hi:[1,0] neg_lo:[1,0] neg_hi:[1,0]")
    A(f"v_pk_mul_f32 v[10:11], v[20:21], {v(C_+2,2)} op_sel_hi:[1,0] neg_lo:[1,0] neg_hi:[1,0]")
    for i in range(4):
        s3lo, s3hi = (0, 1) if i == 0 else (1, 1)
        a_, b_ = TF, TF + 2
        A(f"v_pk_fma_f32 {v(a_,2)}, {v(E(0)+2*i,2)}, {v(R_,2)}, v[8:9] op_sel:[0,0,{s3lo}] op_sel_hi:[1,0,{s3hi}]")
        A(f"v_pk_fma_f32 {v(b_,2)}, {v(E(2)+2*i,2)}, {v(R_+2,2)}, v[10:11] op_sel:[0,0,{s3lo}] op_sel_hi:[1,0,{s3hi}]")
        A(f"v_pk_mul_f32 {v(TM,2)}, {v(O(0)+2*i,2)}, {v(R_,2)} op_sel_hi:[1,0]")
        A(f"v_pk_mul_f32 {v(TM+2,2)}, {v(O(3)+2*i,2)}, {v(R_+2,2)} op_sel:[0,1] op_sel_hi:[1,1]")
        A(f"v_pk_fma_f32 {v(a_,2)}, {v(E(1)+2*i,2)}, {v(R_,2)}, {v(a_,2)} {bh}")
        A(f"v_pk_fma_f32 {v(b_,2)}, {v(E(3)+2*i,2)}, {v(R_+2,2)}, {v(b_,2)} {bh}")
        A(f"v_pk_fma_f32 {v(TM,2)}, {v(O(1)+2*i,2)}, {v(R_,2)}, {v(TM,2)} {bh} neg_lo:[1,0,0] neg_hi:[1,0,0]")
        A(f"v_pk_fma_f32 {v(TM+2,2)}, {v(O(2)+2*i,2)}, {v(R_+2,2)}, {v(TM+2,2)} {bl} neg_lo:[1,0,0] neg_hi:[1,0,0]")
        A(f"v_pk_add_f32 {v(OUT(0)+2*i,2)}, {v(a_,2)}, {v(b_,2)}")
        A(f"v_pk_add_f32 {v(OUT(1)+2*i,2)}, {v(a_,2)}, {v(b_,2)} neg_lo:[0,1] neg_hi:[0,1]")
        A(f"v_pk_add_f32 {v(OUT(2)+2*i,2)}, {v(TM,2)}, {v(TM+2,2)}")
        A(f"v_pk_add_f32 {v(OUT(3)+2*i,2)}, {v(TM,2)}, {v(TM+2,2)} neg_lo:[0,1] neg_hi:[0,1]")
    PKD = EO
    FS = 131072
    A(f"""
    v_lshlrev_b32 v8, 13, v2
    v_lshrrev_b32 v9, 1, v3
    v_lshl_add_u32 v8, v9, 9, v8
    v_and_b32 v10, 7, v9
    v_lshl_add_u32 v8, v10, 4, v8
    v_and_b32 v10, 1, v3
    v_lshl_add_u32 v8, v10, 7, v8
    v_and_b32 v9, 8, v9
    v_or_b32 v8, v8, v9
    s_lshr_b32 s3, s{S_W}, 2
    s_lshl_b32 s3, s3, 8
    s_and_b32 s27, s{S_W}, 3
    s_lshl_b32 s27, s27, 2
    s_add_u32 s3, s3, s27
    s_add_u32 s3, s3, {FS}
    v_xor_b32 v8, s3, v8
    """)
    for j in range(1, 8):
        A(f"v_xor_b32 v{8+j}, {j<<4}, v8")
    for pr in range(2):
        for j in range(8):
            A(f"v_permlane32_swap_b32 v{OUT(2*pr)+j}, v{OUT(2*pr+1)+j}")
        for j in range(8):
            A(f"v_cvt_pk_bf16_f32 v{PKD+8*pr+j}, v{OUT(2*pr)+j}, v{OUT(2*pr+1)+j}")
        for j in range(8):
            A.lds(f"ds_write_b32 v{8+j}, v{PKD+8*pr+j} offset:{pr*16384}")
    A(f"""
    v_xor_b32 v28, v3, v2
    v_lshlrev_b32 v28, 4, v28
    v_lshl_add_u32 v28, v2, 9, v28
    s_lshl_b32 s3, s{S_W}, 12
    s_and_b32 s27, s{S_W}, 1
    s_lshl_b32 s27, s27, 3
    s_add_u32 s3, s3, s27
    s_add_u32 s3, s3, {FS}
    v_add_u32 v28, s3, v28
    v_lshlrev_b32 v27, 4, v3
    v_lshl_add_u32 v27, v2, 14, v27
    s_lshr_b32 s3, s{S_Q}, 1
    s_lshl_b32 s3, s3, 10
    s_and_b32 s27, s{S_Q}, 1
    s_lshl_b32 s27, s27, 9
    s_add_u32 s3, s3, s27
    s_lshl_b32 s27, s{S_W}, 17
    s_add_u32 s3, s3, s27
    s_add_u32 s3, s3, {WS_XF}
    """)
    for k in range(1, 8):
        A(f"v_xor_b32 v{RAW+16+k}, {(k>>1)*32 + (k&1)*8}, v28")
    A.wait(lg=0)
    A("s_barrier")
    if opt.get("rs", 0):
        A.vmem(f"buffer_store_dword v189, v188, s[{sWS}:{sWS+3}], 0 offen sc1")
    for i in range(4):
        for hh in range(2):
            k = 2 * i + hh
            A.lds(f"ds_read_b64 {v(RAW+4*i+2*hh,2)}, v{RAW+16+k if k else 28} offset:{i*1024}", ("rb", i))
    for i in range(4):
        A.wait(lg=("rb", i))
        A.vmem(f"buffer_store_dwordx4 {v(RAW+4*i,4)}, v27, s[{sWS}:{sWS+3}], s3 offen sc1", "xst")
        A(f"s_add_u32 s3, s3, 32768")
    A.stamp(3)
    cgen(opt.get("c1", 4))
    cg_left = cg[0]
    A(f"s_cmp_ge_u32 s{S_W}, 4\ns_cbranch_scc1 L_dft_helper")
    dstate = (list(A.vm), A.vm_done)
    SACC, SEX, CF, XF = 32, 96, [104, 136], 168
    KALT, B512, X5 = 4, 8, [12, 16]
    CA = 22
    S_XA = 15
    A(f"""
    v_lshlrev_b32 v{CA}, 4, v1
    v_and_b32 v26, 1, v1
    s_cmp_ge_u32 s{S_VAR}, 2
    s_cselect_b32 s100, 1, 0
    s_cselect_b32 s101, 0x80008000, 0
    v_xor_b32 v26, s100, v26
    v_lshlrev_b32 v26, 15, v26
    v_or_b32 v{B512}, 0x3f80, v26
    s_lshl_b32 s26, s{S_N}, 3
    s_lshl_b32 s27, s{S_W}, 1
    s_add_u32 s26, s26, s27
    s_lshl_b32 s3, s{S_VAR}, 4
    s_add_u32 s3, s3, s26
    s_lshl_b32 s{S_XA}, s3, 14
    s_add_u32 s{S_XA}, s{S_XA}, {WS_XF}
    s_add_u32 s{S_R}, s{S_M}, 1
    s_and_b32 s{S_R}, s{S_R}, 3
    s_lshl_b32 s3, s{S_R}, 15
    v_add_u32 v{CA}, s3, v{CA}
    s_add_u32 s3, s3, 32768
    s_and_b32 s3, s3, 0x1ffff
    v_lshl_add_u32 v{CA+1}, v1, 4, s3
    v_xor_b32 v{CA+2}, 0x10000, v{CA}
    v_xor_b32 v{CA+3}, 0x10000, v{CA+1}
    s_lshl_b32 s26, s26, 5
    s_lshl_b32 s27, s{S_VAR}, 9
    s_add_u32 s26, s26, s27
    s_add_u32 s26, s26, {WS_X512}
    v_lshl_add_u32 v27, v1, 1, s26
    s_add_u32 s3, s{S_VAR}, 1
    s_and_b32 s3, s3, 2
    s_cmp_eq_u32 s3, 0
    s_cselect_b32 s3, 16, 0
    v_cmp_gt_u32 vcc, s3, v1
    v_mov_b32 v26, {OOB}
    v_lshlrev_b32 v28, 4, v1
    v_cndmask_b32 v27, v26, v27, vcc
    v_add_u32 v29, 16384, v28
    s_or_b32 s3, s{S_M}, s{S_VAR}
    s_cmp_eq_u32 s3, 0
    s_cselect_b32 vcc_lo, 1, 0
    s_mov_b32 vcc_hi, 0
    """)
    for i in range(4):
        A(f"v_mov_b32 v{KALT+i}, 0xbf803f80")
    for i in range(8):
        A(f"v_mov_b32 v{SEX+i}, 0")
    A.wait(vm="xst")
    A("s_barrier")
    A.stamp(4)
    if opt.get("t2p"):
        wtouch(18)
    cgen(16)
    A.wait(lg=0)
    for i in range(1, 4):
        A(f"v_mov_b32 v{B512+i}, 0\nv_mov_b32 v{X5[0]+i}, 0\nv_mov_b32 v{X5[1]+i}, 0")

    def c_reads(sb):
        return [lambda tb=tb: A.lds(f"ds_read_b128 {v(CF[sb&1]+4*tb,4)}, v{CA + sb//4} offset:{(sb%4)*8192 + tb*1024}", ("cf", sb))
                for tb in range(8)]

    def x_th(sb):
        r = []
        for a_ in range(2):
            def f(a_=a_):
                if sb % 4 == 0 and a_ == 0:
                    A(f"s_add_u32 s94, s{S_R}, {sb // 4}\ns_and_b32 s94, s94, 3\ns_lshl_b32 s94, s94, 12\ns_add_u32 s94, s94, s{S_XA}")
                A.vmem(f"buffer_load_dwordx4 {v(XF + (sb % 11)*8 + 4*a_, 4)}, v{28+a_}, s[{sWS}:{sWS+3}], s94 offen offset:{(sb%4)*1024} {HLD}", ("xf", sb))
            r.append(f)
        return r

    outl = []

    def extra(xa0, xa1):
        L = A.label("L_nx")
        A(f"s_cbranch_vccnz {L}_x")
        A(f"{L}:")
        outl.append((L, xa0, xa1))
    A("s_barrier")
    A.stamp(5)
    XD = opt.get("xd", 4)
    for sb in range(XD):
        for f in x_th(sb):
            f()
    for f in c_reads(0):
        f()
    xnext = XD
    for sb in range(16):
        fl = list(enumerate(c_reads(sb + 1))) if sb + 1 < 16 else []
        nx = [k for k in (xnext, xnext + 1) if k <= min(15, sb + opt.get("xla", 6))]
        if len(nx) == 2 and nx[1] % 4 == 0:
            nx = nx[:1]
        if nx and nx[0] % 4 == 0 and opt.get("xq", 1):
            A("s_barrier")
        xnext += len(nx)
        k0 = 0
        for k in nx:
            for f in x_th(k):
                fl.append((8 + 2 * k0, f)); k0 += 1
        if sb == 13:
            fl.append((13, lambda: A.vmem(f"buffer_load_ushort v{X5[0]}, v27, s[{sWS}:{sWS+3}], 0 offen {HLD}", "x5")))
            fl.append((15, lambda: A.vmem(f"buffer_load_ushort v{X5[1]}, v27, s[{sWS}:{sWS+3}], 0 offen offset:32 {HLD}", "x5")))
        A.wait(vm=("xf", sb), lg=("cf", sb))
        z = "0" if sb == 0 else None
        xa = XF + (sb % 11) * 8
        A.weave([lambda a_=a_, tb=tb: A.mfma(SACC + (a_ * 8 + tb) * 4, xa + 4 * a_, CF[sb & 1] + 4 * tb, z)
                 for a_ in range(2) for tb in range(8)], fl)
        extra(xa, xa + 4)
    A.wait(vm="x5")
    extra(X5[0], X5[1])
    A(f"""
    s_lshl_b32 s3, s{S_M}, 3
    s_add_u32 s3, s3, s{S_P}
    s_lshl_b32 s3, s3, 5
    s_lshl_b32 s27, s100, 3
    s_lshl_b32 s26, s{S_N}, 2
    s_add_u32 s27, s27, s26
    s_add_u32 s27, s27, s{S_W}
    s_add_u32 s3, s3, s27
    s_lshl_b32 s3, s3, 10
    s_add_u32 s3, s3, {WS_VV}
    s_lshl_b32 s27, s27, 10
    s_add_u32 s{S_XA}, s27, {WS_VV + 64*16384}
    """)
    D0 = CF[0]

    def vout(tb):
        d = D0 + 4 * tb
        for a_ in range(2):
            s0 = SACC + (a_ * 8 + tb) * 4
            A(f"v_cvt_pk_bf16_f32 v{d+2*a_}, v{s0}, v{s0+1}\nv_cvt_pk_bf16_f32 v{d+2*a_+1}, v{s0+2}, v{s0+3}")
        for i in range(4):
            A(f"v_xor_b32 v{d+i}, s101, v{d+i}")
        A(f"s_add_u32 s27, s3, {((tb >> 1) * 4 + (tb & 1)) * 16384}")
        A.vmem(f"buffer_store_dwordx4 {v(d,4)}, v28, s[{sWS}:{sWS+3}], s27 offen sc1")
    for tb in range(8):
        for a_ in range(2):
            A.mfma(SACC + (a_ * 8 + tb) * 4, X5[a_], B512)
        if tb == 1:
            A("s_nop 5")
        if tb >= 1:
            vout(tb - 1)
    A.stamp(6)
    vout(7)
    A("s_cbranch_vccz L_nospecial")
    A("s_mov_b32 s26, 0x00010001\ns_mov_b32 s27, 0x00010001")
    for i in range(4):
        A(f"v_cvt_pk_bf16_f32 v{XF+i}, v{SEX+2*i}, v{SEX+2*i+1}")
    for i in range(4):
        A(f"v_cndmask_b32 v{XF+i}, v{D0+i}, v{XF+i}, s[26:27]")
    A(f"buffer_store_dwordx4 {v(XF,4)}, v28, s[{sWS}:{sWS+3}], s{S_XA} offen sc1")
    A("L_nospecial:")
    A.wait(vm=0)
    A("s_barrier")
    A.stamp(7)
    A.dump_stamps(8)
    A("s_endpgm")
    for L, xa0, xa1 in outl:
        A(f"{L}_x:")
        A.mfma(SEX, xa0, KALT)
        A.mfma(SEX + 4, xa1, KALT)
        A(f"s_branch {L}")

    A.reset()
    A("L_dft_helper:")
    A.vm, A.vm_done = dstate
    S_DT = 94
    A.wait(vm="xst")
    A(f"""
    v_readfirstlane_b32 s{S_DT}, v191
    v_lshlrev_b32 v4, 7, v1
    v_lshlrev_b32 v6, 2, v1
    s_lshl_b32 s3, s{S_Q}, 2
    s_add_u32 s3, s3, {WS_XFLAG}
    s_mul_i32 s{S_DT}, s{S_DT}, {TAGMUL}
    s_add_u32 s{S_DT}, s{S_DT}, {TAGADD}
    v_mov_b32 v5, s{S_DT}
    s_barrier
    s_cmp_eq_u32 s{S_W}, 4
    s_cbranch_scc0 L_nox
    s_setprio 3
    s_mov_b64 exec, 0xff
    buffer_store_dword v5, v4, s[{sWS}:{sWS+3}], s3 offen sc1
    s_mov_b64 exec, -1
    L_nox:
    """)
    A.stamp(4)
    if opt.get("t2p"):
        wtouch(18)
    cg[0] = cg_left
    cgen(16)
    A(f"""
    s_waitcnt lgkmcnt(0)
    s_cmp_eq_u32 s{S_W}, 4
    s_cbranch_scc0 L_end
    s_lshl_b32 s3, s{S_XCD}, 7
    s_add_u32 s3, s3, {WS_XFLAG}
    """)
    if not opt.get("xq", 1):
        A.poll(6, sWS, "s3", "eq", 32, S_DT, sleep=opt.get("xps", 1))
        A("s_barrier")
    for k in range(4 if opt.get("xq", 1) else 0):
        A(f"s_add_u32 s26, s{S_M}, {k + 1}\ns_and_b32 s26, s26, 3\ns_lshl_b32 s26, s26, 5\ns_add_u32 s26, s26, s3")
        A.poll(6, sWS, "s26", "eq", 8, S_DT, sleep=opt.get("xps", 1))
        if k == 0:
            A.stamp(5)
        A("s_barrier")
    A("v_mov_b32 v8, 0")
    A(f"""
    s_lshl_b32 s3, s{S_VAR}, 2
    s_add_u32 s3, s3, s{S_M}
    s_lshl_b32 s3, s3, 5
    s_add_u32 s3, s3, s{S_N}
    s_lshl_b32 s3, s3, 2
    s_add_u32 s3, s3, {WS_VFLAG}
    s_barrier
    s_mov_b64 exec, 1
    buffer_store_dword v5, v8, s[{sWS}:{sWS+3}], s3 offen sc1
    """)
    A(f"s_cmp_lg_u32 s{S_Q}, 0\ns_cbranch_scc1 L_noepw")
    A(f"s_mov_b64 exec, -1\nv_and_b32 v9, 7, v1\nv_min_u32 v9, 6, v9\nv_lshlrev_b32 v9, 2, v9\nv_lshrrev_b32 v10, 3, v1\nv_lshl_add_u32 v9, v10, 7, v9")
    A(f"s_mov_b32 s27, 0x40000\ns_mov_b32 s3, {WS_HFLAG + 16}")
    A("L_epl:")
    for i in range(4):
        A(f"buffer_load_dword v{12+i}, v9, s[{sWS}:{sWS+3}], s3 offen offset:{i*1024} sc1")
    A("s_waitcnt vmcnt(0)")
    for i in range(4):
        A(f"v_xor_b32 v{12+i}, s{S_DT}, v{12+i}")
    A("v_or3_b32 v12, v12, v13, v14\nv_or_b32 v12, v12, v15\nv_cmp_eq_u32 vcc, 0, v12\ns_nop 1\ns_cmp_eq_u64 vcc, exec\ns_cbranch_scc1 L_epok")
    A("s_sleep 2\ns_sub_u32 s27, s27, 1\ns_cbranch_scc0 L_epl")
    A("L_epok:")
    A(f"s_mov_b32 s3, {WS_EPOCH}\ns_mov_b64 exec, 1\nbuffer_store_dword v5, v8, s[{sWS}:{sWS+3}], s3 offen sc1")
    A("L_noepw:")
    A.stamp(6)
    A.dump_stamps(8)
    A("L_end:")
    A("s_endpgm")
    A("L_code_end:")

    ix = lambda m: next(i for i, l in enumerate(A.lines) if m in l)
    c0, c1 = ix("@@CUT0"), ix("@@CUT1")
    head = A.lines[c0 + 1:c1]
    del A.lines[c0:c1 + 1]
    h = ix("@@HEAD")
    A.lines[h:h + 1] = head
    hdr = open("parallel_sum__spectral_fnet__dense_activation_relu__prompt.s.ref").read().split("; Override")[0]
    return (hdr + "; @launch grid=(256,1,1) block=(512,1,1) lds=163840\n" + DOC
            + ".amdgcn_target \"amdgcn-amd-amdhsa--gfx950\"\n" + kernel_header(NAME) + A.text() + kernel_desc(NAME, 256, 256))


if __name__ == "__main__":
    out = sys.argv[1]
    stamps = len(sys.argv) > 2 and sys.argv[2] == "stamps"
    opt = {}
    for kv in sys.argv[3:]:
        k, x = kv.split("=")
        opt[k] = int(x) if x.lstrip("-").isdigit() else x
    open(out, "w").write(gen(stamps, opt))
```

```python
import sys
from kbase import *

TAGMUL, TAGADD = 0x9E3779B1, 0x7F4A7C15


DOC = """\
;
;
;   generated in the kernel (v_cos_f32 + three-term recurrence) and their symmetries are used: rows s, S-s, S/2-s, S/2+s and
"""


def wblk(i):
    if i < 24:
        return 65536 + 4096 * i
    if i < 28:
        return 32768 + 4096 * (i - 24)
    return 65536 + 4096 * (i - 28)


def mod7(A, s, tmp, maxv):
    m = 7
    while m * 2 < maxv:
        m *= 2
    while m >= 7:
        A(f"s_cmp_ge_u32 s{s}, {m}\ns_cselect_b32 s{tmp}, {m}, 0\ns_sub_u32 s{s}, s{s}, s{tmp}")
        m //= 2


CT = [1]


def code_touch(A, vb=118):
    if CT[0] in (0, 3):
        return
    L = A.label("L_pc")
    if CT[0] == 2:
        A(f"""
        s_getpc_b64 s[48:49]
        {L}:
        s_sub_u32 s48, s48, {L}-{NAME}
        s_subb_u32 s49, s49, 0
        s_mov_b32 s50, L_code_end-{NAME}
        s_mov_b32 s51, 0x20000
        v_lshlrev_b32 v{vb}, 7, v1
        """)
        for i in range(5):
            A(f"s_movk_i32 s3, {i*8192 if i < 4 else 0}\nbuffer_load_dword v{vb+1}, v{vb}, s[48:51], s3 offen" + (" offset:0" if i < 4 else ""))
            if i == 3:
                A(f"v_add_u32 v{vb}, 32768, v{vb}")
        return
    A(f"""
    s_getpc_b64 s[48:49]
    {L}:
    s_sub_u32 s48, s48, {L}-{NAME}
    s_subb_u32 s49, s49, 0
    s_mov_b32 s50, L_code_end-{NAME}
    s_mov_b32 s51, 0x20000
    v_lshlrev_b32 v{vb}, 12, v1
    s_lshl_b32 s3, s{S_J}, 7
    v_add_u32 v{vb}, s3, v{vb}
    s_mov_b64 exec, 0x3ff
    buffer_load_dword v{vb+1}, v{vb}, s[48:51], 0 offen
    s_mov_b64 exec, -1
    """)


def start_touch(A, opt, what, vb=10):
    fl = opt.get("tfl", "")
    if what == "x":
        A(f"""
        s_lshl_b32 s3, s{S_XCD}, 2
        s_lshr_b32 s27, s{S_J}, 3
        s_add_u32 s3, s3, s27
        s_lshl_b32 s3, s3, 4
        s_and_b32 s27, s{S_J}, 1
        s_lshl_b32 s27, s27, 3
        s_add_u32 s3, s3, s27
        v_lshrrev_b32 v{vb+1}, 3, v1
        v_add_u32 v{vb+1}, s3, v{vb+1}
        s_bfe_u32 s3, s{S_J}, 0x20001
        s_add_u32 s27, s3, 1
        s_and_b32 s27, s27, 2
        s_sub_u32 s27, 1, s27
        v_mul_i32_i24 v{vb+1}, s27, v{vb+1}
        s_cmp_eq_u32 s3, 0
        s_cselect_b32 s27, 0, 1024
        s_cmp_eq_u32 s3, 1
        s_cselect_b32 s27, 2048, s27
        v_add_u32 v{vb+1}, s27, v{vb+1}
        v_mul_u32_u24 v{vb+1}, 896, v{vb+1}
        v_and_b32 v{vb+2}, 7, v1
        v_min_u32 v{vb+2}, 6, v{vb+2}
        v_lshl_add_u32 v{vb+1}, v{vb+2}, 7, v{vb+1}
        buffer_load_dword v{vb+3}, v{vb+1}, s[{sX}:{sX+3}], 0 offen {fl}
        """)
    else:
        A(f"""
        s_cmp_ge_u32 s{S_XCD}, 4
        s_cselect_b32 s{sOUT}, s8, s6
        s_cselect_b32 s{sOUT+1}, s9, s7
        s_and_b32 s{sOUT+1}, s{sOUT+1}, 0xffff
        s_mov_b32 s{sOUT+2}, {2048*4096}
        s_mov_b32 s{sOUT+3}, 0x20000
        s_and_b32 s3, s{S_XCD}, 1
        s_lshl_b32 s3, s3, 5
        s_add_u32 s3, s3, s{S_J}
        s_lshl_b32 s3, s3, 4
        s_bfe_u32 s27, s{S_XCD}, 0x10001
        s_add_u32 s3, s3, s27
        s_lshl_b32 s3, s3, 12
        v_lshrrev_b32 v{vb}, 3, v1
        v_lshlrev_b32 v{vb}, 13, v{vb}
        v_and_b32 v{vb+1}, 7, v1
        v_lshl_add_u32 v{vb}, v{vb+1}, 7, v{vb}
        buffer_load_dword v{vb+2}, v{vb}, s[{sOUT}:{sOUT+3}], s3 offen {fl}
        """)


def gen(stamps=False, opt=None):
    opt = opt or {}
    HST = opt.get("hst", "sc1")
    HLD = opt.get("hld", "sc1")
    TOUCH_AT = opt.get("touch_at", 2)
    HD = opt.get("hd", 12)
    VAT = opt.get("vat", 22)
    A = K(stamps)
    CT[0] = opt.get('ct', 3)
    P2 = opt.get('p2', 0)
    P1 = opt.get('p1', 0)
    st1 = lambda i: None if (P2 or P1) else A.stamp(i)
    _stamp = A.stamp
    if opt.get('p3'):
        st1 = lambda i: None
        A.stamp = lambda i: _stamp(i) if i in (0, 1, 8, 9, 10) else None
    if opt.get('light'):
        P1 = 0
        A.stamp = lambda i: _stamp(i) if i == 0 else None
    if P1:
        A.stamp = lambda i: _stamp(i) if i == 0 else None
    st2 = lambda i: A.stamp(i) if P2 else None
    A.stamp(0)
    if opt.get("dbg"):
        A("s_memrealtime s[92:93]\ns_memtime s[90:91]")
    A("""
    s_load_dwordx16 s[4:19], s[0:1], 0
    s_load_dwordx4 s[20:23], s[0:1], 64
    s_load_dwordx2 s[24:25], s[0:1], 80
    s_cmp_ge_u32 s2, 256
    s_cbranch_scc1 L_end
    """)
    A(f"s_lshr_b32 s{S_J}, s2, 3")
    if CT[0] == 3:
        A(f"""
        s_getpc_b64 s[48:49]
        L_pc0:
        v_cmp_gt_u32 vcc, 10, v0
        s_sub_u32 s48, s48, L_pc0-{NAME}
        s_subb_u32 s49, s49, 0
        s_mov_b32 s50, L_code_end-{NAME}
        s_mov_b32 s51, 0x20000
        s_lshl_b32 s3, s{S_J}, 7
        v_lshlrev_b32 v254, 12, v0
        s_and_saveexec_b64 s[26:27], vcc
        s_cbranch_execz L_ct0
        buffer_load_dword v255, v254, s[48:51], s3 offen
        L_ct0:
        s_mov_b64 exec, s[26:27]
        """)
    if opt.get("et", 0):
        A(f"""
        v_subrev_u32 v253, 64, v0
        v_cmp_gt_u32 vcc, 64, v253
        v_lshrrev_b32 v252, 4, v253
        v_lshl_add_u32 v252, s{S_J}, 2, v252
        v_mul_u32_u24 v252, 3584, v252
        v_and_b32 v253, 15, v253
        v_lshl_add_u32 v252, v253, 7, v252
        s_and_b32 s3, s2, 1
        s_mul_i32 s3, s3, 1792
        s_and_saveexec_b64 s[26:27], vcc
        s_cbranch_execz L_et0
        s_waitcnt lgkmcnt(0)
        s_mov_b32 s48, s16
        s_and_b32 s49, s17, 0xffff
        s_mov_b32 s50, {448*3584}
        s_mov_b32 s51, 0x20000
        buffer_load_dword v253, v252, s[48:51], s3 offen
        """)
        if opt["et"] == 2:
            A(f"s_add_u32 s3, s3, {128*3584}\nbuffer_load_dword v253, v252, s[48:51], s3 offen")
        A("L_et0:\ns_mov_b64 exec, s[26:27]")
    A("v_lshrrev_b32 v2, 6, v0\nv_and_b32 v1, 63, v0")
    A(f"s_and_b32 s{S_XCD}, s2, 7")
    A(f"v_readfirstlane_b32 s{S_W}, v2")
    A(f"s_cmp_lt_u32 s{S_J}, 28\ns_cbranch_scc1 L_ffn")
    A.c("@@HEAD")
    A("L_ffn:")

    S_RB, S_FT, S_KX, S_KW, S_MX, S_MW, S_T, S_CT = 63, 96, 97, 98, 99, 100, 101, 26
    S_FTL, S_JX, S_TAG, S_PF = 14, 86, 58, 59
    S_M2, S_K2, S_G2, S_HF, S_PT = 56, 57, 95, 94, 58
    A(f"""
    s_mul_i32 s27, s{S_J}, 37
    s_lshr_b32 s27, s27, 8
    s_mul_i32 s3, s27, 7
    s_sub_u32 s{S_CT}, s{S_J}, s3
    s_and_b32 s{S_RB}, s{S_XCD}, 6
    s_lshl_b32 s{S_RB}, s{S_RB}, 1
    s_add_u32 s{S_RB}, s{S_RB}, s27
    s_lshl_b32 s27, s27, 1
    s_add_u32 s{S_G2}, s{S_CT}, s27
    """)
    mod7(A, S_G2, 3, 14)
    VD, XA, WA, ONES = 2, 8, 16, 20
    VW2, VEP = 6, 18
    FX = [24, 48]; FW = [40, 64]
    ACC, RS, CS = 72, 104, 108
    S_MD = 52
    sL = sW1
    A(f"""
    s_and_b32 s{S_JX}, s{S_XCD}, 1
    s_mul_i32 s3, s{S_JX}, 7
    s_add_u32 s{S_FT}, s{S_G2}, s3
    v_lshrrev_b32 v31, 4, v1
    v_mov_b32 v35, 896
    s_movk_i32 s3, 0xe2
    s_bitcmp1_b32 s3, s{S_W}
    s_cbranch_scc1 L_ldw
    s_max_u32 s{S_KX}, s{S_W}, 1
    s_add_u32 s{S_KX}, s{S_KX}, s{S_CT}
    s_add_u32 s{S_KX}, s{S_KX}, 3
    s_and_b32 s{S_KX}, s{S_KX}, 3
    s_lshl_b32 s3, s{S_RB}, 6
    s_lshr_b32 s27, s{S_KX}, 1
    s_add_u32 s3, s3, s27
    v_lshrrev_b32 v30, 3, v1
    v_lshl_add_u32 v30, v30, 1, s3
    v_and_b32 v32, 7, v1
    v_xor_b32 v32, v32, v31
    v_lshlrev_b32 v32, 4, v32
    s_lshl_b32 s{S_MD}, s{S_KX}, 12
    s_bitcmp1_b32 s{S_KX}, 0
    s_cselect_b32 s3, -1, 1
    s_cselect_b32 s27, 2048, 0
    v_mul_i32_i24 v30, s3, v30
    v_add_u32 v30, s27, v30
    s_mul_i32 s3, s3, {16*896}
    v_mad_u32_u24 v33, v30, v35, v32
    v_lshrrev_b32 v34, 11, v30
    v_mul_u32_u24 v34, {1024*896}, v34
    v_sub_u32 v{VD}, v33, v34
    v_xor_b32 v32, 64, v32
    v_mad_u32_u24 v32, v30, v35, v32
    v_add_u32 v{VD+1}, s3, v32
    s_lshl_b32 s3, s3, 1
    v_add_u32 v{VD+2}, s3, v33
    v_add_u32 v{VD+3}, s3, v{VD+1}
    s_add_u32 s{S_MD+1}, s{S_MD}, 1024
    s_add_u32 s{S_MD+2}, s{S_MD}, 2048
    s_add_u32 s{S_MD+3}, s{S_MD}, 3072
    """)
    A(f"s_movk_i32 s{S_MX}, 128\ns_waitcnt lgkmcnt(0)")
    A.srd(sL, 4, 2048 * 896)
    A("s_branch L_ldok")
    A("L_ldw:")
    A(f"""
    s_max_u32 s{S_KX}, s{S_W}, 4
    s_add_u32 s{S_KX}, s{S_KX}, s{S_RB}
    s_lshl_b32 s{S_KX}, s{S_KX}, 2
    v_lshlrev_b32 v33, 1, v31
    v_and_b32 v34, 15, v1
    v_xor_b32 v33, v33, v34
    v_mul_u32_u24 v34, 3584, v31
    v_lshl_add_u32 v32, v33, 4, v34
    v_xor_b32 v33, 128, v32
    s_and_b32 s{S_MD}, s{S_KX}, 15
    s_mul_i32 s27, s{S_MD}, {4*3584}
    s_lshl_b32 s3, s{S_FT}, 8
    s_add_u32 s27, s27, s3
    v_add_u32 v{VD}, s27, v32
    v_add_u32 v{VD+2}, s27, v33
    v_add_u32 v{VD+1}, {4*3584}, v{VD}
    v_add_u32 v{VD+2}, {8*3584}, v{VD+2}
    v_add_u32 v{VD+3}, {4*3584}, v{VD+2}
    s_lshl_b32 s{S_MD}, s{S_MD}, 10
    s_add_u32 s{S_MD}, s{S_MD}, 16384
    s_add_u32 s{S_MD+1}, s{S_MD}, 1024
    s_add_u32 s{S_MD+2}, s{S_MD}, 2048
    s_add_u32 s{S_MD+3}, s{S_MD}, 3072
    s_mov_b32 s{S_MX}, {64*3584}
    s_waitcnt lgkmcnt(0)
    """)
    A.srd(sL, 16, 448 * 3584)
    A("L_ldok:")
    A.srd(sX, 4, 2048 * 896)

    def p1_dmas(st):
        slot = st % 5
        return [A.dma2(VD + i, sL, f"s{S_KX}", f"s_add_u32 m0, s{S_MD+i}, {slot*32768}", ("p1", st),
                       pre=None if i else f"s_mul_i32 s{S_KX}, s{S_MX}, {st}", flags=p1fl[0]) for i in range(4)]
    p1fl = [""]

    def burst(dmas):
        for a_, b_ in dmas:
            a_(); A("s_nop 0"); b_()

    def p1_setup():
        A.srd(sWS, 24, WS_SIZE + (0x40000 if stamps else 0))
        A(f"""
        s_mov_b32 s{S_FTL}, s{S_G2}
        s_lshl_b32 s{S_HF}, s{S_XCD}, 2
        s_and_b32 s3, s{S_RB}, 3
        s_add_u32 s{S_HF}, s{S_HF}, s3
        s_lshl_b32 s{S_HF}, s{S_HF}, 7
        s_add_u32 s{S_HF}, s{S_HF}, {WS_HFLAG}
        v_mov_b32 v35, {WS_EPOCH}
        """)
        A.vmem(f"buffer_load_dword v{VEP}, v35, s[{sWS}:{sWS+3}], 0 offen sc1", "ep")
        if opt.get("lf", 1):
            A("v_mov_b32 v35, 4096")
            A.vmem(f"buffer_load_dword v{VEP+1}, v35, s[{sWS}:{sWS+3}], s{S_HF} offen sc1", "ep")
        A(f"""
        v_and_b32 v32, 15, v1
        v_lshrrev_b32 v33, 1, v32
        v_xor_b32 v33, v33, v31
        v_lshlrev_b32 v33, 4, v33
        v_lshl_add_u32 v33, v32, 7, v33
        s_lshl_b32 s3, s{S_W}, 11
        v_add_u32 v{XA}, s3, v33
        """)
        for rb in range(1, 4):
            A(f"v_xor_b32 v{XA+rb}, {rb*2048}, v{XA}")
        for rb in range(4):
            A(f"v_xor_b32 v{XA+4+rb}, 64, v{XA+rb}")
        A(f"""
        v_bfe_u32 v30, v1, 2, 2
        v_lshl_add_u32 v32, v31, 3, v30
        v_lshlrev_b32 v32, 8, v32
        v_and_b32 v33, 3, v1
        v_lshl_add_u32 v32, v33, 3, v32
        v_add_u32 v32, 16384, v32
        v_and_b32 v33, 1, v31
        v_lshl_or_b32 v33, v33, 2, v30
        s_and_b32 s3, s{S_W}, 3
        s_lshl_b32 s3, s3, 1
        s_lshr_b32 s27, s{S_W}, 2
        s_or_b32 s3, s3, s27
        v_xor_b32 v33, s3, v33
        v_lshl_add_u32 v{WA}, v33, 5, v32
        v_xor_b32 v{WA+1}, 32, v{WA}
        """)
        for i in range(4):
            A(f"v_mov_b32 v{ONES+i}, 0x3f803f80")
        A.srd(sW2, 18, 1792 * 896)
        A(f"""
        s_lshl_b32 s{S_T}, s{S_RB}, 1
        s_add_u32 s{S_T}, s{S_T}, s{S_JX}
        v_lshrrev_b32 v30, 3, v1
        v_mul_u32_u24 v32, 896, v30
        v_and_b32 v30, 6, v30
        v_and_b32 v33, 7, v1
        v_xor_b32 v30, v30, v33
        v_lshl_add_u32 v32, v30, 4, v32
        s_lshl_b32 s3, s{S_CT}, 7
        s_mul_i32 s27, s{S_W}, {8*896}
        s_add_u32 s3, s3, s27
        v_add_u32 v{VW2}, s3, v32
        s_lshl_b32 s{S_M2}, s{S_W}, 10
        s_and_b32 s3, s{S_W}, 2
        s_add_u32 s3, s3, s{S_JX}
        s_lshl_b32 s3, s3, 2
        s_lshr_b32 s27, s{S_T}, 3
        s_add_u32 s3, s3, s27
        s_lshl_b32 s3, s3, 7
        s_add_u32 s59, s3, {WS_VFLAG}
        v_mov_b32 v35, 0
        """)
        A.vmem(f"buffer_load_dword v{VEP+1}, v35, s[{sWS}:{sWS+3}], s59 offen sc1", "ep")

    def wpair_addr(p):
        if p < 12:
            return 65536 + 8192 * p
        if p < 14:
            return 16384 + 8192 * (p - 12)
        return [32768, 40960, 0, 65536, 49152, 57344, 8192, 73728][p - 14]

    def w_dma(p):
        if p < 14:
            srd = sW2
            if p % 2 == 0:
                pre = (f"s_mul_i32 s{S_K2}, s{S_JX}, 7\ns_add_u32 s{S_K2}, s{S_K2}, s{S_G2}\ns_mul_i32 s{S_K2}, s{S_K2}, {128*896}\n"
                       f"s_add_u32 s{S_G2}, s{S_G2}, 1\ns_cmp_eq_u32 s{S_G2}, 7\ns_cselect_b32 s{S_G2}, 0, s{S_G2}")
            else:
                pre = f"s_add_u32 s{S_K2}, s{S_K2}, {64*896}"
        else:
            srd = sWD if p < 18 else sW1
            pre = f"s_mov_b32 s{S_K2}, {((p - 14) % 4)*64*896}"
        return A.dma2(VW2, srd, f"s{S_K2}", f"s_add_u32 m0, s{S_M2}, {wpair_addr(p)}", ("w", p), pre=pre)

    def place(dmas, g0, g1):
        r = []
        for k, (a_, b_) in enumerate(dmas):
            g = g0 + 1 + k * (g1 - g0) // len(dmas)
            r += [(g - 1, a_), (g, b_)]
        return r

    def p1_reads(st, q, buf):
        so = ((st % 5) & 1) * 32768
        r = []
        for rb in range(4):
            r.append(lambda rb=rb: A.lds(f"ds_read_b128 {v(FX[buf]+4*rb,4)}, v{XA + 4*q + rb} offset:{so}", ("f", st, q)))
        for cb in range(2):
            for h in range(2):
                r.append(lambda cb=cb, h=h: A.lds(f"ds_read_b64_tr_b16 {v(FW[buf]+4*cb+2*h,2)}, v{WA+cb} offset:{so + q*8192 + h*1024}", ("f", st, q)))
        return r

    def p1_mfma(buf, first):
        z = "0" if first else None
        r = [lambda: A.mfma(RS, ONES, FX[buf], z), lambda: A.mfma(CS, FW[buf], ONES, z)]
        for cb in range(2):
            for rb in range(4):
                r.append(lambda cb=cb, rb=rb: A.mfma(ACC + (cb * 4 + rb) * 4, FW[buf] + 4 * cb, FX[buf] + 4 * rb, z))
        return r

    def p1_addr_step(st):
        d = {2: 65536, 4: 65536, 5: -131072}.get(st)
        if not d:
            return []
        return [(8 + k // 5, lambda r=r: A(f"v_add_u32 v{r}, {d & 0xffffffff}, v{r}"))
                for k, r in enumerate(list(range(XA, XA + 8)) + [WA, WA + 1])]

    def lines(txt, g0, g1):
        ex = [x for x in txt.strip().split("\n") if x.strip()]
        return [(g0 + k * (g1 - g0) // len(ex), lambda x=x: A(x)) for k, x in enumerate(ex)]

    VID = 120
    WA2, WB, WC, VH, VO, VL, VZ = 8, 12, 112, 2, 4, 16, 7
    FW2 = [24, 40]
    AC2, HF, VF = 56, 128, 192
    p2_setup = f"""
    v_lshlrev_b32 v{VL}, 4, v1
    v_mov_b32 v{VZ}, 0
    v_lshrrev_b32 v124, 4, v1
    v_bfe_u32 v125, v1, 2, 2
    v_lshl_add_u32 v126, v124, 2, v125
    v_lshrrev_b32 v127, 1, v126
    v_and_b32 v127, 3, v127
    v_lshlrev_b32 v126, 7, v126
    v_and_b32 v125, 3, v1
    v_lshl_add_u32 v126, v125, 3, v126
    """ + "".join(f"""
    v_xor_b32 v125, {eb}, v127
    v_lshl_add_u32 v{WA2+eb}, v125, 5, v126
    v_add_u32 v{WB+eb}, 0x10000, v{WA2+eb}
    v_add_u32 v{WC+eb}, 0x20000, v{WA2+eb}""" for eb in range(4)) + f"""
    s_lshl_b32 s{S_K2+32}, s{S_T}, 2
    s_and_b32 s{S_K2+33}, s{S_W}, 3
    s_add_u32 s{S_K2+32}, s{S_K2+32}, s{S_K2+33}
    s_mul_i32 s{S_K2+34}, s{S_K2+32}, {H_STRIDE}
    v_add_u32 v{VH}, s{S_K2+34}, v{VL}
    s_xor_b32 s{S_K2+34}, s{S_K2+32}, 4
    s_mul_i32 s{S_K2+34}, s{S_K2+34}, {H_STRIDE}
    v_add_u32 v{VH+1}, s{S_K2+34}, v{VL}
    s_and_b32 s{S_K2+32}, s{S_K2+32}, 7
    s_lshl_b32 s{S_K2+32}, s{S_K2+32}, 12
    s_add_u32 s{S_K2+32}, s{S_K2+32}, 32768
    v_add_u32 v238, s{S_K2+32}, v{VL}
    v_xor_b32 v239, 16384, v238
    s_lshl_b32 s{S_K2+32}, s{S_RB}, 6
    s_add_u32 s{S_K2+32}, s{S_K2+32}, s{S_JX}
    s_and_b32 s{S_K2+33}, s{S_W}, 1
    s_lshl_b32 s{S_K2+33}, s{S_K2+33}, 5
    s_add_u32 s{S_K2+33}, s{S_K2+33}, s{S_K2+32}
    v_lshrrev_b32 v124, 3, v1
    v_lshl_add_u32 v125, v124, 1, s{S_K2+33}
    s_bfe_u32 s{S_K2+32}, s{S_W}, 0x10001
    s_lshl_b32 s{S_K2+33}, s{S_K2+32}, 11
    s_lshl_b32 s{S_K2+32}, s{S_K2+32}, 1
    s_sub_u32 s{S_K2+32}, 1, s{S_K2+32}
    v_mul_i32_i24 v125, s{S_K2+32}, v125
    v_add_u32 v125, s{S_K2+33}, v125
    s_mul_i32 s{S_K2+32}, s{S_K2+32}, {16*896}
    s_lshl_b32 s{S_K2+33}, s{S_CT}, 7
    v_mul_u32_u24 v126, 896, v125
    v_add_u32 v126, s{S_K2+32}, v126
    v_lshrrev_b32 v127, 11, v125
    v_lshlrev_b32 v127, 10, v127
    v_sub_u32 v125, v125, v127
    v_mul_u32_u24 v125, 896, v125
    v_and_b32 v127, 7, v1
    v_xor_b32 v127, v127, v124
    v_lshlrev_b32 v127, 4, v127
    v_add_u32 v127, s{S_K2+33}, v127
    v_add_u32 v{VO}, v125, v127
    v_add_u32 v{VO+1}, v126, v127
    """
    for k in range(3):
        p2_setup = p2_setup.replace(f"s{S_K2+32+k}", f"s{48+k}")
    WPRE = opt.get("wpre", 12)

    def phase1(cls):
        K0 = opt.get("k0", 2) if cls == 0 else opt.get("k1", 2)
        p1fl[0] = opt.get("shfl", "") if cls == 0 else ""
        if cls == 0:
            if opt.get("xt", 0) == 2:
                A(f"s_cmp_lg_u32 s{S_W}, 1\ns_cbranch_scc1 L_notouch0")
                start_touch(A, opt, "x", 124)
                A("L_notouch0:")
            for s_ in range(K0):
                burst(p1_dmas(s_))
            A(f"s_cmp_lg_u32 s{S_W}, 0\ns_cbranch_scc1 L_notouch")
            if opt.get("xt", 0) == 1:
                start_touch(A, opt, "x", 124)
            code_touch(A)
            A("L_notouch:")
            p1_setup()
        else:
            p1_setup()
            for s_ in range(K0):
                burst(p1_dmas(s_))
        A.wait(vm=("p1", 0))
        A("s_barrier")
        st1(2)
        if P1: _stamp(1)
        for f in p1_reads(0, 0, 0):
            f()
        queue = []
        for s_ in range(K0, 7):
            for i in range(4):
                first = max(0, 2 * (s_ - 5) + 1)
                if cls == 1:
                    first = max(first, 2 * s_ - opt.get("la1", 5) + i // 2)
                queue.append((first, lambda s_=s_, i=i: p1_dmas(s_)[i]))
        wn = WPRE
        for p in range(WPRE):
            queue.append((max(2 * (2 + p // 4) + 1 if p < 12 else 13, min(13, opt.get("w0", 8) + p // 2)), lambda p=p: w_dma(p)))
        rate = (opt.get("r0", 4), 4)
        for st in range(7):
            for q in range(2):
                fl = []
                if q == 0:
                    A.wait(lg=("f", st, 0))
                    fl += list(enumerate(p1_reads(st, 1, 1))) + p1_addr_step(st + 1)
                else:
                    if st < 6:
                        if P1 == 2: _stamp(st + 2)
                        A.wait(vm=("p1", st + 1), lg=0)
                        if P1 == 3: _stamp(st + 2)
                        A("s_barrier")
                        if P1 == 1: _stamp(st + 2)
                        fl += list(enumerate(p1_reads(st + 1, 0, 0)))
                    else:
                        A.wait(lg=0)
                dm = []
                blk = 2 * st + q
                while queue and len(dm) < rate[cls] and queue[0][0] <= blk:
                    dm.append(queue.pop(0)[1]())
                if dm:
                    fl += place(dm, 1, 9)
                if (st, q) == (0, 1):
                    fl += lines(f"""
                    v_readfirstlane_b32 s{S_TAG}, v{VEP}
                    s_lshl_b32 s27, s{S_CT}, 2
                    v_mov_b32 v{VID+1}, s27
                    s_mul_i32 s{S_TAG}, s{S_TAG}, {TAGMUL}
                    s_add_u32 s{S_TAG}, s{S_TAG}, {TAGADD}
                    v_min_u32 v{VID+3}, 6, v1
                    v_lshlrev_b32 v{VID+3}, 2, v{VID+3}
                    """, 0, 8)
                    A.wait(vm="ep")
                if cls == 0 and opt.get("dum", 0) and 2 * st + q == opt.get("dumb", 0):
                    def dummy():
                        for s_ in range(5, 7):
                            A(f"s_mul_i32 s3, s{S_MX}, {s_}")
                            for i in range(4):
                                A.vmem(f"buffer_load_dwordx4 v[252:255], v{VD+i}, s[{sL}:{sL+3}], s3 offen")
                    fl.append((9, dummy))
                if cls == 0 and 2 * st + q == opt.get("wtb", 5):
                    def wt():
                        A(f"s_cmp_lg_u32 s{S_W}, 1\ns_cbranch_scc1 L_notouch3")
                        A(f"""
                        v_lshlrev_b32 v124, 7, v1
                        s_mul_i32 s3, s2, {56*128}
                        s_mov_b32 exec_hi, 0xffffff
                        buffer_load_dword v125, v124, s[{sW2}:{sW2+3}], s3 offen
                        s_mov_b64 exec, -1
                        """)
                        A("L_notouch3:")
                    fl.append((9, wt))
                if (st, q) == (6, 1):
                    fl += lines(f"""
                    v_and_b32 v30, 15, v1
                    v_lshlrev_b32 v30, 2, v30
                    s_lshl_b32 s3, s{S_W}, 6
                    v_add_u32 v30, s3, v30
                    v_lshrrev_b32 v31, 4, v1
                    v_lshlrev_b32 v31, 4, v31
                    s_and_b32 s27, s{S_W}, 3
                    s_lshl_b32 s27, s27, 7
                    s_lshr_b32 s3, s{S_W}, 2
                    s_lshl_b32 s3, s3, 6
                    s_add_u32 s27, s27, s3
                    v_add_u32 v31, s27, v31
                    v_xor_b32 v32, 64, v30
                    v_xor_b32 v33, 128, v30
                    v_xor_b32 v34, 192, v30
                    v_xor_b32 v35, 64, v31
                    """, 0, 8)
                    fl += lines(p2_setup, 0, 9)
                    fl.append((9, lambda: A.lds(f"ds_write_b32 v30, v{RS}")))
                    fl.append((9, lambda: A.lds(f"ds_write_b128 v31, {v(CS,4)} offset:512")))
                A.weave(p1_mfma(q, st == 0 and q == 0), fl)
        assert not queue, len(queue)
        if opt.get("tre", 0):
            A.wait(vm=("w", 2 * opt.get("tre", 0) - 1))
        return wn
    A(f"s_cmp_ge_u32 s{S_W}, 2\ns_cbranch_scc1 L_p1b")
    WN = phase1(0)
    A("s_branch L_p1done")
    A("L_p1b:")
    A.reset()
    phase1(1)
    A("L_p1done:")
    A.reset()
    st1(3)
    if P1: _stamp(8)
    A.wait(lg=0)
    A("s_barrier")
    if P1: _stamp(9)
    S_HS = S_MD

    def epilogue(wr):
        A.reset()
        MB = 24; CS1 = 28
        A.lds(f"ds_read_b32 v{MB+1}, v32")
        A.lds(f"ds_read_b32 v{MB+2}, v33")
        A.lds(f"ds_read_b32 v{MB+3}, v34")
        A.lds(f"ds_read_b128 {v(CS1,4)}, v35 offset:512")
        if wr == 0 and opt.get("xe", 1):
            A(f"s_lshl_b32 s3, s{S_W}, 11")
            for ps in range(2):
                A.dma(VO + ps, sX, "0", f"s_add_u32 m0, s3, {4096 + ps*1024}", "xr")
        A(f"""
        s_lshl_b32 s{S_KX}, s{S_RB}, 3
        s_mul_i32 s{S_KX}, s{S_KX}, 56
        s_lshl_b32 s{S_KW}, s{S_FT}, 2
        s_add_u32 s{S_KX}, s{S_KX}, s{S_KW}
        s_and_b32 s27, s{S_W}, 3
        s_add_u32 s{S_KX}, s{S_KX}, s27
        s_lshl_b32 s{S_KX}, s{S_KX}, 10
        s_lshl_b32 s27, s27, 10
        s_add_u32 s27, s27, 32768
        v_add_u32 v34, s27, v{VL}
        s_mov_b32 s3, {0x3b124925}
        v_mul_f32 v{MB}, s3, v{RS}
        """)
        A.wait(lg=0)
        for i in range(1, 4):
            A(f"v_mul_f32 v{MB+i}, s3, v{MB+i}")
        A(f"v_cvt_pk_bf16_f32 v32, v{MB}, v{MB+1}\nv_cvt_pk_bf16_f32 v33, v{MB+2}, v{MB+3}")
        A(f"v_lshlrev_b32 v{MB}, 16, v32\nv_and_b32 v{MB+1}, 0xffff0000, v32\nv_lshlrev_b32 v{MB+2}, 16, v33\nv_and_b32 v{MB+3}, 0xffff0000, v33")
        PK = 36
        for rb in range(4):
            sel = "op_sel:[0,1,0] op_sel_hi:[1,1,1]" if rb & 1 else "op_sel_hi:[1,0,1]"
            d = PK + 4 * rb
            for cb in range(2):
                a0 = ACC + (cb * 4 + rb) * 4
                for hh in range(2):
                    A(f"v_pk_fma_f32 {v(a0+2*hh,2)}, {v((CS, CS1)[cb]+2*hh,2)}, {v(MB+(rb&2),2)}, {v(a0+2*hh,2)} {sel} neg_lo:[1,0,0] neg_hi:[1,0,0]")
            for cb in range(2):
                a0 = ACC + (cb * 4 + rb) * 4
                for hh in range(2):
                    A(f"v_cvt_pk_bf16_f32 v{d+2*(cb^wr)+hh}, v{a0+2*hh}, v{a0+2*hh+1}")
            for i in range(4):
                A(f"v_pk_max_i16 v{d+i}, v{d+i}, 0")
            A(f"s_xor_b32 s27, s{S_W}, {rb}\ns_mul_i32 s{S_MD+rb}, s27, {H_STRIDE}\ns_add_u32 s{S_MD+rb}, s{S_MD+rb}, s{S_KX}")
            A.vmem(f"buffer_store_dwordx4 {v(PK+4*rb,4)}, v{VL}, s[{sWS}:{sWS+3}], s{S_MD+rb} offen sc1", ("hst", rb))
            A(f"s_lshl_b32 s27, s27, 12\nv_add_u32 v35, s27, v34")
            A.lds(f"ds_write_b128 v35, {v(PK+4*rb,4)}")
        st1(4)
        if P1: _stamp(10)
        A.stamp(5)

    def readback(vb):
        if opt.get("rb", 0):
            A(f"""
            v_lshrrev_b32 v{vb}, 3, v1
            v_xor_b32 v{vb}, s{S_W}, v{vb}
            v_mul_u32_u24 v{vb}, {H_STRIDE}, v{vb}
            v_and_b32 v{vb+1}, 7, v1
            v_lshl_add_u32 v{vb}, v{vb+1}, 7, v{vb}
            s_mov_b32 exec_hi, 0
            """)
            A.vmem(f"buffer_load_dword v{vb+1}, v{vb}, s[{sWS}:{sWS+3}], s{S_HB} offen")
            A("s_mov_b32 exec_hi, -1")
    S_HB = 59
    S_H, S_GH = S_KX, S_KW
    TRB = opt.get("trb", 0)
    assert TRB <= 2 * WN and TRB % 4 == 0
    NAL = opt.get("nal", 24)
    B0 = 4 + NAL

    def w_reads(key, i, both=True):
        r = []
        if i < TRB:
            a_ = wpair_addr(i >> 1) + (i & 1) * 4096
            return [lambda eb=eb: A.lds(f"ds_read_b128 {v(FW2[key&1]+4*eb,4)}, v{240+(a_>>16)} offset:{(a_ & 0xffff) + eb*1024}", ("wf", key, eb >> 1))
                    for eb in range(4)]
        for eb in range(4):
            for h in range(2):
                if i < 28:
                    a_ = wpair_addr(i >> 1) + (i & 1) * 4096
                    reg, off = (WA2, WB, WC)[a_ >> 16] + eb, (a_ & 0xffff) + h * 2048
                else:
                    u = i - 28
                    reg, off = ((WA2, u * 4096) if u < 4 else ((WB, WC)[(u - 4) >> 1], (u & 1) * 4096))
                    reg, off = reg + eb, off + h * 2048
                r.append(lambda reg=reg, off=off, eb=eb, h=h: A.lds(f"ds_read_b64_tr_b16 {v(FW2[key&1]+4*eb+2*h,2)}, v{reg} offset:{off}", ("wf", key, eb >> 1)))
        return r

    YS, ZS = 32768, 0
    XS = TS = 4096

    A(f"s_cmp_ge_u32 s{S_W}, 4\ns_cbranch_scc1 L_aux")
    epilogue(0)
    seq = [(i, (0, 1)) for i in range(4)] + [(i, (1,)) for i in range(4, B0)] + [(i, (0, 1)) for i in range(B0, 28)] + [(i, (0,)) for i in range(4, B0)]
    hl = [(n, tt) for n, (i, tts) in enumerate(seq) for tt in tts]
    NSL = opt.get("nsl", 16)
    slot = {k: HF + (idx % NSL) * 4 for idx, k in enumerate(hl)}
    state_h = dict(next=8, grp=None)

    def h_next():
        idx = state_h["next"]
        if idx >= len(hl):
            return
        state_h["next"] += 1
        n, tt = hl[idx]
        i = seq[n][0]
        if state_h["grp"] != i // 4 and not (opt.get("hfix") and state_h["grp"]):
            state_h["grp"] = i // 4
            A(f"s_add_u32 s{S_H}, s{S_FTL}, {i // 4}\ns_cmp_ge_u32 s{S_H}, 7\ns_cselect_b32 s3, 7, 0\ns_sub_u32 s{S_H}, s{S_H}, s3")
            A(f"s_add_u32 s{S_H}, s{S_H}, s{S_GH}\ns_lshl_b32 s{S_H}, s{S_H}, 12")
        if opt.get("noh"):
            A.vm.append(("h", n, tt)); A.vm_done = len(A.vm)
            return
        A.vmem(f"buffer_load_dwordx4 {v(slot[(n, tt)], 4)}, v{VH+tt}, s[{sWS}:{sWS+3}], s{S_H} offen offset:{(i%4)*1024} {HLD}", ("h", n, tt))

    def step(n, extra=()):
        i, tts = seq[n]
        nm = 4 * len(tts)
        fl = list(extra)
        if n + 1 < len(seq):
            rd = w_reads(n + 1, seq[n + 1][0])
            fl += [(k * nm // len(rd), f) for k, f in enumerate(rd)]
        if n >= 1:
            fl += [(1 + 4 * k, h_next) for k in range(len(seq[n - 1][1]))]
        mf = []
        for eb in range(4):
            for tt in tts:
                def f(eb=eb, tt=tt):
                    if eb % 2 == 0 and tt == tts[0]:
                        A.wait(vm=("h", n, tts[-1]) if eb == 0 and n >= 4 else None, lg=("wf", n, eb >> 1))
                    A.mfma(AC2 + (tt * 4 + eb) * 4, FW2[n & 1] + 4 * eb, slot[(n, tt)], "0" if n == 0 else None)
                mf.append(f)
        A.weave(mf, fl)

    PR, XU = 192, 208
    fin = f"""
    v_and_b32 v20, 15, v1
    v_lshrrev_b32 v21, 4, v1
    v_lshrrev_b32 v22, 1, v21
    v_and_b32 v23, 7, v20
    v_xor_b32 v22, v22, v23
    v_lshlrev_b32 v22, 4, v22
    v_lshl_add_u32 v22, v20, 7, v22
    v_and_b32 v21, 1, v21
    v_lshl_add_u32 v22, v21, 3, v22
    s_lshl_b32 s27, s{S_W}, 11
    s_add_u32 s27, s27, {TS}
    v_add_u32 v232, s27, v22
    v_add_u32 v23, s27, v{VL}
    v_xor_b32 v233, 32, v232
    v_xor_b32 v234, 64, v232
    v_xor_b32 v235, 96, v232
    ds_read_b64 v[224:225], v232
    ds_read_b64 v[226:227], v233
    ds_read_b64 v[228:229], v234
    ds_read_b64 v[230:231], v235
    s_lshl_b32 s27, s{S_W}, 6
    s_add_u32 s27, s27, {YS + 20480}
    v_lshl_add_u32 v20, v20, 2, s27
    s_and_b32 s27, s{S_W}, 1
    s_lshl_b32 s27, s27, 12
    s_add_u32 s27, s27, {YS}
    v_add_u32 v19, s27, v{VL}
    s_xor_b32 s{S_MW}, s{S_W}, 2
    s_or_b32 s{S_MW}, s{S_MW}, s{S_T}
    s_sub_u32 s{S_MW}, s{S_MW}, 1
    s_lshr_b32 s{S_MW}, s{S_MW}, 31
    s_lshl_b32 s{S_MW}, s{S_MW}, 14
    v_add_u32 v18, s{S_MW}, v19
    s_lshl_b32 s27, s{S_W}, 30
    s_and_b32 s27, s27, 0x80000000
    s_or_b32 s27, s27, 1.0
    v_mov_b32 v237, s27
    s_xor_b32 s{S_FT}, s{S_MX}, 16384
    s_and_b32 s{S_G2}, s{S_PT}, {1 if opt.get('pb', 1) else 0xff}
    """.strip().split("\n")
    fin = [x.strip() for x in fin]
    unp = [f"v_lshlrev_b32 v{XU+2*k}, 16, v{224+k}" if b_ == 0 else f"v_and_b32 v{XU+2*k+1}, 0xffff0000, v{224+k}" for k in range(8) for b_ in range(2)]

    PB = opt.get("pb", 1)

    def p_loads(track):
        for eb in range(2 if PB else 4):
            t_ = f"buffer_load_dwordx4 {v(PR+4*eb,4)}, v{VL}, s[{sWS}:{sWS+3}], s{S_FT} offen offset:{eb*1024} sc1"
            A.vmem(t_, "part") if track else A(t_)
    TRE = min(opt.get("tre", 0), TRB // 4)

    def transpose(b0, b1):
        def tr_in(b):
            a_ = wpair_addr(2 * b)
            for eb in range(4):
                for h in range(2):
                    A.lds(f"ds_read_b64_tr_b16 {v(160+16*(b&1)+4*eb+2*h,2)}, v{240+4*(a_>>16)+eb} offset:{(a_ & 0xffff) + h*2048}", ("tr", b))
        if b0 < b1:
            tr_in(b0)
        for b in range(b0, b1):
            if b + 1 < b1:
                tr_in(b + 1)
            A.wait(lg=("tr", b))
            a_ = wpair_addr(2 * b)
            for eb in range(4):
                A.lds(f"ds_write_b128 v{252+(a_>>16)}, {v(160+16*(b&1)+4*eb,4)} offset:{(a_ & 0xffff) + eb*1024}")
    A(f"s_lshl_b32 s3, s2, 14\ns_lshl_b32 s27, s{S_W}, 12\ns_add_u32 s3, s3, s27\ns_add_u32 s{S_MX}, s3, {WS_PART}")
    A.srd(sOUT, 20, 2048 * 896)
    if not opt.get("xe", 1):
        A(f"s_lshl_b32 s{S_H}, s{S_W}, 11")
        for ps in range(2):
            A.dma(VO + ps, sX, "0", f"s_add_u32 m0, s{S_H}, {XS + ps*1024}", "xr")
    if TRB:
        A(f"s_lshl_b32 s3, s{S_W}, 12")
        for k, base in enumerate((WA2, WB, WC)):
            for eb in range(4):
                A(f"v_add_u32 v{240+4*k+eb}, s3, v{base+eb}")
            A(f"v_add_u32 v{252+k}, s3, v{VL}" + (f"\nv_add_u32 v{252+k}, {k << 16}, v{252+k}" if k else ""))
    transpose(0, TRE)
    for x in fin:
        if not x.startswith("ds_"):
            A(x.replace(f"s{S_G2}", "s48").replace("s48", f"s{S_HB}") if False else x) if f"s{S_G2}" not in x else None
    A.wait(vm=0, lg=0)
    for x in fin:
        if x.startswith("ds_"):
            A.lds(x)
    burst([w_dma(p) for p in range(WN, 14)])
    A("s_barrier")
    A(f"s_cmp_lg_u32 s{S_W}, 3\ns_cbranch_scc1 L_nopub")
    A(f"v_mov_b32 v236, s{S_TAG}\ns_mov_b64 exec, 1")
    if opt.get("lf", 1):
        A(f"s_add_u32 s3, s{S_HF}, 4096")
        A(f"buffer_store_dword v236, v{VID+1}, s[{sWS}:{sWS+3}], s3 offen offset:16")
    A(f"buffer_store_dword v236, v{VID+1}, s[{sWS}:{sWS+3}], s{S_HF} offen offset:16 sc1")
    A("s_mov_b64 exec, -1")
    A("L_nopub:")
    A.stamp(7)
    for x in fin:
        if f"s{S_G2}" in x:
            A(x)
    for n in range(4):
        for tt in range(2):
            A.lds(f"ds_read_b128 {v(slot[(n, tt)],4)}, v{238+tt} offset:{n*1024}")
    A.wait(lg=0)
    for x in unp:
        A(x)
    A(f"s_mul_i32 s{S_GH}, s{S_JX}, 7")
    transpose(TRE, TRB // 4)
    if TRB:
        A(f"v_add_u32 v241, 0x10000, v{VL}\nv_add_u32 v242, 0x20000, v{VL}\nv_mov_b32 v240, v{VL}")
    A(f"s_cmp_lg_u32 s{S_W}, 3\ns_cbranch_scc1 L_nopoll")
    if opt.get("lf", 1):
        A(f"""
        s_mov_b32 s27, 0x40000
        L_hpoll:
        s_and_b32 s3, s27, 3
        s_cselect_b32 s3, {4096 + 16}, 16
        s_add_u32 s3, s3, s{S_HF}
        buffer_load_dword v236, v{VID+3}, s[{sWS}:{sWS+3}], s3 offen sc1
        s_waitcnt vmcnt(0)
        v_cmp_eq_u32 vcc, s{S_TAG}, v236
        s_nop 1
        s_cmp_eq_u64 vcc, exec
        s_cbranch_scc1 L_nopoll
        s_sub_u32 s27, s27, 1
        s_cbranch_scc0 L_hpoll
        """.replace("0x40000", "0x3ffff"))
    else:
        A(f"s_add_u32 s3, s{S_HF}, 16")
        A.poll(VID + 3, sWS, "s3", "eq", 64, S_TAG, vtmp=236)
    A("L_nopoll:")
    A.wait(vm=0, lg=0)
    A("s_barrier")
    if not P2: A.stamp(1)
    for k in range(NSL - 8):
        h_next()
    for f in w_reads(0, 0):
        f()
    if opt.get("prio", 1):
        A(f"s_setprio {opt.get('prio', 1)}")
    for n in range(len(seq)):
        ex = []
        if opt.get("p3") and n in (0, 4, 12, 20, 36, 44):
            _stamp({0: 2, 4: 3, 12: 4, 20: 5, 36: 6, 44: 7}[n])
        if n == opt.get("m2n", -1):
            A("s_barrier")
        if n == 28:
            A.stamp(8)
            A(f"""
            v_mov_b32 v236, s{S_G2}
            s_movk_i32 s27, {1 if PB else 0xff}
            s_nop 5
            """)
            for k in range(2 if PB else 0):
                for r in range(4):
                    A(f"v_cvt_pk_bf16_f32 v{AC2+16+4*k+r}, v{AC2+16+8*k+2*r}, v{AC2+17+8*k+2*r}")
                for r in range(4):
                    A(f"v_bfi_b32 v{AC2+16+4*k+r}, s27, v236, v{AC2+16+4*k+r}")
                A.vmem(f"buffer_store_dwordx4 {v(AC2+16+4*k,4)}, v{VL}, s[{sWS}:{sWS+3}], s{S_MX} offen offset:{k*1024} sc1", "pst")
            for eb in range(0 if PB else 4):
                for r in range(4):
                    A(f"v_bfi_b32 v{AC2+16+4*eb+r}, s27, v236, v{AC2+16+4*eb+r}")
                A.vmem(f"buffer_store_dwordx4 {v(AC2+16+4*eb,4)}, v{VL}, s[{sWS}:{sWS+3}], s{S_MX} offen offset:{eb*1024} sc1", "pst")
        if n == len(seq) - opt.get("pat", 6):
            ex.append((3, lambda: p_loads(True)))
        step(n, ex)
    A.stamp(9)
    A(f"s_mov_b32 s{S_KX}, 0x40000")
    A("L_pchk:")
    A("s_waitcnt vmcnt(0)")
    NP = 8 if PB else 16
    for r in range(NP):
        A(f"v_xor_b32 v{PR+r}, s{S_G2}, v{PR+r}")
    A(f"v_or3_b32 v24, v{PR}, v{PR+1}, v{PR+2}")
    for k in range(NP // 2 - 2):
        A(f"v_or3_b32 v24, v24, v{PR+3+2*k}, v{PR+4+2*k}")
    A(f"v_or_b32 v24, v24, v{PR+NP-1}\nv_and_b32 v24, {1 if PB else 0xff}, v24\nv_cmp_eq_u32 vcc, 0, v24\ns_nop 1\ns_cmp_eq_u64 vcc, exec\ns_cbranch_scc1 L_pok")
    p_loads(False)
    A(f"s_sub_u32 s{S_KX}, s{S_KX}, 1\ns_cbranch_scc0 L_pchk")
    A("L_pok:")
    if PB:
        for r in range(8):
            A(f"v_and_b32 v{PR+8+r}, 0xffff0000, v{PR+r}\nv_lshlrev_b32 v{PR+r}, 16, v{PR+r}")
    for r in range(16):
        A(f"v_add_f32 v{AC2+r}, v{AC2+r}, v{PR + ((r >> 1) + 8 * (r & 1) if PB else r)}")
    if P2: A.stamp(2)
    A("s_barrier")
    A.stamp(10)
    YP = HF
    A(f"ds_read_b32 v236, v20")
    for eb in range(4):
        A(f"ds_read_b128 {v(YP+4*eb,4)}, v18 offset:{eb*1024}")
    for eb in range(4):
        A(f"ds_read_b128 {v(YP+16+4*eb,4)}, v19 offset:{8192 + eb*1024}")
    A("s_waitcnt lgkmcnt(8)")
    for eb in range(4):
        for hh in range(2):
            A(f"v_pk_fma_f32 {v(XU+4*eb+2*hh,2)}, {v(AC2+4*eb+2*hh,2)}, v[236:237], {v(XU+4*eb+2*hh,2)} op_sel_hi:[1,0,1]")
    A("s_waitcnt lgkmcnt(4)")
    for eb in range(4):
        for hh in range(2):
            A(f"v_pk_add_f32 {v(XU+4*eb+2*hh,2)}, {v(XU+4*eb+2*hh,2)}, {v(YP+4*eb+2*hh,2)}")
    A("s_waitcnt lgkmcnt(0)")
    for eb in range(4):
        for hh in range(2):
            A(f"v_pk_fma_f32 {v(XU+4*eb+2*hh,2)}, {v(YP+16+4*eb+2*hh,2)}, v[236:237], {v(XU+4*eb+2*hh,2)} op_sel:[0,1,0] op_sel_hi:[1,1,1]")
        A(f"v_cvt_pk_bf16_f32 v{28+2*eb}, v{XU+4*eb}, v{XU+4*eb+1}\nv_cvt_pk_bf16_f32 v{29+2*eb}, v{XU+4*eb+2}, v{XU+4*eb+3}")
        A(f"ds_write_b64 v{232+eb}, {v(28+2*eb,2)}")
    A("s_waitcnt lgkmcnt(0)")
    A("ds_read_b128 v[36:39], v23\nds_read_b128 v[40:43], v23 offset:1024")
    A("s_waitcnt lgkmcnt(1)")
    A(f"buffer_store_dwordx4 v[36:39], v{VO}, s[{sOUT}:{sOUT+3}], 0 offen {opt.get('ofl', '')}")
    A("s_waitcnt lgkmcnt(0)")
    A(f"buffer_store_dwordx4 v[40:43], v{VO+1}, s[{sOUT}:{sOUT+3}], 0 offen {opt.get('ofl', '')}")
    if opt.get("dbg"):
        A.srd(sDBG, 22, 256)
        A("""
        s_waitcnt vmcnt(0)
        s_memrealtime s[88:89]
        s_memtime s[84:85]
        s_waitcnt lgkmcnt(0)
        s_sub_u32 s84, s84, s90
        s_sub_u32 s88, s88, s92
        s_lshl_b32 s88, s88, 16
        s_and_b32 s92, s92, 0xffff
        s_or_b32 s88, s88, s92
        v_mov_b32 v2, s88
        v_mov_b32 v3, s84
        s_lshl_b32 s3, s2, 3
        s_lshl_b32 s27, s60, 8
        s_add_u32 s3, s3, s27
        v_mov_b32 v5, s3
        s_mov_b64 exec, 1
        """)
        A(f"buffer_store_dwordx2 v[2:3], v5, s[{sDBG}:{sDBG+3}], 0 offen")
    A.dump_stamps(11)
    A("s_endpgm")

    A("L_aux:")
    epilogue(1)
    RSD, VPOLL, VT, YB, YA, V2, VF, WF = 20, 22, 19, 32, 48, 64, 96, 128
    PR, XU = VF, V2
    DF, EF, TA = 24, 8, opt.get('ta', 32)
    S_PA = S_MX
    A(f"""
    s_and_b32 s{S_GH}, s{S_W}, 3
    v_and_b32 v14, 15, v1
    s_lshl_b32 s3, s{S_CT}, 6
    v_add_u32 v{EF}, s3, v14
    v_cvt_f32_u32 v{EF}, v{EF}
    v_lshrrev_b32 v15, 4, v1
    v_lshlrev_b32 v{DF}, 2, v15
    v_cvt_f32_u32 v{DF}, v{DF}
    s_mov_b32 s3, 0x41800000
    v_add_f32 v{EF+1}, s3, v{EF}
    v_add_f32 v{EF+2}, s3, v{EF+1}
    v_add_f32 v{EF+3}, s3, v{EF+2}
    v_add_f32 v{DF+1}, 1.0, v{DF}
    v_add_f32 v{DF+2}, 2.0, v{DF}
    v_add_f32 v{DF+3}, 2.0, v{DF+1}
    v_add_f32 v{DF+4}, s3, v{DF}
    v_add_f32 v{DF+5}, s3, v{DF+1}
    v_add_f32 v{DF+6}, s3, v{DF+2}
    v_add_f32 v{DF+7}, s3, v{DF+3}
    s_mov_b32 s3, {0x3b124925}
    v_mul_f32 v{EF}, s3, v{EF}
    v_mul_f32 v{EF+1}, s3, v{EF+1}
    v_mul_f32 v{EF+2}, s3, v{EF+2}
    v_mul_f32 v{EF+3}, s3, v{EF+3}
    s_bitcmp1_b32 s{S_W}, 1
    s_cselect_b32 s3, 0x3e800000, 0
    v_mov_b32 v{EF+4}, s3
    v_mov_b32 v{EF+5}, 0x42000000
    """)
    gen_ops = []
    CA_, CB_, KK = 64, 72, 80
    for eb in range(4):
        sel = "op_sel:[0,1,0] op_sel_hi:[1,1,0]" if eb & 1 else "op_sel_hi:[1,0,0]"
        gen_ops.append(f"v_mul_f32 v{KK}, v{EF+5}, v{EF+eb}")
        gen_ops += [f"v_pk_fma_f32 {v(CA_+2*i,2)}, {v(DF+2*i,2)}, {v(EF+(eb&2),2)}, {v(EF+4,2)} {sel}" for i in range(4)]
        gen_ops += [f"v_pk_add_f32 {v(CB_+2*i,2)}, {v(CA_+2*i,2)}, {v(KK,2)} op_sel_hi:[1,0]" for i in range(4)]
        gen_ops.append(f"v_cos_f32 v{KK}, v{KK}")
        gen_ops += [f"v_cos_f32 v{CA_+i}, v{CA_+i}" for i in range(16)]
        gen_ops.append(f"v_add_f32 v{KK}, v{KK}, v{KK}")
        for u in range(8):
            cur = (CA_, CB_)[u & 1]
            if u >= 2:
                gen_ops += [f"v_pk_fma_f32 {v(cur+2*i,2)}, {v((CB_, CA_)[u & 1]+2*i,2)}, {v(KK,2)}, {v(cur+2*i,2)} op_sel_hi:[1,0,1] neg_lo:[0,0,1] neg_hi:[0,0,1]" for i in range(4)]
            gen_ops += [f"v_cvt_pk_bf16_f32 v{WF+16*u+4*eb+i}, v{cur+2*i}, v{cur+2*i+1}" for i in range(4)]

    def wgen(n):
        for x in gen_ops[:16 * n]:
            A(x)
        del gen_ops[:16 * n]
    S_VF = 59
    A(f"""
    s_lshl_b32 s3, s{S_RB}, 6
    s_add_u32 s3, s3, s{S_JX}
    s_and_b32 s27, s{S_W}, 1
    s_lshl_b32 s27, s27, 5
    s_add_u32 s27, s27, s3
    v_lshl_add_u32 v{RSD+1}, v14, 1, s27
    s_bitcmp1_b32 s{S_W}, 1
    s_cselect_b32 s3, -1, 1
    s_cselect_b32 s27, 2048, 0
    v_mul_i32_i24 v{RSD+1}, s3, v{RSD+1}
    v_add_u32 v{RSD+1}, s27, v{RSD+1}
    v_lshrrev_b32 v{RSD}, 11, v{RSD+1}
    v_lshlrev_b32 v{RSD}, 10, v{RSD}
    v_sub_u32 v{RSD+1}, v{RSD+1}, v{RSD}
    v_lshlrev_b32 v{RSD+1}, 2, v{RSD+1}
    v_add_u32 v{RSD+1}, {WS_RSTD}, v{RSD+1}
    s_lshl_b32 s3, s{S_T}, 1
    s_and_b32 s27, s{S_W}, 1
    s_add_u32 s3, s3, s27
    s_lshl_b32 s{S_FT}, s3, 14
    s_lshr_b32 s27, s{S_GH}, 1
    s_lshl_b32 s3, s27, 13
    s_add_u32 s{S_FT}, s{S_FT}, s3
    s_add_u32 s{S_FT}, s{S_FT}, {WS_VV}
    s_cmp_eq_u32 s{S_GH}, 0
    s_cselect_b32 s{S_MW}, {WS_VV + 64*16384}, s{S_FT}
    s_lshl_b32 s3, s{S_GH}, 12
    s_add_u32 s27, s3, {YS}
    v_add_u32 v17, s27, v{VL}
    s_lshl_b32 s3, s{S_GH}, 6
    s_add_u32 s3, s3, {YS + 20480}
    v_lshl_add_u32 v18, v14, 2, s3
    """)
    A(f"""
    v_and_b32 v{VPOLL+1}, 1, v1
    v_lshlrev_b32 v{VPOLL+1}, 2, v{VPOLL+1}
    """)
    wgen(opt.get("g1", 8))
    A.wait(vm=0, lg=0)
    burst([w_dma(p) for p in range(WN, 14)])
    A("s_barrier")
    A.stamp(7)
    wgen(32)
    A.wait(vm=0)
    A("s_barrier")
    if not P2: A.stamp(1)
    if opt.get("nov"):
        A("s_branch L_vdone")
    if opt.get("m2n", -1) >= 0:
        A("s_barrier")
    A.poll(VPOLL + 1, sWS, f"s{S_VF}", "eq", 64, S_TAG, vtmp=VPOLL, sleep=opt.get("vps", 8))
    A.stamp(9)
    A.reset()
    A.vmem(f"buffer_load_dword v{RSD}, v{RSD+1}, s[{sWS}:{sWS+3}], 0 offen {HLD}", "rstd")
    for u in range(8):
        if u % 4 == 0:
            A(f"s_add_u32 s27, s{S_FT}, {u*1024}")
        A.vmem(f"buffer_load_dwordx4 {v(VF+4*u,4)}, v{VL}, s[{sWS}:{sWS+3}], s27 offen offset:{(u%4)*1024} {HLD}", ("v", u))

    A(f"s_or_b32 s3, s{S_T}, s{S_GH}\ns_cbranch_scc0 L_vspecial")

    def vpart(special):
        if special:
            if opt.get("sp", 0):
                A(f"s_setprio {opt['sp']}")
            for u in range(8):
                if u % 4 == 0:
                    A(f"s_add_u32 s27, s{S_MW}, {u*1024}")
                A.vmem(f"buffer_load_dwordx4 {v(V2+4*u,4)}, v{VL}, s[{sWS}:{sWS+3}], s27 offen offset:{(u%4)*1024} {HLD}", ("v2", u))
        for u in range(8):
            A.wait(vm=("v2" if special else "v", u))
            for eb in range(4):
                A.mfma(YA + eb * 4, WF + 16 * u + 4 * eb, VF + 4 * u, "0" if u == 0 else None)
                if special:
                    A.mfma(YB + eb * 4, WF + 16 * u + 4 * eb, V2 + 4 * u, "0" if u == 0 else None)
        A(f"ds_write_b32 v18, v{RSD}")
        A(f"s_nop {opt.get('yn', 6)}")
        for eb in range(4):
            A(f"ds_write_b128 v17, {v(YA+4*eb,4)} offset:{eb*1024}")
        if special:
            A("s_mov_b32 s26, 0x00010001\ns_mov_b32 s27, 0x00010001")
            for r in range(16):
                A(f"v_cndmask_b32 v{YB+r}, v{YA+r}, v{YB+r}, s[26:27]")
            for eb in range(4):
                A(f"ds_write_b128 v17, {v(YB+4*eb,4)} offset:{16384 + eb*1024}")
    sv = (list(A.vm), A.vm_done, list(A.lg), A.lg_done)
    vpart(False)
    A("s_branch L_vdone")
    A("L_vspecial:")
    A.vm, A.vm_done, A.lg, A.lg_done = sv
    vpart(True)
    A("L_vdone:")
    A("s_waitcnt lgkmcnt(0)")
    A.stamp(10)
    A("s_barrier")
    A.dump_stamps(11)
    A("s_endpgm")

    A.reset()
    A.c("@@CUT0")
    S_Q, S_VAR, S_M, S_N, S_P = 63, 96, 97, 98, 99
    A(f"""
    s_sub_u32 s3, s{S_J}, 28
    s_lshl_b32 s{S_Q}, s{S_XCD}, 2
    s_add_u32 s{S_Q}, s{S_Q}, s3
    s_lshr_b32 s{S_VAR}, s{S_XCD}, 1
    s_mov_b32 s{S_M}, s3
    s_and_b32 s{S_N}, s{S_XCD}, 1
    s_and_b32 s{S_P}, s{S_VAR}, 1
    """)
    def wtouch(ptr):
        A.srd(sW1, ptr, 448 * 3584)
        A(f"v_lshlrev_b32 v210, 7, v1\ns_lshl_b32 s3, s{S_Q}, 13\ns_add_u32 s27, s{S_W}, {opt.get('t1s', 3)}\ns_lshl_b32 s27, s27, 18\ns_add_u32 s3, s3, s27\nv_add_u32 v210, s3, v210")
        A.vmem(f"buffer_load_dword v211, v210, s[{sW1}:{sW1+3}], 0 offen")

    RAW, EO, TF, TM, ST = 32, 64, 128, 136, 144
    A(f"""
    s_lshl_b32 s3, s{S_Q}, 4
    s_lshl_b32 s27, s{S_W}, 1
    s_add_u32 s3, s3, s27
    v_lshrrev_b32 v2, 5, v1
    v_add_u32 v4, s3, v2
    v_and_b32 v3, 31, v1
    v_sub_u32 v5, 2048, v4
    v_sub_u32 v6, 1024, v4
    v_add_u32 v7, 1024, v4
    v_cmp_eq_u32 s[100:101], 0, v4
    v_mov_b32 v8, 512
    v_mov_b32 v9, 1536
    v_mov_b32 v12, {OOB}
    v_cndmask_b32 v5, v5, v8, s[100:101]
    v_cndmask_b32 v7, v7, v9, s[100:101]
    v_cmp_gt_u32 vcc, 28, v3
    v_lshlrev_b32 v8, 4, v3
    v_sub_u32 v9, 880, v8
    v_cndmask_b32 v8, v12, v8, vcc
    v_cndmask_b32 v9, v12, v9, vcc
    s_waitcnt lgkmcnt(0)
    """)
    A.srd(sX, 4, 2048 * 896)
    if opt.get("t1", 1) == 2:
        wtouch(16)
    def x_loads(track):
        for rho in range(4):
            A(f"v_mul_u32_u24 v222, 896, v{4+rho}\nv_add_u32 v220, v222, v8\nv_add_u32 v221, v222, v9")
            for fm in range(2):
                t_ = f"buffer_load_dwordx4 {v(RAW + rho*8 + 4*fm, 4)}, v{220+fm}, s[{sX}:{sX+3}], 0 offen"
                A.vmem(t_, ("x", rho)) if track else A(t_)
    LX = opt.get("lx", 1)
    if LX:
        A(f"s_cmp_ge_u32 s{S_W}, 4\ns_cbranch_scc1 L_dft")
    x_loads(True)
    A("s_branch L_dft")
    A.c("@@CUT1")
    A("L_dft:")
    A.srd(sWS, 24, WS_SIZE + (0x40000 if stamps else 0))
    if opt.get("t1", 1) == 1:
        wtouch(16)
    A(f"v_mov_b32 v190, {WS_EPOCH}")
    A.vmem(f"buffer_load_dword v191, v190, s[{sWS}:{sWS+3}], 0 offen sc1", "ep")
    A(f"s_cmp_lg_u32 s{S_W}, 7\ns_cbranch_scc1 L_dnotouch")
    if opt.get("xt", 0):
        start_touch(A, opt, "x", 200)
    code_touch(A, 208)
    A("L_dnotouch:")

    S_R = 14
    GA, GT = 160, 168
    A(f"""
    s_lshl_b32 s3, s{S_M}, 7
    s_lshl_b32 s27, s{S_W}, 4
    s_add_u32 s3, s3, s27
    s_lshl_b32 s3, s3, 1
    s_add_u32 s3, s3, s{S_P}
    v_and_b32 v13, 15, v1
    v_lshl_add_u32 v13, v13, 1, s3
    v_cvt_f32_u32 v13, v13
    v_mul_f32 v13, 0x3a000000, v13
    v_lshrrev_b32 v14, 4, v1
    v_lshlrev_b32 v14, 3, v14
    v_cvt_f32_u32 v14, v14
    s_cmp_ge_u32 s{S_VAR}, 2
    s_cselect_b32 s3, 0x3e800000, 0
    v_fma_f32 v{GA}, v13, v14, s3
    v_mul_f32 v14, 0x42000000, v13
    v_lshlrev_b32 v16, 4, v1
    s_lshl_b32 s3, s{S_W}, 10
    v_add_u32 v16, s3, v16
    v_add_u32 v17, 0x10000, v16
    """)
    for i in range(1, 8):
        A(f"v_add_f32 v{GA+i}, v13, v{GA+i-1}")
    for i in range(8):
        A(f"v_add_f32 v{GT+i}, v14, v{GA+i}")
    A("v_cos_f32 v14, v14")
    for i in range(16):
        A(f"v_cos_f32 v{GA+i}, v{GA+i}")
    A("v_add_f32 v14, v14, v14")
    A("v_mov_b32 v184, v14\nv_mov_b32 v186, v16\nv_mov_b32 v187, v17")
    cg = [0]

    def cgen(n):
        for sb in range(cg[0], min(16, cg[0] + n)):
            cur, oth = (GA, GT) if sb % 2 == 0 else (GT, GA)
            if sb >= 2:
                for i in range(4):
                    A(f"v_pk_fma_f32 {v(cur+2*i,2)}, {v(oth+2*i,2)}, v[184:185], {v(cur+2*i,2)} op_sel_hi:[1,0,1] neg_lo:[0,0,1] neg_hi:[0,0,1]")
            d = GT + 8 + 4 * (sb & 1)
            for i in range(4):
                A(f"v_cvt_pk_bf16_f32 v{d+i}, v{cur+2*i}, v{cur+2*i+1}")
            A.lds(f"ds_write_b128 v{186 + sb//8}, {v(d,4)} offset:{(sb%8)*8192}")
        cg[0] = min(16, cg[0] + n)
    cgen(opt.get("c0", 2))
    if LX:
        A(f"s_cmp_lt_u32 s{S_W}, 4\ns_cbranch_scc1 L_xok")
        x_loads(False)
        A("s_waitcnt vmcnt(0)")
        A("L_xok:")
    A.stamp(1)
    A(f"""
    v_cmp_eq_u32 s[26:27], 0, v3
    v_cndmask_b32 v21, 0, 2.0, vcc
    v_cmp_eq_u32 vcc, 28, v3
    v_mov_b32 v24, 0
    v_cndmask_b32 v20, v21, 1.0, s[26:27]
    v_mov_b32 v25, 0
    v_cndmask_b32 v20, v20, 1.0, vcc
    v_mov_b32 v26, 0
    v_mov_b32 v27, 0
    """)
    E = lambda rho: EO + rho * 16
    O = lambda rho: EO + rho * 16 + 8
    for rho in range(4):
        A.wait(vm=("x", rho))
        if rho == opt.get("t2", 9):
            wtouch(18)
        F = RAW + rho * 8
        M = F + 4
        A(f"v_mov_b32_dpp v{24+rho}, v{M} row_bcast:15 row_mask:0xa bank_mask:0xf")
        for i in range(4):
            A(f"v_lshlrev_b32 v{TF+2*i}, 16, v{F+i}\nv_and_b32 v{TF+2*i+1}, 0xffff0000, v{F+i}")
        A(f"v_mov_b32_dpp v{24+rho}, v{M} row_shr:1 row_mask:0xf bank_mask:0xf")
        for j in range(1, 8):
            k = 8 - j
            if k & 1:
                A(f"v_and_b32 v{TM+j}, 0xffff0000, v{M + k//2}")
            else:
                A(f"v_lshlrev_b32 v{TM+j}, 16, v{M + k//2}")
        A(f"v_lshlrev_b32 v{TM}, 16, v{24+rho}")
        for i in range(4):
            A(f"v_pk_add_f32 {v(E(rho)+2*i,2)}, {v(TF+2*i,2)}, {v(TM+2*i,2)}")
            A(f"v_pk_add_f32 {v(O(rho)+2*i,2)}, {v(TF+2*i,2)}, {v(TM+2*i,2)} neg_lo:[0,1] neg_hi:[0,1]")
        sm, sq = ST + 4 * rho, ST + 4 * rho + 2
        for i in range(4):
            if i == 0:
                A(f"v_pk_add_f32 {v(sm,2)}, {v(E(rho),2)}, {v(E(rho)+2,2)}")
                A(f"v_pk_mul_f32 {v(sq,2)}, {v(E(rho),2)}, {v(E(rho),2)}")
            else:
                if i > 1:
                    A(f"v_pk_add_f32 {v(sm,2)}, {v(sm,2)}, {v(E(rho)+2*i,2)}")
                A(f"v_pk_fma_f32 {v(sq,2)}, {v(E(rho)+2*i,2)}, {v(E(rho)+2*i,2)}, {v(sq,2)}")
            A(f"v_pk_fma_f32 {v(sq,2)}, {v(O(rho)+2*i,2)}, {v(O(rho)+2*i,2)}, {v(sq,2)}")
    A.stamp(2)
    for rho in range(4):
        A(f"v_add_f32 v{ST+4*rho}, v{ST+4*rho}, v{ST+4*rho+1}\nv_add_f32 v{ST+4*rho+2}, v{ST+4*rho+2}, v{ST+4*rho+3}")
    for i in range(4):
        A(f"v_permlane16_swap_b32 v{ST+2*i}, v{ST+8+2*i}")
    for i in range(4):
        A(f"v_add_f32 v{ST+2*i}, v{ST+2*i}, v{ST+8+2*i}")
    for sh in (8, 4, 2, 1):
        for i in range(4):
            r = ST + 2 * i
            A(f"v_add_f32_dpp v{r}, v{r}, v{r} row_ror:{sh} row_mask:0xf bank_mask:0xf")
    R_, C_ = 24, 28
    A(f"s_mov_b32 s3, {0x3b124925}\ns_mov_b32 s26, {0x3a924925}\ns_mov_b32 s27, {0x3727c5ac}")
    seq_ = [
        lambda b: f"v_mul_f32 v{b}, s3, v{b}\nv_mul_f32 v{b+2}, s26, v{b+2}",
        lambda b: f"v_fma_f32 v{b+2}, -v{b}, v{b}, v{b+2}",
        lambda b: f"v_max_f32 v{b+2}, 0, v{b+2}",
        lambda b: f"v_cvt_pk_bf16_f32 v{b+1}, v{b}, v{b+2}",
        lambda b: f"v_lshlrev_b32 v{b}, 16, v{b+1}\nv_and_b32 v{b+2}, 0xffff0000, v{b+1}",
        lambda b: f"v_add_f32 v{b+2}, s27, v{b+2}",
        lambda b: f"v_cvt_pk_bf16_f32 v{b+2}, v{b+2}, v{b+2}",
        lambda b: f"v_and_b32 v{b+2}, 0xffff0000, v{b+2}",
        lambda b: f"v_sqrt_f32 v{b+2}, v{b+2}",
        lambda b: f"s_nop 0\nv_cvt_pk_bf16_f32 v{b+2}, v{b+2}, v{b+2}",
        lambda b: f"v_and_b32 v{b+2}, 0xffff0000, v{b+2}",
    ]
    for f in seq_:
        for rho in range(2):
            A(f(ST + 4 * rho))
    for rho in range(2):
        A(f"v_rcp_f32 v{R_+rho}, v{ST+4*rho+2}")
    A("s_nop 0")
    for rho in range(2):
        A(f"v_mul_f32 v{C_+rho}, v{ST+4*rho}, v{R_+rho}")
    for r in (R_, R_ + 1, C_, C_ + 1):
        A(f"v_mov_b32 v{r+2}, v{r}")
    A("s_nop 0")
    for r in (R_, R_ + 1, C_, C_ + 1):
        A(f"v_permlane16_swap_b32 v{r}, v{r+2}")
    A(f"""
    v_cmp_eq_u32 vcc, 1, v3
    v_cmp_eq_u32 s[26:27], 2, v3
    v_mov_b32 v8, v4
    v_mov_b32 v9, v{R_}
    v_cndmask_b32 v8, v8, v5, vcc
    v_cndmask_b32 v9, v9, v{R_+1}, vcc
    v_cmp_eq_u32 vcc, 3, v3
    v_cndmask_b32 v8, v8, v6, s[26:27]
    v_cndmask_b32 v9, v9, v{R_+2}, s[26:27]
    v_cndmask_b32 v8, v8, v7, vcc
    v_cndmask_b32 v9, v9, v{R_+3}, vcc
    v_cmp_gt_u32 vcc, 4, v3
    v_lshlrev_b32 v8, 2, v8
    v_add_u32 v8, {WS_RSTD}, v8
    v_cndmask_b32 v8, v12, v8, vcc
    """)
    if opt.get("rs", 0):
        A("v_mov_b32 v188, v8\nv_mov_b32 v189, v9")
    else:
        A.vmem(f"buffer_store_dword v9, v8, s[{sWS}:{sWS+3}], 0 offen sc1")
    A(f"s_or_b32 s3, s{S_Q}, s{S_W}\ns_cmp_lg_u32 s3, 0\ns_cbranch_scc1 L_no512")
    A(f"v_add_f32 v10, v{C_+1}, v{C_+3}")
    for j in range(8):
        A(f"v_mul_f32 v{TF+j}, v10, v{20+(1 if j else 0)}")
        A(f"v_fma_f32 v{TF+j}, v{E(1)+j}, v{R_+1}, -v{TF+j}")
        A(f"v_fma_f32 v{TF+j}, v{E(3)+j}, v{R_+3}, v{TF+j}")
        A(f"v_mul_f32 v{TM+j}, v{O(1)+j}, v{R_+1}")
        A(f"v_fma_f32 v{TM+j}, -v{O(3)+j}, v{R_+3}, v{TM+j}")
    for i in range(4):
        A(f"v_cvt_pk_bf16_f32 v{RAW+i}, v{TF+2*i}, v{TF+2*i+1}")
        A(f"v_cvt_pk_bf16_f32 v{RAW+4+i}, v{TM+2*i}, v{TM+2*i+1}")
    A(f"v_lshlrev_b32 v10, 4, v3\nv_add_u32 v10, {WS_X512}, v10\nv_cndmask_b32 v10, v12, v10, s[100:101]")
    A(f"buffer_store_dwordx4 {v(RAW,4)}, v10, s[{sWS}:{sWS+3}], 0 offen sc1")
    A(f"buffer_store_dwordx4 {v(RAW+4,4)}, v10, s[{sWS}:{sWS+3}], 0 offen offset:{3*512} sc1")
    A("s_nop 1")
    A("L_no512:")
    for r in (R_ + 1, R_ + 3, C_ + 1, C_ + 3):
        A(f"v_cndmask_b32 v{r}, v{r}, 0, s[100:101]")
    A(f"v_add_f32 v{C_}, v{C_}, v{C_+1}\nv_add_f32 v{C_+2}, v{C_+2}, v{C_+3}")
    OUT = lambda var: RAW + var * 8
    bl = "op_sel_hi:[1,0,1]"
    bh = "op_sel:[0,1,0] op_sel_hi:[1,1,1]"
    A(f"v_pk_mul_f32 v[8:9], v[20:21], {v(C_,2)} op_sel_hi:[1,0] neg_lo:[1,0] neg_hi:[1,0]")
    A(f"v_pk_mul_f32 v[10:11], v[20:21], {v(C_+2,2)} op_sel_hi:[1,0] neg_lo:[1,0] neg_hi:[1,0]")
    for i in range(4):
        s3lo, s3hi = (0, 1) if i == 0 else (1, 1)
        a_, b_ = TF, TF + 2
        A(f"v_pk_fma_f32 {v(a_,2)}, {v(E(0)+2*i,2)}, {v(R_,2)}, v[8:9] op_sel:[0,0,{s3lo}] op_sel_hi:[1,0,{s3hi}]")
        A(f"v_pk_fma_f32 {v(b_,2)}, {v(E(2)+2*i,2)}, {v(R_+2,2)}, v[10:11] op_sel:[0,0,{s3lo}] op_sel_hi:[1,0,{s3hi}]")
        A(f"v_pk_mul_f32 {v(TM,2)}, {v(O(0)+2*i,2)}, {v(R_,2)} op_sel_hi:[1,0]")
        A(f"v_pk_mul_f32 {v(TM+2,2)}, {v(O(3)+2*i,2)}, {v(R_+2,2)} op_sel:[0,1] op_sel_hi:[1,1]")
        A(f"v_pk_fma_f32 {v(a_,2)}, {v(E(1)+2*i,2)}, {v(R_,2)}, {v(a_,2)} {bh}")
        A(f"v_pk_fma_f32 {v(b_,2)}, {v(E(3)+2*i,2)}, {v(R_+2,2)}, {v(b_,2)} {bh}")
        A(f"v_pk_fma_f32 {v(TM,2)}, {v(O(1)+2*i,2)}, {v(R_,2)}, {v(TM,2)} {bh} neg_lo:[1,0,0] neg_hi:[1,0,0]")
        A(f"v_pk_fma_f32 {v(TM+2,2)}, {v(O(2)+2*i,2)}, {v(R_+2,2)}, {v(TM+2,2)} {bl} neg_lo:[1,0,0] neg_hi:[1,0,0]")
        A(f"v_pk_add_f32 {v(OUT(0)+2*i,2)}, {v(a_,2)}, {v(b_,2)}")
        A(f"v_pk_add_f32 {v(OUT(1)+2*i,2)}, {v(a_,2)}, {v(b_,2)} neg_lo:[0,1] neg_hi:[0,1]")
        A(f"v_pk_add_f32 {v(OUT(2)+2*i,2)}, {v(TM,2)}, {v(TM+2,2)}")
        A(f"v_pk_add_f32 {v(OUT(3)+2*i,2)}, {v(TM,2)}, {v(TM+2,2)} neg_lo:[0,1] neg_hi:[0,1]")
    PKD = EO
    FS = 131072
    A(f"""
    v_lshlrev_b32 v8, 13, v2
    v_lshrrev_b32 v9, 1, v3
    v_lshl_add_u32 v8, v9, 9, v8
    v_and_b32 v10, 7, v9
    v_lshl_add_u32 v8, v10, 4, v8
    v_and_b32 v10, 1, v3
    v_lshl_add_u32 v8, v10, 7, v8
    v_and_b32 v9, 8, v9
    v_or_b32 v8, v8, v9
    s_lshr_b32 s3, s{S_W}, 2
    s_lshl_b32 s3, s3, 8
    s_and_b32 s27, s{S_W}, 3
    s_lshl_b32 s27, s27, 2
    s_add_u32 s3, s3, s27
    s_add_u32 s3, s3, {FS}
    v_xor_b32 v8, s3, v8
    """)
    for j in range(1, 8):
        A(f"v_xor_b32 v{8+j}, {j<<4}, v8")
    for pr in range(2):
        for j in range(8):
            A(f"v_permlane32_swap_b32 v{OUT(2*pr)+j}, v{OUT(2*pr+1)+j}")
        for j in range(8):
            A(f"v_cvt_pk_bf16_f32 v{PKD+8*pr+j}, v{OUT(2*pr)+j}, v{OUT(2*pr+1)+j}")
        for j in range(8):
            A.lds(f"ds_write_b32 v{8+j}, v{PKD+8*pr+j} offset:{pr*16384}")
    A(f"""
    v_xor_b32 v28, v3, v2
    v_lshlrev_b32 v28, 4, v28
    v_lshl_add_u32 v28, v2, 9, v28
    s_lshl_b32 s3, s{S_W}, 12
    s_and_b32 s27, s{S_W}, 1
    s_lshl_b32 s27, s27, 3
    s_add_u32 s3, s3, s27
    s_add_u32 s3, s3, {FS}
    v_add_u32 v28, s3, v28
    v_lshlrev_b32 v27, 4, v3
    v_lshl_add_u32 v27, v2, 14, v27
    s_lshr_b32 s3, s{S_Q}, 1
    s_lshl_b32 s3, s3, 10
    s_and_b32 s27, s{S_Q}, 1
    s_lshl_b32 s27, s27, 9
    s_add_u32 s3, s3, s27
    s_lshl_b32 s27, s{S_W}, 17
    s_add_u32 s3, s3, s27
    s_add_u32 s3, s3, {WS_XF}
    """)
    for k in range(1, 8):
        A(f"v_xor_b32 v{RAW+16+k}, {(k>>1)*32 + (k&1)*8}, v28")
    A.wait(lg=0)
    A("s_barrier")
    if opt.get("rs", 0):
        A.vmem(f"buffer_store_dword v189, v188, s[{sWS}:{sWS+3}], 0 offen sc1")
    for i in range(4):
        for hh in range(2):
            k = 2 * i + hh
            A.lds(f"ds_read_b64 {v(RAW+4*i+2*hh,2)}, v{RAW+16+k if k else 28} offset:{i*1024}", ("rb", i))
    for i in range(4):
        A.wait(lg=("rb", i))
        A.vmem(f"buffer_store_dwordx4 {v(RAW+4*i,4)}, v27, s[{sWS}:{sWS+3}], s3 offen sc1", "xst")
        A(f"s_add_u32 s3, s3, 32768")
    A.stamp(3)
    cgen(opt.get("c1", 4))
    cg_left = cg[0]
    A(f"s_cmp_ge_u32 s{S_W}, 4\ns_cbranch_scc1 L_dft_helper")
    dstate = (list(A.vm), A.vm_done)
    SACC, SEX, CF, XF = 32, 96, [104, 136], 168
    KALT, B512, X5 = 4, 8, [12, 16]
    CA = 22
    S_XA = 15
    A(f"""
    v_lshlrev_b32 v{CA}, 4, v1
    v_and_b32 v26, 1, v1
    s_cmp_ge_u32 s{S_VAR}, 2
    s_cselect_b32 s100, 1, 0
    s_cselect_b32 s101, 0x80008000, 0
    v_xor_b32 v26, s100, v26
    v_lshlrev_b32 v26, 15, v26
    v_or_b32 v{B512}, 0x3f80, v26
    s_lshl_b32 s26, s{S_N}, 3
    s_lshl_b32 s27, s{S_W}, 1
    s_add_u32 s26, s26, s27
    s_lshl_b32 s3, s{S_VAR}, 4
    s_add_u32 s3, s3, s26
    s_lshl_b32 s{S_XA}, s3, 14
    s_add_u32 s{S_XA}, s{S_XA}, {WS_XF}
    s_add_u32 s{S_R}, s{S_M}, 1
    s_and_b32 s{S_R}, s{S_R}, 3
    s_lshl_b32 s3, s{S_R}, 15
    v_add_u32 v{CA}, s3, v{CA}
    s_add_u32 s3, s3, 32768
    s_and_b32 s3, s3, 0x1ffff
    v_lshl_add_u32 v{CA+1}, v1, 4, s3
    v_xor_b32 v{CA+2}, 0x10000, v{CA}
    v_xor_b32 v{CA+3}, 0x10000, v{CA+1}
    s_lshl_b32 s26, s26, 5
    s_lshl_b32 s27, s{S_VAR}, 9
    s_add_u32 s26, s26, s27
    s_add_u32 s26, s26, {WS_X512}
    v_lshl_add_u32 v27, v1, 1, s26
    s_add_u32 s3, s{S_VAR}, 1
    s_and_b32 s3, s3, 2
    s_cmp_eq_u32 s3, 0
    s_cselect_b32 s3, 16, 0
    v_cmp_gt_u32 vcc, s3, v1
    v_mov_b32 v26, {OOB}
    v_lshlrev_b32 v28, 4, v1
    v_cndmask_b32 v27, v26, v27, vcc
    v_add_u32 v29, 16384, v28
    s_or_b32 s3, s{S_M}, s{S_VAR}
    s_cmp_eq_u32 s3, 0
    s_cselect_b32 vcc_lo, 1, 0
    s_mov_b32 vcc_hi, 0
    """)
    for i in range(4):
        A(f"v_mov_b32 v{KALT+i}, 0xbf803f80")
    for i in range(8):
        A(f"v_mov_b32 v{SEX+i}, 0")
    A.wait(vm="xst")
    A("s_barrier")
    A.stamp(4)
    if opt.get("t2p"):
        wtouch(18)
    cgen(16)
    A.wait(lg=0)
    for i in range(1, 4):
        A(f"v_mov_b32 v{B512+i}, 0\nv_mov_b32 v{X5[0]+i}, 0\nv_mov_b32 v{X5[1]+i}, 0")

    def c_reads(sb):
        return [lambda tb=tb: A.lds(f"ds_read_b128 {v(CF[sb&1]+4*tb,4)}, v{CA + sb//4} offset:{(sb%4)*8192 + tb*1024}", ("cf", sb))
                for tb in range(8)]

    def x_th(sb):
        r = []
        for a_ in range(2):
            def f(a_=a_):
                if sb % 4 == 0 and a_ == 0:
                    A(f"s_add_u32 s94, s{S_R}, {sb // 4}\ns_and_b32 s94, s94, 3\ns_lshl_b32 s94, s94, 12\ns_add_u32 s94, s94, s{S_XA}")
                A.vmem(f"buffer_load_dwordx4 {v(XF + (sb % 11)*8 + 4*a_, 4)}, v{28+a_}, s[{sWS}:{sWS+3}], s94 offen offset:{(sb%4)*1024} {HLD}", ("xf", sb))
            r.append(f)
        return r

    A("s_barrier")
    A.stamp(5)
    XD = opt.get("xd", 4)
    for sb in range(XD):
        for f in x_th(sb):
            f()
    for f in c_reads(0):
        f()

    def s2_loop(special):
        xnext = XD
        for sb in range(16):
            fl = list(enumerate(c_reads(sb + 1))) if sb + 1 < 16 else []
            nx = [k for k in (xnext, xnext + 1) if k <= min(15, sb + opt.get("xla", 6))]
            if len(nx) == 2 and nx[1] % 4 == 0:
                nx = nx[:1]
            if nx and nx[0] % 4 == 0 and opt.get("xq", 1):
                A("s_barrier")
            xnext += len(nx)
            k0 = 0
            for k in nx:
                for f in x_th(k):
                    fl.append((8 + 2 * k0, f)); k0 += 1
            if sb == 13:
                fl.append((13, lambda: A.vmem(f"buffer_load_ushort v{X5[0]}, v27, s[{sWS}:{sWS+3}], 0 offen {HLD}", "x5")))
                fl.append((15, lambda: A.vmem(f"buffer_load_ushort v{X5[1]}, v27, s[{sWS}:{sWS+3}], 0 offen offset:32 {HLD}", "x5")))
            A.wait(vm=("xf", sb), lg=("cf", sb))
            z = "0" if sb == 0 else None
            xa = XF + (sb % 11) * 8
            A.weave([lambda a_=a_, tb=tb: A.mfma(SACC + (a_ * 8 + tb) * 4, xa + 4 * a_, CF[sb & 1] + 4 * tb, z)
                     for a_ in range(2) for tb in range(8)] +
                    ([lambda a_=a_: A.mfma(SEX + 4 * a_, xa + 4 * a_, KALT) for a_ in range(2)] if special else []), fl)
        A.wait(vm="x5")
        if special:
            for a_ in range(2):
                A.mfma(SEX + 4 * a_, X5[a_], KALT)
    s2state = (list(A.vm), A.vm_done, list(A.lg), A.lg_done)
    A("s_cbranch_vccnz L_s2x")
    s2_loop(False)
    A("L_s2done:")
    A(f"""
    s_lshl_b32 s3, s{S_M}, 3
    s_add_u32 s3, s3, s{S_P}
    s_lshl_b32 s3, s3, 5
    s_lshl_b32 s27, s100, 3
    s_lshl_b32 s26, s{S_N}, 2
    s_add_u32 s27, s27, s26
    s_add_u32 s27, s27, s{S_W}
    s_add_u32 s3, s3, s27
    s_lshl_b32 s3, s3, 10
    s_add_u32 s3, s3, {WS_VV}
    s_lshl_b32 s27, s27, 10
    s_add_u32 s{S_XA}, s27, {WS_VV + 64*16384}
    """)
    D0 = CF[0]

    def vout(tb):
        d = D0 + 4 * tb
        for a_ in range(2):
            s0 = SACC + (a_ * 8 + tb) * 4
            A(f"v_cvt_pk_bf16_f32 v{d+2*a_}, v{s0}, v{s0+1}\nv_cvt_pk_bf16_f32 v{d+2*a_+1}, v{s0+2}, v{s0+3}")
        for i in range(4):
            A(f"v_xor_b32 v{d+i}, s101, v{d+i}")
        A(f"s_add_u32 s27, s3, {((tb >> 1) * 4 + (tb & 1)) * 16384}")
        A.vmem(f"buffer_store_dwordx4 {v(d,4)}, v28, s[{sWS}:{sWS+3}], s27 offen sc1")
    for tb in range(8):
        for a_ in range(2):
            A.mfma(SACC + (a_ * 8 + tb) * 4, X5[a_], B512)
        if tb == 1:
            A("s_nop 5")
        if tb >= 1:
            vout(tb - 1)
    A.stamp(6)
    vout(7)
    A("s_cbranch_vccz L_nospecial")
    A("s_mov_b32 s26, 0x00010001\ns_mov_b32 s27, 0x00010001")
    for i in range(4):
        A(f"v_cvt_pk_bf16_f32 v{XF+i}, v{SEX+2*i}, v{SEX+2*i+1}")
    for i in range(4):
        A(f"v_cndmask_b32 v{XF+i}, v{D0+i}, v{XF+i}, s[26:27]")
    A(f"buffer_store_dwordx4 {v(XF,4)}, v28, s[{sWS}:{sWS+3}], s{S_XA} offen sc1")
    A("L_nospecial:")
    A.wait(vm=0)
    A("s_barrier")
    A.stamp(7)
    A.dump_stamps(8)
    A("s_endpgm")
    A("L_s2x:")
    A.vm, A.vm_done, A.lg, A.lg_done = s2state
    s2_loop(True)
    A("s_branch L_s2done")

    A.reset()
    A("L_dft_helper:")
    A.vm, A.vm_done = dstate
    S_DT = 94
    A.wait(vm="xst")
    A(f"""
    v_readfirstlane_b32 s{S_DT}, v191
    v_lshlrev_b32 v4, 7, v1
    v_lshlrev_b32 v6, 2, v1
    s_lshl_b32 s3, s{S_Q}, 2
    s_add_u32 s3, s3, {WS_XFLAG}
    s_mul_i32 s{S_DT}, s{S_DT}, {TAGMUL}
    s_add_u32 s{S_DT}, s{S_DT}, {TAGADD}
    v_mov_b32 v5, s{S_DT}
    s_barrier
    s_cmp_eq_u32 s{S_W}, 4
    s_cbranch_scc0 L_nox
    s_setprio 3
    s_mov_b64 exec, 0xff
    buffer_store_dword v5, v4, s[{sWS}:{sWS+3}], s3 offen sc1
    s_mov_b64 exec, -1
    L_nox:
    """)
    A.stamp(4)
    if opt.get("t2p"):
        wtouch(18)
    cg[0] = cg_left
    cgen(16)
    A(f"""
    s_waitcnt lgkmcnt(0)
    s_cmp_eq_u32 s{S_W}, 4
    s_cbranch_scc0 L_end
    s_lshl_b32 s3, s{S_XCD}, 7
    s_add_u32 s3, s3, {WS_XFLAG}
    """)
    if not opt.get("xq", 1):
        A.poll(6, sWS, "s3", "eq", 32, S_DT, sleep=opt.get("xps", 1))
        A("s_barrier")
    for k in range(4 if opt.get("xq", 1) else 0):
        A(f"s_add_u32 s26, s{S_M}, {k + 1}\ns_and_b32 s26, s26, 3\ns_lshl_b32 s26, s26, 5\ns_add_u32 s26, s26, s3")
        A.poll(6, sWS, "s26", "eq", 8, S_DT, sleep=opt.get("xps", 1))
        if k == 0:
            A.stamp(5)
        A("s_barrier")
    A("v_mov_b32 v8, 0")
    A(f"""
    s_lshl_b32 s3, s{S_VAR}, 2
    s_add_u32 s3, s3, s{S_M}
    s_lshl_b32 s3, s3, 5
    s_add_u32 s3, s3, s{S_N}
    s_lshl_b32 s3, s3, 2
    s_add_u32 s3, s3, {WS_VFLAG}
    s_barrier
    s_mov_b64 exec, 1
    buffer_store_dword v5, v8, s[{sWS}:{sWS+3}], s3 offen sc1
    """)
    A(f"s_cmp_lg_u32 s{S_Q}, 0\ns_cbranch_scc1 L_noepw")
    A(f"s_mov_b64 exec, -1\nv_and_b32 v9, 7, v1\nv_min_u32 v9, 6, v9\nv_lshlrev_b32 v9, 2, v9\nv_lshrrev_b32 v10, 3, v1\nv_lshl_add_u32 v9, v10, 7, v9")
    A(f"s_mov_b32 s27, 0x40000\ns_mov_b32 s3, {WS_HFLAG + 16}")
    A("L_epl:")
    for i in range(4):
        A(f"buffer_load_dword v{12+i}, v9, s[{sWS}:{sWS+3}], s3 offen offset:{i*1024} sc1")
    A("s_waitcnt vmcnt(0)")
    for i in range(4):
        A(f"v_xor_b32 v{12+i}, s{S_DT}, v{12+i}")
    A("v_or3_b32 v12, v12, v13, v14\nv_or_b32 v12, v12, v15\nv_cmp_eq_u32 vcc, 0, v12\ns_nop 1\ns_cmp_eq_u64 vcc, exec\ns_cbranch_scc1 L_epok")
    A("s_sleep 2\ns_sub_u32 s27, s27, 1\ns_cbranch_scc0 L_epl")
    A("L_epok:")
    A(f"s_mov_b32 s3, {WS_EPOCH}\ns_mov_b64 exec, 1\nbuffer_store_dword v5, v8, s[{sWS}:{sWS+3}], s3 offen sc1")
    A("L_noepw:")
    A.stamp(6)
    A.dump_stamps(8)
    A("L_end:")
    A("s_endpgm")
    A("L_code_end:")

    ix = lambda m: next(i for i, l in enumerate(A.lines) if m in l)
    c0, c1 = ix("@@CUT0"), ix("@@CUT1")
    head = A.lines[c0 + 1:c1]
    del A.lines[c0:c1 + 1]
    h = ix("@@HEAD")
    A.lines[h:h + 1] = head
    hdr = open("parallel_sum__spectral_fnet__dense_activation_relu__prompt.s.ref").read().split("; Override")[0]
    return (hdr + "; @launch grid=(256,1,1) block=(512,1,1) lds=163840\n" + DOC
            + ".amdgcn_target \"amdgcn-amd-amdhsa--gfx950\"\n" + kernel_header(NAME) + A.text() + kernel_desc(NAME, 256, 256))


if __name__ == "__main__":
    out = sys.argv[1]
    stamps = len(sys.argv) > 2 and sys.argv[2] == "stamps"
    opt = {}
    for kv in sys.argv[3:]:
        k, x = kv.split("=")
        opt[k] = int(x) if x.lstrip("-").isdigit() else x
    open(out, "w").write(gen(stamps, opt))
```
